```python
import torch

def _softmax(x, axis=-1):
    return torch.softmax(x, dim=axis)
def _gelu(x):
    return torch.nn.functional.gelu(x, approximate="tanh")
def _silu(x):
    return torch.nn.functional.silu(x)
def _sigmoid(x):
    return torch.sigmoid(x)
def _layernorm(x, axis=-1, eps=1e-5):
    m = x.mean(dim=axis, keepdim=True)
    v = x.var(dim=axis, keepdim=True, unbiased=False)
    return (x - m) / torch.sqrt(v + eps)
def _scatter_add(tgt, idx, src, axis=0):
    return tgt.clone().index_add_(axis, idx, src)
def _segment_sum(src, seg, n):
    out = torch.zeros((n,) + src.shape[1:], dtype=src.dtype)
    return out.index_add_(0, seg, src)
def _pad(x, pw):
    flat = tuple(v for pair in reversed(pw) for v in pair)
    return torch.nn.functional.pad(x, flat)

kernel_name = 'standalone__modern_conv_block_convnext__vision'

def setup_inputs():

    _w = (lambda a: (lambda t: t.to(torch.bfloat16) if t.is_floating_point() else t)(torch.as_tensor(a)))
    H = W = 224
    C = 192
    K = 3
    return {
        "x": _w((lambda *s: torch.randn(*s, dtype=torch.bfloat16) * 0.05)(1, H, W, C)),
        "dw": _w((lambda *s: torch.randn(*s, dtype=torch.bfloat16) * 0.05)(K, K, C)),
        "w1": _w((lambda *s: torch.randn(*s, dtype=torch.bfloat16) * 0.05)(C, 4 * C)),
        "b1": _w((lambda *s: torch.randn(*s, dtype=torch.bfloat16) * 0.2)(4 * C)),
        "w2": _w((lambda *s: torch.randn(*s, dtype=torch.bfloat16) * 0.05)(4 * C, C)),
        "b2": _w((lambda *s: torch.randn(*s, dtype=torch.bfloat16) * 0.4)(C)),
        "gamma": _w((lambda *s: torch.randn(*s, dtype=torch.bfloat16) * 0.05)(C)),
    }

def reference(x, dw, w1, b1, w2, b2, gamma):
    B, H, W, C = x.shape
    K = dw.shape[0]
    pad = K // 2
    xp = _pad(x, ((0,0),(pad,pad),(pad,pad),(0,0)))
    out = torch.zeros_like(x)
    for i in range(K):
        for j in range(K):
            out = out + xp[:, i:i+H, j:j+W, :] * dw[i, j][None, None, None, :]
    h = _layernorm(out, axis=-1)
    h = torch.einsum('bhwc,ce->bhwe', h, w1) + b1
    h = _gelu(h)
    h = torch.einsum('bhwe,ec->bhwc', h, w2) + b2
    return x + gamma[None, None, None, :] * h
```

```python
import math, struct, sys

NAME = "standalone__modern_conv_block_convnext__vision"
def f2u(f): return struct.unpack("<I", struct.pack("<f", f))[0]
def f2h(f): return struct.unpack("<H", struct.pack("<e", f))[0]

class Opt:
    gelu = 1
    stamps = False
    D = 4
    R = 8
opt = Opt()
for a in sys.argv[1:]:
    if "=" in a:
        k, v = a.split("="); setattr(opt, k, int(v))

C0 = 2.0 * math.sqrt(2.0 / math.pi) * math.log2(math.e)
SA = (C0 * 0.044715) ** (1.0 / 3.0)
KK = C0 / SA
if opt.gelu == 2:
    KK = struct.unpack("<e", struct.pack("<e", KK))[0]
    SA = C0 / KK

XBYTES = 224 * 224 * 384
ROWB = 86016
SLOT = 49152
XB = 49152
XROW = 7168
TAB_B1 = 156672
TAB_B2 = TAB_B1 + 3072
TAB_G = TAB_B2 + 768
TAB_Z = TAB_G + 768
DWL = 24576
LDS_SIZE = 163840

S_X = 8
S_W1 = 12
S_W2 = 16
S_O = 20
S_T = 24
sWave = 28; sRow0 = 29; sStrip = 30; sNrows = 31
sK = 32; sDelta = 33; sDmaBase = 34; sW1off = 35; sW2off = 36; sCnt = 37
sT0 = 38; sT1 = 39; sT2 = 40; sT3 = 41
sEx = 42
sRowB = 44; sM1 = 45; sM2 = 46; sSo = 47; sDel1 = 48; sDel2 = 49
sE = 50
sPtr = 60
sStamp = 80

vTid = 0; vLane = 1
vA1 = 2
vA2 = 6
vAb = 10
vD1 = 14; vD2 = 15
vOut = 16
vTab = 17
vTmp = 18
vBias = 20
vT = 28
vHL = 44
vPL = 48
vP = 52
vH = 76
vFree = 124
vB1 = 160
vCA = 20
vS = 40
vCB = 52
vY = 76
vX1 = 124; vX2 = 125
aRing = 192

out = []
def e(s): out.append("    " + s)
def lab(s): out.append(s + ":")
def cm(s): out.append("    ; " + s)
nstamp = [0]
def stamp(i):
    if opt.stamps:
        e("s_memrealtime s[%d:%d]" % (sStamp + 2 * i, sStamp + 2 * i + 1))

def srd(s, ptr_slot, nbytes):
    e("s_mov_b32 s%d, s%d" % (s, sPtr + 2 * ptr_slot))
    e("s_and_b32 s%d, s%d, 0xffff" % (s + 1, sPtr + 2 * ptr_slot + 1))
    e("s_mov_b32 s%d, %d" % (s + 2, nbytes))
    e("s_mov_b32 s%d, 0x20000" % (s + 3))

def vr(b, n): return "v[%d:%d]" % (b, b + n - 1)
def ar(b, n): return "a[%d:%d]" % (b, b + n - 1)
def sr(b, n): return "s[%d:%d]" % (b, b + n - 1)

def head():
    e("s_cmp_ge_u32 s2, 252")
    e("s_cbranch_scc1 L_exit")
    stamp(0)
    e("s_load_dwordx16 %s, s[0:1], 0" % sr(sPtr + 4, 16))
    out.pop()
    e("s_load_dwordx4 %s, s[0:1], 0" % sr(sPtr, 4))
    e("s_load_dwordx16 %s, s[0:1], 16" % sr(sPtr + 4, 16))
    e("s_and_b32 s%d, s2, 7" % sT0)
    e("s_lshr_b32 s%d, s2, 3" % sT1)
    e("s_and_b32 s%d, s%d, 3" % (sT2, sT0))
    e("s_mul_i32 s%d, s%d, 63" % (sT2, sT2))
    e("s_lshr_b32 s%d, s%d, 2" % (sT0, sT0))
    e("s_lshl_b32 s%d, s%d, 5" % (sT0, sT0))
    e("s_add_u32 s%d, s%d, s%d" % (sT2, sT2, sT0))
    e("s_add_u32 s%d, s%d, s%d" % (sT2, sT2, sT1))
    e("s_cmp_ge_u32 s%d, 126" % sT2)
    e("s_cselect_b32 s%d, 7, 0" % sStrip)
    e("s_cselect_b32 s%d, 126, 0" % sT0)
    e("s_sub_u32 s%d, s%d, s%d" % (sT2, sT2, sT0))
    e("s_mul_i32 s%d, s%d, 9363" % (sT0, sT2))
    e("s_lshr_b32 s%d, s%d, 16" % (sT0, sT0))
    e("s_mul_i32 s%d, s%d, 7" % (sT1, sT0))
    e("s_sub_u32 s%d, s%d, s%d" % (sT1, sT2, sT1))
    e("s_add_u32 s%d, s%d, s%d" % (sStrip, sStrip, sT1))
    e("s_mul_i32 s%d, s%d, %d" % (sRow0, sT0, 112 * 7282))
    e("s_add_u32 s%d, s%d, %d" % (sNrows, sRow0, 112 * 7282))
    e("s_lshr_b32 s%d, s%d, 16" % (sRow0, sRow0))
    e("s_lshr_b32 s%d, s%d, 16" % (sNrows, sNrows))
    e("s_sub_u32 s%d, s%d, s%d" % (sNrows, sNrows, sRow0))
    for r in range(126): assert (r * 9363) >> 16 == r // 7
    for b in range(19): assert (b * 112 * 7282) >> 16 == b * 112 // 9
    e("v_and_b32 v%d, 63, v0" % vLane)
    e("v_lshrrev_b32 v%d, 6, v0" % vTmp)
    e("s_mov_b32 s%d, %d" % (sRowB, ROWB))
    e("v_readfirstlane_b32 s%d, v%d" % (sWave, vTmp))
    t0, t1, t2 = vS, vS + 1, vS + 2
    e("s_sub_u32 s%d, s%d, 1" % (sT0, sRow0))
    e("s_mul_i32 s%d, s%d, %d" % (sT0, sT0, ROWB))
    e("s_mul_i32 s%d, s%d, 6144" % (sT1, sStrip))
    e("s_add_u32 s%d, s%d, s%d" % (sT0, sT0, sT1))
    e("s_sub_u32 s%d, s%d, 384" % (sT0, sT0))
    e("s_cmp_eq_u32 s%d, 0" % sStrip)
    e("s_cselect_b32 s%d, 1, 0" % sT1)
    e("s_cmp_eq_u32 s%d, 13" % sStrip)
    e("s_cselect_b32 s%d, 17, 18" % sT2)
    e("s_sub_u32 s%d, s%d, s%d" % (sT2, sT2, sT1))
    for P in range(512): assert (P * 2731) >> 16 == P // 24
    for vx, add in ((vX1, 0), (vX2, 256)):
        if add: e("v_add_u32 v%d, %d, v0" % (t2, add))
        src = t2 if add else 0
        e("v_mul_u32_u24 v%d, 2731, v%d" % (t0, src))
        e("v_lshrrev_b32 v%d, 16, v%d" % (t0, t0))
        e("v_mul_u32_u24 v%d, 24, v%d" % (t1, t0))
        e("v_sub_u32 v%d, v%d, v%d" % (t1, src, t1))
        e("v_bfe_u32 v%d, v%d, 1, 3" % (vx, t0))
        e("v_xor_b32 v%d, v%d, v%d" % (t1, t1, vx))
        e("v_mul_u32_u24 v%d, 384, v%d" % (vx, t0))
        e("v_lshl_add_u32 v%d, v%d, 4, v%d" % (vx, t1, vx))
        e("v_add_u32 v%d, s%d, v%d" % (vx, sT0, vx))
        e("v_subrev_u32 v%d, s%d, v%d" % (t0, sT1, t0))
        e("v_cmp_gt_u32 vcc, s%d, v%d" % (sT2, t0))
        e("v_mov_b32 v%d, 0x80000000" % t1)
        e("s_nop 0")
        e("v_cndmask_b32 v%d, v%d, v%d, vcc" % (vx, t1, vx))
    e("s_waitcnt lgkmcnt(0)")
    srd(S_X, 0, XBYTES)
    srd(S_T, 1, 3456)
    e("v_lshlrev_b32 v%d, 4, v0" % t0)
    e("s_lshl_b32 s%d, s%d, 10" % (sM1, sWave))
    e("s_add_u32 s%d, s%d, %d" % (sT0, sM1, DWL))
    e("s_mov_b32 m0, s%d" % sT0)
    e("v_lshlrev_b32 v%d, 3, v0" % t1)
    e("buffer_load_dwordx4 v%d, %s, 0 offen lds" % (t0, sr(S_T, 4)))
    srd(S_T, 3, 1536)
    e("buffer_load_dwordx2 %s, v%d, %s, 0 offen" % (vr(vY, 2), t1, sr(S_T, 4)))
    srd(S_W1, 5, 384)
    e("buffer_load_dwordx2 %s, v%d, %s, 0 offen" % (vr(vY + 2, 2), t1, sr(S_W1, 4)))
    srd(S_W2, 6, 384)
    e("buffer_load_dwordx2 %s, v%d, %s, 0 offen" % (vr(vY + 4, 2), t1, sr(S_W2, 4)))
    e("s_add_u32 s%d, s%d, %d" % (sM1, sM1, XB))
    e("s_cmp_eq_u32 s%d, 13" % sNrows)
    e("s_cbranch_scc1 L_body1")

def dma_w(i, kind):
    if kind == 1:
        return (["s_add_u32 m0, s%d, %d" % (sM1, i * 1024), "s_add_u32 s%d, s%d, %d" % (sSo, sW1off, i * 12288)],
                "buffer_load_dwordx4 v%d, %s, s%d offen lds" % (vD1, sr(S_W1, 4), sSo))
    oo, t = i // 3, i % 3
    return (["s_add_u32 m0, s%d, %d" % (sM2, oo * 3072 + t * 1024), "s_add_u32 s%d, s%d, %d" % (sSo, sW2off, oo * 3072 + t * 128)],
            "buffer_load_dwordx4 v%d, %s, s%d offen lds" % (vD2, sr(S_W2, 4), sSo))

def set_dma_slot(slot_base_imm):
    e("s_mul_i32 s%d, s%d, 6144" % (sM1, sWave))
    e("s_add_u32 s%d, s%d, %d" % (sM1, sM1, slot_base_imm))
    e("s_add_u32 s%d, s%d, 24576" % (sM2, sM1))

def issue_dma(kinds):
    for kind in kinds:
        for i in range(6):
            sc, ins = dma_w(i, kind)
            for s in sc: e(s)
            e(ins)

def wait_vm_bywave(n_other, n_w3, tag):
    e("s_cmp_eq_u32 s%d, 3" % sWave)
    e("s_cbranch_scc1 L_w3_%s" % tag)
    e("s_waitcnt vmcnt(%d)" % n_other)
    e("s_branch L_wj_%s" % tag)
    lab("L_w3_%s" % tag)
    e("s_waitcnt vmcnt(%d)" % n_w3)
    lab("L_wj_%s" % tag)

def prologue(L):
    R = 15 if L else 14
    tag = "b%d" % L
    e("s_cmp_eq_u32 s%d, 3" % sWave)
    e("s_cbranch_scc1 L_x3_%s" % tag)
    for r in range(R):
        e("s_add_u32 m0, s%d, %d" % (sM1, r * XROW))
        e("s_nop 0")
        e("buffer_load_dwordx4 v%d, %s, 0 offen lds" % (vX1, sr(S_X, 4)))
        e("s_add_u32 m0, s%d, %d" % (sM1, r * XROW + 4096))
        e("v_add_u32 v%d, s%d, v%d" % (vX1, sRowB, vX1))
        e("buffer_load_dwordx4 v%d, %s, 0 offen lds" % (vX2, sr(S_X, 4)))
        e("v_add_u32 v%d, s%d, v%d" % (vX2, sRowB, vX2))
    e("s_branch L_xj_%s" % tag)
    lab("L_x3_%s" % tag)
    for r in range(R):
        e("s_add_u32 m0, s%d, %d" % (sM1, r * XROW))
        e("s_nop 0")
        e("buffer_load_dwordx4 v%d, %s, 0 offen lds" % (vX1, sr(S_X, 4)))
        e("v_add_u32 v%d, s%d, v%d" % (vX1, sRowB, vX1))
    lab("L_xj_%s" % tag)
    t0, t1, t2, t3 = vS, vS + 1, vS + 2, vS + 3
    cm("W1 dma voffset")
    e("v_lshrrev_b32 v%d, 3, v%d" % (t0, vLane))
    e("v_and_b32 v%d, 7, v%d" % (t1, vLane))
    e("v_and_b32 v%d, 6, v%d" % (t2, t0))
    e("v_xor_b32 v%d, v%d, v%d" % (t1, t1, t2))
    e("v_mul_u32_u24 v%d, 1536, v%d" % (t0, t0))
    e("v_lshl_add_u32 v%d, v%d, 4, v%d" % (vD1, t1, t0))
    e("s_mul_i32 s%d, s%d, %d" % (sT0, sWave, 48 * 1536))
    e("v_add_u32 v%d, s%d, v%d" % (vD1, sT0, vD1))
    cm("W2 dma voffset")
    e("v_bfe_u32 v%d, v%d, 2, 3" % (t0, vLane))
    e("v_mul_u32_u24 v%d, 384, v%d" % (t0, t0))
    e("v_lshrrev_b32 v%d, 5, v%d" % (t1, vLane))
    e("v_lshl_add_u32 v%d, v%d, 6, v%d" % (t0, t1, t0))
    e("v_and_b32 v%d, 3, v%d" % (t1, vLane))
    e("v_lshl_add_u32 v%d, v%d, 4, v%d" % (vD2, t1, t0))
    e("s_mul_i32 s%d, s%d, %d" % (sT0, sWave, 16 * 384))
    e("v_add_u32 v%d, s%d, v%d" % (vD2, sT0, vD2))
    srd(S_W1, 2, 192 * 768 * 2)
    srd(S_W2, 4, 192 * 768 * 2)
    srd(S_O, 7, XBYTES)
    set_dma_slot(0)
    e("s_mov_b32 s%d, 0" % sW1off)
    issue_dma([1])
    stamp(1)
    cm("zero the diagonal fragments")
    for i in range(240): e("v_accvgpr_write_b32 a%d, 0" % i)
    cm("conv B-frag addresses")
    px, g, gl, gh = vS + 4, vS + 5, vS + 6, vS + 7
    e("v_and_b32 v%d, 15, v%d" % (px, vLane))
    e("v_lshrrev_b32 v%d, 4, v%d" % (g, vLane))
    e("v_and_b32 v%d, 1, v%d" % (gl, g))
    e("v_lshrrev_b32 v%d, 1, v%d" % (gh, g))
    e("s_mul_i32 s%d, s%d, %d" % (sT0, sWave, XROW))
    e("s_add_u32 s%d, s%d, %d" % (sT0, sT0, XB))
    for tp in range(5):
        if tp < 3: e("v_add_u32 v%d, %d, v%d" % (t0, tp, px))
        elif tp == 3: e("v_add_u32 v%d, v%d, v%d" % (t0, gl, px))
        else: e("v_add_u32 v%d, 2, v%d" % (t0, px))
        e("v_bfe_u32 v%d, v%d, 1, 3" % (t1, t0))
        e("v_xor_b32 v%d, v%d, v%d" % (t1, t1, gh))
        e("v_mul_u32_u24 v%d, 384, v%d" % (t0, t0))
        e("v_lshl_add_u32 v%d, v%d, 4, v%d" % (t0, t1, t0))
        if tp < 3:
            e("v_mul_u32_u24 v%d, %d, v%d" % (t1, XROW, gl))
            e("v_add3_u32 v%d, v%d, v%d, s%d" % (vCA + tp * 4, t0, t1, sT0))
        else:
            e("v_add_u32 v%d, %d, v%d" % (t0, 2 * XROW, t0))
            e("v_add_u32 v%d, s%d, v%d" % (vCA + tp * 4, sT0, t0))
        for k in range(1, 4):
            e("v_xor_b32 v%d, %d, v%d" % (vCA + tp * 4 + k, 32 * k, vCA + tp * 4))
    cm("main-loop LDS addresses")
    e("v_bfe_u32 v%d, v%d, 2, 3" % (t0, vLane))
    e("v_lshrrev_b32 v%d, 5, v%d" % (t1, vLane))
    e("v_and_b32 v%d, 3, v%d" % (t2, vLane))
    e("v_lshlrev_b32 v%d, 7, v%d" % (t3, t0))
    e("v_lshl_add_u32 v%d, v%d, 10, v%d" % (t3, t1, t3))
    e("v_lshl_add_u32 v%d, v%d, 3, v%d" % (t3, t2, t3))
    e("v_lshrrev_b32 v%d, 1, v%d" % (vA1, t0))
    e("v_xor_b32 v%d, s%d, v%d" % (vA1, sWave, vA1))
    e("v_lshl_add_u32 v%d, v%d, 5, v%d" % (vA1, vA1, t3))
    for p in range(1, 4): e("v_xor_b32 v%d, %d, v%d" % (vA1 + p, 32 * p, vA1))
    e("v_mul_u32_u24 v%d, 3072, v%d" % (t3, t1))
    e("v_and_b32 v%d, 31, v%d" % (t0, vLane))
    e("v_lshl_add_u32 v%d, v%d, 4, v%d" % (t3, t0, t3))
    for p in range(4):
        e("s_xor_b32 s%d, s%d, %d" % (sT0, sWave, p))
        e("s_mul_i32 s%d, s%d, 6144" % (sT1, sT0))
        e("s_add_u32 s%d, s%d, %d" % (sT1, sT1, SLOT + 24576))
        e("v_add_u32 v%d, s%d, v%d" % (vA2 + p, sT1, t3))
        e("s_lshl_b32 s%d, s%d, 6" % (sT0, sT0))
        e("s_add_u32 s%d, s%d, %d" % (sT0, sT0, TAB_B1))
        e("v_lshlrev_b32 v%d, 4, v%d" % (vAb + p, g))
        e("v_add_u32 v%d, s%d, v%d" % (vAb + p, sT0, vAb + p))
    e("v_lshlrev_b32 v%d, 5, v%d" % (vTab, g))
    e("v_add_u32 v%d, %d, v%d" % (vTab, TAB_B2, vTab))
    e("s_add_u32 s%d, s%d, s%d" % (sT0, sRow0, sWave))
    e("s_mul_i32 s%d, s%d, %d" % (sT0, sT0, ROWB))
    e("s_mul_i32 s%d, s%d, 6144" % (sT1, sStrip))
    e("s_add_u32 s%d, s%d, s%d" % (sT0, sT0, sT1))
    e("v_mul_u32_u24 v%d, 384, v%d" % (vOut, px))
    e("v_lshl_add_u32 v%d, v%d, 4, v%d" % (vOut, g, vOut))
    e("v_add_u32 v%d, s%d, v%d" % (vOut, sT0, vOut))
    cm("diag masks: E_i exec masks, half masks")
    e("v_lshrrev_b32 v%d, 3, v%d" % (t0, px))
    e("v_xor_b32 v%d, v%d, v%d" % (t0, t0, gh))
    e("v_bfe_u32 v%d, v%d, 1, 2" % (t1, px))
    e("v_lshl_add_u32 v%d, v%d, 2, v%d" % (t0, t0, t1))
    for i in range(4): e("v_cmp_eq_u32 %s, %d, v%d" % (sr(sE + 2 * i, 2), i, t0))
    mA, mB, bA, bB = vS + 8, vS + 9, vS + 10, vS + 11
    e("v_and_b32 v%d, 1, v%d" % (t0, px))
    e("v_lshlrev_b32 v%d, 4, v%d" % (t0, t0))
    e("v_mov_b32 v%d, 0xffff" % t1)
    e("v_lshlrev_b32 v%d, v%d, v%d" % (mA, t0, t1))
    e("v_subrev_u32 v%d, 1, v%d" % (t0, gl))
    e("v_and_b32 v%d, v%d, v%d" % (mB, mA, t0))
    e("v_and_b32 v%d, 14, v%d" % (t0, px))
    e("v_lshlrev_b32 v%d, 1, v%d" % (t0, t0))
    e("v_add_u32 v%d, %d, v%d" % (t0, DWL, t0))
    e("v_mul_u32_u24 v%d, 1152, v%d" % (bA, gl))
    e("v_add_u32 v%d, v%d, v%d" % (bA, bA, t0))
    e("v_mul_u32_u24 v%d, 384, v%d" % (bB, gl))
    e("v_add_u32 v%d, v%d, v%d" % (bB, bB, t0))
    cm("tables")
    wait_vm_bywave(2 * R + 6, R + 6, "s" + tag)
    e("v_lshlrev_b32 v%d, 4, v0" % t0)
    def unpack_scale(src, dst, scale):
        e("s_mov_b32 s%d, 0x%08x" % (sT0, f2u(scale)))
        for h in range(2):
            e("v_lshlrev_b32 v%d, 16, v%d" % (dst + 2 * h, src + h))
            e("v_and_b32 v%d, 0xffff0000, v%d" % (dst + 2 * h + 1, src + h))
        for k in range(4): e("v_mul_f32 v%d, s%d, v%d" % (dst + k, sT0, dst + k))
    unpack_scale(vY, vY + 8, SA)
    unpack_scale(vY + 2, vY + 12, SA)
    unpack_scale(vY + 4, vY + 16, 1.0 / SA)
    for k in range(4): e("v_mov_b32 v%d, 0" % (vY + 20 + k))
    e("v_add_u32 v%d, %d, v%d" % (t0, TAB_B1, t0))
    e("v_cmp_gt_u32 vcc, 192, v0")
    e("s_and_saveexec_b64 %s, vcc" % sr(sEx, 2))
    e("ds_write_b128 v%d, %s" % (t0, vr(vY + 8, 4)))
    e("v_cmp_gt_u32 vcc, 48, v0")
    e("s_and_b64 exec, exec, vcc")
    e("ds_write_b128 v%d, %s offset:%d" % (t0, vr(vY + 12, 4), TAB_B2 - TAB_B1))
    e("ds_write_b128 v%d, %s offset:%d" % (t0, vr(vY + 16, 4), TAB_G - TAB_B1))
    e("ds_write_b128 v%d, %s offset:%d" % (t0, vr(vY + 20, 4), TAB_Z - TAB_B1))
    e("s_mov_b64 exec, -1")
    e("s_waitcnt lgkmcnt(0)")
    e("s_barrier")
    cm("build diagonal fragments")
    vW = vB1
    for f in range(60):
        cg, tp = f // 5, f % 5
        if tp < 3: e("ds_read_b32 v%d, v%d offset:%d" % (vW + f, bA, tp * 384 + cg * 32))
        else: e("ds_read_b32 v%d, v%d offset:%d" % (vW + f, bB, (6 if tp == 3 else 8) * 384 + cg * 32))
        if f >= 12:
            e("s_waitcnt lgkmcnt(12)")
            e("v_and_b32 v%d, v%d, v%d" % (vW + f - 12, mB if (f - 12) % 5 == 4 else mA, vW + f - 12))
    e("s_waitcnt lgkmcnt(0)")
    for f in range(48, 60): e("v_and_b32 v%d, v%d, v%d" % (vW + f, mB if f % 5 == 4 else mA, vW + f))
    for i in range(4):
        e("s_mov_b64 exec, %s" % sr(sE + 2 * i, 2))
        for f in range(60): e("v_accvgpr_write_b32 a%d, v%d" % (4 * f + i, vW + f))
    e("s_mov_b64 exec, -1")
    stamp(2)
    nst = 4 if L else 3
    for s in range(nst):
        need = min(4 * s + 6, R)
        extra = 12 if s == 3 else 0
        wait_vm_bywave(2 * (R - need) + 6 + extra, (R - need) + 6 + extra, "c%d%s" % (s, tag))
        e("s_barrier")
        if s == 2:
            set_dma_slot(SLOT)
            e("s_mov_b32 s%d, 128" % sW1off)
            e("s_mov_b32 s%d, 0" % sW2off)
            issue_dma([1, 2])
        conv_tile(s, last=(s == nst - 1))
        if s + 1 < nst:
            if s + 1 < 3:
                e("s_mov_b32 s%d, %d" % (sT0, 4 * XROW))
            else:
                e("s_sub_u32 s%d, 4, s%d" % (sT0, sWave))
                e("s_mul_i32 s%d, s%d, %d" % (sT0, sT0, XROW))
            for k in range(20): e("v_add_u32 v%d, s%d, v%d" % (vCA + k, sT0, vCA + k))
        stamp(3 + s)
    e("s_waitcnt vmcnt(0)")
    e("s_barrier")

def conv_tile(t, last):
    NR = 6
    def rd(f):
        cg, tp = f // 5, f % 5
        return "ds_read_b128 %s, v%d offset:%d" % (vr(vCB + 4 * (f % NR), 4), vCA + tp * 4 + cg % 4, (cg // 4) * 128)
    PD = NR - 1
    for f in range(PD): e(rd(f))
    s1 = [vS, vS + 1]; s2 = [vS + 2, vS + 3]
    pend = []
    def stats(cg):
        ops = []
        for i in range(4):
            y = vY + 4 * cg + i
            if cg == 0 and i < 2:
                ops.append("v_mov_b32 v%d, v%d" % (s1[i], y))
                ops.append("v_mul_f32 v%d, v%d, v%d" % (s2[i], y, y))
            else:
                ops.append("v_add_f32 v%d, v%d, v%d" % (s1[i % 2], s1[i % 2], y))
                ops.append("v_fmac_f32 v%d, v%d, v%d" % (s2[i % 2], y, y))
        return ops
    e("s_waitcnt lgkmcnt(%d)" % (PD - 1))
    for f in range(60):
        cg, tp = f // 5, f % 5
        d = vr(vY + 4 * cg, 4)
        e("v_mfma_f32_16x16x32_bf16 %s, %s, %s, %s" % (d, ar(4 * f, 4), vr(vCB + 4 * (f % NR), 4), d if tp else "0"))
        if f + 1 < 60:
            rem = min(59, f + PD - 1) - (f + 1)
            e("s_waitcnt lgkmcnt(%d)" % rem)
        if f + PD < 60: e(rd(f + PD))
        if tp == 2 and cg >= 1: pend += stats(cg - 1)
        for _ in range(2):
            if pend: e(pend.pop(0))
    while pend: e(pend.pop(0))
    e("s_nop 7")
    for o in stats(11): e(o)
    a, b, c = vS + 4, vS + 5, vS + 6
    e("v_add_f32 v%d, v%d, v%d" % (a, s1[0], s1[1]))
    e("v_add_f32 v%d, v%d, v%d" % (b, s2[0], s2[1]))
    e("s_nop 1")
    e("v_permlane32_swap_b32 v%d, v%d" % (a, b))
    e("s_nop 1")
    e("v_add_f32 v%d, v%d, v%d" % (a, a, b))
    e("v_mov_b32 v%d, v%d" % (b, a))
    e("s_nop 1")
    e("v_permlane16_swap_b32 v%d, v%d" % (a, b))
    e("s_nop 1")
    e("v_add_f32 v%d, v%d, v%d" % (a, a, b))
    e("v_mul_f32 v%d, 0x%08x, v%d" % (a, f2u(1.0 / 192.0), a))
    e("v_mov_b32 v%d, v%d" % (b, a))
    e("s_nop 1")
    e("v_permlane32_swap_b32 v%d, v%d" % (a, b))
    e("s_nop 1")
    e("v_fma_f32 v%d, -v%d, v%d, v%d" % (b, a, a, b))
    e("v_max_f32 v%d, 0, v%d" % (b, b))
    e("v_add_f32 v%d, 0x%08x, v%d" % (b, f2u(1e-5), b))
    e("v_rsq_f32 v%d, v%d" % (b, b))
    sc, sh = vS + 8, vS + 10
    e("s_nop 0")
    e("v_mul_f32 v%d, 0x%08x, v%d" % (sc, f2u(SA), b))
    e("v_mul_f32 v%d, v%d, v%d" % (sh, a, sc))
    for k in range(24):
        y = vY + 2 * k
        e("v_pk_fma_f32 %s, %s, %s, %s op_sel_hi:[1,0,0] neg_lo:[0,0,1] neg_hi:[0,0,1]" % (vr(y, 2), vr(y, 2), vr(sc, 2), vr(sh, 2)))
        if k >= 1: e("v_cvt_pk_bf16_f32 v%d, v%d, v%d" % (vB1 + 24 * t + k - 1, y - 2, y - 1))
    e("v_cvt_pk_bf16_f32 v%d, v%d, v%d" % (vB1 + 24 * t + 23, vY + 46, vY + 47))

def gelu_pair(x0, x1, dst, tmp):
    if opt.gelu == 1:
        a, b = tmp, tmp + 1
        return [("v_fma_f32 v%d, -v%d, v%d, -s%d" % (a, x0, x0, sK), 4), ("v_fma_f32 v%d, -v%d, v%d, -s%d" % (b, x1, x1, sK), 4),
                ("v_mul_f32 v%d, v%d, v%d" % (a, x0, a), 4), ("v_mul_f32 v%d, v%d, v%d" % (b, x1, b), 4),
                ("v_exp_f32 v%d, v%d" % (a, a), 8), ("v_exp_f32 v%d, v%d" % (b, b), 8),
                ("v_add_f32 v%d, 1.0, v%d" % (a, a), 4), ("v_add_f32 v%d, 1.0, v%d" % (b, b), 4),
                ("v_rcp_f32 v%d, v%d" % (a, a), 8), ("v_rcp_f32 v%d, v%d" % (b, b), 8),
                ("v_mul_f32 v%d, v%d, v%d" % (a, x0, a), 4), ("v_mul_f32 v%d, v%d, v%d" % (b, x1, b), 4),
                ("v_cvt_pk_bf16_f32 v%d, v%d, v%d" % (dst, a, b), 4)]
    a, b = tmp, tmp + 1
    sd = "dst_sel:WORD_1 dst_unused:UNUSED_PRESERVE src0_sel:WORD_1"
    return [("v_cvt_pk_f16_f32 v%d, v%d, v%d" % (a, x0, x1), 4),
            ("v_pk_fma_f16 v%d, v%d, v%d, s%d" % (b, a, a, sK), 4),
            ("v_pk_mul_f16 v%d, v%d, v%d neg_lo:[1,0] neg_hi:[1,0]" % (a, a, b), 4),
            ("v_exp_f16 v%d, v%d" % (b, a), 8),
            ("v_exp_f16_sdwa v%d, v%d %s" % (b, a, sd), 8),
            ("v_pk_add_f16 v%d, v%d, 1.0 op_sel_hi:[1,0]" % (a, b), 4),
            ("v_rcp_f16 v%d, v%d" % (b, a), 8),
            ("v_rcp_f16_sdwa v%d, v%d %s" % (b, a, sd), 8),
            ("v_fma_mix_f32 v%d, v%d, v%d, 0 op_sel_hi:[0,1,0]" % (a, x0, b), 4),
            ("v_fma_mix_f32 v%d, v%d, v%d, 0 op_sel:[0,1,0] op_sel_hi:[0,1,0]" % (b, x1, b), 4),
            ("v_cvt_pk_bf16_f32 v%d, v%d, v%d" % (dst, a, b), 4)]

def gelu_ops(c, L):
    hb = vH + 24 * (c % 2); pb = vP + 12 * (c % 2)
    quads = []
    for t in range(3):
        for ep in range(2):
            quads.append((hb + 8 * t + 4 * ep, pb + 4 * t + 2 * ep))
    if L and c % 2 == 0: quads.append((vHL, vPL))
    ops = []
    for n, (x, d) in enumerate(quads):
        tmp = vT + 4 * (n % 2)
        A = gelu_pair(x, x + 1, d, tmp); B = gelu_pair(x + 2, x + 3, d + 1, tmp + 2)
        if opt.gelu == 1:
            for k in range(0, 12, 2): ops += [A[k], A[k + 1], B[k], B[k + 1]]
            ops += [A[12], B[12]]
        else:
            for k in range(len(A)): ops += [A[k], B[k]]
    return ops

class Frag:
    pass

def build_main(L, c_lo, c_hi, virt):
    groups = []
    for c in range(c_lo, c_hi + 1 + (1 if virt else 0)):
        step = (c + 1) // 2
        if c + 1 <= 23 or virt:
            c1 = c + 1
            for ep in range(2):
                pos = 2 * (c1 % 2) + ep
                for kb in range(6):
                    g = Frag(); g.kind = 1; g.period = c; g.step = step; g.pos = pos; g.kb = kb; g.chunk = c1; g.ep = ep
                    groups.append(g)
        if c - 1 >= 0:
            c2 = c - 1
            for ct in range(12):
                g = Frag(); g.kind = 2; g.period = c; g.step = step; g.ct = ct; g.chunk = c2
                groups.append(g)
    N = len(groups)
    D, R = opt.D, opt.R
    assert 24 % R == 0 or 48 % R == 0
    nbias = 0
    for n, g in enumerate(groups):
        g.slot = aRing + 4 * (n % R)
        g.reads = []
        if g.kind == 1:
            if g.kb == 0:
                g.bias = vBias + 4 * (nbias % 2); nbias += 1
                g.reads.append("ds_read_b128 %s, v%d" % (vr(g.bias, 4), vAb + g.pos))
            for h in range(2):
                g.reads.append("ds_read_b64_tr_b16 %s, v%d offset:%d" % (ar(g.slot + 2 * h, 2), vA1 + g.pos, (g.kb * 4 + h * 2) * 1024))
            hb = vH + 24 * (g.chunk % 2)
            g.mf = []
            tiles = [0, 1, 2] + ([3] if (L and g.pos == 0) else [])
            for t in tiles:
                d = (hb + 8 * t + 4 * g.ep) if t < 3 else vHL
                cc = vr(g.bias, 4) if g.kb == 0 else vr(d, 4)
                g.mf.append("v_mfma_f32_16x16x32_bf16 %s, %s, %s, %s" % (vr(d, 4), ar(g.slot, 4), vr(vB1 + 24 * t + 4 * g.kb, 4), cc))
            g.upd = []
            if g.kb == 5: g.upd = ["v_add_u32 v%d, s%d, v%d" % (vA1 + g.pos, sDelta, vA1 + g.pos)]
            if g.kb == 0: g.upd = ["v_add_u32 v%d, 0x100, v%d" % (vAb + g.pos, vAb + g.pos)]
        else:
            m, o = g.ct // 2, g.ct % 2
            for h in range(2):
                pos = 2 * (g.chunk % 2) + h
                g.reads.append("ds_read_b64_tr_b16 %s, v%d offset:%d" % (ar(g.slot + 2 * h, 2), vA2 + pos, m * 512 + o * 8))
            pb = vP + 12 * (g.chunk % 2)
            g.mf = []
            tiles = [0, 1, 2] + ([3] if (L and g.chunk % 2 == 0) else [])
            for t in tiles:
                acc = ar(48 * t + 4 * g.ct, 4)
                g.mf.append("v_mfma_f32_16x16x32_bf16 %s, %s, %s, %s" % (acc, ar(g.slot, 4), vr(pb + 4 * t, 4) if t < 3 else vr(vPL, 4), acc))
            g.upd = []
            if g.ct == 11:
                g.upd = ["v_add_u32 v%d, s%d, v%d" % (vA2 + 2 * (g.chunk % 2) + h, sDelta, vA2 + 2 * (g.chunk % 2) + h) for h in range(2)]
    steps = [[] for _ in range(13)]
    issued = [0]
    lastseq = {}
    pre = []
    def issue(n, dst):
        for r in groups[n].reads:
            dst.append(r); issued[0] += 1
        lastseq[n] = issued[0]
    for n in range(D): issue(n, pre)
    for n in range(D): pre += groups[n].upd
    first_wait = "s_waitcnt lgkmcnt(%d)" % (issued[0] - lastseq[0])
    n = 0
    for c in range(c_lo, c_hi + 1):
        step = (c + 1) // 2
        dst = steps[step]
        gs = [k for k in range(N) if groups[k].period == c]
        val = gelu_ops(c, L) if 0 <= c <= 23 else []
        if c == c_lo:
            burst = 0
            while val and burst < 120:
                pre.append(val[0][0]); burst += val[0][1]; val = val[1:]
            pre.append(first_wait)
        dmas = []
        if c % 2 == 1 and step <= 11 or c == -1:
            dmas = [dma_w(i, 1) for i in range(6)] + [dma_w(i, 2) for i in range(6)]
        nm = sum(len(groups[k].mf) for k in gs)
        tot = 8 * nm + sum(x[1] for x in val) + 12 * len(dmas)
        for k in gs:
            if k + D < N: tot += 4 * len(groups[k + D].reads) + 4 * len(groups[k + D].upd)
        t = 0.0; vi = 0; mi = 0
        for gi, k in enumerate(gs):
            g = groups[k]
            for j, m in enumerate(g.mf):
                dst.append(m); t += 8; mi += 1
                extra = []
                if j == len(g.mf) - 1 and k + 1 < N:
                    dst.append("s_waitcnt lgkmcnt(%d)" % (issued[0] - lastseq[k + 1]))
                if j == 0:
                    if gi < len(dmas): dst.append(dmas[gi][0][0])
                    if k + D < N:
                        issue(k + D, dst); t += 4 * len(groups[k + D].reads)
                        extra = groups[k + D].upd
                if j == 1 and gi < len(dmas):
                    dst.append(dmas[gi][0][1]); dst.append(dmas[gi][1]); t += 12
                for x in extra: dst.append(x); t += 4
                lim = mi * tot / nm
                while vi < len(val) and t + val[vi][1] <= lim + 2:
                    dst.append(val[vi][0]); t += val[vi][1]; vi += 1
        while vi < len(val): dst.append(val[vi][0]); vi += 1
    return pre, steps

def main_part(L):
    tag = "b%d" % L
    pre, steps = build_main(L, -1, 22, True)
    pre12, steps12 = build_main(L, 23, 24, False)
    for j in range(2, 12): assert steps[j] == steps[1], j
    e("s_mov_b32 s%d, 0x%08x" % (sK, f2u(KK) if opt.gelu == 1 else f2h(KK) * 0x10001))
    cm("accumulator init")
    for t in range(3):
        for ct in range(12):
            e("ds_read_b128 %s, v%d offset:%d" % (ar(48 * t + 4 * ct, 4), vTab, (ct // 2) * 128 + (ct % 2) * 16))
    if L:
        e("s_cmp_eq_u32 s%d, 0" % sWave)
        e("s_cselect_b32 s%d, 0, %d" % (sT0, TAB_Z - TAB_B2))
        e("v_add_u32 v%d, s%d, v%d" % (vTmp, sT0, vTab))
        for ct in range(12):
            e("ds_read_b128 %s, v%d offset:%d" % (ar(144 + 4 * ct, 4), vTmp, (ct // 2) * 128 + (ct % 2) * 16))
        e("v_mov_b32 v%d, 0" % (vPL + 2))
        e("v_mov_b32 v%d, 0" % (vPL + 3))
    set_dma_slot(2 * SLOT)
    e("s_mov_b32 s%d, 256" % sW1off)
    e("s_mov_b32 s%d, 24576" % sW2off)
    e("s_mov_b32 s%d, %d" % (sDelta, SLOT))
    e("s_mov_b32 s%d, %d" % (sDel1, SLOT))
    e("s_mov_b32 s%d, %d" % (sDel2, -2 * SLOT))
    for s in pre: e(s)
    def step_end():
        e("s_add_u32 s%d, s%d, s%d" % (sM1, sM1, sDel2))
        e("s_add_u32 s%d, s%d, s%d" % (sM2, sM2, sDel2))
        e("s_mov_b32 s%d, s%d" % (sT0, sDelta))
        e("s_mov_b32 s%d, s%d" % (sDelta, sDel1))
        e("s_mov_b32 s%d, s%d" % (sDel1, sDel2))
        e("s_mov_b32 s%d, s%d" % (sDel2, sT0))
        e("s_add_u32 s%d, s%d, 128" % (sW1off, sW1off))
        e("s_add_u32 s%d, s%d, 24576" % (sW2off, sW2off))
        e("s_cmp_ge_u32 s%d, 1536" % sW1off)
        e("s_cselect_b32 s%d, 0, s%d" % (S_W1 + 2, S_W1 + 2))
        e("s_waitcnt vmcnt(0)")
        e("s_barrier")
    for s in steps[0]: e(s)
    step_end()
    stamp(7)
    e("s_mov_b32 s%d, 11" % sCnt)
    out.append(".p2align 6")
    lab("L_loop_%s" % tag)
    for s in steps[1]: e(s)
    step_end()
    e("s_sub_u32 s%d, s%d, 1" % (sCnt, sCnt))
    e("s_cmp_lg_u32 s%d, 0" % sCnt)
    e("s_cbranch_scc1 L_loop_%s" % tag)
    stamp(8)
    cm("residual loads")
    for t in range(3):
        e("s_mov_b32 s%d, %d" % (sT0, t * 4 * ROWB))
        for m in range(6):
            e("buffer_load_dwordx4 %s, v%d, %s, s%d offen offset:%d" % (vr(vB1 + 24 * t + 4 * m, 4), vOut, sr(S_X, 4), sT0, m * 64))
    if L:
        e("s_sub_u32 s%d, 12, s%d" % (sT1, sWave))
        e("s_mul_i32 s%d, s%d, %d" % (sT1, sT1, ROWB))
        e("s_lshl_b32 s%d, s%d, 6" % (sT2, sWave))
        e("s_add_u32 s%d, s%d, s%d" % (sT1, sT1, sT2))
        e("buffer_load_dwordx4 %s, v%d, %s, s%d offen" % (vr(vB1 + 72, 4), vOut, sr(S_X, 4), sT1))
        e("buffer_load_dwordx4 %s, v%d, %s, s%d offen offset:256" % (vr(vB1 + 76, 4), vOut, sr(S_X, 4), sT1))
    for s in pre12: e(s)
    for s in steps12[12]: e(s)
    epilogue(L)

def epi_pair(acc_regs, gam, xr, dst, tmp):
    for k in range(4):
        e("v_lshlrev_b32 v%d, 16, v%d" % (tmp + 2 * k, xr + k))
        e("v_and_b32 v%d, 0xffff0000, v%d" % (tmp + 2 * k + 1, xr + k))
    for k in range(4):
        e("v_pk_fma_f32 %s, %s, %s, %s" % (vr(tmp + 2 * k, 2), vr(acc_regs + 2 * k, 2), vr(gam + 2 * k, 2), vr(tmp + 2 * k, 2)))
    for k in range(4):
        e("v_cvt_pk_bf16_f32 v%d, v%d, v%d" % (dst + k, tmp + 2 * k, tmp + 2 * k + 1))

def epilogue(L):
    tag = "b%d" % L
    vG = vH
    for ct in range(12):
        e("ds_read_b128 %s, v%d offset:%d" % (vr(vG + 4 * ct, 4), vTab, TAB_G - TAB_B2 + (ct // 2) * 128 + (ct % 2) * 16))
    RED = SLOT
    if L:
        e("v_lshlrev_b32 v%d, 4, v%d" % (vTmp, vLane))
        e("s_mul_i32 s%d, s%d, 12288" % (sT0, sWave))
        e("s_add_u32 s%d, s%d, %d" % (sT0, sT0, RED))
        e("v_add_u32 v%d, s%d, v%d" % (vTmp + 1, sT0, vTmp))
        for ct in range(12):
            e("ds_write_b128 v%d, %s offset:%d" % (vTmp + 1, ar(144 + 4 * ct, 4), ct * 1024))
        e("s_waitcnt lgkmcnt(0)")
        e("s_barrier")
    else:
        e("s_nop 7")
        e("s_waitcnt lgkmcnt(0)")
    nl = 2 if L else 0
    vAc = vFree; vTm = vFree + 16
    n = 0
    for t in range(3):
        e("s_mov_b32 s%d, %d" % (sT0, t * 4 * ROWB))
        for m in range(6):
            ac = vAc + 8 * (n % 2); tm = vTm + 8 * (n % 2)
            for k in range(8): e("v_accvgpr_read_b32 v%d, a%d" % (ac + k, 48 * t + 8 * m + k))
            e("s_waitcnt vmcnt(%d)" % (17 + nl))
            xr = vB1 + 24 * t + 4 * m
            epi_pair(ac, vG + 8 * m, xr, xr, tm)
            e("buffer_store_dwordx4 %s, v%d, %s, s%d offen offset:%d" % (vr(xr, 4), vOut, sr(S_O, 4), sT0, m * 64))
            n += 1
    if L:
        e("s_lshl_b32 s%d, s%d, 11" % (sT0, sWave))
        e("s_add_u32 s%d, s%d, %d" % (sT0, sT0, RED))
        e("v_add_u32 v%d, s%d, v%d" % (vTmp, sT0, vTmp))
        e("s_lshl_b32 s%d, s%d, 7" % (sT0, sWave))
        e("v_add_u32 v%d, s%d, v%d" % (vTmp + 1, sT0, vTab))
        vR = vB1
        for half in range(2):
            if half == 1:
                e("s_cmp_ge_u32 s%d, 2" % sWave)
                e("s_cbranch_scc1 L_done_%s" % tag)
            vR = vP
            regs = [vT, vT + 8, vP, vP + 8]
            for w in range(4):
                for o in range(2):
                    e("ds_read_b128 %s, v%d offset:%d" % (vr(regs[w] + 4 * o, 4), vTmp, w * 12288 + half * 8192 + o * 1024))
            for o in range(2):
                e("ds_read_b128 %s, v%d offset:%d" % (vr(vP + 16 + 4 * o, 4), vTmp + 1, TAB_G - TAB_B2 + half * 512 + o * 16))
            e("s_waitcnt lgkmcnt(0)")
            for k in range(0, 8, 2):
                e("v_pk_add_f32 %s, %s, %s" % (vr(regs[0] + k, 2), vr(regs[0] + k, 2), vr(regs[1] + k, 2)))
                e("v_pk_add_f32 %s, %s, %s" % (vr(regs[2] + k, 2), vr(regs[2] + k, 2), vr(regs[3] + k, 2)))
            for k in range(0, 8, 2):
                e("v_pk_add_f32 %s, %s, %s" % (vr(regs[0] + k, 2), vr(regs[0] + k, 2), vr(regs[2] + k, 2)))
            xr = vB1 + 72 + 4 * half
            e("s_waitcnt vmcnt(18)")
            epi_pair(regs[0], vP + 16, xr, xr, vTm)
            e("buffer_store_dwordx4 %s, v%d, %s, s%d offen offset:%d" % (vr(xr, 4), vOut, sr(S_O, 4), sT1, half * 256))
        lab("L_done_%s" % tag)
    if opt.stamps:
        stamp(9)
        e("s_waitcnt vmcnt(0)")
        e("s_memrealtime s[%d:%d]" % (sE, sE + 1))
        e("s_waitcnt lgkmcnt(0)")
        srd(S_T, 9, 1 << 20)
        e("s_lshl_b32 s%d, s2, 2" % sT0)
        e("s_add_u32 s%d, s%d, s%d" % (sT0, sT0, sWave))
        e("s_lshl_b32 s%d, s%d, 6" % (sT0, sT0))
        e("v_mov_b32 v2, 0")
        for i in range(10): e("v_writelane_b32 v2, s%d, %d" % (sStamp + 2 * i, i))
        e("v_writelane_b32 v2, s%d, 10" % sE)
        e("v_writelane_b32 v2, s%d, 11" % sNrows)
        e("v_lshlrev_b32 v3, 2, v%d" % vLane)
        e("v_add_u32 v3, s%d, v3" % sT0)
        e("v_cmp_gt_u32 vcc, 16, v%d" % vLane)
        e("s_and_saveexec_b64 %s, vcc" % sr(sEx, 2))
        e("buffer_store_dword v2, v3, %s, 0 offen" % sr(S_T, 4))
    e("s_endpgm")

if opt.stamps:
    for i in range(10):
        pass
head_lines = []
head()
if opt.stamps:
    pass
for L in (0, 1):
    lab("L_body%d" % L)
    if opt.stamps and not L:
        e("s_mov_b64 s[%d:%d], 0" % (sStamp + 12, sStamp + 13))
    prologue(L)
    main_part(L)
lab("L_exit")
e("s_endpgm")

ref = open("cdna_kernels/%s.s.ref" % NAME).read().split("\n")
hdr = [l for l in ref if l.startswith(";") and "@launch" not in l]
txt = "\n".join(hdr) + "\n; @launch grid=(252,1,1) block=(256,1,1) lds=%d\n" % LDS_SIZE
txt += """.amdgcn_target "amdgcn-amd-amdhsa--gfx950"
.text
.globl %s_kernel
.p2align 8
.type %s_kernel,@function
%s_kernel:
""" % (NAME, NAME, NAME)
txt += "\n".join(out) + "\n"
txt += """.section .rodata,"a"
.p2align 6
.amdhsa_kernel %s_kernel
  .amdhsa_next_free_vgpr 512
  .amdhsa_next_free_sgpr 102
  .amdhsa_accum_offset 256
  .amdhsa_group_segment_fixed_size 0
  .amdhsa_kernarg_size 80
  .amdhsa_user_sgpr_count 2
  .amdhsa_user_sgpr_kernarg_segment_ptr 1
  .amdhsa_system_sgpr_workgroup_id_x 1
.end_amdhsa_kernel
""" % NAME
dst = [a for a in sys.argv[1:] if "=" not in a]
open(dst[0] if dst else "cdna_kernels/%s.s" % NAME, "w").write(txt)
```

```python
import math, struct, sys

NAME = "standalone__modern_conv_block_convnext__vision"
def f2u(f): return struct.unpack("<I", struct.pack("<f", f))[0]
def f2h(f): return struct.unpack("<H", struct.pack("<e", f))[0]

class Opt:
    gelu = 2
    stamps = 0
    D = 4
    R = 6
    xnt = 1
    ont = 1
opt = Opt()
for a in sys.argv[1:]:
    if "=" in a:
        k, v = a.split("="); assert hasattr(opt, k), k; setattr(opt, k, int(v))

C0 = 2.0 * math.sqrt(2.0 / math.pi) * math.log2(math.e)
SA = (C0 * 0.044715) ** (1.0 / 3.0)
KK = C0 / SA
if opt.gelu == 2:
    KK = struct.unpack("<e", struct.pack("<e", KK))[0]
    SA = C0 / KK

XBYTES = 224 * 224 * 384
ROWB = 86016
SLOT = 49152
XB = 49152
XROW = 7168
TAB_B1 = 156672
TAB_B2 = TAB_B1 + 3072
TAB_G = TAB_B2 + 768
DUMMY = TAB_G + 768
IMG = 0
XCH = 24576
LDS_SIZE = 163840
OOB = 0x40000
XPOL = " nt" if opt.xnt else ""
OPOL = ["", " nt", " sc1", " sc0 sc1"][opt.ont]

S_X = 8; S_W1 = 12; S_W2 = 16; S_O = 20; S_T = 24
sWave = 28; sRow0 = 29; sStrip = 30; sNrows = 31
sK = 32; sDelta = 33; sW1off = 35; sW2off = 36; sCnt = 37
sT0 = 38; sT1 = 39; sT2 = 40; sT3 = 41
sEx = 42
sRowB = 44; sM1 = 45; sM2 = 46; sSo = 47; sDel1 = 48; sDel2 = 49
sXm1 = 50; sXm2 = 51; sXs2 = 52; sLoff = 53
sPtr = 60
sStamp = 80

vLane = 1
vA1 = 2; vA2 = 6; vAb = 10
vD1 = 14; vD2 = 15; vOut = 16; vTab = 17; vTmp = 18
vBias = 20
vT = 28
vRL = 36
vHL = 44; vPL = 48
vP = 52
vH = 76
vR0 = 124
vR1 = 148
vX1 = 156; vX2 = 157; vRA = 158
vB1 = 160
vCA = 20
vS = 40
vCB = 52
vY = 76
aRing = 192
aR2 = 216
aR1 = 240

out = []
def e(s): out.append("    " + s)
def lab(s): out.append(s + ":")
def cm(s): out.append("    ; " + s)
def stamp(i):
    if opt.stamps: e("s_memrealtime s[%d:%d]" % (sStamp + 2 * i, sStamp + 2 * i + 1))
def vr(b, n): return "v[%d:%d]" % (b, b + n - 1)
def ar(b, n): return "a[%d:%d]" % (b, b + n - 1)
def sr(b, n): return "s[%d:%d]" % (b, b + n - 1)
def srd(s, ptr_slot, nbytes):
    e("s_mov_b32 s%d, s%d" % (s, sPtr + 2 * ptr_slot))
    e("s_and_b32 s%d, s%d, 0xffff" % (s + 1, sPtr + 2 * ptr_slot + 1))
    e("s_mov_b32 s%d, %d" % (s + 2, nbytes))
    e("s_mov_b32 s%d, 0x20000" % (s + 3))

class VM:
    def __init__(self): self.issued = []; self.pending = []
    def issue_now(self, tag, lines):
        for l in lines: e(l)
        self.issued.append(tag)
    def queue(self, tag, lines): self.pending.append((tag, lines))
    def pop(self, n=1):
        for _ in range(n):
            if self.pending:
                tag, lines = self.pending.pop(0); self.issue_now(tag, lines)
    def wait(self, pred):
        while any(pred(t) for t, _ in self.pending): self.pop()
        idx = [i for i, t in enumerate(self.issued) if pred(t)]
        e("s_waitcnt vmcnt(%d)" % (len(self.issued) - 1 - max(idx)))
vm = None

def x_items(r):
    return [(("x", r), ["s_add_u32 m0, s%d, %d" % (sXm1, r * XROW), "s_add_u32 s%d, s%d, s%d" % (sXm2, sXm2, sXs2),
                        "buffer_load_dwordx4 v%d, %s, 0 offen%s lds" % (vX1, sr(S_X, 4), XPOL),
                        "v_add_u32 v%d, s%d, v%d" % (vX1, sRowB, vX1)]),
            (("x", r), ["s_mov_b32 m0, s%d" % sXm2, "s_nop 0",
                        "buffer_load_dwordx4 v%d, %s, 0 offen%s lds" % (vX2, sr(S_X, 4), XPOL),
                        "v_add_u32 v%d, s%d, v%d" % (vX2, sRowB, vX2)])]

vDW = vB1
def head():
    e("s_cmp_ge_u32 s2, 252")
    e("s_cbranch_scc1 L_exit")
    stamp(0)
    e("s_load_dwordx4 %s, s[0:1], 0" % sr(sPtr, 4))
    e("s_load_dwordx16 %s, s[0:1], 16" % sr(sPtr + 4, 16))
    e("s_and_b32 s%d, s2, 7" % sT0)
    e("s_lshr_b32 s%d, s2, 3" % sT1)
    e("s_and_b32 s%d, s%d, 3" % (sT2, sT0))
    e("s_mul_i32 s%d, s%d, 63" % (sT2, sT2))
    e("s_lshr_b32 s%d, s%d, 2" % (sT0, sT0))
    e("s_lshl_b32 s%d, s%d, 5" % (sT0, sT0))
    e("s_add_u32 s%d, s%d, s%d" % (sT2, sT2, sT0))
    e("s_add_u32 s%d, s%d, s%d" % (sT2, sT2, sT1))
    e("s_cmp_ge_u32 s%d, 126" % sT2)
    e("s_cselect_b32 s%d, 7, 0" % sStrip)
    e("s_cselect_b32 s%d, 126, 0" % sT0)
    e("s_sub_u32 s%d, s%d, s%d" % (sT2, sT2, sT0))
    e("s_mul_i32 s%d, s%d, 9363" % (sT0, sT2))
    e("s_lshr_b32 s%d, s%d, 16" % (sT0, sT0))
    e("s_mul_i32 s%d, s%d, 7" % (sT1, sT0))
    e("s_sub_u32 s%d, s%d, s%d" % (sT1, sT2, sT1))
    e("s_add_u32 s%d, s%d, s%d" % (sStrip, sStrip, sT1))
    e("s_mul_i32 s%d, s%d, %d" % (sRow0, sT0, 112 * 7282))
    e("s_add_u32 s%d, s%d, %d" % (sNrows, sRow0, 112 * 7282))
    e("s_lshr_b32 s%d, s%d, 16" % (sRow0, sRow0))
    e("s_lshr_b32 s%d, s%d, 16" % (sNrows, sNrows))
    e("s_sub_u32 s%d, s%d, s%d" % (sNrows, sNrows, sRow0))
    for r in range(126): assert (r * 9363) >> 16 == r // 7
    for b in range(19): assert (b * 112 * 7282) >> 16 == b * 112 // 9
    e("v_and_b32 v%d, 63, v0" % vLane)
    e("v_lshrrev_b32 v%d, 6, v0" % vTmp)
    e("s_mov_b32 s%d, %d" % (sRowB, ROWB))
    e("v_readfirstlane_b32 s%d, v%d" % (sWave, vTmp))
    t0, t1, t2 = vS, vS + 1, vS + 2
    e("s_sub_u32 s%d, s%d, 1" % (sT0, sRow0))
    e("s_mul_i32 s%d, s%d, %d" % (sT0, sT0, ROWB))
    e("s_mul_i32 s%d, s%d, 6144" % (sT1, sStrip))
    e("s_add_u32 s%d, s%d, s%d" % (sT0, sT0, sT1))
    e("s_sub_u32 s%d, s%d, 384" % (sT0, sT0))
    e("s_cmp_eq_u32 s%d, 0" % sStrip)
    e("s_cselect_b32 s%d, 1, 0" % sT1)
    e("s_cmp_eq_u32 s%d, 13" % sStrip)
    e("s_cselect_b32 s%d, 17, 18" % sT2)
    e("s_sub_u32 s%d, s%d, s%d" % (sT2, sT2, sT1))
    for P in range(512): assert (P * 2731) >> 16 == P // 24
    for vx, add in ((vX1, 0), (vX2, 256)):
        if add: e("v_add_u32 v%d, %d, v0" % (t2, add))
        src = t2 if add else 0
        e("v_mul_u32_u24 v%d, 2731, v%d" % (t0, src))
        e("v_lshrrev_b32 v%d, 16, v%d" % (t0, t0))
        e("v_mul_u32_u24 v%d, 24, v%d" % (t1, t0))
        e("v_sub_u32 v%d, v%d, v%d" % (t1, src, t1))
        e("v_bfe_u32 v%d, v%d, 1, 3" % (vx, t0))
        e("v_xor_b32 v%d, v%d, v%d" % (t1, t1, vx))
        e("v_mul_u32_u24 v%d, 384, v%d" % (vx, t0))
        e("v_lshl_add_u32 v%d, v%d, 4, v%d" % (vx, t1, vx))
        e("v_add_u32 v%d, s%d, v%d" % (vx, sT0, vx))
        e("v_subrev_u32 v%d, s%d, v%d" % (t0, sT1, t0))
        e("v_cmp_gt_u32 vcc, s%d, v%d" % (sT2, t0))
        e("v_mov_b32 v%d, 0x80000000" % t1)
        e("s_nop 0")
        e("v_cndmask_b32 v%d, v%d, v%d, vcc" % (vx, t1, vx))
    e("s_lshl_b32 s%d, s%d, 10" % (sXm1, sWave))
    e("s_add_u32 s%d, s%d, %d" % (sXm1, sXm1, XB))
    e("s_add_u32 s%d, s%d, %d" % (sXm2, sXm1, 4096 - XROW))
    e("s_cmp_eq_u32 s%d, 3" % sWave)
    e("s_cselect_b32 s%d, %d, s%d" % (sXm2, DUMMY, sXm2))
    e("s_cselect_b32 s%d, 0, %d" % (sXs2, XROW))
    e("v_lshrrev_b32 v%d, 1, v0" % t0)
    e("v_lshlrev_b32 v%d, 2, v%d" % (t0, t0))
    e("v_lshlrev_b32 v%d, 3, v0" % t1)
    e("s_waitcnt lgkmcnt(0)")
    srd(S_T, 1, 3456)
    for i in range(7):
        vm.issue_now("dw", ["buffer_load_dword v%d, v%d, %s, 0 offen offset:%d" % (vDW + i, t0, sr(S_T, 4), i * 512)])
    srd(S_X, 0, XBYTES)
    for r in range(2):
        for tag, l in x_items(r): vm.issue_now(tag, l)
    srd(S_T, 3, 1536)
    vm.issue_now("tab", ["buffer_load_dwordx2 %s, v%d, %s, 0 offen" % (vr(vY, 2), t1, sr(S_T, 4))])
    srd(S_W1, 5, 384)
    vm.issue_now("tab", ["buffer_load_dwordx2 %s, v%d, %s, 0 offen" % (vr(vY + 2, 2), t1, sr(S_W1, 4))])
    srd(S_W2, 6, 384)
    vm.issue_now("tab", ["buffer_load_dwordx2 %s, v%d, %s, 0 offen" % (vr(vY + 4, 2), t1, sr(S_W2, 4))])
    for r in range(2, 6):
        for tag, l in x_items(r): vm.issue_now(tag, l)
    stamp(1)
    setup()
    for r in range(6, 14):
        for tag, l in x_items(r): vm.queue(tag, l)
    build_diag()
    e("s_cmp_eq_u32 s%d, 13" % sNrows)
    e("s_cbranch_scc1 L_body1")

def dma_w(i, kind):
    if kind == 1:
        return (["s_add_u32 m0, s%d, %d" % (sM1, i * 1024), "s_add_u32 s%d, s%d, %d" % (sSo, sW1off, i * 12288)],
                "buffer_load_dwordx4 v%d, %s, s%d offen lds" % (vD1, sr(S_W1, 4), sSo))
    oo, t = i // 3, i % 3
    return (["s_add_u32 m0, s%d, %d" % (sM2, oo * 3072 + t * 1024), "s_add_u32 s%d, s%d, %d" % (sSo, sW2off, oo * 3072 + t * 128)],
            "buffer_load_dwordx4 v%d, %s, s%d offen lds" % (vD2, sr(S_W2, 4), sSo))

def set_dma_slot(slot_base_imm):
    e("s_mul_i32 s%d, s%d, 6144" % (sM1, sWave))
    e("s_add_u32 s%d, s%d, %d" % (sM1, sM1, slot_base_imm))
    e("s_add_u32 s%d, s%d, 24576" % (sM2, sM1))

vIA = vS + 8
vM = vCB
def setup():
    t0, t1, t2, t3 = vS, vS + 1, vS + 2, vS + 3
    cm("W1 dma voffset")
    e("v_lshrrev_b32 v%d, 3, v%d" % (t0, vLane))
    e("v_and_b32 v%d, 7, v%d" % (t1, vLane))
    e("v_and_b32 v%d, 6, v%d" % (t2, t0))
    e("v_xor_b32 v%d, v%d, v%d" % (t1, t1, t2))
    e("v_mul_u32_u24 v%d, 1536, v%d" % (t0, t0))
    e("v_lshl_add_u32 v%d, v%d, 4, v%d" % (vD1, t1, t0))
    e("s_mul_i32 s%d, s%d, %d" % (sT0, sWave, 48 * 1536))
    e("v_add_u32 v%d, s%d, v%d" % (vD1, sT0, vD1))
    cm("W2 dma voffset")
    e("v_bfe_u32 v%d, v%d, 2, 3" % (t0, vLane))
    e("v_mul_u32_u24 v%d, 384, v%d" % (t0, t0))
    e("v_lshrrev_b32 v%d, 5, v%d" % (t1, vLane))
    e("v_lshl_add_u32 v%d, v%d, 6, v%d" % (t0, t1, t0))
    e("v_and_b32 v%d, 3, v%d" % (t1, vLane))
    e("v_lshl_add_u32 v%d, v%d, 4, v%d" % (vD2, t1, t0))
    e("s_mul_i32 s%d, s%d, %d" % (sT0, sWave, 16 * 384))
    e("v_add_u32 v%d, s%d, v%d" % (vD2, sT0, vD2))
    srd(S_W1, 2, 192 * 768 * 2)
    srd(S_W2, 4, 192 * 768 * 2)
    srd(S_O, 7, XBYTES)
    cm("image masks: entry n=tid+256i holds w at halfword n%8")
    e("v_and_b32 v%d, 1, v0" % t0)
    e("v_lshlrev_b32 v%d, 4, v%d" % (t0, t0))
    e("v_mov_b32 v%d, 0xffff" % t1)
    e("v_lshlrev_b32 v%d, v%d, v%d" % (t1, t0, t1))
    e("v_bfe_u32 v%d, v0, 1, 2" % t2)
    for i in range(4):
        e("v_cmp_eq_u32 vcc, %d, v%d" % (i, t2))
        e("s_nop 1")
        e("v_cndmask_b32 v%d, 0, v%d, vcc" % (vM + i, t1))
    cm("conv B-frag addresses")
    px, g, gl, gh = vS + 4, vS + 5, vS + 6, vS + 7
    e("v_and_b32 v%d, 15, v%d" % (px, vLane))
    e("v_lshrrev_b32 v%d, 4, v%d" % (g, vLane))
    e("v_and_b32 v%d, 1, v%d" % (gl, g))
    e("v_lshrrev_b32 v%d, 1, v%d" % (gh, g))
    e("s_mul_i32 s%d, s%d, %d" % (sT0, sWave, XROW))
    e("s_add_u32 s%d, s%d, %d" % (sT0, sT0, XB))
    for tp in range(5):
        if tp < 3: e("v_add_u32 v%d, %d, v%d" % (t0, tp, px))
        elif tp == 3: e("v_add_u32 v%d, v%d, v%d" % (t0, gl, px))
        else: e("v_add_u32 v%d, 2, v%d" % (t0, px))
        e("v_bfe_u32 v%d, v%d, 1, 3" % (t1, t0))
        if tp == 1:
            e("v_xor_b32 v%d, v%d, v%d" % (t2, t1, g))
        e("v_xor_b32 v%d, v%d, v%d" % (t1, t1, gh))
        e("v_mul_u32_u24 v%d, 384, v%d" % (t0, t0))
        if tp == 1:
            e("v_lshl_add_u32 v%d, v%d, 4, v%d" % (t2, t2, t0))
            e("v_add_u32 v%d, %d, v%d" % (t2, XROW, t2))
            e("v_add_u32 v%d, s%d, v%d" % (vRA, sT0, t2))
            e("v_xor_b32 v%d, 64, v%d" % (vRA + 1, vRA))
        e("v_lshl_add_u32 v%d, v%d, 4, v%d" % (t0, t1, t0))
        if tp < 3:
            e("v_mul_u32_u24 v%d, %d, v%d" % (t1, XROW, gl))
            e("v_add3_u32 v%d, v%d, v%d, s%d" % (vCA + tp * 4, t0, t1, sT0))
        else:
            e("v_add_u32 v%d, %d, v%d" % (t0, 2 * XROW, t0))
            e("v_add_u32 v%d, s%d, v%d" % (vCA + tp * 4, sT0, t0))
        for k in range(1, 4):
            e("v_xor_b32 v%d, %d, v%d" % (vCA + tp * 4 + k, 32 * k, vCA + tp * 4))
    cm("image read addresses (invalid lanes out of range -> read 0)")
    e("v_lshrrev_b32 v%d, 3, v%d" % (t0, px))
    e("v_xor_b32 v%d, v%d, v%d" % (t0, t0, gh))
    e("v_mul_u32_u24 v%d, %d, v%d" % (t0, OOB, t0))
    e("v_lshl_add_u32 v%d, v%d, 4, v%d" % (t0, px, t0))
    e("v_mul_u32_u24 v%d, %d, v%d" % (t1, 3 * 3072, gl))
    e("v_add_u32 v%d, v%d, v%d" % (vIA, t0, t1))
    e("v_mul_u32_u24 v%d, 3072, v%d" % (t1, gl))
    e("v_add_u32 v%d, v%d, v%d" % (vIA + 1, t0, t1))
    e("v_mul_u32_u24 v%d, %d, v%d" % (t1, OOB, gl))
    e("v_add_u32 v%d, v%d, v%d" % (vIA + 2, t0, t1))
    cm("main-loop LDS addresses")
    e("v_bfe_u32 v%d, v%d, 2, 3" % (t0, vLane))
    e("v_lshrrev_b32 v%d, 5, v%d" % (t1, vLane))
    e("v_and_b32 v%d, 3, v%d" % (t2, vLane))
    e("v_lshlrev_b32 v%d, 7, v%d" % (t3, t0))
    e("v_lshl_add_u32 v%d, v%d, 10, v%d" % (t3, t1, t3))
    e("v_lshl_add_u32 v%d, v%d, 3, v%d" % (t3, t2, t3))
    e("v_lshrrev_b32 v%d, 1, v%d" % (vA1, t0))
    e("v_xor_b32 v%d, s%d, v%d" % (vA1, sWave, vA1))
    e("v_lshl_add_u32 v%d, v%d, 5, v%d" % (vA1, vA1, t3))
    for p in range(1, 4): e("v_xor_b32 v%d, %d, v%d" % (vA1 + p, 32 * p, vA1))
    e("v_mul_u32_u24 v%d, 3072, v%d" % (t3, t1))
    e("v_and_b32 v%d, 31, v%d" % (t0, vLane))
    e("v_lshl_add_u32 v%d, v%d, 4, v%d" % (t3, t0, t3))
    e("v_lshlrev_b32 v%d, 4, v%d" % (t2, g))
    for p in range(4):
        e("s_xor_b32 s%d, s%d, %d" % (sT0, sWave, p))
        e("s_mul_i32 s%d, s%d, 6144" % (sT1, sT0))
        e("s_add_u32 s%d, s%d, %d" % (sT1, sT1, SLOT + 24576))
        e("v_add_u32 v%d, s%d, v%d" % (vA2 + p, sT1, t3))
        e("s_lshl_b32 s%d, s%d, 6" % (sT0, sT0))
        e("s_add_u32 s%d, s%d, %d" % (sT0, sT0, TAB_B1))
        e("v_add_u32 v%d, s%d, v%d" % (vAb + p, sT0, t2))
    e("v_lshlrev_b32 v%d, 5, v%d" % (vTab, g))
    e("v_add_u32 v%d, %d, v%d" % (vTab, TAB_B2, vTab))
    e("s_add_u32 s%d, s%d, s%d" % (sT0, sRow0, sWave))
    e("s_mul_i32 s%d, s%d, %d" % (sT0, sT0, ROWB))
    e("s_mul_i32 s%d, s%d, 6144" % (sT1, sStrip))
    e("s_add_u32 s%d, s%d, s%d" % (sT0, sT0, sT1))
    e("v_mul_u32_u24 v%d, 384, v%d" % (vOut, px))
    e("v_lshl_add_u32 v%d, v%d, 4, v%d" % (vOut, g, vOut))
    e("v_add_u32 v%d, s%d, v%d" % (vOut, sT0, vOut))
    e("v_lshlrev_b32 v%d, 4, v0" % vTmp)

def build_diag():
    cm("diagonal image")
    vm.wait(lambda t: t == "dw")
    for i in range(7):
        q = vB1 + 8 + 4 * i
        for k in range(4): e("v_and_b32 v%d, v%d, v%d" % (q + k, vM + k, vDW + i))
        e("ds_write_b128 v%d, %s offset:%d" % (vTmp, vr(q, 4), IMG + i * 4096))
    cm("tables")
    vm.wait(lambda t: t == "tab")
    def unpack_scale(src, dst, scale):
        e("s_mov_b32 s%d, 0x%08x" % (sT0, f2u(scale)))
        for h in range(2):
            e("v_lshlrev_b32 v%d, 16, v%d" % (dst + 2 * h, src + h))
            e("v_and_b32 v%d, 0xffff0000, v%d" % (dst + 2 * h + 1, src + h))
        for k in range(4): e("v_mul_f32 v%d, s%d, v%d" % (dst + k, sT0, dst + k))
    unpack_scale(vY, vY + 8, SA)
    unpack_scale(vY + 2, vY + 12, SA)
    unpack_scale(vY + 4, vY + 16, 1.0 / SA)
    e("v_add_u32 v%d, %d, v%d" % (vTmp + 1, TAB_B1, vTmp))
    e("v_cmp_gt_u32 vcc, 192, v0")
    e("s_and_saveexec_b64 %s, vcc" % sr(sEx, 2))
    e("ds_write_b128 v%d, %s" % (vTmp + 1, vr(vY + 8, 4)))
    e("v_cmp_gt_u32 vcc, 48, v0")
    e("s_and_b64 exec, exec, vcc")
    e("ds_write_b128 v%d, %s offset:%d" % (vTmp + 1, vr(vY + 12, 4), TAB_B2 - TAB_B1))
    e("ds_write_b128 v%d, %s offset:%d" % (vTmp + 1, vr(vY + 16, 4), TAB_G - TAB_B1))
    e("s_mov_b64 exec, -1")
    e("s_waitcnt lgkmcnt(0)")
    e("s_barrier")
    for f in range(60):
        cg, tp = f // 5, f % 5
        a, off = (vIA, tp * 3072) if tp < 3 else ((vIA + 1, 6 * 3072) if tp == 3 else (vIA + 2, 8 * 3072))
        e("ds_read_b128 %s, v%d offset:%d" % (ar(4 * f, 4), a, IMG + off + cg * 256))
        if f % 8 == 7: vm.pop()
    stamp(2)

NR = 6; PD = NR - 1
def conv_rd(f, toff):
    cg, tp = f // 5, f % 5
    return "ds_read_b128 %s, v%d offset:%d" % (vr(vCB + 4 * (f % NR), 4), vCA + tp * 4 + cg % 4, toff + (cg // 4) * 128)

def res_dst(t, m):
    if t == 0: return vr(vR0 + 4 * m, 4)
    if t == 1: return vr(vR1 + 4 * m, 4) if m < 2 else ar(aR1 + 4 * (m - 2), 4)
    return ar(aR2 + 4 * m, 4)
def res_rd(t, m):
    return "ds_read_b128 %s, v%d offset:%d" % (res_dst(t, m), vRA + m % 2, t * 4 * XROW + (m // 2) * 128)

s1 = vS; s2 = vS + 2
def conv_mfma(t, npop):
    toff = t * 4 * XROW
    pend = []
    def stats(cg):
        ops = []
        for i in range(4):
            y = vY + 4 * cg + i
            if cg == 0 and i < 2:
                ops.append("v_mov_b32 v%d, v%d" % (s1 + i, y))
                ops.append("v_mul_f32 v%d, v%d, v%d" % (s2 + i, y, y))
            else:
                ops.append("v_add_f32 v%d, v%d, v%d" % (s1 + i % 2, s1 + i % 2, y))
                ops.append("v_fmac_f32 v%d, v%d, v%d" % (s2 + i % 2, y, y))
        return ops
    NI = 6
    e("s_waitcnt lgkmcnt(%d)" % (PD - 1))
    for f in range(60):
        cg, tp = f // 5, f % 5
        d = vr(vY + 4 * cg, 4)
        e("v_mfma_f32_16x16x32_bf16 %s, %s, %s, %s" % (d, ar(4 * f, 4), vr(vCB + 4 * (f % NR), 4), d if tp else "0"))
        if f + 1 < 60: e("s_waitcnt lgkmcnt(%d)" % (min(59, f + PD - 1) - (f + 1)))
        if f + PD < 60: e(conv_rd(f + PD, toff))
        if tp == 2 and 1 <= cg <= NI: pend += stats(cg - 1)
        if npop and f % npop == 0: vm.pop()
        if pend: e(pend.pop(0))
    while pend: e(pend.pop(0))
    return NI

def ln_finish(t, first_cg, init=False):
    for cg in range(first_cg, 12):
        for i in (0, 2):
            y = vr(vY + 4 * cg + i, 2)
            if init and cg == 0 and i == 0:
                e("v_mov_b32 v%d, v%d" % (s1, vY)); e("v_mov_b32 v%d, v%d" % (s1 + 1, vY + 1))
                e("v_pk_mul_f32 %s, %s, %s" % (vr(s2, 2), y, y))
            else:
                e("v_pk_add_f32 %s, %s, %s" % (vr(s1, 2), vr(s1, 2), y))
                e("v_pk_fma_f32 %s, %s, %s, %s" % (vr(s2, 2), y, y, vr(s2, 2)))
    a, b = vS + 4, vS + 5
    e("v_add_f32 v%d, v%d, v%d" % (a, s1, s1 + 1))
    e("v_add_f32 v%d, v%d, v%d" % (b, s2, s2 + 1))
    e("s_nop 1")
    e("v_permlane32_swap_b32 v%d, v%d" % (a, b))
    e("v_add_f32 v%d, v%d, v%d" % (a, a, b))
    e("v_mov_b32 v%d, v%d" % (b, a))
    e("s_nop 1")
    e("v_permlane16_swap_b32 v%d, v%d" % (a, b))
    e("v_add_f32 v%d, v%d, v%d" % (a, a, b))
    e("v_mul_f32 v%d, 0x%08x, v%d" % (a, f2u(1.0 / 192.0), a))
    e("v_mov_b32 v%d, v%d" % (b, a))
    e("s_nop 1")
    e("v_permlane32_swap_b32 v%d, v%d" % (a, b))
    e("v_fma_f32 v%d, -v%d, v%d, v%d" % (b, a, a, b))
    e("v_max_f32 v%d, 0, v%d" % (b, b))
    e("v_add_f32 v%d, 0x%08x, v%d" % (b, f2u(1e-5), b))
    e("v_rsq_f32 v%d, v%d" % (b, b))
    sc, sh = vS + 6, vS + 8
    e("s_nop 0")
    e("v_mul_f32 v%d, 0x%08x, v%d" % (sc, f2u(SA), b))
    e("v_mul_f32 v%d, v%d, v%d" % (sh, a, sc))
    for k in range(24):
        y = vY + 2 * k
        e("v_pk_fma_f32 %s, %s, %s, %s op_sel_hi:[1,0,0] neg_lo:[0,0,1] neg_hi:[0,0,1]" % (vr(y, 2), vr(y, 2), vr(sc, 2), vr(sh, 2)))
        if k >= 1: e("v_cvt_pk_bf16_f32 v%d, v%d, v%d" % (vB1 + 24 * t + k - 1, y - 2, y - 1))
    e("v_cvt_pk_bf16_f32 v%d, v%d, v%d" % (vB1 + 24 * t + 23, vY + 46, vY + 47))

def prologue(L):
    tag = "b%d" % L
    if L:
        for tg, l in x_items(14): vm.queue(tg, l)
    R = 15 if L else 14
    vm.wait(lambda t: t[0] == "x" and t[1] < 6)
    e("s_waitcnt lgkmcnt(0)")
    e("s_barrier")
    set_dma_slot(0)
    e("s_mov_b32 s%d, 0" % sW1off)
    for i in range(6):
        sc, ins = dma_w(i, 1); vm.queue("w0", sc + [ins])
    for f in range(PD): e(conv_rd(f, 0))
    for t in range(3):
        ni = conv_mfma(t, 4)
        while t == 1 and vm.pending: vm.pop()
        if t < 2:
            for m in range(6): e(res_rd(t, m))
            need = [10, R][t]
            vm.wait(lambda x: x[0] == "x" and x[1] < need)
            e("s_waitcnt lgkmcnt(0)")
            e("s_barrier")
            for f in range(PD): e(conv_rd(f, (t + 1) * 4 * XROW))
            if t == 1:
                set_dma_slot(SLOT)
                e("s_mov_b32 s%d, 128" % sW1off)
                e("s_mov_b32 s%d, 0" % sW2off)
                for kind in (1, 2):
                    for i in range(6):
                        sc, ins = dma_w(i, kind); vm.queue("w1", sc + [ins])
        elif L:
            e("s_sub_u32 s%d, 4, s%d" % (sT0, sWave))
            e("s_mul_i32 s%d, s%d, %d" % (sT0, sT0, XROW))
            for k in range(20): e("v_add_u32 v%d, s%d, v%d" % (vCA + k, sT0, vCA + k))
            vL = vB1 + 72
            for w in range(4):
                if w < 3:
                    e("s_cmp_lg_u32 s%d, %d" % (sWave, w))
                    e("s_cbranch_scc1 L_lc%d" % (w + 1))
                fs = list(range(15 * w, 15 * w + 15))
                for f in fs[:PD]: e(conv_rd(f, 8 * XROW))
                e("s_waitcnt lgkmcnt(%d)" % (PD - 1))
                for n, f in enumerate(fs):
                    d = vr(vL + 4 * (n // 5), 4)
                    e("v_mfma_f32_16x16x32_bf16 %s, %s, %s, %s" % (d, ar(4 * f, 4), vr(vCB + 4 * (f % NR), 4), d if f % 5 else "0"))
                    if n + 1 < 15: e("s_waitcnt lgkmcnt(%d)" % (min(14, n + PD - 1) - (n + 1)))
                    if n + PD < 15: e(conv_rd(f + PD, 8 * XROW))
                if w < 3:
                    e("s_branch L_lcj")
                    lab("L_lc%d" % (w + 1))
            lab("L_lcj")
        else:
            e("s_nop 7")
        if t == 2:
            for m in range(6): e(res_rd(2, m))
            if L:
                e("s_sub_u32 s%d, 12, s%d" % (sT1, sWave))
                e("s_mul_i32 s%d, s%d, %d" % (sT1, sT1, XROW))
                e("s_lshr_b32 s%d, s%d, 1" % (sT2, sWave))
                e("s_lshl_b32 s%d, s%d, 7" % (sT2, sT2))
                e("s_add_u32 s%d, s%d, s%d" % (sT1, sT1, sT2))
                e("s_and_b32 s%d, s%d, 1" % (sT2, sWave))
                e("s_lshl_b32 s%d, s%d, 6" % (sT2, sT2))
                e("v_xor_b32 v%d, s%d, v%d" % (vRA, sT2, vRA))
                e("v_add_u32 v%d, s%d, v%d" % (vRA, sT1, vRA))
                e("ds_read_b128 %s, v%d" % (vr(vCB, 4), vRA))
                e("ds_read_b128 %s, v%d offset:256" % (vr(vCB + 4, 4), vRA))
                e("s_mul_i32 s%d, s%d, 3072" % (sT0, sWave))
                e("v_lshlrev_b32 v%d, 4, v%d" % (vTmp, vLane))
                e("v_add_u32 v%d, s%d, v%d" % (vTmp + 1, sT0, vTmp))
                for k in range(3): e("ds_write_b128 v%d, %s offset:%d" % (vTmp + 1, vr(vB1 + 72 + 4 * k, 4), XCH + k * 1024))
        ln_finish(t, ni)
        stamp(3 + t)
    while vm.pending: vm.pop()
    e("s_waitcnt vmcnt(0) lgkmcnt(0)")
    e("s_barrier")
    if L:
        for cg in range(12): e("ds_read_b128 %s, v%d offset:%d" % (vr(vY + 4 * cg, 4), vTmp, XCH + cg * 1024))
    acc_init(L)
    if L:
        e("s_waitcnt lgkmcnt(15)")
        ln_finish(3, 0, init=True)
        for k in range(8): e("v_mov_b32 v%d, v%d" % (vRL + k, vCB + k))
        e("v_mov_b32 v%d, 0" % (vPL + 2))
        e("v_mov_b32 v%d, 0" % (vPL + 3))
    stamp(6)

def acc_init(L):
    cm("accumulator init")
    for t in range(3):
        for ct in range(12):
            e("ds_read_b128 %s, v%d offset:%d" % (ar(48 * t + 4 * ct, 4), vTab, (ct // 2) * 128 + (ct % 2) * 16))
    if L:
        e("s_cmp_eq_u32 s%d, 0" % sWave)
        e("s_cselect_b32 s%d, 0, %d" % (sT0, OOB))
        e("v_add_u32 v%d, s%d, v%d" % (vTmp + 1, sT0, vTab))
        for ct in range(12):
            e("ds_read_b128 %s, v%d offset:%d" % (ar(144 + 4 * ct, 4), vTmp + 1, (ct // 2) * 128 + (ct % 2) * 16))

def gelu_pair(x0, x1, dst, tmp):
    a, b = tmp, tmp + 1
    if opt.gelu == 1:
        return [("v_fma_f32 v%d, -v%d, v%d, -s%d" % (a, x0, x0, sK), 4), ("v_fma_f32 v%d, -v%d, v%d, -s%d" % (b, x1, x1, sK), 4),
                ("v_mul_f32 v%d, v%d, v%d" % (a, x0, a), 4), ("v_mul_f32 v%d, v%d, v%d" % (b, x1, b), 4),
                ("v_exp_f32 v%d, v%d" % (a, a), 8), ("v_exp_f32 v%d, v%d" % (b, b), 8),
                ("v_add_f32 v%d, 1.0, v%d" % (a, a), 4), ("v_add_f32 v%d, 1.0, v%d" % (b, b), 4),
                ("v_rcp_f32 v%d, v%d" % (a, a), 8), ("v_rcp_f32 v%d, v%d" % (b, b), 8),
                ("v_mul_f32 v%d, v%d, v%d" % (a, x0, a), 4), ("v_mul_f32 v%d, v%d, v%d" % (b, x1, b), 4),
                ("v_cvt_pk_bf16_f32 v%d, v%d, v%d" % (dst, a, b), 4)]
    sd = "dst_sel:WORD_1 dst_unused:UNUSED_PRESERVE src0_sel:WORD_1"
    return [("v_cvt_pk_f16_f32 v%d, v%d, v%d" % (a, x0, x1), 4),
            ("v_pk_fma_f16 v%d, v%d, v%d, s%d" % (b, a, a, sK), 4),
            ("v_pk_mul_f16 v%d, v%d, v%d neg_lo:[1,0] neg_hi:[1,0]" % (a, a, b), 4),
            ("v_exp_f16 v%d, v%d" % (b, a), 8),
            ("v_exp_f16_sdwa v%d, v%d %s" % (b, a, sd), 8),
            ("v_pk_add_f16 v%d, v%d, 1.0 op_sel_hi:[1,0]" % (a, b), 4),
            ("v_rcp_f16 v%d, v%d" % (b, a), 8),
            ("v_rcp_f16_sdwa v%d, v%d %s" % (b, a, sd), 8),
            ("v_fma_mix_f32 v%d, v%d, v%d, 0 op_sel_hi:[0,1,0]" % (a, x0, b), 4),
            ("v_fma_mix_f32 v%d, v%d, v%d, 0 op_sel:[0,1,0] op_sel_hi:[0,1,0]" % (b, x1, b), 4),
            ("v_cvt_pk_bf16_f32 v%d, v%d, v%d" % (dst, a, b), 4)]

def gelu_ops(c, L):
    hb = vH + 24 * (c % 2); pb = vP + 12 * (c % 2)
    quads = []
    for t in range(3):
        for ep in range(2):
            quads.append((hb + 8 * t + 4 * ep, pb + 4 * t + 2 * ep))
    if L and c % 2 == 0: quads.append((vHL, vPL))
    ops = []
    for n, (x, d) in enumerate(quads):
        tmp = vT + 4 * (n % 2)
        A = gelu_pair(x, x + 1, d, tmp); B = gelu_pair(x + 2, x + 3, d + 1, tmp + 2)
        if opt.gelu == 1:
            for k in range(0, 12, 2): ops += [A[k], A[k + 1], B[k], B[k + 1]]
            ops += [A[12], B[12]]
        else:
            for k in range(len(A)): ops += [A[k], B[k]]
    return ops

class Frag: pass

def step_scalars():
    return ["s_add_u32 s%d, s%d, s%d" % (sM1, sM1, sDel2),
            "s_add_u32 s%d, s%d, s%d" % (sM2, sM2, sDel2),
            "s_add_u32 s%d, s%d, 128" % (sW1off, sW1off),
            "s_add_u32 s%d, s%d, 24576" % (sW2off, sW2off),
            "s_cmp_ge_u32 s%d, 1536" % sW1off,
            "s_cselect_b32 s%d, 0, s%d" % (S_W1 + 2, S_W1 + 2),
            "s_mov_b32 s%d, s%d" % (sT0, sDel1),
            "s_mov_b32 s%d, s%d" % (sDel1, sDel2),
            "s_mov_b32 s%d, s%d" % (sDel2, sDelta),
            "s_sub_u32 s%d, s%d, 1" % (sCnt, sCnt),
            "s_cmp_lg_u32 s%d, 0" % sCnt]

def build_main(L, c_lo, c_hi, virt):
    groups = []
    for c in range(c_lo, c_hi + 1 + (1 if virt else 0)):
        step = (c + 1) // 2
        if c + 1 <= 23 or virt:
            c1 = c + 1
            for ep in range(2):
                pos = 2 * (c1 % 2) + ep
                for kb in range(6):
                    g = Frag(); g.kind = 1; g.period = c; g.step = step; g.pos = pos; g.kb = kb; g.chunk = c1; g.ep = ep
                    groups.append(g)
        if c - 1 >= 0:
            c2 = c - 1
            for ct in range(12):
                g = Frag(); g.kind = 2; g.period = c; g.step = step; g.ct = ct; g.chunk = c2
                groups.append(g)
    N = len(groups)
    D, R = opt.D, opt.R
    assert 24 % R == 0 and D < R and D <= 5
    nbias = 0
    for n, g in enumerate(groups):
        g.slot = aRing + 4 * (n % R)
        g.reads = []
        if g.kind == 1:
            if g.kb == 0:
                g.bias = vBias + 4 * (nbias % 2); nbias += 1
                g.reads.append("ds_read_b128 %s, v%d" % (vr(g.bias, 4), vAb + g.pos))
            for h in range(2):
                g.reads.append("ds_read_b64_tr_b16 %s, v%d offset:%d" % (ar(g.slot + 2 * h, 2), vA1 + g.pos, (g.kb * 4 + h * 2) * 1024))
            hb = vH + 24 * (g.chunk % 2)
            g.mf = []
            tiles = [0, 1, 2] + ([3] if (L and g.pos == 0) else [])
            for t in tiles:
                d = (hb + 8 * t + 4 * g.ep) if t < 3 else vHL
                cc = vr(g.bias, 4) if g.kb == 0 else vr(d, 4)
                g.mf.append("v_mfma_f32_16x16x32_bf16 %s, %s, %s, %s" % (vr(d, 4), ar(g.slot, 4), vr(vB1 + 24 * t + 4 * g.kb, 4), cc))
            g.upd = []
            if g.kb == 5: g.upd = ["v_add_u32 v%d, s%d, v%d" % (vA1 + g.pos, sDelta, vA1 + g.pos)]
            if g.kb == 0: g.upd = ["v_add_u32 v%d, 0x100, v%d" % (vAb + g.pos, vAb + g.pos)]
        else:
            m, o = g.ct // 2, g.ct % 2
            for h in range(2):
                pos = 2 * (g.chunk % 2) + h
                g.reads.append("ds_read_b64_tr_b16 %s, v%d offset:%d" % (ar(g.slot + 2 * h, 2), vA2 + pos, m * 512 + o * 8))
            pb = vP + 12 * (g.chunk % 2)
            g.mf = []
            tiles = [0, 1, 2] + ([3] if (L and g.chunk % 2 == 0) else [])
            for t in tiles:
                acc = ar(48 * t + 4 * g.ct, 4)
                g.mf.append("v_mfma_f32_16x16x32_bf16 %s, %s, %s, %s" % (acc, ar(g.slot, 4), vr(pb + 4 * t, 4) if t < 3 else vr(vPL, 4), acc))
            g.upd = []
            if g.ct == 11 and virt:
                g.upd = ["v_add_u32 v%d, s%d, v%d" % (vA2 + 2 * (g.chunk % 2) + h, sDelta, vA2 + 2 * (g.chunk % 2) + h) for h in range(2)]
    steps = [[] for _ in range(13)]
    issued = [0]; lastseq = {}
    pre = []
    def issue(n, dst):
        for r in groups[n].reads:
            dst.append(r); issued[0] += 1
        lastseq[n] = issued[0]
    for n in range(D): issue(n, pre)
    for n in range(D): pre += groups[n].upd
    first_wait = "s_waitcnt lgkmcnt(%d)" % (issued[0] - lastseq[0])
    for c in range(c_lo, c_hi + 1):
        step = (c + 1) // 2
        dst = steps[step]
        gs = [k for k in range(N) if groups[k].period == c]
        val = gelu_ops(c, L) if 0 <= c <= 23 else []
        if c == c_lo:
            burst = 0
            while val and burst < 120:
                pre.append(val[0][0]); burst += val[0][1]; val = val[1:]
            pre.append(first_wait)
        dmas = []; scal = []
        if step <= 11:
            if c % 2 == 1: dmas = [dma_w(i, 1) for i in range(6)] + [dma_w(i, 2) for i in range(6)]
            else: scal = step_scalars()
        nm = sum(len(groups[k].mf) for k in gs)
        tot = 8 * nm + sum(x[1] for x in val) + 12 * len(dmas)
        for k in gs:
            if k + D < N: tot += 4 * len(groups[k + D].reads) + 4 * len(groups[k + D].upd)
        t = 0.0; vi = 0; mi = 0
        for gi, k in enumerate(gs):
            g = groups[k]
            for j, m in enumerate(g.mf):
                dst.append(m); t += 8; mi += 1
                extra = []
                if j == len(g.mf) - 1 and k + 1 < N:
                    dst.append("s_waitcnt lgkmcnt(%d)" % (issued[0] - lastseq[k + 1]))
                if j == 0:
                    if gi < len(dmas): dst.append(dmas[gi][0][0])
                    elif scal: dst.append(scal.pop(0))
                    if k + D < N:
                        issue(k + D, dst); t += 4 * len(groups[k + D].reads)
                        extra = groups[k + D].upd
                if j == 1:
                    if gi < len(dmas):
                        dst.append(dmas[gi][0][1]); dst.append(dmas[gi][1]); t += 12
                    elif gi == len(gs) - 1 and step <= 11 and c % 2 == 0:
                        dst.append("s_mov_b32 s%d, s%d" % (sDelta, sT0))
                for x in extra: dst.append(x); t += 4
                lim = mi * tot / nm
                while vi < len(val) and t + val[vi][1] <= lim + 2:
                    dst.append(val[vi][0]); t += val[vi][1]; vi += 1
        while vi < len(val): dst.append(val[vi][0]); vi += 1
        assert not scal
    return pre, steps

def main_part(L):
    tag = "b%d" % L
    pre, steps = build_main(L, -1, 22, True)
    pre12, steps12 = build_main(L, 23, 24, False)
    for j in range(2, 12): assert steps[j] == steps[1], j
    e("s_mov_b32 s%d, 0x%08x" % (sK, f2u(KK) if opt.gelu == 1 else f2h(KK) * 0x10001))
    set_dma_slot(2 * SLOT)
    e("s_mov_b32 s%d, 256" % sW1off)
    e("s_mov_b32 s%d, 24576" % sW2off)
    e("s_mov_b32 s%d, %d" % (sDelta, SLOT))
    e("s_mov_b32 s%d, %d" % (sDel1, SLOT))
    e("s_mov_b32 s%d, %d" % (sDel2, -2 * SLOT))
    e("s_mov_b32 s%d, 12" % sCnt)
    for s in pre: e(s)
    for s in steps[0]: e(s)
    e("s_waitcnt vmcnt(0)")
    e("s_barrier")
    stamp(7)
    out.append(".p2align 6")
    lab("L_loop_%s" % tag)
    for s in steps[1]: e(s)
    e("s_waitcnt vmcnt(0)")
    e("s_barrier")
    e("s_cbranch_scc1 L_loop_%s" % tag)
    stamp(8)
    for s in pre12: e(s)
    for s in steps12[12]: e(s)
    epilogue(L)

def epi_group(acc_regs, gam, xr, dst, tmp):
    for k in range(4):
        e("v_lshlrev_b32 v%d, 16, v%d" % (tmp + 2 * k, xr + k))
        e("v_and_b32 v%d, 0xffff0000, v%d" % (tmp + 2 * k + 1, xr + k))
    for k in range(4):
        e("v_pk_fma_f32 %s, %s, %s, %s" % (vr(tmp + 2 * k, 2), vr(acc_regs + 2 * k, 2), vr(gam + 2 * k, 2), vr(tmp + 2 * k, 2)))
    for k in range(4):
        e("v_cvt_pk_bf16_f32 v%d, v%d, v%d" % (dst + k, tmp + 2 * k, tmp + 2 * k + 1))

def epilogue(L):
    tag = "b%d" % L
    vG = vH
    for ct in range(12):
        e("ds_read_b128 %s, v%d offset:%d" % (vr(vG + 4 * ct, 4), vTab, TAB_G - TAB_B2 + (ct // 2) * 128 + (ct % 2) * 16))
    RED = SLOT
    if L:
        e("v_lshlrev_b32 v%d, 4, v%d" % (vTmp, vLane))
        e("s_mul_i32 s%d, s%d, 12288" % (sT0, sWave))
        e("s_add_u32 s%d, s%d, %d" % (sT0, sT0, RED))
        e("v_add_u32 v%d, s%d, v%d" % (vTmp + 1, sT0, vTmp))
        for ct in range(12):
            e("ds_write_b128 v%d, %s offset:%d" % (vTmp + 1, ar(144 + 4 * ct, 4), ct * 1024))
    e("s_waitcnt lgkmcnt(%d)" % (12 if L else 0))
    vAc = vB1; vTm = vB1 + 16; vXs = vB1 + 32; vO = vB1 + 40
    n = 0
    for t in range(3):
        e("s_mov_b32 s%d, %d" % (sT0, t * 4 * ROWB))
        for m in range(6):
            ac = vAc + 8 * (n % 2); tm = vTm + 8 * (n % 2); o = vO + 4 * (n % 4)
            for k in range(8): e("v_accvgpr_read_b32 v%d, a%d" % (ac + k, 48 * t + 8 * m + k))
            src = res_dst(t, m)
            base = int(src[2:src.index(":")])
            if src[0] == "a":
                xr = vXs + 4 * (n % 2)
                for k in range(4): e("v_accvgpr_read_b32 v%d, a%d" % (xr + k, base + k))
            else: xr = base
            epi_group(ac, vG + 8 * m, xr, o, tm)
            e("buffer_store_dwordx4 %s, v%d, %s, s%d offen offset:%d%s" % (vr(o, 4), vOut, sr(S_O, 4), sT0, m * 64, OPOL))
            n += 1
            if L and n == 6:
                e("s_waitcnt lgkmcnt(0)")
                e("s_barrier")
    if L:
        e("s_sub_u32 s%d, 12, s%d" % (sT1, sWave))
        e("s_mul_i32 s%d, s%d, %d" % (sT1, sT1, ROWB))
        e("s_lshl_b32 s%d, s%d, 6" % (sT2, sWave))
        e("s_add_u32 s%d, s%d, s%d" % (sT1, sT1, sT2))
        e("s_lshl_b32 s%d, s%d, 11" % (sT0, sWave))
        e("s_add_u32 s%d, s%d, %d" % (sT0, sT0, RED))
        e("v_add_u32 v%d, s%d, v%d" % (vTmp, sT0, vTmp))
        e("s_lshl_b32 s%d, s%d, 7" % (sT0, sWave))
        e("v_add_u32 v%d, s%d, v%d" % (vTmp + 1, sT0, vTab))
        for half in range(2):
            if half == 1:
                e("s_cmp_ge_u32 s%d, 2" % sWave)
                e("s_cbranch_scc1 L_done_%s" % tag)
            regs = [vB1 + 56 + 8 * w for w in range(4)]
            gq = vB1 + 88
            for w in range(4):
                for o in range(2):
                    e("ds_read_b128 %s, v%d offset:%d" % (vr(regs[w] + 4 * o, 4), vTmp, w * 12288 + half * 8192 + o * 1024))
            for o in range(2):
                e("ds_read_b128 %s, v%d offset:%d" % (vr(gq + 4 * o, 4), vTmp + 1, TAB_G - TAB_B2 + half * 512 + o * 16))
            e("s_waitcnt lgkmcnt(0)")
            for k in range(0, 8, 2):
                e("v_pk_add_f32 %s, %s, %s" % (vr(regs[0] + k, 2), vr(regs[0] + k, 2), vr(regs[1] + k, 2)))
                e("v_pk_add_f32 %s, %s, %s" % (vr(regs[2] + k, 2), vr(regs[2] + k, 2), vr(regs[3] + k, 2)))
            for k in range(0, 8, 2):
                e("v_pk_add_f32 %s, %s, %s" % (vr(regs[0] + k, 2), vr(regs[0] + k, 2), vr(regs[2] + k, 2)))
            xr = vRL + 4 * half
            epi_group(regs[0], gq, xr, xr, vTm)
            e("buffer_store_dwordx4 %s, v%d, %s, s%d offen offset:%d%s" % (vr(xr, 4), vOut, sr(S_O, 4), sT1, half * 256, OPOL))
        lab("L_done_%s" % tag)
    if opt.stamps:
        stamp(9)
        e("s_waitcnt vmcnt(0)")
        stamp(10)
        e("s_waitcnt lgkmcnt(0)")
        srd(S_T, 9, 1 << 20)
        e("s_lshl_b32 s%d, s2, 2" % sT0)
        e("s_add_u32 s%d, s%d, s%d" % (sT0, sT0, sWave))
        e("s_lshl_b32 s%d, s%d, 6" % (sT0, sT0))
        e("v_mov_b32 v2, 0")
        for i in range(11): e("v_writelane_b32 v2, s%d, %d" % (sStamp + 2 * i, i))
        e("v_writelane_b32 v2, s%d, 11" % sNrows)
        e("v_lshlrev_b32 v3, 2, v%d" % vLane)
        e("v_add_u32 v3, s%d, v3" % sT0)
        e("v_cmp_gt_u32 vcc, 16, v%d" % vLane)
        e("s_and_saveexec_b64 %s, vcc" % sr(sEx, 2))
        e("buffer_store_dword v2, v3, %s, 0 offen" % sr(S_T, 4))
    e("s_endpgm")

import copy
vm = VM()
head()
vm0 = vm
for L in (0, 1):
    vm = copy.deepcopy(vm0)
    lab("L_body%d" % L)
    prologue(L)
    main_part(L)
lab("L_exit")
e("s_endpgm")

ref = open("cdna_kernels/%s.s.ref" % NAME).read().split("\n")
hdr = [l for l in ref if l.startswith(";") and "@launch" not in l]
txt = "\n".join(hdr) + "\n; @launch grid=(252,1,1) block=(256,1,1) lds=%d\n" % LDS_SIZE
txt += """.amdgcn_target "amdgcn-amd-amdhsa--gfx950"
.text
.globl %s_kernel
.p2align 8
.type %s_kernel,@function
%s_kernel:
""" % (NAME, NAME, NAME)
txt += "\n".join(out) + "\n"
txt += """.section .rodata,"a"
.p2align 6
.amdhsa_kernel %s_kernel
  .amdhsa_next_free_vgpr 512
  .amdhsa_next_free_sgpr 102
  .amdhsa_accum_offset 256
  .amdhsa_group_segment_fixed_size 0
  .amdhsa_kernarg_size 80
  .amdhsa_user_sgpr_count 2
  .amdhsa_user_sgpr_kernarg_segment_ptr 1
  .amdhsa_system_sgpr_workgroup_id_x 1
.end_amdhsa_kernel
""" % NAME
dst = [a for a in sys.argv[1:] if "=" not in a]
open(dst[0] if dst else "cdna_kernels/%s.s" % NAME, "w").write(txt)
```

```python
import math, struct, sys

NAME = "standalone__modern_conv_block_convnext__vision"
def f2u(f): return struct.unpack("<I", struct.pack("<f", f))[0]
def f2h(f): return struct.unpack("<H", struct.pack("<e", f))[0]

class Opt:
    gelu = 2
    stamps = 0
    D = 4
    R = 6
    xnt = 1
    sset = 0
    pf = 0
    ont = 0
opt = Opt()
for a in sys.argv[1:]:
    if "=" in a:
        k, v = a.split("="); assert hasattr(opt, k), k; setattr(opt, k, int(v))

C0 = 2.0 * math.sqrt(2.0 / math.pi) * math.log2(math.e)
SA = (C0 * 0.044715) ** (1.0 / 3.0)
KK = C0 / SA
if opt.gelu == 2:
    KK = struct.unpack("<e", struct.pack("<e", KK))[0]
    SA = C0 / KK

XBYTES = 224 * 224 * 384
ROWB = 86016
SLOT = 49152
XB = 49152
XROW = 7168
TAB_B1 = 156672
TAB_B2 = TAB_B1 + 3072
TAB_G = TAB_B2 + 768
DUMMY = TAB_G + 768
IMG = 0
XCH = 24576
LDS_SIZE = 163840
OOB = 0x40000
XPOL = " nt" if opt.xnt else ""
OPOL = ["", " nt", " sc1", " sc0 sc1"][opt.ont]

S_X = 8; S_W1 = 12; S_W2 = 16; S_O = 20; S_T = 24
sWave = 28; sRow0 = 29; sStrip = 30; sNrows = 31
sK = 32; sDelta = 33; sW1off = 35; sW2off = 36; sCnt = 37
sT0 = 38; sT1 = 39; sT2 = 40; sT3 = 41
sEx = 42
sRowB = 44; sM1 = 45; sM2 = 46; sSo = 47; sDel1 = 48; sDel2 = 49
sXm1 = 50; sXm2 = 51; sXs2 = 52; sLoff = 53
sPtr = 60
sStamp = 80

vLane = 1
vA1 = 2; vA2 = 6; vAb = 10
vD1 = 14; vD2 = 15; vOut = 16; vTab = 17; vTmp = 18
vBias = 20
vT = 28
vRL = 36
vHL = 44; vPL = 48
vP = 52
vH = 76
vR0 = 124
vR1 = 148
vX1 = 156; vX2 = 157; vRA = 158
vB1 = 160
vCA = 20
vS = 40
vCB = 52
vY = 76
aRing = 192
aR2 = 216
aR1 = 240

out = []
def e(s): out.append("    " + s)
def lab(s): out.append(s + ":")
def cm(s): out.append("    ; " + s)
SSETS = [["start", "issued", "diag", "conv0", "conv1", "conv2", "conv3", "step0", "loop", "epi", "drain"],
         ["start", "loop", "p24", "gam", "t0", "t1", "t2", "epi", "drain"],
         ["start", "kernarg", "issued", "setup", "dwin", "img", "bar", "diag", "x0in", "mf0", "conv0"]]
def st(name):
    names = SSETS[opt.sset]
    if opt.stamps and name in names: stamp(names.index(name))
def stamp(i):
    if opt.stamps: e("%s s[%d:%d]" % ("s_memrealtime" if opt.stamps == 1 else "s_memtime", sStamp + 2 * i, sStamp + 2 * i + 1))
def vr(b, n): return "v[%d:%d]" % (b, b + n - 1)
def ar(b, n): return "a[%d:%d]" % (b, b + n - 1)
def sr(b, n): return "s[%d:%d]" % (b, b + n - 1)
def srd(s, ptr_slot, nbytes):
    e("s_mov_b32 s%d, s%d" % (s, sPtr + 2 * ptr_slot))
    e("s_and_b32 s%d, s%d, 0xffff" % (s + 1, sPtr + 2 * ptr_slot + 1))
    e("s_mov_b32 s%d, %d" % (s + 2, nbytes))
    e("s_mov_b32 s%d, 0x20000" % (s + 3))

class VM:
    def __init__(self): self.issued = []; self.pending = []
    def issue_now(self, tag, lines):
        for l in lines: e(l)
        self.issued.append(tag)
    def queue(self, tag, lines): self.pending.append((tag, lines))
    def pop(self, n=1):
        for _ in range(n):
            if self.pending:
                tag, lines = self.pending.pop(0); self.issue_now(tag, lines)
    def wait(self, pred):
        while any(pred(t) for t, _ in self.pending): self.pop()
        idx = [i for i, t in enumerate(self.issued) if pred(t)]
        e("s_waitcnt vmcnt(%d)" % (len(self.issued) - 1 - max(idx)))
vm = None

def x_items(r):
    return [(("x", r), ["s_add_u32 m0, s%d, %d" % (sXm1, r * XROW), "s_add_u32 s%d, s%d, s%d" % (sXm2, sXm2, sXs2),
                        "buffer_load_dwordx4 v%d, %s, 0 offen%s lds" % (vX1, sr(S_X, 4), XPOL),
                        "v_add_u32 v%d, s%d, v%d" % (vX1, sRowB, vX1)]),
            (("x", r), ["s_mov_b32 m0, s%d" % sXm2, "s_nop 0",
                        "buffer_load_dwordx4 v%d, %s, 0 offen%s lds" % (vX2, sr(S_X, 4), XPOL),
                        "v_add_u32 v%d, s%d, v%d" % (vX2, sRowB, vX2)])]

vTB = vB1 + 48
vDW = vB1
def head():
    e("s_cmp_ge_u32 s2, 252")
    e("s_cbranch_scc1 L_exit")
    st("start")
    e("s_load_dwordx4 %s, s[0:1], 0" % sr(sPtr, 4))
    e("s_load_dwordx16 %s, s[0:1], 16" % sr(sPtr + 4, 16))
    e("s_and_b32 s%d, s2, 7" % sT0)
    e("s_lshr_b32 s%d, s2, 3" % sT1)
    e("s_and_b32 s%d, s%d, 3" % (sT2, sT0))
    e("s_mul_i32 s%d, s%d, 63" % (sT2, sT2))
    e("s_lshr_b32 s%d, s%d, 2" % (sT0, sT0))
    e("s_lshl_b32 s%d, s%d, 5" % (sT0, sT0))
    e("s_add_u32 s%d, s%d, s%d" % (sT2, sT2, sT0))
    e("s_add_u32 s%d, s%d, s%d" % (sT2, sT2, sT1))
    e("s_cmp_ge_u32 s%d, 126" % sT2)
    e("s_cselect_b32 s%d, 7, 0" % sStrip)
    e("s_cselect_b32 s%d, 126, 0" % sT0)
    e("s_sub_u32 s%d, s%d, s%d" % (sT2, sT2, sT0))
    e("s_mul_i32 s%d, s%d, 9363" % (sT0, sT2))
    e("s_lshr_b32 s%d, s%d, 16" % (sT0, sT0))
    e("s_mul_i32 s%d, s%d, 7" % (sT1, sT0))
    e("s_sub_u32 s%d, s%d, s%d" % (sT1, sT2, sT1))
    e("s_add_u32 s%d, s%d, s%d" % (sStrip, sStrip, sT1))
    e("s_mul_i32 s%d, s%d, %d" % (sRow0, sT0, 112 * 7282))
    e("s_add_u32 s%d, s%d, %d" % (sNrows, sRow0, 112 * 7282))
    e("s_lshr_b32 s%d, s%d, 16" % (sRow0, sRow0))
    e("s_lshr_b32 s%d, s%d, 16" % (sNrows, sNrows))
    e("s_sub_u32 s%d, s%d, s%d" % (sNrows, sNrows, sRow0))
    for r in range(126): assert (r * 9363) >> 16 == r // 7
    for b in range(19): assert (b * 112 * 7282) >> 16 == b * 112 // 9
    e("v_and_b32 v%d, 63, v0" % vLane)
    e("v_lshrrev_b32 v%d, 6, v0" % vTmp)
    e("s_mov_b32 s%d, %d" % (sRowB, ROWB))
    e("v_readfirstlane_b32 s%d, v%d" % (sWave, vTmp))
    t0, t1, t2 = vS, vS + 1, vS + 2
    e("s_sub_u32 s%d, s%d, 1" % (sT0, sRow0))
    e("s_mul_i32 s%d, s%d, %d" % (sT0, sT0, ROWB))
    e("s_mul_i32 s%d, s%d, 6144" % (sT1, sStrip))
    e("s_add_u32 s%d, s%d, s%d" % (sT0, sT0, sT1))
    e("s_sub_u32 s%d, s%d, 384" % (sT0, sT0))
    e("s_cmp_eq_u32 s%d, 0" % sStrip)
    e("s_cselect_b32 s%d, 1, 0" % sT1)
    e("s_cmp_eq_u32 s%d, 13" % sStrip)
    e("s_cselect_b32 s%d, 17, 18" % sT2)
    e("s_sub_u32 s%d, s%d, s%d" % (sT2, sT2, sT1))
    for P in range(512): assert (P * 2731) >> 16 == P // 24
    for vx, add in ((vX1, 0), (vX2, 256)):
        if add: e("v_add_u32 v%d, %d, v0" % (t2, add))
        src = t2 if add else 0
        e("v_mul_u32_u24 v%d, 2731, v%d" % (t0, src))
        e("v_lshrrev_b32 v%d, 16, v%d" % (t0, t0))
        e("v_mul_u32_u24 v%d, 24, v%d" % (t1, t0))
        e("v_sub_u32 v%d, v%d, v%d" % (t1, src, t1))
        e("v_bfe_u32 v%d, v%d, 1, 3" % (vx, t0))
        e("v_xor_b32 v%d, v%d, v%d" % (t1, t1, vx))
        e("v_mul_u32_u24 v%d, 384, v%d" % (vx, t0))
        e("v_lshl_add_u32 v%d, v%d, 4, v%d" % (vx, t1, vx))
        e("v_add_u32 v%d, s%d, v%d" % (vx, sT0, vx))
        e("v_subrev_u32 v%d, s%d, v%d" % (t0, sT1, t0))
        e("v_cmp_gt_u32 vcc, s%d, v%d" % (sT2, t0))
        e("v_mov_b32 v%d, 0x80000000" % t1)
        e("s_nop 0")
        e("v_cndmask_b32 v%d, v%d, v%d, vcc" % (vx, t1, vx))
    e("s_lshl_b32 s%d, s%d, 10" % (sXm1, sWave))
    e("s_add_u32 s%d, s%d, %d" % (sXm1, sXm1, XB))
    e("s_add_u32 s%d, s%d, %d" % (sXm2, sXm1, 4096 - XROW))
    e("s_cmp_eq_u32 s%d, 3" % sWave)
    e("s_cselect_b32 s%d, %d, s%d" % (sXm2, DUMMY, sXm2))
    e("s_cselect_b32 s%d, 0, %d" % (sXs2, XROW))
    e("v_lshrrev_b32 v%d, 1, v0" % t0)
    e("v_lshlrev_b32 v%d, 2, v%d" % (t0, t0))
    e("v_lshlrev_b32 v%d, 3, v0" % t1)
    e("s_waitcnt lgkmcnt(0)")
    st("kernarg")
    srd(S_T, 1, 3456)
    for i in range(7):
        vm.issue_now("dw", ["buffer_load_dword v%d, v%d, %s, 0 offen offset:%d" % (vDW + i, t0, sr(S_T, 4), i * 512)])
    srd(S_X, 0, XBYTES)
    for r in range(6):
        for tag, l in x_items(r): vm.issue_now(tag, l)
    srd(S_T, 3, 1536)
    vm.issue_now("tab", ["buffer_load_dwordx2 %s, v%d, %s, 0 offen" % (vr(vTB, 2), t1, sr(S_T, 4))])
    srd(S_W1, 5, 384)
    vm.issue_now("tab", ["buffer_load_dwordx2 %s, v%d, %s, 0 offen" % (vr(vTB + 2, 2), t1, sr(S_W1, 4))])
    srd(S_W2, 6, 384)
    vm.issue_now("tab", ["buffer_load_dwordx2 %s, v%d, %s, 0 offen" % (vr(vTB + 4, 2), t1, sr(S_W2, 4))])
    st("issued")
    if opt.pf:
        e("s_getpc_b64 %s" % sr(sEx, 2))
        lab("L_pf")
        e("v_lshlrev_b32 v%d, 7, v0" % (vS + 3))
        for i in range(2):
            vm.issue_now("tab", ["global_load_dword v%d, v%d, %s" % (vTB + 6 + i, vS + 3, sr(sEx, 2))])
            if i == 0: e("v_min_u32 v%d, PF_LIM, v%d" % (vS + 3, vS + 3)); e("v_add_u32 v%d, 0x8000, v%d" % (vS + 3, vS + 3))
    setup_early()
    st("setup")
    for r in range(6, 14):
        for tag, l in x_items(r): vm.queue(tag, l)
    build_diag()
    e("s_cmp_eq_u32 s%d, 13" % sNrows)
    e("s_cbranch_scc1 L_body1")

def dma_w(i, kind):
    if kind == 1:
        return (["s_add_u32 m0, s%d, %d" % (sM1, i * 1024), "s_add_u32 s%d, s%d, %d" % (sSo, sW1off, i * 12288)],
                "buffer_load_dwordx4 v%d, %s, s%d offen lds" % (vD1, sr(S_W1, 4), sSo))
    oo, t = i // 3, i % 3
    return (["s_add_u32 m0, s%d, %d" % (sM2, oo * 3072 + t * 1024), "s_add_u32 s%d, s%d, %d" % (sSo, sW2off, oo * 3072 + t * 128)],
            "buffer_load_dwordx4 v%d, %s, s%d offen lds" % (vD2, sr(S_W2, 4), sSo))

def set_dma_slot(slot_base_imm):
    e("s_mul_i32 s%d, s%d, 6144" % (sM1, sWave))
    e("s_add_u32 s%d, s%d, %d" % (sM1, sM1, slot_base_imm))
    e("s_add_u32 s%d, s%d, 24576" % (sM2, sM1))

vIA = vS + 8
vM = vCB
def setup_early():
    t0, t1, t2, t3 = vS, vS + 1, vS + 2, vS + 3
    px, g, gl, gh = vS + 4, vS + 5, vS + 6, vS + 7
    cm("image masks: entry n=tid+256i holds w at halfword n%8")
    e("v_and_b32 v%d, 1, v0" % t0)
    e("v_lshlrev_b32 v%d, 4, v%d" % (t0, t0))
    e("v_mov_b32 v%d, 0xffff" % t1)
    e("v_lshlrev_b32 v%d, v%d, v%d" % (t1, t0, t1))
    e("v_bfe_u32 v%d, v0, 1, 2" % t2)
    fill = ["v_and_b32 v%d, 15, v%d" % (px, vLane), "v_lshrrev_b32 v%d, 4, v%d" % (g, vLane),
            "v_and_b32 v%d, 1, v%d" % (gl, g), "v_lshrrev_b32 v%d, 1, v%d" % (gh, g),
            "v_lshrrev_b32 v%d, 3, v%d" % (t0, px), "v_xor_b32 v%d, v%d, v%d" % (t0, t0, gh),
            "v_mul_u32_u24 v%d, %d, v%d" % (t0, OOB, t0), "v_lshl_add_u32 v%d, v%d, 4, v%d" % (t0, px, t0)]
    for i in range(4):
        e("v_cmp_eq_u32 vcc, %d, v%d" % (i, t2))
        e(fill[2 * i]); e(fill[2 * i + 1])
        e("v_cndmask_b32 v%d, 0, v%d, vcc" % (vM + i, t1))
    cm("image read addresses (invalid lanes out of range -> read 0)")
    e("v_mul_u32_u24 v%d, %d, v%d" % (t1, 3 * 3072, gl))
    e("v_add_u32 v%d, v%d, v%d" % (vIA, t0, t1))
    e("v_mul_u32_u24 v%d, 3072, v%d" % (t1, gl))
    e("v_add_u32 v%d, v%d, v%d" % (vIA + 1, t0, t1))
    e("v_mul_u32_u24 v%d, %d, v%d" % (t1, OOB, gl))
    e("v_add_u32 v%d, v%d, v%d" % (vIA + 2, t0, t1))
    e("v_lshlrev_b32 v%d, 4, v0" % vTmp)

def setup_late():
    t0, t1, t2, t3 = vS, vS + 1, vS + 2, vS + 3
    cm("W1 dma voffset")
    e("v_lshrrev_b32 v%d, 3, v%d" % (t0, vLane))
    e("v_and_b32 v%d, 7, v%d" % (t1, vLane))
    e("v_and_b32 v%d, 6, v%d" % (t2, t0))
    e("v_xor_b32 v%d, v%d, v%d" % (t1, t1, t2))
    e("v_mul_u32_u24 v%d, 1536, v%d" % (t0, t0))
    e("v_lshl_add_u32 v%d, v%d, 4, v%d" % (vD1, t1, t0))
    e("s_mul_i32 s%d, s%d, %d" % (sT0, sWave, 48 * 1536))
    e("v_add_u32 v%d, s%d, v%d" % (vD1, sT0, vD1))
    cm("W2 dma voffset")
    e("v_bfe_u32 v%d, v%d, 2, 3" % (t0, vLane))
    e("v_mul_u32_u24 v%d, 384, v%d" % (t0, t0))
    e("v_lshrrev_b32 v%d, 5, v%d" % (t1, vLane))
    e("v_lshl_add_u32 v%d, v%d, 6, v%d" % (t0, t1, t0))
    e("v_and_b32 v%d, 3, v%d" % (t1, vLane))
    e("v_lshl_add_u32 v%d, v%d, 4, v%d" % (vD2, t1, t0))
    e("s_mul_i32 s%d, s%d, %d" % (sT0, sWave, 16 * 384))
    e("v_add_u32 v%d, s%d, v%d" % (vD2, sT0, vD2))
    srd(S_W1, 2, 192 * 768 * 2)
    srd(S_W2, 4, 192 * 768 * 2)
    srd(S_O, 7, XBYTES)
    cm("conv B-frag addresses")
    px, g, gl, gh = vS + 4, vS + 5, vS + 6, vS + 7
    e("s_mul_i32 s%d, s%d, %d" % (sT0, sWave, XROW))
    e("s_add_u32 s%d, s%d, %d" % (sT0, sT0, XB))
    for tp in range(5):
        if tp < 3: e("v_add_u32 v%d, %d, v%d" % (t0, tp, px))
        elif tp == 3: e("v_add_u32 v%d, v%d, v%d" % (t0, gl, px))
        else: e("v_add_u32 v%d, 2, v%d" % (t0, px))
        e("v_bfe_u32 v%d, v%d, 1, 3" % (t1, t0))
        if tp == 1:
            e("v_xor_b32 v%d, v%d, v%d" % (t2, t1, g))
        e("v_xor_b32 v%d, v%d, v%d" % (t1, t1, gh))
        e("v_mul_u32_u24 v%d, 384, v%d" % (t0, t0))
        if tp == 1:
            e("v_lshl_add_u32 v%d, v%d, 4, v%d" % (t2, t2, t0))
            e("v_add_u32 v%d, %d, v%d" % (t2, XROW, t2))
            e("v_add_u32 v%d, s%d, v%d" % (vRA, sT0, t2))
            e("v_xor_b32 v%d, 64, v%d" % (vRA + 1, vRA))
        e("v_lshl_add_u32 v%d, v%d, 4, v%d" % (t0, t1, t0))
        if tp < 3:
            e("v_mul_u32_u24 v%d, %d, v%d" % (t1, XROW, gl))
            e("v_add3_u32 v%d, v%d, v%d, s%d" % (vCA + tp * 4, t0, t1, sT0))
        else:
            e("v_add_u32 v%d, %d, v%d" % (t0, 2 * XROW, t0))
            e("v_add_u32 v%d, s%d, v%d" % (vCA + tp * 4, sT0, t0))
        for k in range(1, 4):
            e("v_xor_b32 v%d, %d, v%d" % (vCA + tp * 4 + k, 32 * k, vCA + tp * 4))
    cm("main-loop LDS addresses")
    e("v_bfe_u32 v%d, v%d, 2, 3" % (t0, vLane))
    e("v_lshrrev_b32 v%d, 5, v%d" % (t1, vLane))
    e("v_and_b32 v%d, 3, v%d" % (t2, vLane))
    e("v_lshlrev_b32 v%d, 7, v%d" % (t3, t0))
    e("v_lshl_add_u32 v%d, v%d, 10, v%d" % (t3, t1, t3))
    e("v_lshl_add_u32 v%d, v%d, 3, v%d" % (t3, t2, t3))
    e("v_lshrrev_b32 v%d, 1, v%d" % (vA1, t0))
    e("v_xor_b32 v%d, s%d, v%d" % (vA1, sWave, vA1))
    e("v_lshl_add_u32 v%d, v%d, 5, v%d" % (vA1, vA1, t3))
    for p in range(1, 4): e("v_xor_b32 v%d, %d, v%d" % (vA1 + p, 32 * p, vA1))
    e("v_mul_u32_u24 v%d, 3072, v%d" % (t3, t1))
    e("v_and_b32 v%d, 31, v%d" % (t0, vLane))
    e("v_lshl_add_u32 v%d, v%d, 4, v%d" % (t3, t0, t3))
    e("v_lshlrev_b32 v%d, 4, v%d" % (t2, g))
    for p in range(4):
        e("s_xor_b32 s%d, s%d, %d" % (sT0, sWave, p))
        e("s_mul_i32 s%d, s%d, 6144" % (sT1, sT0))
        e("s_add_u32 s%d, s%d, %d" % (sT1, sT1, SLOT + 24576))
        e("v_add_u32 v%d, s%d, v%d" % (vA2 + p, sT1, t3))
        e("s_lshl_b32 s%d, s%d, 6" % (sT0, sT0))
        e("s_add_u32 s%d, s%d, %d" % (sT0, sT0, TAB_B1))
        e("v_add_u32 v%d, s%d, v%d" % (vAb + p, sT0, t2))
    e("v_lshlrev_b32 v%d, 5, v%d" % (vTab, g))
    e("v_add_u32 v%d, %d, v%d" % (vTab, TAB_B2, vTab))
    e("s_add_u32 s%d, s%d, s%d" % (sT0, sRow0, sWave))
    e("s_mul_i32 s%d, s%d, %d" % (sT0, sT0, ROWB))
    e("s_mul_i32 s%d, s%d, 6144" % (sT1, sStrip))
    e("s_add_u32 s%d, s%d, s%d" % (sT0, sT0, sT1))
    e("v_mul_u32_u24 v%d, 384, v%d" % (vOut, px))
    e("v_lshl_add_u32 v%d, v%d, 4, v%d" % (vOut, g, vOut))
    e("v_add_u32 v%d, s%d, v%d" % (vOut, sT0, vOut))

def capture(fn, *args):
    global out
    save = out; out = []
    fn(*args)
    got = [l.strip() for l in out if not l.strip().startswith(";")]
    out = save
    return got

def build_diag():
    cm("diagonal image")
    vm.wait(lambda t: t == "dw")
    st("dwin")
    for i in range(7):
        q = vB1 + 8 + 4 * i
        for k in range(4): e("v_and_b32 v%d, v%d, v%d" % (q + k, vM + k, vDW + i))
    for i in range(7):
        e("ds_write_b128 v%d, %s offset:%d" % (vTmp, vr(vB1 + 8 + 4 * i, 4), IMG + i * 4096))
    late = capture(setup_late)
    for l in late[:24]: e(l)
    late = late[24:]
    st("img")
    e("s_waitcnt lgkmcnt(0)")
    e("s_barrier")
    st("bar")
    per = (len(late) + 9) // 10
    for f in range(60):
        cg, tp = f // 5, f % 5
        a, off = (vIA, tp * 3072) if tp < 3 else ((vIA + 1, 6 * 3072) if tp == 3 else (vIA + 2, 8 * 3072))
        e("ds_read_b128 %s, v%d offset:%d" % (ar(4 * f, 4), a, IMG + off + cg * 256))
        if f % 6 == 5:
            vm.pop()
            for l in late[:per]: e(l)
            late = late[per:]
    assert not late
    st("diag")

def tables():
    def unpack_scale(src, dst, scale):
        e("s_mov_b32 s%d, 0x%08x" % (sT0, f2u(scale)))
        for h in range(2):
            e("v_lshlrev_b32 v%d, 16, v%d" % (dst + 2 * h, src + h))
            e("v_and_b32 v%d, 0xffff0000, v%d" % (dst + 2 * h + 1, src + h))
        for k in range(4): e("v_mul_f32 v%d, s%d, v%d" % (dst + k, sT0, dst + k))
    unpack_scale(vTB, vTB + 8, SA)
    unpack_scale(vTB + 2, vTB + 12, SA)
    unpack_scale(vTB + 4, vTB + 16, 1.0 / SA)
    e("v_add_u32 v%d, %d, v%d" % (vTmp + 1, TAB_B1, vTmp))
    e("v_cmp_gt_u32 vcc, 192, v0")
    e("s_and_saveexec_b64 %s, vcc" % sr(sEx, 2))
    e("ds_write_b128 v%d, %s" % (vTmp + 1, vr(vTB + 8, 4)))
    e("v_cmp_gt_u32 vcc, 48, v0")
    e("s_and_b64 exec, exec, vcc")
    e("ds_write_b128 v%d, %s offset:%d" % (vTmp + 1, vr(vTB + 12, 4), TAB_B2 - TAB_B1))
    e("ds_write_b128 v%d, %s offset:%d" % (vTmp + 1, vr(vTB + 16, 4), TAB_G - TAB_B1))
    e("s_mov_b64 exec, -1")

NR = 6; PD = NR - 1
def conv_rd(f, toff):
    cg, tp = f // 5, f % 5
    return "ds_read_b128 %s, v%d offset:%d" % (vr(vCB + 4 * (f % NR), 4), vCA + tp * 4 + cg % 4, toff + (cg // 4) * 128)

def res_dst(t, m):
    if t == 0: return vr(vR0 + 4 * m, 4)
    if t == 1: return vr(vR1 + 4 * m, 4) if m < 2 else ar(aR1 + 4 * (m - 2), 4)
    return ar(aR2 + 4 * m, 4)
def res_rd(t, m):
    return "ds_read_b128 %s, v%d offset:%d" % (res_dst(t, m), vRA + m % 2, t * 4 * XROW + (m // 2) * 128)

s1 = vS; s2 = vS + 2
def conv_mfma(t, npop):
    toff = t * 4 * XROW
    pend = []
    def stats(cg):
        ops = []
        for i in range(4):
            y = vY + 4 * cg + i
            if cg == 0 and i < 2:
                ops.append("v_mov_b32 v%d, v%d" % (s1 + i, y))
                ops.append("v_mul_f32 v%d, v%d, v%d" % (s2 + i, y, y))
            else:
                ops.append("v_add_f32 v%d, v%d, v%d" % (s1 + i % 2, s1 + i % 2, y))
                ops.append("v_fmac_f32 v%d, v%d, v%d" % (s2 + i % 2, y, y))
        return ops
    NI = 6
    e("s_waitcnt lgkmcnt(%d)" % (PD - 1))
    for f in range(60):
        cg, tp = f // 5, f % 5
        d = vr(vY + 4 * cg, 4)
        e("v_mfma_f32_16x16x32_bf16 %s, %s, %s, %s" % (d, ar(4 * f, 4), vr(vCB + 4 * (f % NR), 4), d if tp else "0"))
        if f + 1 < 60: e("s_waitcnt lgkmcnt(%d)" % (min(59, f + PD - 1) - (f + 1)))
        if f + PD < 60: e(conv_rd(f + PD, toff))
        if tp == 2 and 1 <= cg <= NI: pend += stats(cg - 1)
        if npop and f % npop == 0: vm.pop()
        if pend: e(pend.pop(0))
    while pend: e(pend.pop(0))
    return NI

def ln_stats(first_cg, init=False):
    u1, u2 = vS + 6, vS + 8
    for cg in range(first_cg, 12):
        for i in (0, 2):
            y = vr(vY + 4 * cg + i, 2)
            a1, a2 = (s1, s2) if i == 0 else (u1, u2)
            if (init and cg == 0) or (i == 2 and cg == first_cg):
                e("v_pk_add_f32 %s, %s, 0 op_sel_hi:[1,0]" % (vr(a1, 2), y))
                e("v_pk_mul_f32 %s, %s, %s" % (vr(a2, 2), y, y))
            else:
                e("v_pk_add_f32 %s, %s, %s" % (vr(a1, 2), vr(a1, 2), y))
                e("v_pk_fma_f32 %s, %s, %s, %s" % (vr(a2, 2), y, y, vr(a2, 2)))
    e("v_pk_add_f32 %s, %s, %s" % (vr(s1, 2), vr(s1, 2), vr(u1, 2)))
    e("v_pk_add_f32 %s, %s, %s" % (vr(s2, 2), vr(s2, 2), vr(u2, 2)))

def ln_reduce(fill):
    fill = list(fill)
    def gap(n):
        f = fill.pop(0) if fill else []
        for l in f: e(l)
        if len(f) < n: e("s_nop %d" % (n - len(f) - 1))
    a, b = vS + 4, vS + 5
    e("v_add_f32 v%d, v%d, v%d" % (a, s1, s1 + 1))
    e("v_add_f32 v%d, v%d, v%d" % (b, s2, s2 + 1))
    gap(2)
    e("v_permlane32_swap_b32 v%d, v%d" % (a, b))
    e("v_add_f32 v%d, v%d, v%d" % (a, a, b))
    e("v_mov_b32 v%d, v%d" % (b, a))
    gap(2)
    e("v_permlane16_swap_b32 v%d, v%d" % (a, b))
    e("v_add_f32 v%d, v%d, v%d" % (a, a, b))
    e("v_mul_f32 v%d, 0x%08x, v%d" % (a, f2u(1.0 / 192.0), a))
    e("v_mov_b32 v%d, v%d" % (b, a))
    gap(2)
    e("v_permlane32_swap_b32 v%d, v%d" % (a, b))
    e("v_fma_f32 v%d, -v%d, v%d, v%d" % (b, a, a, b))
    e("v_max_f32 v%d, 0, v%d" % (b, b))
    e("v_add_f32 v%d, 0x%08x, v%d" % (b, f2u(1e-5), b))
    e("v_rsq_f32 v%d, v%d" % (b, b))
    gap(1)
    e("v_mul_f32 v%d, 0x%08x, v%d" % (vS + 6, f2u(SA), b))
    e("v_mul_f32 v%d, v%d, v%d" % (vS + 8, a, vS + 6))
    for f in fill:
        for l in f: e(l)

def ln_norm(t):
    sc, sh = vS + 6, vS + 8
    LAG = 6
    for k in range(24 + LAG):
        if k < 24:
            y = vY + 2 * k
            e("v_pk_fma_f32 %s, %s, %s, %s op_sel_hi:[1,0,0] neg_lo:[0,0,1] neg_hi:[0,0,1]" % (vr(y, 2), vr(y, 2), vr(sc, 2), vr(sh, 2)))
        if k >= LAG:
            j = k - LAG
            e("v_cvt_pk_bf16_f32 v%d, v%d, v%d" % (vB1 + 24 * t + j, vY + 2 * j, vY + 2 * j + 1))

def prologue(L):
    tag = "b%d" % L
    if L:
        for tg, l in x_items(14): vm.queue(tg, l)
    R = 15 if L else 14
    vm.wait(lambda t: t[0] == "x" and t[1] < 6)
    e("s_waitcnt lgkmcnt(0)")
    e("s_barrier")
    st("x0in")
    for f in range(PD): e(conv_rd(f, 0))
    set_dma_slot(0)
    e("s_mov_b32 s%d, 0" % sW1off)
    for i in range(6):
        sc, ins = dma_w(i, 1); vm.queue("w0", sc + [ins])
    for t in range(3):
        ni = conv_mfma(t, 4)
        st("mf%d" % t)
        while t == 1 and vm.pending: vm.pop()
        if t == 2 and L:
            e("s_sub_u32 s%d, 4, s%d" % (sT0, sWave))
            e("s_mul_i32 s%d, s%d, %d" % (sT0, sT0, XROW))
            vL = vB1 + 72
            for w in range(4):
                if w < 3:
                    e("s_cmp_lg_u32 s%d, %d" % (sWave, w))
                    e("s_cbranch_scc1 L_lc%d" % (w + 1))
                fs = list(range(15 * w, 15 * w + 15))
                for f in fs:
                    k = vCA + (f % 5) * 4 + (f // 5) % 4
                    e("v_add_u32 v%d, s%d, v%d" % (k, sT0, k))
                for f in fs[:PD]: e(conv_rd(f, 8 * XROW))
                e("s_waitcnt lgkmcnt(%d)" % (PD - 1))
                for n, f in enumerate(fs):
                    d = vr(vL + 4 * (n // 5), 4)
                    e("v_mfma_f32_16x16x32_bf16 %s, %s, %s, %s" % (d, ar(4 * f, 4), vr(vCB + 4 * (f % NR), 4), d if f % 5 else "0"))
                    if n + 1 < 15: e("s_waitcnt lgkmcnt(%d)" % (min(14, n + PD - 1) - (n + 1)))
                    if n + PD < 15: e(conv_rd(f + PD, 8 * XROW))
                if w < 3:
                    e("s_branch L_lcj")
                    lab("L_lc%d" % (w + 1))
            lab("L_lcj")
        for m in range(6): e(res_rd(t, m))
        if t == 2 and L:
            e("s_sub_u32 s%d, 12, s%d" % (sT1, sWave))
            e("s_mul_i32 s%d, s%d, %d" % (sT1, sT1, XROW))
            e("s_lshr_b32 s%d, s%d, 1" % (sT2, sWave))
            e("s_lshl_b32 s%d, s%d, 7" % (sT2, sT2))
            e("s_add_u32 s%d, s%d, s%d" % (sT1, sT1, sT2))
            e("s_and_b32 s%d, s%d, 1" % (sT2, sWave))
            e("s_lshl_b32 s%d, s%d, 6" % (sT2, sT2))
            e("v_xor_b32 v%d, s%d, v%d" % (vRA, sT2, vRA))
            e("v_add_u32 v%d, s%d, v%d" % (vRA, sT1, vRA))
            e("s_mul_i32 s%d, s%d, 3072" % (sT0, sWave))
            e("v_lshlrev_b32 v%d, 4, v%d" % (vTmp, vLane))
            e("v_add_u32 v%d, s%d, v%d" % (vTmp + 1, sT0, vTmp))
            e("ds_read_b128 %s, v%d" % (vr(vCB, 4), vRA))
            e("ds_read_b128 %s, v%d offset:256" % (vr(vCB + 4, 4), vRA))
            for k in range(3): e("ds_write_b128 v%d, %s offset:%d" % (vTmp + 1, vr(vB1 + 72 + 4 * k, 4), XCH + k * 1024))
        ln_stats(ni)
        fill = []
        if t < 2:
            need = [10, R][t]
            sync = capture(vm.wait, lambda x: x[0] == "x" and x[1] < need) + ["s_waitcnt lgkmcnt(0)", "s_barrier"]
            rds = [conv_rd(f, (t + 1) * 4 * XROW) for f in range(PD)]
            fill = [[], [], sync + rds]
            if t == 1:
                fill.append(capture(set_dma_slot, SLOT) + ["s_mov_b32 s%d, 128" % sW1off, "s_mov_b32 s%d, 0" % sW2off])
                for kind in (1, 2):
                    for i in range(6):
                        sc, ins = dma_w(i, kind); vm.queue("w1", sc + [ins])
        ln_reduce(fill)
        ln_norm(t)
        if t == 0:
            tables()
            e("s_waitcnt lgkmcnt(0)")
        st("conv%d" % t)
    while vm.pending: vm.pop()
    e("s_waitcnt vmcnt(0) lgkmcnt(0)")
    e("s_barrier")
    if L:
        for cg in range(12): e("ds_read_b128 %s, v%d offset:%d" % (vr(vY + 4 * cg, 4), vTmp, XCH + cg * 1024))
        e("s_cmp_eq_u32 s%d, 0" % sWave)
        e("s_cselect_b32 s%d, 0, %d" % (sT0, OOB))
        e("v_add_u32 v%d, s%d, v%d" % (vTmp + 1, sT0, vTab))
        e("s_waitcnt lgkmcnt(0)")
        ln_stats(0, init=True)
        ln_reduce([])
        ln_norm(3)
        for k in range(8): e("v_mov_b32 v%d, v%d" % (vRL + k, vCB + k))
        e("v_mov_b32 v%d, 0" % (vPL + 2))
        e("v_mov_b32 v%d, 0" % (vPL + 3))
    st("conv3")

def acc_init(L):
    r = []
    for ct in range(12):
        for t in range(3):
            r.append("ds_read_b128 %s, v%d offset:%d" % (ar(48 * t + 4 * ct, 4), vTab, (ct // 2) * 128 + (ct % 2) * 16))
        if L:
            r.append("ds_read_b128 %s, v%d offset:%d" % (ar(144 + 4 * ct, 4), vTmp + 1, (ct // 2) * 128 + (ct % 2) * 16))
    return r

def gelu_pair(x0, x1, dst, tmp):
    a, b = tmp, tmp + 1
    if opt.gelu == 1:
        return [("v_fma_f32 v%d, -v%d, v%d, -s%d" % (a, x0, x0, sK), 4), ("v_fma_f32 v%d, -v%d, v%d, -s%d" % (b, x1, x1, sK), 4),
                ("v_mul_f32 v%d, v%d, v%d" % (a, x0, a), 4), ("v_mul_f32 v%d, v%d, v%d" % (b, x1, b), 4),
                ("v_exp_f32 v%d, v%d" % (a, a), 8), ("v_exp_f32 v%d, v%d" % (b, b), 8),
                ("v_add_f32 v%d, 1.0, v%d" % (a, a), 4), ("v_add_f32 v%d, 1.0, v%d" % (b, b), 4),
                ("v_rcp_f32 v%d, v%d" % (a, a), 8), ("v_rcp_f32 v%d, v%d" % (b, b), 8),
                ("v_mul_f32 v%d, v%d, v%d" % (a, x0, a), 4), ("v_mul_f32 v%d, v%d, v%d" % (b, x1, b), 4),
                ("v_cvt_pk_bf16_f32 v%d, v%d, v%d" % (dst, a, b), 4)]
    sd = "dst_sel:WORD_1 dst_unused:UNUSED_PRESERVE src0_sel:WORD_1"
    return [("v_cvt_pk_f16_f32 v%d, v%d, v%d" % (a, x0, x1), 4),
            ("v_pk_fma_f16 v%d, v%d, v%d, s%d" % (b, a, a, sK), 4),
            ("v_pk_mul_f16 v%d, v%d, v%d neg_lo:[1,0] neg_hi:[1,0]" % (a, a, b), 4),
            ("v_exp_f16 v%d, v%d" % (b, a), 8),
            ("v_exp_f16_sdwa v%d, v%d %s" % (b, a, sd), 8),
            ("v_pk_add_f16 v%d, v%d, 1.0 op_sel_hi:[1,0]" % (a, b), 4),
            ("v_rcp_f16 v%d, v%d" % (b, a), 8),
            ("v_rcp_f16_sdwa v%d, v%d %s" % (b, a, sd), 8),
            ("v_fma_mix_f32 v%d, v%d, v%d, 0 op_sel_hi:[0,1,0]" % (a, x0, b), 4),
            ("v_fma_mix_f32 v%d, v%d, v%d, 0 op_sel:[0,1,0] op_sel_hi:[0,1,0]" % (b, x1, b), 4),
            ("v_cvt_pk_bf16_f32 v%d, v%d, v%d" % (dst, a, b), 4)]

def gelu_ops(c, L):
    hb = vH + 24 * (c % 2); pb = vP + 12 * (c % 2)
    quads = []
    for t in range(3):
        for ep in range(2):
            quads.append((hb + 8 * t + 4 * ep, pb + 4 * t + 2 * ep))
    if L and c % 2 == 0: quads.append((vHL, vPL))
    ops = []
    for n, (x, d) in enumerate(quads):
        tmp = vT + 4 * (n % 2)
        A = gelu_pair(x, x + 1, d, tmp); B = gelu_pair(x + 2, x + 3, d + 1, tmp + 2)
        if opt.gelu == 1:
            for k in range(0, 12, 2): ops += [A[k], A[k + 1], B[k], B[k + 1]]
            ops += [A[12], B[12]]
        else:
            for k in range(len(A)): ops += [A[k], B[k]]
    return ops

class Frag: pass

def step_scalars():
    return ["s_add_u32 s%d, s%d, s%d" % (sM1, sM1, sDel2),
            "s_add_u32 s%d, s%d, s%d" % (sM2, sM2, sDel2),
            "s_add_u32 s%d, s%d, 128" % (sW1off, sW1off),
            "s_add_u32 s%d, s%d, 24576" % (sW2off, sW2off),
            "s_cmp_ge_u32 s%d, 1536" % sW1off,
            "s_cselect_b32 s%d, 0, s%d" % (S_W1 + 2, S_W1 + 2),
            "s_mov_b32 s%d, s%d" % (sT0, sDel1),
            "s_mov_b32 s%d, s%d" % (sDel1, sDel2),
            "s_mov_b32 s%d, s%d" % (sDel2, sDelta),
            "s_sub_u32 s%d, s%d, 1" % (sCnt, sCnt),
            "s_cmp_lg_u32 s%d, 0" % sCnt]

def build_main(L, c_lo, c_hi, virt, xds={}, xval={}):
    groups = []
    for c in range(c_lo, c_hi + 1 + (1 if virt else 0)):
        step = (c + 1) // 2
        if c + 1 <= 23 or virt:
            c1 = c + 1
            for ep in range(2):
                pos = 2 * (c1 % 2) + ep
                for kb in range(6):
                    g = Frag(); g.kind = 1; g.period = c; g.step = step; g.pos = pos; g.kb = kb; g.chunk = c1; g.ep = ep
                    groups.append(g)
        if c - 1 >= 0:
            c2 = c - 1
            for ct in range(12):
                g = Frag(); g.kind = 2; g.period = c; g.step = step; g.ct = ct; g.chunk = c2
                groups.append(g)
    N = len(groups)
    D, R = opt.D, opt.R
    assert 24 % R == 0 and D < R and D <= 5
    nbias = 0
    for n, g in enumerate(groups):
        g.slot = aRing + 4 * (n % R)
        g.reads = []
        if g.kind == 1:
            if g.kb == 0:
                g.bias = vBias + 4 * (nbias % 2); nbias += 1
                g.reads.append("ds_read_b128 %s, v%d" % (vr(g.bias, 4), vAb + g.pos))
            for h in range(2):
                g.reads.append("ds_read_b64_tr_b16 %s, v%d offset:%d" % (ar(g.slot + 2 * h, 2), vA1 + g.pos, (g.kb * 4 + h * 2) * 1024))
            hb = vH + 24 * (g.chunk % 2)
            g.mf = []
            tiles = [0, 1, 2] + ([3] if (L and g.pos == 0) else [])
            for t in tiles:
                d = (hb + 8 * t + 4 * g.ep) if t < 3 else vHL
                cc = vr(g.bias, 4) if g.kb == 0 else vr(d, 4)
                g.mf.append("v_mfma_f32_16x16x32_bf16 %s, %s, %s, %s" % (vr(d, 4), ar(g.slot, 4), vr(vB1 + 24 * t + 4 * g.kb, 4), cc))
            g.upd = []
            if g.kb == 5: g.upd = ["v_add_u32 v%d, s%d, v%d" % (vA1 + g.pos, sDelta, vA1 + g.pos)]
            if g.kb == 0: g.upd = ["v_add_u32 v%d, 0x100, v%d" % (vAb + g.pos, vAb + g.pos)]
        else:
            m, o = g.ct // 2, g.ct % 2
            for h in range(2):
                pos = 2 * (g.chunk % 2) + h
                g.reads.append("ds_read_b64_tr_b16 %s, v%d offset:%d" % (ar(g.slot + 2 * h, 2), vA2 + pos, m * 512 + o * 8))
            pb = vP + 12 * (g.chunk % 2)
            g.mf = []
            tiles = [0, 1, 2] + ([3] if (L and g.chunk % 2 == 0) else [])
            for t in tiles:
                acc = ar(48 * t + 4 * g.ct, 4)
                g.mf.append("v_mfma_f32_16x16x32_bf16 %s, %s, %s, %s" % (acc, ar(g.slot, 4), vr(pb + 4 * t, 4) if t < 3 else vr(vPL, 4), acc))
            g.upd = []
            if g.ct == 11 and virt:
                g.upd = ["v_add_u32 v%d, s%d, v%d" % (vA2 + 2 * (g.chunk % 2) + h, sDelta, vA2 + 2 * (g.chunk % 2) + h) for h in range(2)]
    steps = [[] for _ in range(13)]
    issued = [0]; lastseq = {}
    pre = []
    def issue(n, dst):
        for r in groups[n].reads:
            dst.append(r); issued[0] += 1
        lastseq[n] = issued[0]
    for n in range(D): issue(n, pre)
    for n in range(D): pre += groups[n].upd
    first_wait = "s_waitcnt lgkmcnt(%d)" % (issued[0] - lastseq[0])
    for c in range(c_lo, c_hi + 1):
        step = (c + 1) // 2
        dst = steps[step]
        gs = [k for k in range(N) if groups[k].period == c]
        val = gelu_ops(c, L) if 0 <= c <= 23 else []
        val = val + [(x, 4) for x in xval.get(c, [])]
        xd = list(xds.get(c, []))
        nxd = (len(xd) + len(gs) - 1) // len(gs)
        if c == c_lo:
            burst = 0
            while val and burst < 120:
                pre.append(val[0][0]); burst += val[0][1]; val = val[1:]
            pre.append(first_wait)
        dmas = []; scal = []
        if step <= 11:
            if c % 2 == 1: dmas = [dma_w(i, 1) for i in range(6)] + [dma_w(i, 2) for i in range(6)]
            else: scal = step_scalars()
        nm = sum(len(groups[k].mf) for k in gs)
        tot = 8 * nm + sum(x[1] for x in val) + 12 * len(dmas) + 4 * len(xd)
        for k in gs:
            if k + D < N: tot += 4 * len(groups[k + D].reads) + 4 * len(groups[k + D].upd)
        t = 0.0; vi = 0; mi = 0
        for gi, k in enumerate(gs):
            g = groups[k]
            for j, m in enumerate(g.mf):
                dst.append(m); t += 8; mi += 1
                extra = []
                if j == len(g.mf) - 1 and k + 1 < N:
                    dst.append("s_waitcnt lgkmcnt(%d)" % min(15, issued[0] - lastseq[k + 1]))
                if j == 0:
                    if gi < len(dmas): dst.append(dmas[gi][0][0])
                    elif scal: dst.append(scal.pop(0))
                    if k + D < N:
                        issue(k + D, dst); t += 4 * len(groups[k + D].reads)
                        extra = groups[k + D].upd
                if j == len(g.mf) - 1:
                    for _ in range(nxd):
                        if xd: dst.append(xd.pop(0)); issued[0] += 1; t += 4
                if j == 1:
                    if gi < len(dmas):
                        dst.append(dmas[gi][0][1]); dst.append(dmas[gi][1]); t += 12
                    elif gi == len(gs) - 1 and step <= 11 and c % 2 == 0:
                        dst.append("s_mov_b32 s%d, s%d" % (sDelta, sT0))
                for x in extra: dst.append(x); t += 4
                lim = mi * tot / nm
                while vi < len(val) and t + val[vi][1] <= lim + 2:
                    dst.append(val[vi][0]); t += val[vi][1]; vi += 1
        while vi < len(val): dst.append(val[vi][0]); vi += 1
        assert not scal and not xd
    return pre, steps

def main_part(L):
    tag = "b%d" % L
    ai = acc_init(L)
    pre, steps = build_main(L, -1, 22, True, xds={-1: ai[:len(ai) // 2], 0: ai[len(ai) // 2:]})
    xd24, xv23, xv24 = epi_prep(L)
    pre12, steps12 = build_main(L, 23, 24, False, xds={24: xd24}, xval={23: xv23, 24: xv24})
    for j in range(3, 12): assert steps[j] == steps[2], j
    assert len(steps[1]) == len(steps[2])
    steps[1] = steps[2]
    e("s_mov_b32 s%d, 0x%08x" % (sK, f2u(KK) if opt.gelu == 1 else f2h(KK) * 0x10001))
    set_dma_slot(2 * SLOT)
    e("s_mov_b32 s%d, 256" % sW1off)
    e("s_mov_b32 s%d, 24576" % sW2off)
    e("s_mov_b32 s%d, %d" % (sDelta, SLOT))
    e("s_mov_b32 s%d, %d" % (sDel1, SLOT))
    e("s_mov_b32 s%d, %d" % (sDel2, -2 * SLOT))
    e("s_mov_b32 s%d, 12" % sCnt)
    for s in pre: e(s)
    for s in steps[0]: e(s)
    e("s_waitcnt vmcnt(0)")
    e("s_barrier")
    st("step0")
    out.append(".p2align 6")
    lab("L_loop_%s" % tag)
    for s in steps[1]: e(s)
    e("s_waitcnt vmcnt(0)")
    e("s_barrier")
    e("s_cbranch_scc1 L_loop_%s" % tag)
    st("loop")
    epi_scalars(L)
    for s in pre12: e(s)
    for s in steps12[12]: e(s)
    st("p24")
    epilogue(L)

RED = SLOT
STG = 2 * SLOT
vG = vH
vWA = vA1
vRd = vA1 + 2
vRdl = [vA1 + 2, vA1 + 3, vAb]
vSt = vAb + 1
vX0 = vB1 + 48
def epi_prep(L):
    xd = ["ds_read_b128 %s, v%d offset:%d" % (vr(vG + 4 * ct, 4), vTab, TAB_G - TAB_B2 + (ct // 2) * 128 + (ct % 2) * 16) for ct in range(12)]
    xv23 = []
    if L:
        xv23 = ["v_lshlrev_b32 v%d, 4, v%d" % (vTmp, vLane), "v_add_u32 v%d, s%d, v%d" % (vTmp + 1, sT3, vTmp)]
        xd += ["ds_write_b128 v%d, %s offset:%d" % (vTmp + 1, ar(144 + 4 * ct, 4), ct * 1024) for ct in range(12)]
    t0, t1 = vAb + 2, vAb + 3
    xv = ["v_and_b32 v%d, 15, v%d" % (t0, vLane), "v_lshrrev_b32 v%d, 4, v%d" % (t1, vLane),
          "v_mul_u32_u24 v%d, 384, v%d" % (vWA, t0), "v_and_b32 v%d, 7, v%d" % (t0, t0),
          "v_xor_b32 v%d, v%d, v%d" % (t0, t0, t1), "v_lshl_add_u32 v%d, v%d, 4, v%d" % (vWA, t0, vWA),
          "v_add_u32 v%d, s%d, v%d" % (vWA, sT2, vWA), "v_xor_b32 v%d, 64, v%d" % (vWA + 1, vWA)]
    for k in range(3):
        xv += ["v_add_u32 v%d, %d, v%d" % (t0, 64 * k, vLane), "v_mul_u32_u24 v%d, 2731, v%d" % (t1, t0),
               "v_bfe_u32 v%d, v%d, 16, 3" % (t1, t1), "v_xor_b32 v%d, v%d, v%d" % (t0, t0, t1),
               "v_lshlrev_b32 v%d, 4, v%d" % (t0, t0), "v_add_u32 v%d, s%d, v%d" % (vRdl[k], sT2, t0)]
    xv += ["v_lshlrev_b32 v%d, 4, v%d" % (vSt, vLane), "v_add_u32 v%d, s%d, v%d" % (vSt, sT1, vSt)]
    for k in range(12):
        xv += ["v_lshlrev_b32 v%d, 16, v%d" % (vX0 + 2 * k, vR0 + k), "v_and_b32 v%d, 0xffff0000, v%d" % (vX0 + 2 * k + 1, vR0 + k)]
    return xd, xv23, xv

def epi_scalars(L):
    e("s_add_u32 s%d, s%d, s%d" % (sT1, sRow0, sWave))
    e("s_mul_i32 s%d, s%d, %d" % (sT1, sT1, ROWB))
    e("s_mul_i32 s%d, s%d, 6144" % (sT2, sStrip))
    e("s_add_u32 s%d, s%d, s%d" % (sT1, sT1, sT2))
    e("s_mul_i32 s%d, s%d, 12288" % (sT2, sWave))
    e("s_add_u32 s%d, s%d, %d" % (sT3, sT2, RED))
    e("s_add_u32 s%d, s%d, %d" % (sT2, sT2, STG))

def epi_group(acc_regs, gam, xr, dst, tmp, unpacked=False):
    if not unpacked:
        for k in range(4):
            e("v_lshlrev_b32 v%d, 16, v%d" % (tmp + 2 * k, xr + k))
            e("v_and_b32 v%d, 0xffff0000, v%d" % (tmp + 2 * k + 1, xr + k))
    for k in range(4):
        e("v_pk_fma_f32 %s, %s, %s, %s" % (vr(tmp + 2 * k, 2), vr(acc_regs + 2 * k, 2), vr(gam + 2 * k, 2), vr(tmp + 2 * k, 2)))
    for k in range(4):
        e("v_cvt_pk_bf16_f32 v%d, v%d, v%d" % (dst + k, tmp + 2 * k, tmp + 2 * k + 1))

def epilogue(L):
    tag = "b%d" % L
    e("s_waitcnt lgkmcnt(0)")
    if L: e("s_barrier")
    st("gam")
    vAc = vB1; vTm = vB1 + 16; vXs = vB1 + 32; vO = vB1 + 40
    vLin = vP
    def store(t, k):
        e("buffer_store_dwordx4 %s, v%d, %s, s%d offen offset:%d%s" % (vr(vLin + 4 * k, 4), vSt, sr(S_O, 4), sT0 if k < 4 else sSo, (k % 4) * 1024, OPOL))
    n = 0
    for t in range(3):
        buf = (t % 2) * 6144
        for m in range(6):
            ac = vAc + 8 * (n % 2); tm = vTm + 8 * (n % 2); o = vO + 4 * (n % 2)
            for k in range(8): e("v_accvgpr_read_b32 v%d, a%d" % (ac + k, 48 * t + 8 * m + k))
            src = res_dst(t, m)
            base = int(src[2:src.index(":")])
            unp = (t == 0 and m < 3)
            if unp: tm = vX0 + 8 * m; xr = None
            elif src[0] == "a":
                xr = vXs + 4 * (n % 2)
                for k in range(4): e("v_accvgpr_read_b32 v%d, a%d" % (xr + k, base + k))
            else: xr = base
            epi_group(ac, vG + 8 * m, xr, o, tm, unp)
            if t > 0:
                if m == 0: e("s_waitcnt lgkmcnt(0)")
                store(t - 1, m)
            e("ds_write_b128 v%d, %s offset:%d" % (vWA + m % 2, vr(o, 4), buf + (m // 2) * 128))
            n += 1
        e("s_mov_b32 s%d, %d" % (sT0, t * 4 * ROWB))
        e("s_mov_b32 s%d, %d" % (sSo, t * 4 * ROWB + 4096))
        for k in range(6):
            e("ds_read_b128 %s, v%d offset:%d" % (vr(vLin + 4 * k, 4), vRdl[k % 3], buf + (k // 3) * 3072))
        st("t%d" % t)
    if L:
        e("s_sub_u32 s%d, 12, s%d" % (sT1, sWave))
        e("s_mul_i32 s%d, s%d, %d" % (sT1, sT1, ROWB))
        e("s_lshl_b32 s%d, s%d, 6" % (sT2, sWave))
        e("s_add_u32 s%d, s%d, s%d" % (sT1, sT1, sT2))
        e("s_lshl_b32 s%d, s%d, 11" % (sT2, sWave))
        e("s_add_u32 s%d, s%d, %d" % (sT2, sT2, RED))
        e("v_add_u32 v%d, s%d, v%d" % (vTmp, sT2, vTmp))
        e("s_lshl_b32 s%d, s%d, 7" % (sT2, sWave))
        e("v_add_u32 v%d, s%d, v%d" % (vTmp + 1, sT2, vTab))
        def lreads(half, base):
            for w in range(4):
                for o in range(2):
                    e("ds_read_b128 %s, v%d offset:%d" % (vr(base + 8 * w + 4 * o, 4), vTmp, w * 12288 + half * 8192 + o * 1024))
            for o in range(2):
                e("ds_read_b128 %s, v%d offset:%d" % (vr(base + 32 + 4 * o, 4), vTmp + 1, TAB_G - TAB_B2 + half * 512 + o * 16))
        bases = [vB1 + 48, vH]
        lreads(0, bases[0])
        e("s_waitcnt lgkmcnt(10)")
        for k in range(6): store(2, k)
        lreads(1, bases[1])
        for half in range(2):
            if half == 1:
                e("s_cmp_ge_u32 s%d, 2" % sWave)
                e("s_cbranch_scc1 L_done_%s" % tag)
            regs = [bases[half] + 8 * w for w in range(4)]
            e("s_waitcnt lgkmcnt(%d)" % (10 if half == 0 else 0))
            for k in range(0, 8, 2):
                e("v_pk_add_f32 %s, %s, %s" % (vr(regs[0] + k, 2), vr(regs[0] + k, 2), vr(regs[1] + k, 2)))
                e("v_pk_add_f32 %s, %s, %s" % (vr(regs[2] + k, 2), vr(regs[2] + k, 2), vr(regs[3] + k, 2)))
            for k in range(0, 8, 2):
                e("v_pk_add_f32 %s, %s, %s" % (vr(regs[0] + k, 2), vr(regs[0] + k, 2), vr(regs[2] + k, 2)))
            xr = vRL + 4 * half
            epi_group(regs[0], bases[half] + 32, xr, xr, vTm)
            e("buffer_store_dwordx4 %s, v%d, %s, s%d offen offset:%d%s" % (vr(xr, 4), vOut, sr(S_O, 4), sT1, half * 256, OPOL))
        lab("L_done_%s" % tag)
    else:
        e("s_waitcnt lgkmcnt(0)")
        for k in range(6): store(2, k)
    if opt.stamps:
        st("epi")
        e("s_waitcnt vmcnt(0)")
        st("drain")
        e("s_waitcnt lgkmcnt(0)")
        srd(S_T, 9, 1 << 20)
        e("s_lshl_b32 s%d, s2, 2" % sT0)
        e("s_add_u32 s%d, s%d, s%d" % (sT0, sT0, sWave))
        e("s_lshl_b32 s%d, s%d, 6" % (sT0, sT0))
        e("v_mov_b32 v2, 0")
        for i in range(len(SSETS[opt.sset])): e("v_writelane_b32 v2, s%d, %d" % (sStamp + 2 * i, i))
        out.append("; STAMPNAMES " + " ".join(SSETS[opt.sset]))
        e("v_writelane_b32 v2, s%d, 11" % sNrows)
        e("v_lshlrev_b32 v3, 2, v%d" % vLane)
        e("v_add_u32 v3, s%d, v3" % sT0)
        e("v_cmp_gt_u32 vcc, 16, v%d" % vLane)
        e("s_and_saveexec_b64 %s, vcc" % sr(sEx, 2))
        e("buffer_store_dword v2, v3, %s, 0 offen" % sr(S_T, 4))
    e("s_endpgm")

import copy
vm = VM()
head()
vm0 = vm
for L in (0, 1):
    vm = copy.deepcopy(vm0)
    lab("L_body%d" % L)
    prologue(L)
    main_part(L)
lab("L_exit")
e("s_endpgm")

ref = open("cdna_kernels/%s.s.ref" % NAME).read().split("\n")
hdr = [l for l in ref if l.startswith(";") and "@launch" not in l]
txt = "\n".join(hdr) + "\n; @launch grid=(252,1,1) block=(256,1,1) lds=%d\n" % LDS_SIZE
txt += """.amdgcn_target "amdgcn-amd-amdhsa--gfx950"
.text
.globl %s_kernel
.p2align 8
.type %s_kernel,@function
%s_kernel:
""" % (NAME, NAME, NAME)
txt += "\n".join(out).replace("PF_LIM", "L_exit-L_pf-0x8000") + "\n"
txt += """.section .rodata,"a"
.p2align 6
.amdhsa_kernel %s_kernel
  .amdhsa_next_free_vgpr 512
  .amdhsa_next_free_sgpr 102
  .amdhsa_accum_offset 256
  .amdhsa_group_segment_fixed_size 0
  .amdhsa_kernarg_size 80
  .amdhsa_user_sgpr_count 2
  .amdhsa_user_sgpr_kernarg_segment_ptr 1
  .amdhsa_system_sgpr_workgroup_id_x 1
.end_amdhsa_kernel
""" % NAME
dst = [a for a in sys.argv[1:] if "=" not in a]
open(dst[0] if dst else "cdna_kernels/%s.s" % NAME, "w").write(txt)
```

```python
import math, struct, sys

NAME = "standalone__modern_conv_block_convnext__vision"
def f2u(f): return struct.unpack("<I", struct.pack("<f", f))[0]
def f2h(f): return struct.unpack("<H", struct.pack("<e", f))[0]

class Opt:
    gelu = 2
    stamps = 0
    D = 4
    R = 6
    xnt = 1
    sset = 0
    diag = -1
    pf = 0
    ont = 0
opt = Opt()
for a in sys.argv[1:]:
    if "=" in a:
        k, v = a.split("="); assert hasattr(opt, k), k; setattr(opt, k, int(v))

C0 = 2.0 * math.sqrt(2.0 / math.pi) * math.log2(math.e)
SA = (C0 * 0.044715) ** (1.0 / 3.0)
KK = C0 / SA
if opt.gelu == 2:
    KK = struct.unpack("<e", struct.pack("<e", KK))[0]
    SA = C0 / KK

XBYTES = 224 * 224 * 384
ROWB = 86016
SLOT = 49152
XB = 49152
XROW = 7168
TAB_B1 = 156672
TAB_B2 = TAB_B1 + 3072
TAB_G = TAB_B2 + 768
DUMMY = TAB_G + 768
IMG = 0
XCH = 24576
LDS_SIZE = 163840
OOB = 0x40000
XPOL = " nt" if opt.xnt else ""
OPOL = ["", " nt", " sc1", " sc0 sc1"][opt.ont]

S_X = 8; S_W1 = 12; S_W2 = 16; S_O = 20; S_T = 24
sWave = 28; sRow0 = 29; sStrip = 30; sNrows = 31
sK = 32; sDelta = 33; sW1off = 35; sW2off = 36; sCnt = 37
sT0 = 38; sT1 = 39; sT2 = 40; sT3 = 41
sEx = 42
sRowB = 44; sM1 = 45; sM2 = 46; sSo = 47; sDel1 = 48; sDel2 = 49
sXm1 = 50; sXm2 = 51; sXs2 = 52; sLoff = 53
sPtr = 60
sStamp = 80

vLane = 1
vA1 = 2; vA2 = 6; vAb = 10
vD1 = 14; vD2 = 15; vOut = 16; vTab = 17; vTmp = 18
vBias = 20
vT = 28
vRL = 36
vHL = 44; vPL = 48
vP = 52
vH = 76
vR0 = 124
vR1 = 148
vX1 = 156; vX2 = 157; vRA = 158
vB1 = 160
vCA = 20
vS = 40
vCB = 52
vY = 76
aRing = 192
aR2 = 216
aR1 = 240

out = []
def e(s): out.append("    " + s)
def lab(s): out.append(s + ":")
def cm(s): out.append("    ; " + s)
SSETS = [["start", "issued", "diag", "conv0", "conv1", "conv2", "conv3", "step0", "loop", "epi", "drain"],
         ["start", "loop", "p24", "gam", "t0", "t1", "t2", "epi", "drain"],
         ["start", "kernarg", "issued", "setup", "dwin", "img", "bar", "diag", "x0in", "mf0", "conv0"]]
def st(name):
    names = SSETS[opt.sset]
    if opt.stamps and name in names: stamp(names.index(name))
def stamp(i):
    if opt.stamps: e("%s s[%d:%d]" % ("s_memrealtime" if opt.stamps == 1 else "s_memtime", sStamp + 2 * i, sStamp + 2 * i + 1))
def vr(b, n): return "v[%d:%d]" % (b, b + n - 1)
def ar(b, n): return "a[%d:%d]" % (b, b + n - 1)
def sr(b, n): return "s[%d:%d]" % (b, b + n - 1)
def srd(s, ptr_slot, nbytes):
    e("s_mov_b32 s%d, s%d" % (s, sPtr + 2 * ptr_slot))
    e("s_and_b32 s%d, s%d, 0xffff" % (s + 1, sPtr + 2 * ptr_slot + 1))
    e("s_mov_b32 s%d, %d" % (s + 2, nbytes))
    e("s_mov_b32 s%d, 0x20000" % (s + 3))

class VM:
    def __init__(self): self.issued = []; self.pending = []
    def issue_now(self, tag, lines):
        for l in lines: e(l)
        self.issued.append(tag)
    def queue(self, tag, lines): self.pending.append((tag, lines))
    def pop(self, n=1):
        for _ in range(n):
            if self.pending:
                tag, lines = self.pending.pop(0); self.issue_now(tag, lines)
    def wait(self, pred):
        while any(pred(t) for t, _ in self.pending): self.pop()
        idx = [i for i, t in enumerate(self.issued) if pred(t)]
        e("s_waitcnt vmcnt(%d)" % (len(self.issued) - 1 - max(idx)))
vm = None

def x_items(r):
    return [(("x", r), ["s_add_u32 m0, s%d, %d" % (sXm1, r * XROW), "s_add_u32 s%d, s%d, s%d" % (sXm2, sXm2, sXs2),
                        "buffer_load_dwordx4 v%d, %s, 0 offen%s lds" % (vX1, sr(S_X, 4), XPOL),
                        "v_add_u32 v%d, s%d, v%d" % (vX1, sRowB, vX1)]),
            (("x", r), ["s_mov_b32 m0, s%d" % sXm2, "s_nop 0",
                        "buffer_load_dwordx4 v%d, %s, 0 offen%s lds" % (vX2, sr(S_X, 4), XPOL),
                        "v_add_u32 v%d, s%d, v%d" % (vX2, sRowB, vX2)])]

vTB = vB1 + 48
vDW = vB1
def head():
    e("s_cmp_ge_u32 s2, 252")
    e("s_cbranch_scc1 L_exit")
    st("start")
    e("s_load_dwordx4 %s, s[0:1], 0" % sr(sPtr, 4))
    e("s_load_dwordx16 %s, s[0:1], 16" % sr(sPtr + 4, 16))
    e("s_and_b32 s%d, s2, 7" % sT0)
    e("s_lshr_b32 s%d, s2, 3" % sT1)
    e("s_and_b32 s%d, s%d, 3" % (sT2, sT0))
    e("s_mul_i32 s%d, s%d, 63" % (sT2, sT2))
    e("s_lshr_b32 s%d, s%d, 2" % (sT0, sT0))
    e("s_lshl_b32 s%d, s%d, 5" % (sT0, sT0))
    e("s_add_u32 s%d, s%d, s%d" % (sT2, sT2, sT0))
    e("s_add_u32 s%d, s%d, s%d" % (sT2, sT2, sT1))
    e("s_cmp_ge_u32 s%d, 126" % sT2)
    e("s_cselect_b32 s%d, 7, 0" % sStrip)
    e("s_cselect_b32 s%d, 126, 0" % sT0)
    e("s_sub_u32 s%d, s%d, s%d" % (sT2, sT2, sT0))
    e("s_mul_i32 s%d, s%d, 9363" % (sT0, sT2))
    e("s_lshr_b32 s%d, s%d, 16" % (sT0, sT0))
    e("s_mul_i32 s%d, s%d, 7" % (sT1, sT0))
    e("s_sub_u32 s%d, s%d, s%d" % (sT1, sT2, sT1))
    e("s_add_u32 s%d, s%d, s%d" % (sStrip, sStrip, sT1))
    e("s_mul_i32 s%d, s%d, %d" % (sRow0, sT0, 112 * 7282))
    e("s_add_u32 s%d, s%d, %d" % (sNrows, sRow0, 112 * 7282))
    e("s_lshr_b32 s%d, s%d, 16" % (sRow0, sRow0))
    e("s_lshr_b32 s%d, s%d, 16" % (sNrows, sNrows))
    e("s_sub_u32 s%d, s%d, s%d" % (sNrows, sNrows, sRow0))
    for r in range(126): assert (r * 9363) >> 16 == r // 7
    for b in range(19): assert (b * 112 * 7282) >> 16 == b * 112 // 9
    e("v_and_b32 v%d, 63, v0" % vLane)
    e("v_lshrrev_b32 v%d, 6, v0" % vTmp)
    e("s_mov_b32 s%d, %d" % (sRowB, ROWB))
    e("v_readfirstlane_b32 s%d, v%d" % (sWave, vTmp))
    t0, t1, t2 = vS, vS + 1, vS + 2
    e("s_sub_u32 s%d, s%d, 1" % (sT0, sRow0))
    e("s_mul_i32 s%d, s%d, %d" % (sT0, sT0, ROWB))
    e("s_mul_i32 s%d, s%d, 6144" % (sT1, sStrip))
    e("s_add_u32 s%d, s%d, s%d" % (sT0, sT0, sT1))
    e("s_sub_u32 s%d, s%d, 384" % (sT0, sT0))
    e("s_cmp_eq_u32 s%d, 0" % sStrip)
    e("s_cselect_b32 s%d, 1, 0" % sT1)
    e("s_cmp_eq_u32 s%d, 13" % sStrip)
    e("s_cselect_b32 s%d, 17, 18" % sT2)
    e("s_sub_u32 s%d, s%d, s%d" % (sT2, sT2, sT1))
    for P in range(512): assert (P * 2731) >> 16 == P // 24
    for vx, add in ((vX1, 0), (vX2, 256)):
        if add: e("v_add_u32 v%d, %d, v0" % (t2, add))
        src = t2 if add else 0
        e("v_mul_u32_u24 v%d, 2731, v%d" % (t0, src))
        e("v_lshrrev_b32 v%d, 16, v%d" % (t0, t0))
        e("v_mul_u32_u24 v%d, 24, v%d" % (t1, t0))
        e("v_sub_u32 v%d, v%d, v%d" % (t1, src, t1))
        e("v_bfe_u32 v%d, v%d, 1, 3" % (vx, t0))
        e("v_xor_b32 v%d, v%d, v%d" % (t1, t1, vx))
        e("v_mul_u32_u24 v%d, 384, v%d" % (vx, t0))
        e("v_lshl_add_u32 v%d, v%d, 4, v%d" % (vx, t1, vx))
        e("v_add_u32 v%d, s%d, v%d" % (vx, sT0, vx))
        e("v_subrev_u32 v%d, s%d, v%d" % (t0, sT1, t0))
        e("v_cmp_gt_u32 vcc, s%d, v%d" % (sT2, t0))
        e("v_mov_b32 v%d, 0x80000000" % t1)
        e("s_nop 0")
        e("v_cndmask_b32 v%d, v%d, v%d, vcc" % (vx, t1, vx))
    e("s_lshl_b32 s%d, s%d, 10" % (sXm1, sWave))
    e("s_add_u32 s%d, s%d, %d" % (sXm1, sXm1, XB))
    e("s_add_u32 s%d, s%d, %d" % (sXm2, sXm1, 4096 - XROW))
    e("s_cmp_eq_u32 s%d, 3" % sWave)
    e("s_cselect_b32 s%d, %d, s%d" % (sXm2, DUMMY, sXm2))
    e("s_cselect_b32 s%d, 0, %d" % (sXs2, XROW))
    e("v_lshrrev_b32 v%d, 1, v0" % t0)
    e("v_lshlrev_b32 v%d, 2, v%d" % (t0, t0))
    e("v_lshlrev_b32 v%d, 3, v0" % t1)
    e("s_waitcnt lgkmcnt(0)")
    st("kernarg")
    srd(S_T, 1, 3456)
    for i in range(7):
        vm.issue_now("dw", ["buffer_load_dword v%d, v%d, %s, 0 offen offset:%d" % (vDW + i, t0, sr(S_T, 4), i * 512)])
    srd(S_X, 0, XBYTES)
    for r in range(6):
        for tag, l in x_items(r): vm.issue_now(tag, l)
    srd(S_T, 3, 1536)
    vm.issue_now("tab", ["buffer_load_dwordx2 %s, v%d, %s, 0 offen" % (vr(vTB, 2), t1, sr(S_T, 4))])
    srd(S_W1, 5, 384)
    vm.issue_now("tab", ["buffer_load_dwordx2 %s, v%d, %s, 0 offen" % (vr(vTB + 2, 2), t1, sr(S_W1, 4))])
    srd(S_W2, 6, 384)
    vm.issue_now("tab", ["buffer_load_dwordx2 %s, v%d, %s, 0 offen" % (vr(vTB + 4, 2), t1, sr(S_W2, 4))])
    st("issued")
    if opt.pf:
        e("s_getpc_b64 %s" % sr(sEx, 2))
        lab("L_pf")
        e("v_lshlrev_b32 v%d, 7, v0" % (vS + 3))
        for i in range(2):
            vm.issue_now("tab", ["global_load_dword v%d, v%d, %s" % (vTB + 6 + i, vS + 3, sr(sEx, 2))])
            if i == 0: e("v_min_u32 v%d, PF_LIM, v%d" % (vS + 3, vS + 3)); e("v_add_u32 v%d, 0x8000, v%d" % (vS + 3, vS + 3))
    setup_early()
    st("setup")
    for r in range(6, 14):
        for tag, l in x_items(r): vm.queue(tag, l)
    build_diag()
    e("s_cmp_eq_u32 s%d, 13" % sNrows)
    e("s_cbranch_scc1 L_body1")

def dma_w(i, kind):
    if kind == 1:
        return (["s_add_u32 m0, s%d, %d" % (sM1, i * 1024), "s_add_u32 s%d, s%d, %d" % (sSo, sW1off, i * 12288)],
                "buffer_load_dwordx4 v%d, %s, s%d offen lds" % (vD1, sr(S_W1, 4), sSo))
    oo, t = i // 3, i % 3
    return (["s_add_u32 m0, s%d, %d" % (sM2, oo * 3072 + t * 1024), "s_add_u32 s%d, s%d, %d" % (sSo, sW2off, oo * 3072 + t * 128)],
            "buffer_load_dwordx4 v%d, %s, s%d offen lds" % (vD2, sr(S_W2, 4), sSo))

def set_dma_slot(slot_base_imm):
    e("s_mul_i32 s%d, s%d, 6144" % (sM1, sWave))
    e("s_add_u32 s%d, s%d, %d" % (sM1, sM1, slot_base_imm))
    e("s_add_u32 s%d, s%d, 24576" % (sM2, sM1))

vIA = vS + 8
vM = vCB
def setup_early():
    t0, t1, t2, t3 = vS, vS + 1, vS + 2, vS + 3
    px, g, gl, gh = vS + 4, vS + 5, vS + 6, vS + 7
    cm("image masks: entry n=tid+256i holds w at halfword n%8")
    e("v_and_b32 v%d, 1, v0" % t0)
    e("v_lshlrev_b32 v%d, 4, v%d" % (t0, t0))
    e("v_mov_b32 v%d, 0xffff" % t1)
    e("v_lshlrev_b32 v%d, v%d, v%d" % (t1, t0, t1))
    e("v_bfe_u32 v%d, v0, 1, 2" % t2)
    fill = ["v_and_b32 v%d, 15, v%d" % (px, vLane), "v_lshrrev_b32 v%d, 4, v%d" % (g, vLane),
            "v_and_b32 v%d, 1, v%d" % (gl, g), "v_lshrrev_b32 v%d, 1, v%d" % (gh, g),
            "v_lshrrev_b32 v%d, 3, v%d" % (t0, px), "v_xor_b32 v%d, v%d, v%d" % (t0, t0, gh),
            "v_mul_u32_u24 v%d, %d, v%d" % (t0, OOB, t0), "v_lshl_add_u32 v%d, v%d, 4, v%d" % (t0, px, t0)]
    for i in range(4):
        e("v_cmp_eq_u32 vcc, %d, v%d" % (i, t2))
        e(fill[2 * i]); e(fill[2 * i + 1])
        e("v_cndmask_b32 v%d, 0, v%d, vcc" % (vM + i, t1))
    cm("image read addresses (invalid lanes out of range -> read 0)")
    e("v_mul_u32_u24 v%d, %d, v%d" % (t1, 3 * 3072, gl))
    e("v_add_u32 v%d, v%d, v%d" % (vIA, t0, t1))
    e("v_mul_u32_u24 v%d, 3072, v%d" % (t1, gl))
    e("v_add_u32 v%d, v%d, v%d" % (vIA + 1, t0, t1))
    e("v_mul_u32_u24 v%d, %d, v%d" % (t1, OOB, gl))
    e("v_add_u32 v%d, v%d, v%d" % (vIA + 2, t0, t1))
    e("v_lshlrev_b32 v%d, 4, v0" % vTmp)

def setup_late():
    t0, t1, t2, t3 = vS, vS + 1, vS + 2, vS + 3
    cm("W1 dma voffset")
    e("v_lshrrev_b32 v%d, 3, v%d" % (t0, vLane))
    e("v_and_b32 v%d, 7, v%d" % (t1, vLane))
    e("v_and_b32 v%d, 6, v%d" % (t2, t0))
    e("v_xor_b32 v%d, v%d, v%d" % (t1, t1, t2))
    e("v_mul_u32_u24 v%d, 1536, v%d" % (t0, t0))
    e("v_lshl_add_u32 v%d, v%d, 4, v%d" % (vD1, t1, t0))
    e("s_mul_i32 s%d, s%d, %d" % (sT0, sWave, 48 * 1536))
    e("v_add_u32 v%d, s%d, v%d" % (vD1, sT0, vD1))
    cm("W2 dma voffset")
    e("v_bfe_u32 v%d, v%d, 2, 3" % (t0, vLane))
    e("v_mul_u32_u24 v%d, 384, v%d" % (t0, t0))
    e("v_lshrrev_b32 v%d, 5, v%d" % (t1, vLane))
    e("v_lshl_add_u32 v%d, v%d, 6, v%d" % (t0, t1, t0))
    e("v_and_b32 v%d, 3, v%d" % (t1, vLane))
    e("v_lshl_add_u32 v%d, v%d, 4, v%d" % (vD2, t1, t0))
    e("s_mul_i32 s%d, s%d, %d" % (sT0, sWave, 16 * 384))
    e("v_add_u32 v%d, s%d, v%d" % (vD2, sT0, vD2))
    srd(S_W1, 2, 192 * 768 * 2)
    srd(S_W2, 4, 192 * 768 * 2)
    srd(S_O, 7, XBYTES)
    cm("conv B-frag addresses")
    px, g, gl, gh = vS + 4, vS + 5, vS + 6, vS + 7
    e("s_mul_i32 s%d, s%d, %d" % (sT0, sWave, XROW))
    e("s_add_u32 s%d, s%d, %d" % (sT0, sT0, XB))
    for tp in range(5):
        if tp < 3: e("v_add_u32 v%d, %d, v%d" % (t0, tp, px))
        elif tp == 3: e("v_add_u32 v%d, v%d, v%d" % (t0, gl, px))
        else: e("v_add_u32 v%d, 2, v%d" % (t0, px))
        e("v_bfe_u32 v%d, v%d, 1, 3" % (t1, t0))
        if tp == 1:
            e("v_xor_b32 v%d, v%d, v%d" % (t2, t1, g))
        e("v_xor_b32 v%d, v%d, v%d" % (t1, t1, gh))
        e("v_mul_u32_u24 v%d, 384, v%d" % (t0, t0))
        if tp == 1:
            e("v_lshl_add_u32 v%d, v%d, 4, v%d" % (t2, t2, t0))
            e("v_add_u32 v%d, %d, v%d" % (t2, XROW, t2))
            e("v_add_u32 v%d, s%d, v%d" % (vRA, sT0, t2))
            e("v_xor_b32 v%d, 64, v%d" % (vRA + 1, vRA))
        e("v_lshl_add_u32 v%d, v%d, 4, v%d" % (t0, t1, t0))
        if tp < 3:
            e("v_mul_u32_u24 v%d, %d, v%d" % (t1, XROW, gl))
            e("v_add3_u32 v%d, v%d, v%d, s%d" % (vCA + tp * 4, t0, t1, sT0))
        else:
            e("v_add_u32 v%d, %d, v%d" % (t0, 2 * XROW, t0))
            e("v_add_u32 v%d, s%d, v%d" % (vCA + tp * 4, sT0, t0))
        for k in range(1, 4):
            e("v_xor_b32 v%d, %d, v%d" % (vCA + tp * 4 + k, 32 * k, vCA + tp * 4))
    cm("main-loop LDS addresses")
    e("v_bfe_u32 v%d, v%d, 2, 3" % (t0, vLane))
    e("v_lshrrev_b32 v%d, 5, v%d" % (t1, vLane))
    e("v_and_b32 v%d, 3, v%d" % (t2, vLane))
    e("v_lshlrev_b32 v%d, 7, v%d" % (t3, t0))
    e("v_lshl_add_u32 v%d, v%d, 10, v%d" % (t3, t1, t3))
    e("v_lshl_add_u32 v%d, v%d, 3, v%d" % (t3, t2, t3))
    e("v_lshrrev_b32 v%d, 1, v%d" % (vA1, t0))
    e("v_xor_b32 v%d, s%d, v%d" % (vA1, sWave, vA1))
    e("v_lshl_add_u32 v%d, v%d, 5, v%d" % (vA1, vA1, t3))
    for p in range(1, 4): e("v_xor_b32 v%d, %d, v%d" % (vA1 + p, 32 * p, vA1))
    e("v_mul_u32_u24 v%d, 3072, v%d" % (t3, t1))
    e("v_and_b32 v%d, 31, v%d" % (t0, vLane))
    e("v_lshl_add_u32 v%d, v%d, 4, v%d" % (t3, t0, t3))
    e("v_lshlrev_b32 v%d, 4, v%d" % (t2, g))
    for p in range(4):
        e("s_xor_b32 s%d, s%d, %d" % (sT0, sWave, p))
        e("s_mul_i32 s%d, s%d, 6144" % (sT1, sT0))
        e("s_add_u32 s%d, s%d, %d" % (sT1, sT1, SLOT + 24576))
        e("v_add_u32 v%d, s%d, v%d" % (vA2 + p, sT1, t3))
        e("s_lshl_b32 s%d, s%d, 6" % (sT0, sT0))
        e("s_add_u32 s%d, s%d, %d" % (sT0, sT0, TAB_B1))
        e("v_add_u32 v%d, s%d, v%d" % (vAb + p, sT0, t2))
    e("v_lshlrev_b32 v%d, 5, v%d" % (vTab, g))
    e("v_add_u32 v%d, %d, v%d" % (vTab, TAB_B2, vTab))
    e("s_add_u32 s%d, s%d, s%d" % (sT0, sRow0, sWave))
    e("s_mul_i32 s%d, s%d, %d" % (sT0, sT0, ROWB))
    e("s_mul_i32 s%d, s%d, 6144" % (sT1, sStrip))
    e("s_add_u32 s%d, s%d, s%d" % (sT0, sT0, sT1))
    e("v_mul_u32_u24 v%d, 384, v%d" % (vOut, px))
    e("v_lshl_add_u32 v%d, v%d, 4, v%d" % (vOut, g, vOut))
    e("v_add_u32 v%d, s%d, v%d" % (vOut, sT0, vOut))

def capture(fn, *args):
    global out
    save = out; out = []
    fn(*args)
    got = [l.strip() for l in out if not l.strip().startswith(";")]
    out = save
    return got

def build_diag():
    cm("diagonal image")
    vm.wait(lambda t: t == "dw")
    st("dwin")
    for i in range(7):
        q = vB1 + 8 + 4 * i
        for k in range(4): e("v_and_b32 v%d, v%d, v%d" % (q + k, vM + k, vDW + i))
    for i in range(7):
        e("ds_write_b128 v%d, %s offset:%d" % (vTmp, vr(vB1 + 8 + 4 * i, 4), IMG + i * 4096))
    late = capture(setup_late)
    for l in late[:24]: e(l)
    late = late[24:]
    st("img")
    e("s_waitcnt lgkmcnt(0)")
    e("s_barrier")
    st("bar")
    per = (len(late) + 9) // 10
    for f in range(60):
        cg, tp = f // 5, f % 5
        a, off = (vIA, tp * 3072) if tp < 3 else ((vIA + 1, 6 * 3072) if tp == 3 else (vIA + 2, 8 * 3072))
        e("ds_read_b128 %s, v%d offset:%d" % (ar(4 * f, 4), a, IMG + off + cg * 256))
        if f % 6 == 5:
            vm.pop()
            for l in late[:per]: e(l)
            late = late[per:]
    assert not late
    st("diag")

def tables():
    def unpack_scale(src, dst, scale):
        e("s_mov_b32 s%d, 0x%08x" % (sT0, f2u(scale)))
        for h in range(2):
            e("v_lshlrev_b32 v%d, 16, v%d" % (dst + 2 * h, src + h))
            e("v_and_b32 v%d, 0xffff0000, v%d" % (dst + 2 * h + 1, src + h))
        for k in range(4): e("v_mul_f32 v%d, s%d, v%d" % (dst + k, sT0, dst + k))
    unpack_scale(vTB, vTB + 8, SA)
    unpack_scale(vTB + 2, vTB + 12, SA)
    unpack_scale(vTB + 4, vTB + 16, 1.0 / SA)
    e("v_add_u32 v%d, %d, v%d" % (vTmp + 1, TAB_B1, vTmp))
    e("v_cmp_gt_u32 vcc, 192, v0")
    e("s_and_saveexec_b64 %s, vcc" % sr(sEx, 2))
    e("ds_write_b128 v%d, %s" % (vTmp + 1, vr(vTB + 8, 4)))
    e("v_cmp_gt_u32 vcc, 48, v0")
    e("s_and_b64 exec, exec, vcc")
    e("ds_write_b128 v%d, %s offset:%d" % (vTmp + 1, vr(vTB + 12, 4), TAB_B2 - TAB_B1))
    e("ds_write_b128 v%d, %s offset:%d" % (vTmp + 1, vr(vTB + 16, 4), TAB_G - TAB_B1))
    e("s_mov_b64 exec, -1")

NR = 6; PD = NR - 1
def conv_rd(f, toff):
    cg, tp = f // 5, f % 5
    return "ds_read_b128 %s, v%d offset:%d" % (vr(vCB + 4 * (f % NR), 4), vCA + tp * 4 + cg % 4, toff + (cg // 4) * 128)

def res_dst(t, m):
    if t == 0: return vr(vR0 + 4 * m, 4)
    if t == 1: return vr(vR1 + 4 * m, 4) if m < 2 else ar(aR1 + 4 * (m - 2), 4)
    return ar(aR2 + 4 * m, 4)
def res_rd(t, m):
    return "ds_read_b128 %s, v%d offset:%d" % (res_dst(t, m), vRA + m % 2, t * 4 * XROW + (m // 2) * 128)

s1 = vS; s2 = vS + 2
def conv_mfma(t, npop):
    toff = t * 4 * XROW
    pend = []
    def stats(cg):
        ops = []
        for i in range(4):
            y = vY + 4 * cg + i
            if cg == 0 and i < 2:
                ops.append("v_mov_b32 v%d, v%d" % (s1 + i, y))
                ops.append("v_mul_f32 v%d, v%d, v%d" % (s2 + i, y, y))
            else:
                ops.append("v_add_f32 v%d, v%d, v%d" % (s1 + i % 2, s1 + i % 2, y))
                ops.append("v_fmac_f32 v%d, v%d, v%d" % (s2 + i % 2, y, y))
        return ops
    NI = 6
    e("s_waitcnt lgkmcnt(%d)" % (PD - 1))
    for f in range(60):
        cg, tp = f // 5, f % 5
        d = vr(vY + 4 * cg, 4)
        e("v_mfma_f32_16x16x32_bf16 %s, %s, %s, %s" % (d, ar(4 * f, 4), vr(vCB + 4 * (f % NR), 4), d if tp else "0"))
        if f + 1 < 60: e("s_waitcnt lgkmcnt(%d)" % (min(59, f + PD - 1) - (f + 1)))
        if f + PD < 60: e(conv_rd(f + PD, toff))
        if tp == 2 and 1 <= cg <= NI: pend += stats(cg - 1)
        if npop and f % npop == 0: vm.pop()
        if pend: e(pend.pop(0))
    while pend: e(pend.pop(0))
    return NI

def ln_stats(first_cg, init=False):
    u1, u2 = vS + 6, vS + 8
    for cg in range(first_cg, 12):
        for i in (0, 2):
            y = vr(vY + 4 * cg + i, 2)
            a1, a2 = (s1, s2) if i == 0 else (u1, u2)
            if (init and cg == 0) or (i == 2 and cg == first_cg):
                e("v_pk_add_f32 %s, %s, 0 op_sel_hi:[1,0]" % (vr(a1, 2), y))
                e("v_pk_mul_f32 %s, %s, %s" % (vr(a2, 2), y, y))
            else:
                e("v_pk_add_f32 %s, %s, %s" % (vr(a1, 2), vr(a1, 2), y))
                e("v_pk_fma_f32 %s, %s, %s, %s" % (vr(a2, 2), y, y, vr(a2, 2)))
    e("v_pk_add_f32 %s, %s, %s" % (vr(s1, 2), vr(s1, 2), vr(u1, 2)))
    e("v_pk_add_f32 %s, %s, %s" % (vr(s2, 2), vr(s2, 2), vr(u2, 2)))

def ln_reduce(fill):
    fill = list(fill)
    def gap(n):
        f = fill.pop(0) if fill else []
        for l in f: e(l)
        if len(f) < n: e("s_nop %d" % (n - len(f) - 1))
    a, b = vS + 4, vS + 5
    e("v_add_f32 v%d, v%d, v%d" % (a, s1, s1 + 1))
    e("v_add_f32 v%d, v%d, v%d" % (b, s2, s2 + 1))
    gap(2)
    e("v_permlane32_swap_b32 v%d, v%d" % (a, b))
    e("v_add_f32 v%d, v%d, v%d" % (a, a, b))
    e("v_mov_b32 v%d, v%d" % (b, a))
    gap(2)
    e("v_permlane16_swap_b32 v%d, v%d" % (a, b))
    e("v_add_f32 v%d, v%d, v%d" % (a, a, b))
    e("v_mul_f32 v%d, 0x%08x, v%d" % (a, f2u(1.0 / 192.0), a))
    e("v_mov_b32 v%d, v%d" % (b, a))
    gap(2)
    e("v_permlane32_swap_b32 v%d, v%d" % (a, b))
    e("v_fma_f32 v%d, -v%d, v%d, v%d" % (b, a, a, b))
    e("v_max_f32 v%d, 0, v%d" % (b, b))
    e("v_add_f32 v%d, 0x%08x, v%d" % (b, f2u(1e-5), b))
    e("v_rsq_f32 v%d, v%d" % (b, b))
    gap(1)
    e("v_mul_f32 v%d, 0x%08x, v%d" % (vS + 6, f2u(SA), b))
    e("v_mul_f32 v%d, v%d, v%d" % (vS + 8, a, vS + 6))
    for f in fill:
        for l in f: e(l)

def ln_norm(t):
    sc, sh = vS + 6, vS + 8
    LAG = 6
    for k in range(24 + LAG):
        if k < 24:
            y = vY + 2 * k
            e("v_pk_fma_f32 %s, %s, %s, %s op_sel_hi:[1,0,0] neg_lo:[0,0,1] neg_hi:[0,0,1]" % (vr(y, 2), vr(y, 2), vr(sc, 2), vr(sh, 2)))
        if k >= LAG:
            j = k - LAG
            e("v_cvt_pk_bf16_f32 v%d, v%d, v%d" % (vB1 + 24 * t + j, vY + 2 * j, vY + 2 * j + 1))

def prologue(L):
    tag = "b%d" % L
    if L:
        for tg, l in x_items(14): vm.queue(tg, l)
    R = 15 if L else 14
    vm.wait(lambda t: t[0] == "x" and t[1] < 6)
    e("s_waitcnt lgkmcnt(0)")
    e("s_barrier")
    st("x0in")
    for f in range(PD): e(conv_rd(f, 0))
    set_dma_slot(0)
    e("s_mov_b32 s%d, 0" % sW1off)
    for i in range(6):
        sc, ins = dma_w(i, 1); vm.queue("w0", sc + [ins])
    for t in range(3):
        ni = conv_mfma(t, 4)
        st("mf%d" % t)
        while t == 1 and vm.pending: vm.pop()
        if t == 2 and L:
            e("s_sub_u32 s%d, 4, s%d" % (sT0, sWave))
            e("s_mul_i32 s%d, s%d, %d" % (sT0, sT0, XROW))
            vL = vB1 + 72
            for w in range(4):
                if w < 3:
                    e("s_cmp_lg_u32 s%d, %d" % (sWave, w))
                    e("s_cbranch_scc1 L_lc%d" % (w + 1))
                fs = list(range(15 * w, 15 * w + 15))
                for f in fs:
                    k = vCA + (f % 5) * 4 + (f // 5) % 4
                    e("v_add_u32 v%d, s%d, v%d" % (k, sT0, k))
                for f in fs[:PD]: e(conv_rd(f, 8 * XROW))
                e("s_waitcnt lgkmcnt(%d)" % (PD - 1))
                for n, f in enumerate(fs):
                    d = vr(vL + 4 * (n // 5), 4)
                    e("v_mfma_f32_16x16x32_bf16 %s, %s, %s, %s" % (d, ar(4 * f, 4), vr(vCB + 4 * (f % NR), 4), d if f % 5 else "0"))
                    if n + 1 < 15: e("s_waitcnt lgkmcnt(%d)" % (min(14, n + PD - 1) - (n + 1)))
                    if n + PD < 15: e(conv_rd(f + PD, 8 * XROW))
                if w < 3:
                    e("s_branch L_lcj")
                    lab("L_lc%d" % (w + 1))
            lab("L_lcj")
        for m in range(6): e(res_rd(t, m))
        if t == 2 and L:
            e("s_sub_u32 s%d, 12, s%d" % (sT1, sWave))
            e("s_mul_i32 s%d, s%d, %d" % (sT1, sT1, XROW))
            e("s_lshr_b32 s%d, s%d, 1" % (sT2, sWave))
            e("s_lshl_b32 s%d, s%d, 7" % (sT2, sT2))
            e("s_add_u32 s%d, s%d, s%d" % (sT1, sT1, sT2))
            e("s_and_b32 s%d, s%d, 1" % (sT2, sWave))
            e("s_lshl_b32 s%d, s%d, 6" % (sT2, sT2))
            e("v_xor_b32 v%d, s%d, v%d" % (vRA, sT2, vRA))
            e("v_add_u32 v%d, s%d, v%d" % (vRA, sT1, vRA))
            e("s_mul_i32 s%d, s%d, 3072" % (sT0, sWave))
            e("v_lshlrev_b32 v%d, 4, v%d" % (vTmp, vLane))
            e("v_add_u32 v%d, s%d, v%d" % (vTmp + 1, sT0, vTmp))
            e("ds_read_b128 %s, v%d" % (vr(vCB, 4), vRA))
            e("ds_read_b128 %s, v%d offset:256" % (vr(vCB + 4, 4), vRA))
            for k in range(3): e("ds_write_b128 v%d, %s offset:%d" % (vTmp + 1, vr(vB1 + 72 + 4 * k, 4), XCH + k * 1024))
        ln_stats(ni)
        fill = []
        if t < 2:
            need = [10, R][t]
            sync = capture(vm.wait, lambda x: x[0] == "x" and x[1] < need) + ["s_waitcnt lgkmcnt(0)", "s_barrier"]
            rds = [conv_rd(f, (t + 1) * 4 * XROW) for f in range(PD)]
            fill = [[], [], sync + rds]
            if t == 1:
                fill.append(capture(set_dma_slot, SLOT) + ["s_mov_b32 s%d, 128" % sW1off, "s_mov_b32 s%d, 0" % sW2off])
                for kind in (1, 2):
                    for i in range(6):
                        sc, ins = dma_w(i, kind); vm.queue("w1", sc + [ins])
        ln_reduce(fill)
        ln_norm(t)
        if t == 0:
            tables()
            e("s_waitcnt lgkmcnt(0)")
        st("conv%d" % t)
    while vm.pending: vm.pop()
    e("s_waitcnt vmcnt(0) lgkmcnt(0)")
    e("s_barrier")
    if L:
        for cg in range(12): e("ds_read_b128 %s, v%d offset:%d" % (vr(vY + 4 * cg, 4), vTmp, XCH + cg * 1024))
        e("s_cmp_eq_u32 s%d, 0" % sWave)
        e("s_cselect_b32 s%d, 0, %d" % (sT0, OOB))
        e("v_add_u32 v%d, s%d, v%d" % (vTmp + 1, sT0, vTab))
        e("s_waitcnt lgkmcnt(0)")
        ln_stats(0, init=True)
        ln_reduce([])
        ln_norm(3)
        for k in range(8): e("v_mov_b32 v%d, v%d" % (vRL + k, vCB + k))
        e("v_mov_b32 v%d, 0" % (vPL + 2))
        e("v_mov_b32 v%d, 0" % (vPL + 3))
    st("conv3")

def acc_init(L):
    r = []
    for ct in range(12):
        for t in range(3):
            r.append("ds_read_b128 %s, v%d offset:%d" % (ar(48 * t + 4 * ct, 4), vTab, (ct // 2) * 128 + (ct % 2) * 16))
        if L:
            r.append("ds_read_b128 %s, v%d offset:%d" % (ar(144 + 4 * ct, 4), vTmp + 1, (ct // 2) * 128 + (ct % 2) * 16))
    return r

def gelu_pair(x0, x1, dst, tmp):
    a, b = tmp, tmp + 1
    if opt.gelu == 1:
        return [("v_fma_f32 v%d, -v%d, v%d, -s%d" % (a, x0, x0, sK), 4), ("v_fma_f32 v%d, -v%d, v%d, -s%d" % (b, x1, x1, sK), 4),
                ("v_mul_f32 v%d, v%d, v%d" % (a, x0, a), 4), ("v_mul_f32 v%d, v%d, v%d" % (b, x1, b), 4),
                ("v_exp_f32 v%d, v%d" % (a, a), 8), ("v_exp_f32 v%d, v%d" % (b, b), 8),
                ("v_add_f32 v%d, 1.0, v%d" % (a, a), 4), ("v_add_f32 v%d, 1.0, v%d" % (b, b), 4),
                ("v_rcp_f32 v%d, v%d" % (a, a), 8), ("v_rcp_f32 v%d, v%d" % (b, b), 8),
                ("v_mul_f32 v%d, v%d, v%d" % (a, x0, a), 4), ("v_mul_f32 v%d, v%d, v%d" % (b, x1, b), 4),
                ("v_cvt_pk_bf16_f32 v%d, v%d, v%d" % (dst, a, b), 4)]
    sd = "dst_sel:WORD_1 dst_unused:UNUSED_PRESERVE src0_sel:WORD_1"
    return [("v_cvt_pk_f16_f32 v%d, v%d, v%d" % (a, x0, x1), 4),
            ("v_pk_fma_f16 v%d, v%d, v%d, s%d" % (b, a, a, sK), 4),
            ("v_pk_mul_f16 v%d, v%d, v%d neg_lo:[1,0] neg_hi:[1,0]" % (a, a, b), 4),
            ("v_exp_f16 v%d, v%d" % (b, a), 8),
            ("v_exp_f16_sdwa v%d, v%d %s" % (b, a, sd), 8),
            ("v_pk_add_f16 v%d, v%d, 1.0 op_sel_hi:[1,0]" % (a, b), 4),
            ("v_rcp_f16 v%d, v%d" % (b, a), 8),
            ("v_rcp_f16_sdwa v%d, v%d %s" % (b, a, sd), 8),
            ("v_fma_mix_f32 v%d, v%d, v%d, 0 op_sel_hi:[0,1,0]" % (a, x0, b), 4),
            ("v_fma_mix_f32 v%d, v%d, v%d, 0 op_sel:[0,1,0] op_sel_hi:[0,1,0]" % (b, x1, b), 4),
            ("v_cvt_pk_bf16_f32 v%d, v%d, v%d" % (dst, a, b), 4)]

def gelu_ops(c, L):
    hb = vH + 24 * (c % 2); pb = vP + 12 * (c % 2)
    quads = []
    for t in range(3):
        for ep in range(2):
            quads.append((hb + 8 * t + 4 * ep, pb + 4 * t + 2 * ep))
    if L and c % 2 == 0: quads.append((vHL, vPL))
    ops = []
    for n, (x, d) in enumerate(quads):
        tmp = vT + 4 * (n % 2)
        A = gelu_pair(x, x + 1, d, tmp); B = gelu_pair(x + 2, x + 3, d + 1, tmp + 2)
        if opt.gelu == 1:
            for k in range(0, 12, 2): ops += [A[k], A[k + 1], B[k], B[k + 1]]
            ops += [A[12], B[12]]
        else:
            for k in range(len(A)): ops += [A[k], B[k]]
    return ops

class Frag: pass

def step_scalars():
    return ["s_add_u32 s%d, s%d, s%d" % (sM1, sM1, sDel2),
            "s_add_u32 s%d, s%d, s%d" % (sM2, sM2, sDel2),
            "s_add_u32 s%d, s%d, 128" % (sW1off, sW1off),
            "s_add_u32 s%d, s%d, 24576" % (sW2off, sW2off),
            "s_cmp_ge_u32 s%d, 1536" % sW1off,
            "s_cselect_b32 s%d, 0, s%d" % (S_W1 + 2, S_W1 + 2),
            "s_mov_b32 s%d, s%d" % (sT0, sDel1),
            "s_mov_b32 s%d, s%d" % (sDel1, sDel2),
            "s_mov_b32 s%d, s%d" % (sDel2, sDelta),
            "s_sub_u32 s%d, s%d, 1" % (sCnt, sCnt),
            "s_cmp_lg_u32 s%d, 0" % sCnt]

def build_main(L, c_lo, c_hi, virt, xds={}, xval={}):
    groups = []
    for c in range(c_lo, c_hi + 1 + (1 if virt else 0)):
        step = (c + 1) // 2
        if c + 1 <= 23 or virt:
            c1 = c + 1
            for ep in range(2):
                pos = 2 * (c1 % 2) + ep
                for kb in range(6):
                    g = Frag(); g.kind = 1; g.period = c; g.step = step; g.pos = pos; g.kb = kb; g.chunk = c1; g.ep = ep
                    groups.append(g)
        if c - 1 >= 0:
            c2 = c - 1
            for ct in range(12):
                g = Frag(); g.kind = 2; g.period = c; g.step = step; g.ct = ct; g.chunk = c2
                groups.append(g)
    N = len(groups)
    D, R = opt.D, opt.R
    assert 24 % R == 0 and D < R and D <= 5
    nbias = 0
    for n, g in enumerate(groups):
        g.slot = aRing + 4 * (n % R)
        g.reads = []
        if g.kind == 1:
            if g.kb == 0:
                g.bias = vBias + 4 * (nbias % 2); nbias += 1
                g.reads.append("ds_read_b128 %s, v%d" % (vr(g.bias, 4), vAb + g.pos))
            for h in range(2):
                g.reads.append("ds_read_b64_tr_b16 %s, v%d offset:%d" % (ar(g.slot + 2 * h, 2), vA1 + g.pos, (g.kb * 4 + h * 2) * 1024))
            hb = vH + 24 * (g.chunk % 2)
            g.mf = []
            tiles = [0, 1, 2] + ([3] if (L and g.pos == 0) else [])
            for t in tiles:
                d = (hb + 8 * t + 4 * g.ep) if t < 3 else vHL
                cc = vr(g.bias, 4) if g.kb == 0 else vr(d, 4)
                g.mf.append("v_mfma_f32_16x16x32_bf16 %s, %s, %s, %s" % (vr(d, 4), ar(g.slot, 4), vr(vB1 + 24 * t + 4 * g.kb, 4), cc))
            g.upd = []
            if g.kb == 5: g.upd = ["v_add_u32 v%d, s%d, v%d" % (vA1 + g.pos, sDelta, vA1 + g.pos)]
            if g.kb == 0: g.upd = ["v_add_u32 v%d, 0x100, v%d" % (vAb + g.pos, vAb + g.pos)]
        else:
            m, o = g.ct // 2, g.ct % 2
            for h in range(2):
                pos = 2 * (g.chunk % 2) + h
                g.reads.append("ds_read_b64_tr_b16 %s, v%d offset:%d" % (ar(g.slot + 2 * h, 2), vA2 + pos, m * 512 + o * 8))
            pb = vP + 12 * (g.chunk % 2)
            g.mf = []
            tiles = [0, 1, 2] + ([3] if (L and g.chunk % 2 == 0) else [])
            for t in tiles:
                acc = ar(48 * t + 4 * g.ct, 4)
                g.mf.append("v_mfma_f32_16x16x32_bf16 %s, %s, %s, %s" % (acc, ar(g.slot, 4), vr(pb + 4 * t, 4) if t < 3 else vr(vPL, 4), acc))
            g.upd = []
            if g.ct == 11 and virt:
                g.upd = ["v_add_u32 v%d, s%d, v%d" % (vA2 + 2 * (g.chunk % 2) + h, sDelta, vA2 + 2 * (g.chunk % 2) + h) for h in range(2)]
    steps = [[] for _ in range(13)]
    issued = [0]; lastseq = {}
    pre = []
    def issue(n, dst):
        for r in groups[n].reads:
            dst.append(r); issued[0] += 1
        lastseq[n] = issued[0]
    for n in range(D): issue(n, pre)
    for n in range(D): pre += groups[n].upd
    first_wait = "s_waitcnt lgkmcnt(%d)" % (issued[0] - lastseq[0])
    for c in range(c_lo, c_hi + 1):
        step = (c + 1) // 2
        dst = steps[step]
        gs = [k for k in range(N) if groups[k].period == c]
        val = gelu_ops(c, L) if 0 <= c <= 23 else []
        val = val + [(x, 4) for x in xval.get(c, [])]
        xd = list(xds.get(c, []))
        nxd = (len(xd) + len(gs) - 1) // len(gs)
        if c == c_lo:
            burst = 0
            while val and burst < 120:
                pre.append(val[0][0]); burst += val[0][1]; val = val[1:]
            pre.append(first_wait)
        dmas = []; scal = []
        if step <= 11:
            if c % 2 == 1: dmas = [dma_w(i, 1) for i in range(6)] + [dma_w(i, 2) for i in range(6)]
            else: scal = step_scalars()
        nm = sum(len(groups[k].mf) for k in gs)
        tot = 8 * nm + sum(x[1] for x in val) + 12 * len(dmas) + 4 * len(xd)
        for k in gs:
            if k + D < N: tot += 4 * len(groups[k + D].reads) + 4 * len(groups[k + D].upd)
        t = 0.0; vi = 0; mi = 0
        for gi, k in enumerate(gs):
            g = groups[k]
            for j, m in enumerate(g.mf):
                dst.append(m); t += 8; mi += 1
                extra = []
                if j == len(g.mf) - 1 and k + 1 < N:
                    dst.append("s_waitcnt lgkmcnt(%d)" % min(15, issued[0] - lastseq[k + 1]))
                if j == 0:
                    if gi < len(dmas): dst.append(dmas[gi][0][0])
                    elif scal: dst.append(scal.pop(0))
                    if k + D < N:
                        issue(k + D, dst); t += 4 * len(groups[k + D].reads)
                        extra = groups[k + D].upd
                if j == len(g.mf) - 1:
                    for _ in range(nxd):
                        if xd: dst.append(xd.pop(0)); issued[0] += 1; t += 4
                if j == 1:
                    if gi < len(dmas):
                        dst.append(dmas[gi][0][1]); dst.append(dmas[gi][1]); t += 12
                    elif gi == len(gs) - 1 and step <= 11 and c % 2 == 0:
                        dst.append("s_mov_b32 s%d, s%d" % (sDelta, sT0))
                for x in extra: dst.append(x); t += 4
                lim = mi * tot / nm
                while vi < len(val) and t + val[vi][1] <= lim + 2:
                    dst.append(val[vi][0]); t += val[vi][1]; vi += 1
        while vi < len(val): dst.append(val[vi][0]); vi += 1
        assert not scal and not xd
    return pre, steps

def main_part(L):
    tag = "b%d" % L
    ai = acc_init(L)
    pre, steps = build_main(L, -1, 22, True, xds={-1: ai[:len(ai) // 2], 0: ai[len(ai) // 2:]})
    xd24, xv23, xv24 = epi_prep(L)
    pre12, steps12 = build_main(L, 23, 24, False, xds={24: xd24}, xval={23: xv23, 24: xv24})
    for j in range(3, 12): assert steps[j] == steps[2], j
    assert len(steps[1]) == len(steps[2])
    steps[1] = steps[2]
    e("s_mov_b32 s%d, 0x%08x" % (sK, f2u(KK) if opt.gelu == 1 else f2h(KK) * 0x10001))
    set_dma_slot(2 * SLOT)
    e("s_mov_b32 s%d, 256" % sW1off)
    e("s_mov_b32 s%d, 24576" % sW2off)
    e("s_mov_b32 s%d, %d" % (sDelta, SLOT))
    e("s_mov_b32 s%d, %d" % (sDel1, SLOT))
    e("s_mov_b32 s%d, %d" % (sDel2, -2 * SLOT))
    e("s_mov_b32 s%d, 12" % sCnt)
    for s in pre: e(s)
    for s in steps[0]: e(s)
    e("s_waitcnt vmcnt(0)")
    e("s_barrier")
    st("step0")
    out.append(".p2align 6")
    lab("L_loop_%s" % tag)
    for s in steps[1]: e(s)
    e("s_waitcnt vmcnt(0)")
    e("s_barrier")
    e("s_cbranch_scc1 L_loop_%s" % tag)
    st("loop")
    epi_scalars(L)
    for s in pre12: e(s)
    for s in steps12[12]: e(s)
    st("p24")
    epilogue(L)

RED = SLOT
STG = 2 * SLOT
vG = vH
vWA = vA1
vRd = vA1 + 2
vRdl = [vA1 + 2, vA1 + 3, vAb]
vSt = vAb + 1
vX0 = vB1 + 48
def epi_prep(L):
    xd = ["ds_read_b128 %s, v%d offset:%d" % (vr(vG + 4 * ct, 4), vTab, TAB_G - TAB_B2 + (ct // 2) * 128 + (ct % 2) * 16) for ct in range(12)]
    xv23 = []
    if L:
        xv23 = ["v_lshlrev_b32 v%d, 4, v%d" % (vTmp, vLane), "v_add_u32 v%d, s%d, v%d" % (vTmp + 1, sT3, vTmp)]
        xd += ["ds_write_b128 v%d, %s offset:%d" % (vTmp + 1, ar(144 + 4 * ct, 4), ct * 1024) for ct in range(12)]
    t0, t1 = vAb + 2, vAb + 3
    xv = ["v_and_b32 v%d, 15, v%d" % (t0, vLane), "v_lshrrev_b32 v%d, 4, v%d" % (t1, vLane),
          "v_mul_u32_u24 v%d, 384, v%d" % (vWA, t0), "v_and_b32 v%d, 7, v%d" % (t0, t0),
          "v_xor_b32 v%d, v%d, v%d" % (t0, t0, t1), "v_lshl_add_u32 v%d, v%d, 4, v%d" % (vWA, t0, vWA),
          "v_add_u32 v%d, s%d, v%d" % (vWA, sT2, vWA), "v_xor_b32 v%d, 64, v%d" % (vWA + 1, vWA)]
    for k in range(3):
        xv += ["v_add_u32 v%d, %d, v%d" % (t0, 64 * k, vLane), "v_mul_u32_u24 v%d, 2731, v%d" % (t1, t0),
               "v_bfe_u32 v%d, v%d, 16, 3" % (t1, t1), "v_xor_b32 v%d, v%d, v%d" % (t0, t0, t1),
               "v_lshlrev_b32 v%d, 4, v%d" % (t0, t0), "v_add_u32 v%d, s%d, v%d" % (vRdl[k], sT2, t0)]
    xv += ["v_lshlrev_b32 v%d, 4, v%d" % (vSt, vLane), "v_add_u32 v%d, s%d, v%d" % (vSt, sT1, vSt)]
    for k in range(12):
        xv += ["v_lshlrev_b32 v%d, 16, v%d" % (vX0 + 2 * k, vR0 + k), "v_and_b32 v%d, 0xffff0000, v%d" % (vX0 + 2 * k + 1, vR0 + k)]
    return xd, xv23, xv

def epi_scalars(L):
    e("s_add_u32 s%d, s%d, s%d" % (sT1, sRow0, sWave))
    e("s_mul_i32 s%d, s%d, %d" % (sT1, sT1, ROWB))
    e("s_mul_i32 s%d, s%d, 6144" % (sT2, sStrip))
    e("s_add_u32 s%d, s%d, s%d" % (sT1, sT1, sT2))
    e("s_mul_i32 s%d, s%d, 12288" % (sT2, sWave))
    e("s_add_u32 s%d, s%d, %d" % (sT3, sT2, RED))
    e("s_add_u32 s%d, s%d, %d" % (sT2, sT2, STG))

def epi_group(acc_regs, gam, xr, dst, tmp, unpacked=False):
    if not unpacked:
        for k in range(4):
            e("v_lshlrev_b32 v%d, 16, v%d" % (tmp + 2 * k, xr + k))
            e("v_and_b32 v%d, 0xffff0000, v%d" % (tmp + 2 * k + 1, xr + k))
    for k in range(4):
        e("v_pk_fma_f32 %s, %s, %s, %s" % (vr(tmp + 2 * k, 2), vr(acc_regs + 2 * k, 2), vr(gam + 2 * k, 2), vr(tmp + 2 * k, 2)))
    for k in range(4):
        e("v_cvt_pk_bf16_f32 v%d, v%d, v%d" % (dst + k, tmp + 2 * k, tmp + 2 * k + 1))

def epilogue(L):
    tag = "b%d" % L
    e("s_waitcnt lgkmcnt(0)")
    if L: e("s_barrier")
    st("gam")
    vAc = vB1; vTm = vB1 + 16; vXs = vB1 + 32; vO = vB1 + 40
    vLin = vP
    def store(t, k):
        e("buffer_store_dwordx4 %s, v%d, %s, s%d offen offset:%d%s" % (vr(vLin + 4 * k, 4), vSt, sr(S_O, 4), sT0 if k < 4 else sSo, (k % 4) * 1024, OPOL))
    n = 0
    for t in range(3):
        buf = (t % 2) * 6144
        for m in range(6):
            ac = vAc + 8 * (n % 2); tm = vTm + 8 * (n % 2); o = vO + 4 * (n % 2)
            for k in range(8): e("v_accvgpr_read_b32 v%d, a%d" % (ac + k, 48 * t + 8 * m + k))
            src = res_dst(t, m)
            base = int(src[2:src.index(":")])
            unp = (t == 0 and m < 3)
            if unp: tm = vX0 + 8 * m; xr = None
            elif src[0] == "a":
                xr = vXs + 4 * (n % 2)
                for k in range(4): e("v_accvgpr_read_b32 v%d, a%d" % (xr + k, base + k))
            else: xr = base
            epi_group(ac, vG + 8 * m, xr, o, tm, unp)
            if t > 0:
                if m == 0: e("s_waitcnt lgkmcnt(0)")
                store(t - 1, m)
            e("ds_write_b128 v%d, %s offset:%d" % (vWA + m % 2, vr(o, 4), buf + (m // 2) * 128))
            n += 1
        e("s_mov_b32 s%d, %d" % (sT0, t * 4 * ROWB))
        e("s_mov_b32 s%d, %d" % (sSo, t * 4 * ROWB + 4096))
        for k in range(6):
            e("ds_read_b128 %s, v%d offset:%d" % (vr(vLin + 4 * k, 4), vRdl[k % 3], buf + (k // 3) * 3072))
        st("t%d" % t)
    if L:
        e("s_sub_u32 s%d, 12, s%d" % (sT1, sWave))
        e("s_mul_i32 s%d, s%d, %d" % (sT1, sT1, ROWB))
        e("s_lshl_b32 s%d, s%d, 6" % (sT2, sWave))
        e("s_add_u32 s%d, s%d, s%d" % (sT1, sT1, sT2))
        e("s_lshl_b32 s%d, s%d, 11" % (sT2, sWave))
        e("s_add_u32 s%d, s%d, %d" % (sT2, sT2, RED))
        e("v_add_u32 v%d, s%d, v%d" % (vTmp, sT2, vTmp))
        e("s_lshl_b32 s%d, s%d, 7" % (sT2, sWave))
        e("v_add_u32 v%d, s%d, v%d" % (vTmp + 1, sT2, vTab))
        def lreads(half, base):
            for w in range(4):
                for o in range(2):
                    e("ds_read_b128 %s, v%d offset:%d" % (vr(base + 8 * w + 4 * o, 4), vTmp, w * 12288 + half * 8192 + o * 1024))
            for o in range(2):
                e("ds_read_b128 %s, v%d offset:%d" % (vr(base + 32 + 4 * o, 4), vTmp + 1, TAB_G - TAB_B2 + half * 512 + o * 16))
        bases = [vB1 + 48, vH]
        lreads(0, bases[0])
        e("s_waitcnt lgkmcnt(10)")
        for k in range(6): store(2, k)
        lreads(1, bases[1])
        for half in range(2):
            if half == 1:
                e("s_cmp_ge_u32 s%d, 2" % sWave)
                e("s_cbranch_scc1 L_done_%s" % tag)
            regs = [bases[half] + 8 * w for w in range(4)]
            e("s_waitcnt lgkmcnt(%d)" % (10 if half == 0 else 0))
            for k in range(0, 8, 2):
                e("v_pk_add_f32 %s, %s, %s" % (vr(regs[0] + k, 2), vr(regs[0] + k, 2), vr(regs[1] + k, 2)))
                e("v_pk_add_f32 %s, %s, %s" % (vr(regs[2] + k, 2), vr(regs[2] + k, 2), vr(regs[3] + k, 2)))
            for k in range(0, 8, 2):
                e("v_pk_add_f32 %s, %s, %s" % (vr(regs[0] + k, 2), vr(regs[0] + k, 2), vr(regs[2] + k, 2)))
            xr = vRL + 4 * half
            epi_group(regs[0], bases[half] + 32, xr, xr, vTm)
            e("buffer_store_dwordx4 %s, v%d, %s, s%d offen offset:%d%s" % (vr(xr, 4), vOut, sr(S_O, 4), sT1, half * 256, OPOL))
        lab("L_done_%s" % tag)
    else:
        e("s_waitcnt lgkmcnt(0)")
        for k in range(6): store(2, k)
    if opt.stamps:
        st("epi")
        e("s_waitcnt vmcnt(0)")
        st("drain")
        e("s_waitcnt lgkmcnt(0)")
        if opt.diag >= 0:
            e("s_add_u32 s%d, s%d, 6000" % (sT0, sStamp + 2 * opt.diag))
            lab("L_spin_%s" % tag)
            e("s_memrealtime %s" % sr(sEx, 2))
            e("s_waitcnt lgkmcnt(0)")
            e("s_sub_u32 s%d, s%d, s%d" % (sT1, sEx, sT0))
            e("s_cmp_lt_i32 s%d, 0" % sT1)
            e("s_cbranch_scc1 L_spin_%s" % tag)
            e("s_endpgm")
            return
        srd(S_T, 9, 1 << 20)
        e("s_lshl_b32 s%d, s2, 2" % sT0)
        e("s_add_u32 s%d, s%d, s%d" % (sT0, sT0, sWave))
        e("s_lshl_b32 s%d, s%d, 6" % (sT0, sT0))
        e("v_mov_b32 v2, 0")
        for i in range(len(SSETS[opt.sset])): e("v_writelane_b32 v2, s%d, %d" % (sStamp + 2 * i, i))
        out.append("; STAMPNAMES " + " ".join(SSETS[opt.sset]))
        e("v_writelane_b32 v2, s%d, 11" % sNrows)
        e("v_lshlrev_b32 v3, 2, v%d" % vLane)
        e("v_add_u32 v3, s%d, v3" % sT0)
        e("v_cmp_gt_u32 vcc, 16, v%d" % vLane)
        e("s_and_saveexec_b64 %s, vcc" % sr(sEx, 2))
        e("buffer_store_dword v2, v3, %s, 0 offen" % sr(S_T, 4))
    e("s_endpgm")

import copy
vm = VM()
head()
vm0 = vm
for L in (0, 1):
    vm = copy.deepcopy(vm0)
    lab("L_body%d" % L)
    prologue(L)
    main_part(L)
lab("L_exit")
e("s_endpgm")

ref = open("cdna_kernels/%s.s.ref" % NAME).read().split("\n")
hdr = [l for l in ref if l.startswith(";") and "@launch" not in l]
txt = "\n".join(hdr) + "\n; @launch grid=(252,1,1) block=(256,1,1) lds=%d\n" % LDS_SIZE
txt += """.amdgcn_target "amdgcn-amd-amdhsa--gfx950"
.text
.globl %s_kernel
.p2align 8
.type %s_kernel,@function
%s_kernel:
""" % (NAME, NAME, NAME)
txt += "\n".join(out).replace("PF_LIM", "L_exit-L_pf-0x8000") + "\n"
txt += """.section .rodata,"a"
.p2align 6
.amdhsa_kernel %s_kernel
  .amdhsa_next_free_vgpr 512
  .amdhsa_next_free_sgpr 102
  .amdhsa_accum_offset 256
  .amdhsa_group_segment_fixed_size 0
  .amdhsa_kernarg_size 80
  .amdhsa_user_sgpr_count 2
  .amdhsa_user_sgpr_kernarg_segment_ptr 1
  .amdhsa_system_sgpr_workgroup_id_x 1
.end_amdhsa_kernel
""" % NAME
dst = [a for a in sys.argv[1:] if "=" not in a]
open(dst[0] if dst else "cdna_kernels/%s.s" % NAME, "w").write(txt)
```

```python
import math, struct, sys

NAME = "standalone__modern_conv_block_convnext__vision"
def f2u(f): return struct.unpack("<I", struct.pack("<f", f))[0]
def f2h(f): return struct.unpack("<H", struct.pack("<e", f))[0]

class Opt:
    gelu = 2
    stamps = 0
    D = 4
    R = 6
    xnt = 1
    sset = 0
    diag = -1
    pf = 0
    ont = 0
opt = Opt()
for a in sys.argv[1:]:
    if "=" in a:
        k, v = a.split("="); assert hasattr(opt, k), k; setattr(opt, k, int(v))

C0 = 2.0 * math.sqrt(2.0 / math.pi) * math.log2(math.e)
SA = (C0 * 0.044715) ** (1.0 / 3.0)
KK = C0 / SA
if opt.gelu == 2:
    KK = struct.unpack("<e", struct.pack("<e", KK))[0]
    SA = C0 / KK

XBYTES = 224 * 224 * 384
ROWB = 86016
SLOT = 49152
XB = 49152
XROW = 7168
TAB_B1 = 156672
TAB_B2 = TAB_B1 + 3072
TAB_G = TAB_B2 + 768
DUMMY = TAB_G + 768
IMG = 0
XCH = 24576
LDS_SIZE = 163840
OOB = 0x40000
XPOL = " nt" if opt.xnt else ""
OPOL = ["", " nt", " sc1", " sc0 sc1"][opt.ont]

S_X = 8; S_W1 = 12; S_W2 = 16; S_O = 20; S_T = 24
sWave = 28; sRow0 = 29; sStrip = 30; sNrows = 31
sK = 32; sDelta = 33; sW1off = 35; sW2off = 36; sCnt = 37
sT0 = 38; sT1 = 39; sT2 = 40; sT3 = 41
sEx = 42
sRowB = 44; sM1 = 45; sM2 = 46; sSo = 47; sDel1 = 48; sDel2 = 49
sXm1 = 50; sXm2 = 51; sXs2 = 52; sLoff = 53
sPtr = 60
sStamp = 80

vLane = 1
vA1 = 2; vA2 = 6; vAb = 10
vD1 = 14; vD2 = 15; vOut = 16; vTab = 17; vTmp = 18
vBias = 20
vT = 28
vRL = 36
vHL = 44; vPL = 48
vP = 52
vH = 76
vR0 = 124
vR1 = 148
vX1 = 156; vX2 = 157; vRA = 158
vB1 = 160
vCA = 20
vS = 40
vCB = 52
vY = 76
aRing = 192
aR2 = 216
aR1 = 240

out = []
def e(s): out.append("    " + s)
def lab(s): out.append(s + ":")
def cm(s): out.append("    ; " + s)
SSETS = [["start", "issued", "diag", "conv0", "conv1", "conv2", "conv3", "step0", "loop", "epi", "drain"],
         ["start", "loop", "p24", "gam", "t0", "t1", "t2", "epi", "drain"],
         ["start", "kernarg", "issued", "setup", "dwin", "img", "bar", "diag", "x0in", "mf0", "conv0"]]
def st(name):
    names = SSETS[opt.sset]
    if opt.stamps and name in names: stamp(names.index(name))
def stamp(i):
    if opt.stamps: e("%s s[%d:%d]" % ("s_memrealtime" if opt.stamps == 1 else "s_memtime", sStamp + 2 * i, sStamp + 2 * i + 1))
def vr(b, n): return "v[%d:%d]" % (b, b + n - 1)
def ar(b, n): return "a[%d:%d]" % (b, b + n - 1)
def sr(b, n): return "s[%d:%d]" % (b, b + n - 1)
def srd(s, ptr_slot, nbytes):
    e("s_mov_b32 s%d, s%d" % (s, sPtr + 2 * ptr_slot))
    e("s_and_b32 s%d, s%d, 0xffff" % (s + 1, sPtr + 2 * ptr_slot + 1))
    e("s_mov_b32 s%d, %d" % (s + 2, nbytes))
    e("s_mov_b32 s%d, 0x20000" % (s + 3))

class VM:
    def __init__(self): self.issued = []; self.pending = []
    def issue_now(self, tag, lines):
        for l in lines: e(l)
        self.issued.append(tag)
    def queue(self, tag, lines): self.pending.append((tag, lines))
    def pop(self, n=1):
        for _ in range(n):
            if self.pending:
                tag, lines = self.pending.pop(0); self.issue_now(tag, lines)
    def wait(self, pred):
        while any(pred(t) for t, _ in self.pending): self.pop()
        idx = [i for i, t in enumerate(self.issued) if pred(t)]
        e("s_waitcnt vmcnt(%d)" % (len(self.issued) - 1 - max(idx)))
vm = None

def x_items(r):
    return [(("x", r), ["s_add_u32 m0, s%d, %d" % (sXm1, r * XROW), "s_add_u32 s%d, s%d, s%d" % (sXm2, sXm2, sXs2),
                        "buffer_load_dwordx4 v%d, %s, 0 offen%s lds" % (vX1, sr(S_X, 4), XPOL),
                        "v_add_u32 v%d, s%d, v%d" % (vX1, sRowB, vX1)]),
            (("x", r), ["s_mov_b32 m0, s%d" % sXm2, "s_nop 0",
                        "buffer_load_dwordx4 v%d, %s, 0 offen%s lds" % (vX2, sr(S_X, 4), XPOL),
                        "v_add_u32 v%d, s%d, v%d" % (vX2, sRowB, vX2)])]

vTB = vB1 + 48
vDW = vB1
def head():
    e("s_cmp_ge_u32 s2, 252")
    e("s_cbranch_scc1 L_exit")
    st("start")
    e("s_load_dwordx4 %s, s[0:1], 0" % sr(sPtr, 4))
    e("s_load_dwordx16 %s, s[0:1], 16" % sr(sPtr + 4, 16))
    e("s_and_b32 s%d, s2, 7" % sT0)
    e("s_lshr_b32 s%d, s2, 3" % sT1)
    e("s_and_b32 s%d, s%d, 3" % (sT2, sT0))
    e("s_mul_i32 s%d, s%d, 63" % (sT2, sT2))
    e("s_lshr_b32 s%d, s%d, 2" % (sT0, sT0))
    e("s_lshl_b32 s%d, s%d, 5" % (sT0, sT0))
    e("s_add_u32 s%d, s%d, s%d" % (sT2, sT2, sT0))
    e("s_add_u32 s%d, s%d, s%d" % (sT2, sT2, sT1))
    e("s_cmp_ge_u32 s%d, 126" % sT2)
    e("s_cselect_b32 s%d, 7, 0" % sStrip)
    e("s_cselect_b32 s%d, 126, 0" % sT0)
    e("s_sub_u32 s%d, s%d, s%d" % (sT2, sT2, sT0))
    e("s_mul_i32 s%d, s%d, 9363" % (sT0, sT2))
    e("s_lshr_b32 s%d, s%d, 16" % (sT0, sT0))
    e("s_mul_i32 s%d, s%d, 7" % (sT1, sT0))
    e("s_sub_u32 s%d, s%d, s%d" % (sT1, sT2, sT1))
    e("s_add_u32 s%d, s%d, s%d" % (sStrip, sStrip, sT1))
    e("s_mul_i32 s%d, s%d, %d" % (sRow0, sT0, 112 * 7282))
    e("s_add_u32 s%d, s%d, %d" % (sNrows, sRow0, 112 * 7282))
    e("s_lshr_b32 s%d, s%d, 16" % (sRow0, sRow0))
    e("s_lshr_b32 s%d, s%d, 16" % (sNrows, sNrows))
    e("s_sub_u32 s%d, s%d, s%d" % (sNrows, sNrows, sRow0))
    for r in range(126): assert (r * 9363) >> 16 == r // 7
    for b in range(19): assert (b * 112 * 7282) >> 16 == b * 112 // 9
    e("v_and_b32 v%d, 63, v0" % vLane)
    e("v_lshrrev_b32 v%d, 6, v0" % vTmp)
    e("s_mov_b32 s%d, %d" % (sRowB, ROWB))
    e("v_readfirstlane_b32 s%d, v%d" % (sWave, vTmp))
    t0, t1, t2 = vS, vS + 1, vS + 2
    e("s_sub_u32 s%d, s%d, 1" % (sT0, sRow0))
    e("s_mul_i32 s%d, s%d, %d" % (sT0, sT0, ROWB))
    e("s_mul_i32 s%d, s%d, 6144" % (sT1, sStrip))
    e("s_add_u32 s%d, s%d, s%d" % (sT0, sT0, sT1))
    e("s_sub_u32 s%d, s%d, 384" % (sT0, sT0))
    e("s_cmp_eq_u32 s%d, 0" % sStrip)
    e("s_cselect_b32 s%d, 1, 0" % sT1)
    e("s_cmp_eq_u32 s%d, 13" % sStrip)
    e("s_cselect_b32 s%d, 17, 18" % sT2)
    e("s_sub_u32 s%d, s%d, s%d" % (sT2, sT2, sT1))
    for P in range(512): assert (P * 2731) >> 16 == P // 24
    for vx, add in ((vX1, 0), (vX2, 256)):
        if add: e("v_add_u32 v%d, %d, v0" % (t2, add))
        src = t2 if add else 0
        e("v_mul_u32_u24 v%d, 2731, v%d" % (t0, src))
        e("v_lshrrev_b32 v%d, 16, v%d" % (t0, t0))
        e("v_mul_u32_u24 v%d, 24, v%d" % (t1, t0))
        e("v_sub_u32 v%d, v%d, v%d" % (t1, src, t1))
        e("v_bfe_u32 v%d, v%d, 1, 3" % (vx, t0))
        e("v_xor_b32 v%d, v%d, v%d" % (t1, t1, vx))
        e("v_mul_u32_u24 v%d, 384, v%d" % (vx, t0))
        e("v_lshl_add_u32 v%d, v%d, 4, v%d" % (vx, t1, vx))
        e("v_add_u32 v%d, s%d, v%d" % (vx, sT0, vx))
        e("v_subrev_u32 v%d, s%d, v%d" % (t0, sT1, t0))
        e("v_cmp_gt_u32 vcc, s%d, v%d" % (sT2, t0))
        e("v_mov_b32 v%d, 0x80000000" % t1)
        e("s_nop 0")
        e("v_cndmask_b32 v%d, v%d, v%d, vcc" % (vx, t1, vx))
    e("s_lshl_b32 s%d, s%d, 10" % (sXm1, sWave))
    e("s_add_u32 s%d, s%d, %d" % (sXm1, sXm1, XB))
    e("s_add_u32 s%d, s%d, %d" % (sXm2, sXm1, 4096 - XROW))
    e("s_cmp_eq_u32 s%d, 3" % sWave)
    e("s_cselect_b32 s%d, %d, s%d" % (sXm2, DUMMY, sXm2))
    e("s_cselect_b32 s%d, 0, %d" % (sXs2, XROW))
    e("v_lshrrev_b32 v%d, 1, v0" % t0)
    e("v_lshlrev_b32 v%d, 2, v%d" % (t0, t0))
    e("v_lshlrev_b32 v%d, 3, v0" % t1)
    e("s_waitcnt lgkmcnt(0)")
    st("kernarg")
    if opt.diag == 11:
        srd(S_T, 8, 256)
        e("s_not_b32 s%d, s%d" % (sT3, sStamp))
        e("v_mov_b32 v2, 0")
        e("v_mov_b32 v3, s%d" % sT3)
        vm.issue_now("dw", ["buffer_atomic_umax v3, v2, %s, 0 offen sc1" % sr(S_T, 4)])
    srd(S_T, 1, 3456)
    for i in range(7):
        vm.issue_now("dw", ["buffer_load_dword v%d, v%d, %s, 0 offen offset:%d" % (vDW + i, t0, sr(S_T, 4), i * 512)])
    srd(S_X, 0, XBYTES)
    for r in range(6):
        for tag, l in x_items(r): vm.issue_now(tag, l)
    srd(S_T, 3, 1536)
    vm.issue_now("tab", ["buffer_load_dwordx2 %s, v%d, %s, 0 offen" % (vr(vTB, 2), t1, sr(S_T, 4))])
    srd(S_W1, 5, 384)
    vm.issue_now("tab", ["buffer_load_dwordx2 %s, v%d, %s, 0 offen" % (vr(vTB + 2, 2), t1, sr(S_W1, 4))])
    srd(S_W2, 6, 384)
    vm.issue_now("tab", ["buffer_load_dwordx2 %s, v%d, %s, 0 offen" % (vr(vTB + 4, 2), t1, sr(S_W2, 4))])
    st("issued")
    if opt.pf:
        e("s_getpc_b64 %s" % sr(sEx, 2))
        lab("L_pf")
        e("v_lshlrev_b32 v%d, 7, v0" % (vS + 3))
        for i in range(2):
            vm.issue_now("tab", ["global_load_dword v%d, v%d, %s" % (vTB + 6 + i, vS + 3, sr(sEx, 2))])
            if i == 0: e("v_min_u32 v%d, PF_LIM, v%d" % (vS + 3, vS + 3)); e("v_add_u32 v%d, 0x8000, v%d" % (vS + 3, vS + 3))
    setup_early()
    st("setup")
    for r in range(6, 14):
        for tag, l in x_items(r): vm.queue(tag, l)
    build_diag()
    e("s_cmp_eq_u32 s%d, 13" % sNrows)
    e("s_cbranch_scc1 L_body1")

def dma_w(i, kind):
    if kind == 1:
        return (["s_add_u32 m0, s%d, %d" % (sM1, i * 1024), "s_add_u32 s%d, s%d, %d" % (sSo, sW1off, i * 12288)],
                "buffer_load_dwordx4 v%d, %s, s%d offen lds" % (vD1, sr(S_W1, 4), sSo))
    oo, t = i // 3, i % 3
    return (["s_add_u32 m0, s%d, %d" % (sM2, oo * 3072 + t * 1024), "s_add_u32 s%d, s%d, %d" % (sSo, sW2off, oo * 3072 + t * 128)],
            "buffer_load_dwordx4 v%d, %s, s%d offen lds" % (vD2, sr(S_W2, 4), sSo))

def set_dma_slot(slot_base_imm):
    e("s_mul_i32 s%d, s%d, 6144" % (sM1, sWave))
    e("s_add_u32 s%d, s%d, %d" % (sM1, sM1, slot_base_imm))
    e("s_add_u32 s%d, s%d, 24576" % (sM2, sM1))

vIA = vS + 8
vM = vCB
def setup_early():
    t0, t1, t2, t3 = vS, vS + 1, vS + 2, vS + 3
    px, g, gl, gh = vS + 4, vS + 5, vS + 6, vS + 7
    cm("image masks: entry n=tid+256i holds w at halfword n%8")
    e("v_and_b32 v%d, 1, v0" % t0)
    e("v_lshlrev_b32 v%d, 4, v%d" % (t0, t0))
    e("v_mov_b32 v%d, 0xffff" % t1)
    e("v_lshlrev_b32 v%d, v%d, v%d" % (t1, t0, t1))
    e("v_bfe_u32 v%d, v0, 1, 2" % t2)
    fill = ["v_and_b32 v%d, 15, v%d" % (px, vLane), "v_lshrrev_b32 v%d, 4, v%d" % (g, vLane),
            "v_and_b32 v%d, 1, v%d" % (gl, g), "v_lshrrev_b32 v%d, 1, v%d" % (gh, g),
            "v_lshrrev_b32 v%d, 3, v%d" % (t0, px), "v_xor_b32 v%d, v%d, v%d" % (t0, t0, gh),
            "v_mul_u32_u24 v%d, %d, v%d" % (t0, OOB, t0), "v_lshl_add_u32 v%d, v%d, 4, v%d" % (t0, px, t0)]
    for i in range(4):
        e("v_cmp_eq_u32 vcc, %d, v%d" % (i, t2))
        e(fill[2 * i]); e(fill[2 * i + 1])
        e("v_cndmask_b32 v%d, 0, v%d, vcc" % (vM + i, t1))
    cm("image read addresses (invalid lanes out of range -> read 0)")
    e("v_mul_u32_u24 v%d, %d, v%d" % (t1, 3 * 3072, gl))
    e("v_add_u32 v%d, v%d, v%d" % (vIA, t0, t1))
    e("v_mul_u32_u24 v%d, 3072, v%d" % (t1, gl))
    e("v_add_u32 v%d, v%d, v%d" % (vIA + 1, t0, t1))
    e("v_mul_u32_u24 v%d, %d, v%d" % (t1, OOB, gl))
    e("v_add_u32 v%d, v%d, v%d" % (vIA + 2, t0, t1))
    e("v_lshlrev_b32 v%d, 4, v0" % vTmp)

def setup_late():
    t0, t1, t2, t3 = vS, vS + 1, vS + 2, vS + 3
    cm("W1 dma voffset")
    e("v_lshrrev_b32 v%d, 3, v%d" % (t0, vLane))
    e("v_and_b32 v%d, 7, v%d" % (t1, vLane))
    e("v_and_b32 v%d, 6, v%d" % (t2, t0))
    e("v_xor_b32 v%d, v%d, v%d" % (t1, t1, t2))
    e("v_mul_u32_u24 v%d, 1536, v%d" % (t0, t0))
    e("v_lshl_add_u32 v%d, v%d, 4, v%d" % (vD1, t1, t0))
    e("s_mul_i32 s%d, s%d, %d" % (sT0, sWave, 48 * 1536))
    e("v_add_u32 v%d, s%d, v%d" % (vD1, sT0, vD1))
    cm("W2 dma voffset")
    e("v_bfe_u32 v%d, v%d, 2, 3" % (t0, vLane))
    e("v_mul_u32_u24 v%d, 384, v%d" % (t0, t0))
    e("v_lshrrev_b32 v%d, 5, v%d" % (t1, vLane))
    e("v_lshl_add_u32 v%d, v%d, 6, v%d" % (t0, t1, t0))
    e("v_and_b32 v%d, 3, v%d" % (t1, vLane))
    e("v_lshl_add_u32 v%d, v%d, 4, v%d" % (vD2, t1, t0))
    e("s_mul_i32 s%d, s%d, %d" % (sT0, sWave, 16 * 384))
    e("v_add_u32 v%d, s%d, v%d" % (vD2, sT0, vD2))
    srd(S_W1, 2, 192 * 768 * 2)
    srd(S_W2, 4, 192 * 768 * 2)
    srd(S_O, 7, XBYTES)
    cm("conv B-frag addresses")
    px, g, gl, gh = vS + 4, vS + 5, vS + 6, vS + 7
    e("s_mul_i32 s%d, s%d, %d" % (sT0, sWave, XROW))
    e("s_add_u32 s%d, s%d, %d" % (sT0, sT0, XB))
    for tp in range(5):
        if tp < 3: e("v_add_u32 v%d, %d, v%d" % (t0, tp, px))
        elif tp == 3: e("v_add_u32 v%d, v%d, v%d" % (t0, gl, px))
        else: e("v_add_u32 v%d, 2, v%d" % (t0, px))
        e("v_bfe_u32 v%d, v%d, 1, 3" % (t1, t0))
        if tp == 1:
            e("v_xor_b32 v%d, v%d, v%d" % (t2, t1, g))
        e("v_xor_b32 v%d, v%d, v%d" % (t1, t1, gh))
        e("v_mul_u32_u24 v%d, 384, v%d" % (t0, t0))
        if tp == 1:
            e("v_lshl_add_u32 v%d, v%d, 4, v%d" % (t2, t2, t0))
            e("v_add_u32 v%d, %d, v%d" % (t2, XROW, t2))
            e("v_add_u32 v%d, s%d, v%d" % (vRA, sT0, t2))
            e("v_xor_b32 v%d, 64, v%d" % (vRA + 1, vRA))
        e("v_lshl_add_u32 v%d, v%d, 4, v%d" % (t0, t1, t0))
        if tp < 3:
            e("v_mul_u32_u24 v%d, %d, v%d" % (t1, XROW, gl))
            e("v_add3_u32 v%d, v%d, v%d, s%d" % (vCA + tp * 4, t0, t1, sT0))
        else:
            e("v_add_u32 v%d, %d, v%d" % (t0, 2 * XROW, t0))
            e("v_add_u32 v%d, s%d, v%d" % (vCA + tp * 4, sT0, t0))
        for k in range(1, 4):
            e("v_xor_b32 v%d, %d, v%d" % (vCA + tp * 4 + k, 32 * k, vCA + tp * 4))
    cm("main-loop LDS addresses")
    e("v_bfe_u32 v%d, v%d, 2, 3" % (t0, vLane))
    e("v_lshrrev_b32 v%d, 5, v%d" % (t1, vLane))
    e("v_and_b32 v%d, 3, v%d" % (t2, vLane))
    e("v_lshlrev_b32 v%d, 7, v%d" % (t3, t0))
    e("v_lshl_add_u32 v%d, v%d, 10, v%d" % (t3, t1, t3))
    e("v_lshl_add_u32 v%d, v%d, 3, v%d" % (t3, t2, t3))
    e("v_lshrrev_b32 v%d, 1, v%d" % (vA1, t0))
    e("v_xor_b32 v%d, s%d, v%d" % (vA1, sWave, vA1))
    e("v_lshl_add_u32 v%d, v%d, 5, v%d" % (vA1, vA1, t3))
    for p in range(1, 4): e("v_xor_b32 v%d, %d, v%d" % (vA1 + p, 32 * p, vA1))
    e("v_mul_u32_u24 v%d, 3072, v%d" % (t3, t1))
    e("v_and_b32 v%d, 31, v%d" % (t0, vLane))
    e("v_lshl_add_u32 v%d, v%d, 4, v%d" % (t3, t0, t3))
    e("v_lshlrev_b32 v%d, 4, v%d" % (t2, g))
    for p in range(4):
        e("s_xor_b32 s%d, s%d, %d" % (sT0, sWave, p))
        e("s_mul_i32 s%d, s%d, 6144" % (sT1, sT0))
        e("s_add_u32 s%d, s%d, %d" % (sT1, sT1, SLOT + 24576))
        e("v_add_u32 v%d, s%d, v%d" % (vA2 + p, sT1, t3))
        e("s_lshl_b32 s%d, s%d, 6" % (sT0, sT0))
        e("s_add_u32 s%d, s%d, %d" % (sT0, sT0, TAB_B1))
        e("v_add_u32 v%d, s%d, v%d" % (vAb + p, sT0, t2))
    e("v_lshlrev_b32 v%d, 5, v%d" % (vTab, g))
    e("v_add_u32 v%d, %d, v%d" % (vTab, TAB_B2, vTab))
    e("s_add_u32 s%d, s%d, s%d" % (sT0, sRow0, sWave))
    e("s_mul_i32 s%d, s%d, %d" % (sT0, sT0, ROWB))
    e("s_mul_i32 s%d, s%d, 6144" % (sT1, sStrip))
    e("s_add_u32 s%d, s%d, s%d" % (sT0, sT0, sT1))
    e("v_mul_u32_u24 v%d, 384, v%d" % (vOut, px))
    e("v_lshl_add_u32 v%d, v%d, 4, v%d" % (vOut, g, vOut))
    e("v_add_u32 v%d, s%d, v%d" % (vOut, sT0, vOut))

def capture(fn, *args):
    global out
    save = out; out = []
    fn(*args)
    got = [l.strip() for l in out if not l.strip().startswith(";")]
    out = save
    return got

def build_diag():
    cm("diagonal image")
    vm.wait(lambda t: t == "dw")
    st("dwin")
    for i in range(7):
        q = vB1 + 8 + 4 * i
        for k in range(4): e("v_and_b32 v%d, v%d, v%d" % (q + k, vM + k, vDW + i))
    for i in range(7):
        e("ds_write_b128 v%d, %s offset:%d" % (vTmp, vr(vB1 + 8 + 4 * i, 4), IMG + i * 4096))
    late = capture(setup_late)
    for l in late[:24]: e(l)
    late = late[24:]
    st("img")
    e("s_waitcnt lgkmcnt(0)")
    e("s_barrier")
    st("bar")
    per = (len(late) + 9) // 10
    for f in range(60):
        cg, tp = f // 5, f % 5
        a, off = (vIA, tp * 3072) if tp < 3 else ((vIA + 1, 6 * 3072) if tp == 3 else (vIA + 2, 8 * 3072))
        e("ds_read_b128 %s, v%d offset:%d" % (ar(4 * f, 4), a, IMG + off + cg * 256))
        if f % 6 == 5:
            vm.pop()
            for l in late[:per]: e(l)
            late = late[per:]
    assert not late
    st("diag")

def tables():
    def unpack_scale(src, dst, scale):
        e("s_mov_b32 s%d, 0x%08x" % (sT0, f2u(scale)))
        for h in range(2):
            e("v_lshlrev_b32 v%d, 16, v%d" % (dst + 2 * h, src + h))
            e("v_and_b32 v%d, 0xffff0000, v%d" % (dst + 2 * h + 1, src + h))
        for k in range(4): e("v_mul_f32 v%d, s%d, v%d" % (dst + k, sT0, dst + k))
    unpack_scale(vTB, vTB + 8, SA)
    unpack_scale(vTB + 2, vTB + 12, SA)
    unpack_scale(vTB + 4, vTB + 16, 1.0 / SA)
    e("v_add_u32 v%d, %d, v%d" % (vTmp + 1, TAB_B1, vTmp))
    e("v_cmp_gt_u32 vcc, 192, v0")
    e("s_and_saveexec_b64 %s, vcc" % sr(sEx, 2))
    e("ds_write_b128 v%d, %s" % (vTmp + 1, vr(vTB + 8, 4)))
    e("v_cmp_gt_u32 vcc, 48, v0")
    e("s_and_b64 exec, exec, vcc")
    e("ds_write_b128 v%d, %s offset:%d" % (vTmp + 1, vr(vTB + 12, 4), TAB_B2 - TAB_B1))
    e("ds_write_b128 v%d, %s offset:%d" % (vTmp + 1, vr(vTB + 16, 4), TAB_G - TAB_B1))
    e("s_mov_b64 exec, -1")

NR = 6; PD = NR - 1
def conv_rd(f, toff):
    cg, tp = f // 5, f % 5
    return "ds_read_b128 %s, v%d offset:%d" % (vr(vCB + 4 * (f % NR), 4), vCA + tp * 4 + cg % 4, toff + (cg // 4) * 128)

def res_dst(t, m):
    if t == 0: return vr(vR0 + 4 * m, 4)
    if t == 1: return vr(vR1 + 4 * m, 4) if m < 2 else ar(aR1 + 4 * (m - 2), 4)
    return ar(aR2 + 4 * m, 4)
def res_rd(t, m):
    return "ds_read_b128 %s, v%d offset:%d" % (res_dst(t, m), vRA + m % 2, t * 4 * XROW + (m // 2) * 128)

s1 = vS; s2 = vS + 2
def conv_mfma(t, npop):
    toff = t * 4 * XROW
    pend = []
    def stats(cg):
        ops = []
        for i in range(4):
            y = vY + 4 * cg + i
            if cg == 0 and i < 2:
                ops.append("v_mov_b32 v%d, v%d" % (s1 + i, y))
                ops.append("v_mul_f32 v%d, v%d, v%d" % (s2 + i, y, y))
            else:
                ops.append("v_add_f32 v%d, v%d, v%d" % (s1 + i % 2, s1 + i % 2, y))
                ops.append("v_fmac_f32 v%d, v%d, v%d" % (s2 + i % 2, y, y))
        return ops
    NI = 6
    e("s_waitcnt lgkmcnt(%d)" % (PD - 1))
    for f in range(60):
        cg, tp = f // 5, f % 5
        d = vr(vY + 4 * cg, 4)
        e("v_mfma_f32_16x16x32_bf16 %s, %s, %s, %s" % (d, ar(4 * f, 4), vr(vCB + 4 * (f % NR), 4), d if tp else "0"))
        if f + 1 < 60: e("s_waitcnt lgkmcnt(%d)" % (min(59, f + PD - 1) - (f + 1)))
        if f + PD < 60: e(conv_rd(f + PD, toff))
        if tp == 2 and 1 <= cg <= NI: pend += stats(cg - 1)
        if npop and f % npop == 0: vm.pop()
        if pend: e(pend.pop(0))
    while pend: e(pend.pop(0))
    return NI

def ln_stats(first_cg, init=False):
    u1, u2 = vS + 6, vS + 8
    for cg in range(first_cg, 12):
        for i in (0, 2):
            y = vr(vY + 4 * cg + i, 2)
            a1, a2 = (s1, s2) if i == 0 else (u1, u2)
            if (init and cg == 0) or (i == 2 and cg == first_cg):
                e("v_pk_add_f32 %s, %s, 0 op_sel_hi:[1,0]" % (vr(a1, 2), y))
                e("v_pk_mul_f32 %s, %s, %s" % (vr(a2, 2), y, y))
            else:
                e("v_pk_add_f32 %s, %s, %s" % (vr(a1, 2), vr(a1, 2), y))
                e("v_pk_fma_f32 %s, %s, %s, %s" % (vr(a2, 2), y, y, vr(a2, 2)))
    e("v_pk_add_f32 %s, %s, %s" % (vr(s1, 2), vr(s1, 2), vr(u1, 2)))
    e("v_pk_add_f32 %s, %s, %s" % (vr(s2, 2), vr(s2, 2), vr(u2, 2)))

def ln_reduce(fill):
    fill = list(fill)
    def gap(n):
        f = fill.pop(0) if fill else []
        for l in f: e(l)
        if len(f) < n: e("s_nop %d" % (n - len(f) - 1))
    a, b = vS + 4, vS + 5
    e("v_add_f32 v%d, v%d, v%d" % (a, s1, s1 + 1))
    e("v_add_f32 v%d, v%d, v%d" % (b, s2, s2 + 1))
    gap(2)
    e("v_permlane32_swap_b32 v%d, v%d" % (a, b))
    e("v_add_f32 v%d, v%d, v%d" % (a, a, b))
    e("v_mov_b32 v%d, v%d" % (b, a))
    gap(2)
    e("v_permlane16_swap_b32 v%d, v%d" % (a, b))
    e("v_add_f32 v%d, v%d, v%d" % (a, a, b))
    e("v_mul_f32 v%d, 0x%08x, v%d" % (a, f2u(1.0 / 192.0), a))
    e("v_mov_b32 v%d, v%d" % (b, a))
    gap(2)
    e("v_permlane32_swap_b32 v%d, v%d" % (a, b))
    e("v_fma_f32 v%d, -v%d, v%d, v%d" % (b, a, a, b))
    e("v_max_f32 v%d, 0, v%d" % (b, b))
    e("v_add_f32 v%d, 0x%08x, v%d" % (b, f2u(1e-5), b))
    e("v_rsq_f32 v%d, v%d" % (b, b))
    gap(1)
    e("v_mul_f32 v%d, 0x%08x, v%d" % (vS + 6, f2u(SA), b))
    e("v_mul_f32 v%d, v%d, v%d" % (vS + 8, a, vS + 6))
    for f in fill:
        for l in f: e(l)

def ln_norm(t):
    sc, sh = vS + 6, vS + 8
    LAG = 6
    for k in range(24 + LAG):
        if k < 24:
            y = vY + 2 * k
            e("v_pk_fma_f32 %s, %s, %s, %s op_sel_hi:[1,0,0] neg_lo:[0,0,1] neg_hi:[0,0,1]" % (vr(y, 2), vr(y, 2), vr(sc, 2), vr(sh, 2)))
        if k >= LAG:
            j = k - LAG
            e("v_cvt_pk_bf16_f32 v%d, v%d, v%d" % (vB1 + 24 * t + j, vY + 2 * j, vY + 2 * j + 1))

def prologue(L):
    tag = "b%d" % L
    if L:
        for tg, l in x_items(14): vm.queue(tg, l)
    R = 15 if L else 14
    vm.wait(lambda t: t[0] == "x" and t[1] < 6)
    e("s_waitcnt lgkmcnt(0)")
    e("s_barrier")
    st("x0in")
    for f in range(PD): e(conv_rd(f, 0))
    set_dma_slot(0)
    e("s_mov_b32 s%d, 0" % sW1off)
    for i in range(6):
        sc, ins = dma_w(i, 1); vm.queue("w0", sc + [ins])
    for t in range(3):
        ni = conv_mfma(t, 4)
        st("mf%d" % t)
        while t == 1 and vm.pending: vm.pop()
        if t == 2 and L:
            e("s_sub_u32 s%d, 4, s%d" % (sT0, sWave))
            e("s_mul_i32 s%d, s%d, %d" % (sT0, sT0, XROW))
            vL = vB1 + 72
            for w in range(4):
                if w < 3:
                    e("s_cmp_lg_u32 s%d, %d" % (sWave, w))
                    e("s_cbranch_scc1 L_lc%d" % (w + 1))
                fs = list(range(15 * w, 15 * w + 15))
                for f in fs:
                    k = vCA + (f % 5) * 4 + (f // 5) % 4
                    e("v_add_u32 v%d, s%d, v%d" % (k, sT0, k))
                for f in fs[:PD]: e(conv_rd(f, 8 * XROW))
                e("s_waitcnt lgkmcnt(%d)" % (PD - 1))
                for n, f in enumerate(fs):
                    d = vr(vL + 4 * (n // 5), 4)
                    e("v_mfma_f32_16x16x32_bf16 %s, %s, %s, %s" % (d, ar(4 * f, 4), vr(vCB + 4 * (f % NR), 4), d if f % 5 else "0"))
                    if n + 1 < 15: e("s_waitcnt lgkmcnt(%d)" % (min(14, n + PD - 1) - (n + 1)))
                    if n + PD < 15: e(conv_rd(f + PD, 8 * XROW))
                if w < 3:
                    e("s_branch L_lcj")
                    lab("L_lc%d" % (w + 1))
            lab("L_lcj")
        for m in range(6): e(res_rd(t, m))
        if t == 2 and L:
            e("s_sub_u32 s%d, 12, s%d" % (sT1, sWave))
            e("s_mul_i32 s%d, s%d, %d" % (sT1, sT1, XROW))
            e("s_lshr_b32 s%d, s%d, 1" % (sT2, sWave))
            e("s_lshl_b32 s%d, s%d, 7" % (sT2, sT2))
            e("s_add_u32 s%d, s%d, s%d" % (sT1, sT1, sT2))
            e("s_and_b32 s%d, s%d, 1" % (sT2, sWave))
            e("s_lshl_b32 s%d, s%d, 6" % (sT2, sT2))
            e("v_xor_b32 v%d, s%d, v%d" % (vRA, sT2, vRA))
            e("v_add_u32 v%d, s%d, v%d" % (vRA, sT1, vRA))
            e("s_mul_i32 s%d, s%d, 3072" % (sT0, sWave))
            e("v_lshlrev_b32 v%d, 4, v%d" % (vTmp, vLane))
            e("v_add_u32 v%d, s%d, v%d" % (vTmp + 1, sT0, vTmp))
            e("ds_read_b128 %s, v%d" % (vr(vCB, 4), vRA))
            e("ds_read_b128 %s, v%d offset:256" % (vr(vCB + 4, 4), vRA))
            for k in range(3): e("ds_write_b128 v%d, %s offset:%d" % (vTmp + 1, vr(vB1 + 72 + 4 * k, 4), XCH + k * 1024))
        ln_stats(ni)
        fill = []
        if t < 2:
            need = [10, R][t]
            sync = capture(vm.wait, lambda x: x[0] == "x" and x[1] < need) + ["s_waitcnt lgkmcnt(0)", "s_barrier"]
            rds = [conv_rd(f, (t + 1) * 4 * XROW) for f in range(PD)]
            fill = [[], [], sync + rds]
            if t == 1:
                fill.append(capture(set_dma_slot, SLOT) + ["s_mov_b32 s%d, 128" % sW1off, "s_mov_b32 s%d, 0" % sW2off])
                for kind in (1, 2):
                    for i in range(6):
                        sc, ins = dma_w(i, kind); vm.queue("w1", sc + [ins])
        ln_reduce(fill)
        ln_norm(t)
        if t == 0:
            tables()
            e("s_waitcnt lgkmcnt(0)")
        st("conv%d" % t)
    while vm.pending: vm.pop()
    e("s_waitcnt vmcnt(0) lgkmcnt(0)")
    e("s_barrier")
    if L:
        for cg in range(12): e("ds_read_b128 %s, v%d offset:%d" % (vr(vY + 4 * cg, 4), vTmp, XCH + cg * 1024))
        e("s_cmp_eq_u32 s%d, 0" % sWave)
        e("s_cselect_b32 s%d, 0, %d" % (sT0, OOB))
        e("v_add_u32 v%d, s%d, v%d" % (vTmp + 1, sT0, vTab))
        e("s_waitcnt lgkmcnt(0)")
        ln_stats(0, init=True)
        ln_reduce([])
        ln_norm(3)
        for k in range(8): e("v_mov_b32 v%d, v%d" % (vRL + k, vCB + k))
        e("v_mov_b32 v%d, 0" % (vPL + 2))
        e("v_mov_b32 v%d, 0" % (vPL + 3))
    st("conv3")

def acc_init(L):
    r = []
    for ct in range(12):
        for t in range(3):
            r.append("ds_read_b128 %s, v%d offset:%d" % (ar(48 * t + 4 * ct, 4), vTab, (ct // 2) * 128 + (ct % 2) * 16))
        if L:
            r.append("ds_read_b128 %s, v%d offset:%d" % (ar(144 + 4 * ct, 4), vTmp + 1, (ct // 2) * 128 + (ct % 2) * 16))
    return r

def gelu_pair(x0, x1, dst, tmp):
    a, b = tmp, tmp + 1
    if opt.gelu == 1:
        return [("v_fma_f32 v%d, -v%d, v%d, -s%d" % (a, x0, x0, sK), 4), ("v_fma_f32 v%d, -v%d, v%d, -s%d" % (b, x1, x1, sK), 4),
                ("v_mul_f32 v%d, v%d, v%d" % (a, x0, a), 4), ("v_mul_f32 v%d, v%d, v%d" % (b, x1, b), 4),
                ("v_exp_f32 v%d, v%d" % (a, a), 8), ("v_exp_f32 v%d, v%d" % (b, b), 8),
                ("v_add_f32 v%d, 1.0, v%d" % (a, a), 4), ("v_add_f32 v%d, 1.0, v%d" % (b, b), 4),
                ("v_rcp_f32 v%d, v%d" % (a, a), 8), ("v_rcp_f32 v%d, v%d" % (b, b), 8),
                ("v_mul_f32 v%d, v%d, v%d" % (a, x0, a), 4), ("v_mul_f32 v%d, v%d, v%d" % (b, x1, b), 4),
                ("v_cvt_pk_bf16_f32 v%d, v%d, v%d" % (dst, a, b), 4)]
    sd = "dst_sel:WORD_1 dst_unused:UNUSED_PRESERVE src0_sel:WORD_1"
    return [("v_cvt_pk_f16_f32 v%d, v%d, v%d" % (a, x0, x1), 4),
            ("v_pk_fma_f16 v%d, v%d, v%d, s%d" % (b, a, a, sK), 4),
            ("v_pk_mul_f16 v%d, v%d, v%d neg_lo:[1,0] neg_hi:[1,0]" % (a, a, b), 4),
            ("v_exp_f16 v%d, v%d" % (b, a), 8),
            ("v_exp_f16_sdwa v%d, v%d %s" % (b, a, sd), 8),
            ("v_pk_add_f16 v%d, v%d, 1.0 op_sel_hi:[1,0]" % (a, b), 4),
            ("v_rcp_f16 v%d, v%d" % (b, a), 8),
            ("v_rcp_f16_sdwa v%d, v%d %s" % (b, a, sd), 8),
            ("v_fma_mix_f32 v%d, v%d, v%d, 0 op_sel_hi:[0,1,0]" % (a, x0, b), 4),
            ("v_fma_mix_f32 v%d, v%d, v%d, 0 op_sel:[0,1,0] op_sel_hi:[0,1,0]" % (b, x1, b), 4),
            ("v_cvt_pk_bf16_f32 v%d, v%d, v%d" % (dst, a, b), 4)]

def gelu_ops(c, L):
    hb = vH + 24 * (c % 2); pb = vP + 12 * (c % 2)
    quads = []
    for t in range(3):
        for ep in range(2):
            quads.append((hb + 8 * t + 4 * ep, pb + 4 * t + 2 * ep))
    if L and c % 2 == 0: quads.append((vHL, vPL))
    ops = []
    for n, (x, d) in enumerate(quads):
        tmp = vT + 4 * (n % 2)
        A = gelu_pair(x, x + 1, d, tmp); B = gelu_pair(x + 2, x + 3, d + 1, tmp + 2)
        if opt.gelu == 1:
            for k in range(0, 12, 2): ops += [A[k], A[k + 1], B[k], B[k + 1]]
            ops += [A[12], B[12]]
        else:
            for k in range(len(A)): ops += [A[k], B[k]]
    return ops

class Frag: pass

def step_scalars():
    return ["s_add_u32 s%d, s%d, s%d" % (sM1, sM1, sDel2),
            "s_add_u32 s%d, s%d, s%d" % (sM2, sM2, sDel2),
            "s_add_u32 s%d, s%d, 128" % (sW1off, sW1off),
            "s_add_u32 s%d, s%d, 24576" % (sW2off, sW2off),
            "s_cmp_ge_u32 s%d, 1536" % sW1off,
            "s_cselect_b32 s%d, 0, s%d" % (S_W1 + 2, S_W1 + 2),
            "s_mov_b32 s%d, s%d" % (sT0, sDel1),
            "s_mov_b32 s%d, s%d" % (sDel1, sDel2),
            "s_mov_b32 s%d, s%d" % (sDel2, sDelta),
            "s_sub_u32 s%d, s%d, 1" % (sCnt, sCnt),
            "s_cmp_lg_u32 s%d, 0" % sCnt]

def build_main(L, c_lo, c_hi, virt, xds={}, xval={}):
    groups = []
    for c in range(c_lo, c_hi + 1 + (1 if virt else 0)):
        step = (c + 1) // 2
        if c + 1 <= 23 or virt:
            c1 = c + 1
            for ep in range(2):
                pos = 2 * (c1 % 2) + ep
                for kb in range(6):
                    g = Frag(); g.kind = 1; g.period = c; g.step = step; g.pos = pos; g.kb = kb; g.chunk = c1; g.ep = ep
                    groups.append(g)
        if c - 1 >= 0:
            c2 = c - 1
            for ct in range(12):
                g = Frag(); g.kind = 2; g.period = c; g.step = step; g.ct = ct; g.chunk = c2
                groups.append(g)
    N = len(groups)
    D, R = opt.D, opt.R
    assert 24 % R == 0 and D < R and D <= 5
    nbias = 0
    for n, g in enumerate(groups):
        g.slot = aRing + 4 * (n % R)
        g.reads = []
        if g.kind == 1:
            if g.kb == 0:
                g.bias = vBias + 4 * (nbias % 2); nbias += 1
                g.reads.append("ds_read_b128 %s, v%d" % (vr(g.bias, 4), vAb + g.pos))
            for h in range(2):
                g.reads.append("ds_read_b64_tr_b16 %s, v%d offset:%d" % (ar(g.slot + 2 * h, 2), vA1 + g.pos, (g.kb * 4 + h * 2) * 1024))
            hb = vH + 24 * (g.chunk % 2)
            g.mf = []
            tiles = [0, 1, 2] + ([3] if (L and g.pos == 0) else [])
            for t in tiles:
                d = (hb + 8 * t + 4 * g.ep) if t < 3 else vHL
                cc = vr(g.bias, 4) if g.kb == 0 else vr(d, 4)
                g.mf.append("v_mfma_f32_16x16x32_bf16 %s, %s, %s, %s" % (vr(d, 4), ar(g.slot, 4), vr(vB1 + 24 * t + 4 * g.kb, 4), cc))
            g.upd = []
            if g.kb == 5: g.upd = ["v_add_u32 v%d, s%d, v%d" % (vA1 + g.pos, sDelta, vA1 + g.pos)]
            if g.kb == 0: g.upd = ["v_add_u32 v%d, 0x100, v%d" % (vAb + g.pos, vAb + g.pos)]
        else:
            m, o = g.ct // 2, g.ct % 2
            for h in range(2):
                pos = 2 * (g.chunk % 2) + h
                g.reads.append("ds_read_b64_tr_b16 %s, v%d offset:%d" % (ar(g.slot + 2 * h, 2), vA2 + pos, m * 512 + o * 8))
            pb = vP + 12 * (g.chunk % 2)
            g.mf = []
            tiles = [0, 1, 2] + ([3] if (L and g.chunk % 2 == 0) else [])
            for t in tiles:
                acc = ar(48 * t + 4 * g.ct, 4)
                g.mf.append("v_mfma_f32_16x16x32_bf16 %s, %s, %s, %s" % (acc, ar(g.slot, 4), vr(pb + 4 * t, 4) if t < 3 else vr(vPL, 4), acc))
            g.upd = []
            if g.ct == 11 and virt:
                g.upd = ["v_add_u32 v%d, s%d, v%d" % (vA2 + 2 * (g.chunk % 2) + h, sDelta, vA2 + 2 * (g.chunk % 2) + h) for h in range(2)]
    steps = [[] for _ in range(13)]
    issued = [0]; lastseq = {}
    pre = []
    def issue(n, dst):
        for r in groups[n].reads:
            dst.append(r); issued[0] += 1
        lastseq[n] = issued[0]
    for n in range(D): issue(n, pre)
    for n in range(D): pre += groups[n].upd
    first_wait = "s_waitcnt lgkmcnt(%d)" % (issued[0] - lastseq[0])
    for c in range(c_lo, c_hi + 1):
        step = (c + 1) // 2
        dst = steps[step]
        gs = [k for k in range(N) if groups[k].period == c]
        val = gelu_ops(c, L) if 0 <= c <= 23 else []
        val = val + [(x, 4) for x in xval.get(c, [])]
        xd = list(xds.get(c, []))
        nxd = (len(xd) + len(gs) - 1) // len(gs)
        if c == c_lo:
            burst = 0
            while val and burst < 120:
                pre.append(val[0][0]); burst += val[0][1]; val = val[1:]
            pre.append(first_wait)
        dmas = []; scal = []
        if step <= 11:
            if c % 2 == 1: dmas = [dma_w(i, 1) for i in range(6)] + [dma_w(i, 2) for i in range(6)]
            else: scal = step_scalars()
        nm = sum(len(groups[k].mf) for k in gs)
        tot = 8 * nm + sum(x[1] for x in val) + 12 * len(dmas) + 4 * len(xd)
        for k in gs:
            if k + D < N: tot += 4 * len(groups[k + D].reads) + 4 * len(groups[k + D].upd)
        t = 0.0; vi = 0; mi = 0
        for gi, k in enumerate(gs):
            g = groups[k]
            for j, m in enumerate(g.mf):
                dst.append(m); t += 8; mi += 1
                extra = []
                if j == len(g.mf) - 1 and k + 1 < N:
                    dst.append("s_waitcnt lgkmcnt(%d)" % min(15, issued[0] - lastseq[k + 1]))
                if j == 0:
                    if gi < len(dmas): dst.append(dmas[gi][0][0])
                    elif scal: dst.append(scal.pop(0))
                    if k + D < N:
                        issue(k + D, dst); t += 4 * len(groups[k + D].reads)
                        extra = groups[k + D].upd
                if j == len(g.mf) - 1:
                    for _ in range(nxd):
                        if xd: dst.append(xd.pop(0)); issued[0] += 1; t += 4
                if j == 1:
                    if gi < len(dmas):
                        dst.append(dmas[gi][0][1]); dst.append(dmas[gi][1]); t += 12
                    elif gi == len(gs) - 1 and step <= 11 and c % 2 == 0:
                        dst.append("s_mov_b32 s%d, s%d" % (sDelta, sT0))
                for x in extra: dst.append(x); t += 4
                lim = mi * tot / nm
                while vi < len(val) and t + val[vi][1] <= lim + 2:
                    dst.append(val[vi][0]); t += val[vi][1]; vi += 1
        while vi < len(val): dst.append(val[vi][0]); vi += 1
        assert not scal and not xd
    return pre, steps

def main_part(L):
    tag = "b%d" % L
    ai = acc_init(L)
    pre, steps = build_main(L, -1, 22, True, xds={-1: ai[:len(ai) // 2], 0: ai[len(ai) // 2:]})
    xd24, xv23, xv24 = epi_prep(L)
    pre12, steps12 = build_main(L, 23, 24, False, xds={24: xd24}, xval={23: xv23, 24: xv24})
    for j in range(3, 12): assert steps[j] == steps[2], j
    assert len(steps[1]) == len(steps[2])
    steps[1] = steps[2]
    e("s_mov_b32 s%d, 0x%08x" % (sK, f2u(KK) if opt.gelu == 1 else f2h(KK) * 0x10001))
    set_dma_slot(2 * SLOT)
    e("s_mov_b32 s%d, 256" % sW1off)
    e("s_mov_b32 s%d, 24576" % sW2off)
    e("s_mov_b32 s%d, %d" % (sDelta, SLOT))
    e("s_mov_b32 s%d, %d" % (sDel1, SLOT))
    e("s_mov_b32 s%d, %d" % (sDel2, -2 * SLOT))
    e("s_mov_b32 s%d, 12" % sCnt)
    for s in pre: e(s)
    for s in steps[0]: e(s)
    e("s_waitcnt vmcnt(0)")
    e("s_barrier")
    st("step0")
    out.append(".p2align 6")
    lab("L_loop_%s" % tag)
    for s in steps[1]: e(s)
    e("s_waitcnt vmcnt(0)")
    e("s_barrier")
    e("s_cbranch_scc1 L_loop_%s" % tag)
    st("loop")
    epi_scalars(L)
    for s in pre12: e(s)
    for s in steps12[12]: e(s)
    st("p24")
    epilogue(L)

RED = SLOT
STG = 2 * SLOT
vG = vH
vWA = vA1
vRd = vA1 + 2
vRdl = [vA1 + 2, vA1 + 3, vAb]
vSt = vAb + 1
vX0 = vB1 + 48
def epi_prep(L):
    xd = ["ds_read_b128 %s, v%d offset:%d" % (vr(vG + 4 * ct, 4), vTab, TAB_G - TAB_B2 + (ct // 2) * 128 + (ct % 2) * 16) for ct in range(12)]
    xv23 = []
    if L:
        xv23 = ["v_lshlrev_b32 v%d, 4, v%d" % (vTmp, vLane), "v_add_u32 v%d, s%d, v%d" % (vTmp + 1, sT3, vTmp)]
        xd += ["ds_write_b128 v%d, %s offset:%d" % (vTmp + 1, ar(144 + 4 * ct, 4), ct * 1024) for ct in range(12)]
    t0, t1 = vAb + 2, vAb + 3
    xv = ["v_and_b32 v%d, 15, v%d" % (t0, vLane), "v_lshrrev_b32 v%d, 4, v%d" % (t1, vLane),
          "v_mul_u32_u24 v%d, 384, v%d" % (vWA, t0), "v_and_b32 v%d, 7, v%d" % (t0, t0),
          "v_xor_b32 v%d, v%d, v%d" % (t0, t0, t1), "v_lshl_add_u32 v%d, v%d, 4, v%d" % (vWA, t0, vWA),
          "v_add_u32 v%d, s%d, v%d" % (vWA, sT2, vWA), "v_xor_b32 v%d, 64, v%d" % (vWA + 1, vWA)]
    for k in range(3):
        xv += ["v_add_u32 v%d, %d, v%d" % (t0, 64 * k, vLane), "v_mul_u32_u24 v%d, 2731, v%d" % (t1, t0),
               "v_bfe_u32 v%d, v%d, 16, 3" % (t1, t1), "v_xor_b32 v%d, v%d, v%d" % (t0, t0, t1),
               "v_lshlrev_b32 v%d, 4, v%d" % (t0, t0), "v_add_u32 v%d, s%d, v%d" % (vRdl[k], sT2, t0)]
    xv += ["v_lshlrev_b32 v%d, 4, v%d" % (vSt, vLane), "v_add_u32 v%d, s%d, v%d" % (vSt, sT1, vSt)]
    for k in range(12):
        xv += ["v_lshlrev_b32 v%d, 16, v%d" % (vX0 + 2 * k, vR0 + k), "v_and_b32 v%d, 0xffff0000, v%d" % (vX0 + 2 * k + 1, vR0 + k)]
    return xd, xv23, xv

def epi_scalars(L):
    e("s_add_u32 s%d, s%d, s%d" % (sT1, sRow0, sWave))
    e("s_mul_i32 s%d, s%d, %d" % (sT1, sT1, ROWB))
    e("s_mul_i32 s%d, s%d, 6144" % (sT2, sStrip))
    e("s_add_u32 s%d, s%d, s%d" % (sT1, sT1, sT2))
    e("s_mul_i32 s%d, s%d, 12288" % (sT2, sWave))
    e("s_add_u32 s%d, s%d, %d" % (sT3, sT2, RED))
    e("s_add_u32 s%d, s%d, %d" % (sT2, sT2, STG))

def epi_group(acc_regs, gam, xr, dst, tmp, unpacked=False):
    if not unpacked:
        for k in range(4):
            e("v_lshlrev_b32 v%d, 16, v%d" % (tmp + 2 * k, xr + k))
            e("v_and_b32 v%d, 0xffff0000, v%d" % (tmp + 2 * k + 1, xr + k))
    for k in range(4):
        e("v_pk_fma_f32 %s, %s, %s, %s" % (vr(tmp + 2 * k, 2), vr(acc_regs + 2 * k, 2), vr(gam + 2 * k, 2), vr(tmp + 2 * k, 2)))
    for k in range(4):
        e("v_cvt_pk_bf16_f32 v%d, v%d, v%d" % (dst + k, tmp + 2 * k, tmp + 2 * k + 1))

def epilogue(L):
    tag = "b%d" % L
    e("s_waitcnt lgkmcnt(0)")
    if L: e("s_barrier")
    st("gam")
    vAc = vB1; vTm = vB1 + 16; vXs = vB1 + 32; vO = vB1 + 40
    vLin = vP
    def store(t, k):
        e("buffer_store_dwordx4 %s, v%d, %s, s%d offen offset:%d%s" % (vr(vLin + 4 * k, 4), vSt, sr(S_O, 4), sT0 if k < 4 else sSo, (k % 4) * 1024, OPOL))
    n = 0
    for t in range(3):
        buf = (t % 2) * 6144
        for m in range(6):
            ac = vAc + 8 * (n % 2); tm = vTm + 8 * (n % 2); o = vO + 4 * (n % 2)
            for k in range(8): e("v_accvgpr_read_b32 v%d, a%d" % (ac + k, 48 * t + 8 * m + k))
            src = res_dst(t, m)
            base = int(src[2:src.index(":")])
            unp = (t == 0 and m < 3)
            if unp: tm = vX0 + 8 * m; xr = None
            elif src[0] == "a":
                xr = vXs + 4 * (n % 2)
                for k in range(4): e("v_accvgpr_read_b32 v%d, a%d" % (xr + k, base + k))
            else: xr = base
            epi_group(ac, vG + 8 * m, xr, o, tm, unp)
            if t > 0:
                if m == 0: e("s_waitcnt lgkmcnt(0)")
                store(t - 1, m)
            e("ds_write_b128 v%d, %s offset:%d" % (vWA + m % 2, vr(o, 4), buf + (m // 2) * 128))
            n += 1
        e("s_mov_b32 s%d, %d" % (sT0, t * 4 * ROWB))
        e("s_mov_b32 s%d, %d" % (sSo, t * 4 * ROWB + 4096))
        for k in range(6):
            e("ds_read_b128 %s, v%d offset:%d" % (vr(vLin + 4 * k, 4), vRdl[k % 3], buf + (k // 3) * 3072))
        st("t%d" % t)
    if L:
        e("s_sub_u32 s%d, 12, s%d" % (sT1, sWave))
        e("s_mul_i32 s%d, s%d, %d" % (sT1, sT1, ROWB))
        e("s_lshl_b32 s%d, s%d, 6" % (sT2, sWave))
        e("s_add_u32 s%d, s%d, s%d" % (sT1, sT1, sT2))
        e("s_lshl_b32 s%d, s%d, 11" % (sT2, sWave))
        e("s_add_u32 s%d, s%d, %d" % (sT2, sT2, RED))
        e("v_add_u32 v%d, s%d, v%d" % (vTmp, sT2, vTmp))
        e("s_lshl_b32 s%d, s%d, 7" % (sT2, sWave))
        e("v_add_u32 v%d, s%d, v%d" % (vTmp + 1, sT2, vTab))
        def lreads(half, base):
            for w in range(4):
                for o in range(2):
                    e("ds_read_b128 %s, v%d offset:%d" % (vr(base + 8 * w + 4 * o, 4), vTmp, w * 12288 + half * 8192 + o * 1024))
            for o in range(2):
                e("ds_read_b128 %s, v%d offset:%d" % (vr(base + 32 + 4 * o, 4), vTmp + 1, TAB_G - TAB_B2 + half * 512 + o * 16))
        bases = [vB1 + 48, vH]
        lreads(0, bases[0])
        e("s_waitcnt lgkmcnt(10)")
        for k in range(6): store(2, k)
        lreads(1, bases[1])
        for half in range(2):
            if half == 1:
                e("s_cmp_ge_u32 s%d, 2" % sWave)
                e("s_cbranch_scc1 L_done_%s" % tag)
            regs = [bases[half] + 8 * w for w in range(4)]
            e("s_waitcnt lgkmcnt(%d)" % (10 if half == 0 else 0))
            for k in range(0, 8, 2):
                e("v_pk_add_f32 %s, %s, %s" % (vr(regs[0] + k, 2), vr(regs[0] + k, 2), vr(regs[1] + k, 2)))
                e("v_pk_add_f32 %s, %s, %s" % (vr(regs[2] + k, 2), vr(regs[2] + k, 2), vr(regs[3] + k, 2)))
            for k in range(0, 8, 2):
                e("v_pk_add_f32 %s, %s, %s" % (vr(regs[0] + k, 2), vr(regs[0] + k, 2), vr(regs[2] + k, 2)))
            xr = vRL + 4 * half
            epi_group(regs[0], bases[half] + 32, xr, xr, vTm)
            e("buffer_store_dwordx4 %s, v%d, %s, s%d offen offset:%d%s" % (vr(xr, 4), vOut, sr(S_O, 4), sT1, half * 256, OPOL))
        lab("L_done_%s" % tag)
    else:
        e("s_waitcnt lgkmcnt(0)")
        for k in range(6): store(2, k)
    if opt.stamps:
        st("epi")
        e("s_waitcnt vmcnt(0)")
        st("drain")
        e("s_waitcnt lgkmcnt(0)")
        if opt.diag >= 0:
            e("s_add_u32 s%d, s%d, 6000" % (sT0, sStamp + 2 * min(opt.diag, 10)))
            if opt.diag == 11:
                srd(S_T, 8, 256)
                e("v_mov_b32 v2, 0")
                e("buffer_load_dword v3, v2, %s, 0 offen sc0 sc1" % sr(S_T, 4))
                e("s_waitcnt vmcnt(0)")
                e("v_readfirstlane_b32 s%d, v3" % sT0)
                e("s_not_b32 s%d, s%d" % (sT0, sT0))
                e("s_add_u32 s%d, s%d, 6000" % (sT0, sT0))
            lab("L_spin_%s" % tag)
            e("s_memrealtime %s" % sr(sEx, 2))
            e("s_waitcnt lgkmcnt(0)")
            e("s_sub_u32 s%d, s%d, s%d" % (sT1, sEx, sT0))
            e("s_cmp_lt_i32 s%d, 0" % sT1)
            e("s_cbranch_scc1 L_spin_%s" % tag)
            e("s_endpgm")
            return
        srd(S_T, 9, 1 << 20)
        e("s_lshl_b32 s%d, s2, 2" % sT0)
        e("s_add_u32 s%d, s%d, s%d" % (sT0, sT0, sWave))
        e("s_lshl_b32 s%d, s%d, 6" % (sT0, sT0))
        e("v_mov_b32 v2, 0")
        for i in range(len(SSETS[opt.sset])): e("v_writelane_b32 v2, s%d, %d" % (sStamp + 2 * i, i))
        out.append("; STAMPNAMES " + " ".join(SSETS[opt.sset]))
        e("v_writelane_b32 v2, s%d, 11" % sNrows)
        e("v_lshlrev_b32 v3, 2, v%d" % vLane)
        e("v_add_u32 v3, s%d, v3" % sT0)
        e("v_cmp_gt_u32 vcc, 16, v%d" % vLane)
        e("s_and_saveexec_b64 %s, vcc" % sr(sEx, 2))
        e("buffer_store_dword v2, v3, %s, 0 offen" % sr(S_T, 4))
    e("s_endpgm")

import copy
vm = VM()
head()
vm0 = vm
for L in (0, 1):
    vm = copy.deepcopy(vm0)
    lab("L_body%d" % L)
    prologue(L)
    main_part(L)
lab("L_exit")
e("s_endpgm")

ref = open("cdna_kernels/%s.s.ref" % NAME).read().split("\n")
hdr = [l for l in ref if l.startswith(";") and "@launch" not in l]
txt = "\n".join(hdr) + "\n; @launch grid=(252,1,1) block=(256,1,1) lds=%d\n" % LDS_SIZE
txt += """.amdgcn_target "amdgcn-amd-amdhsa--gfx950"
.text
.globl %s_kernel
.p2align 8
.type %s_kernel,@function
%s_kernel:
""" % (NAME, NAME, NAME)
txt += "\n".join(out).replace("PF_LIM", "L_exit-L_pf-0x8000") + "\n"
txt += """.section .rodata,"a"
.p2align 6
.amdhsa_kernel %s_kernel
  .amdhsa_next_free_vgpr 512
  .amdhsa_next_free_sgpr 102
  .amdhsa_accum_offset 256
  .amdhsa_group_segment_fixed_size 0
  .amdhsa_kernarg_size 80
  .amdhsa_user_sgpr_count 2
  .amdhsa_user_sgpr_kernarg_segment_ptr 1
  .amdhsa_system_sgpr_workgroup_id_x 1
.end_amdhsa_kernel
""" % NAME
dst = [a for a in sys.argv[1:] if "=" not in a]
open(dst[0] if dst else "cdna_kernels/%s.s" % NAME, "w").write(txt)
```

```python
import math, struct, sys

NAME = "standalone__modern_conv_block_convnext__vision"
def f2u(f): return struct.unpack("<I", struct.pack("<f", f))[0]
def f2h(f): return struct.unpack("<H", struct.pack("<e", f))[0]

class Opt:
    gelu = 2
    stamps = 0
    D = 4
    R = 6
    xnt = 1
    sset = 0
    ne1 = 11
    pe1 = 10
    np0 = 8
    nlate = 60
    diag = -1
    pf = 1
    ont = 2
opt = Opt()
for a in sys.argv[1:]:
    if "=" in a:
        k, v = a.split("="); assert hasattr(opt, k), k; setattr(opt, k, int(v))

C0 = 2.0 * math.sqrt(2.0 / math.pi) * math.log2(math.e)
SA = (C0 * 0.044715) ** (1.0 / 3.0)
KK = C0 / SA
if opt.gelu == 2:
    KK = struct.unpack("<e", struct.pack("<e", KK))[0]
    SA = C0 / KK

XBYTES = 224 * 224 * 384
ROWB = 86016
SLOT = 49152
XB = 49152
XROW = 7168
TAB_B1 = 156672
TAB_B2 = TAB_B1 + 3072
TAB_G = TAB_B2 + 768
DUMMY = TAB_G + 768
IMG = 0
XCH = 36864
LDS_SIZE = 163840
OOB = 0x40000
XPOL = " nt" if opt.xnt else ""
OPOL = ["", " nt", " sc1", " sc0 sc1"][opt.ont]

S_X = 8; S_W1 = 12; S_W2 = 16; S_O = 20; S_T = 24
sWave = 28; sRow0 = 29; sStrip = 30; sNrows = 31
sK = 32; sDelta = 33; sW1off = 35; sW2off = 36; sCnt = 37
sT0 = 38; sT1 = 39; sT2 = 40; sT3 = 41
sEx = 42
sRowB = 44; sM1 = 45; sM2 = 46; sSo = 47; sDel1 = 48; sDel2 = 49
sXm1 = 50; sXm2 = 51; sXs2 = 52; sLoff = 53
sPtr = 60
sStamp = 80

vLane = 1
vA1 = 2; vA2 = 6; vAb = 10
vD1 = 14; vD2 = 15; vOut = 16; vTab = 17; vTmp = 18
vBias = 20
vT = 28
vRL = 36
vHL = 44; vPL = 48
vP = 52
vH = 76
vR0 = 124
vR1 = 148
vX1 = 156; vX2 = 157; vRA = 158
vB1 = 160
vCA = 20
vS = 40
vCB = 52
vY = 76
aRing = 192
aR2 = 216
aR1 = 240

out = []
def e(s): out.append("    " + s)
def lab(s): out.append(s + ":")
def cm(s): out.append("    ; " + s)
SSETS = [["start", "issued", "diag", "conv0", "conv1", "conv2", "conv3", "step0", "loop", "epi", "drain"],
         ["start", "loop", "p24", "gam", "t0", "t1", "t2", "epi", "drain"],
         ["start", "kernarg", "issued", "setup", "dwin", "img", "bar", "diag", "x0in", "mf0", "conv0"]]
def st(name):
    names = SSETS[opt.sset]
    if opt.stamps and name in names: stamp(names.index(name))
def stamp(i):
    if opt.stamps: e("%s s[%d:%d]" % ("s_memrealtime" if opt.stamps == 1 else "s_memtime", sStamp + 2 * i, sStamp + 2 * i + 1))
def vr(b, n): return "v[%d:%d]" % (b, b + n - 1)
def ar(b, n): return "a[%d:%d]" % (b, b + n - 1)
def sr(b, n): return "s[%d:%d]" % (b, b + n - 1)
def srd(s, ptr_slot, nbytes):
    e("s_mov_b32 s%d, s%d" % (s, sPtr + 2 * ptr_slot))
    e("s_and_b32 s%d, s%d, 0xffff" % (s + 1, sPtr + 2 * ptr_slot + 1))
    e("s_mov_b32 s%d, %d" % (s + 2, nbytes))
    e("s_mov_b32 s%d, 0x20000" % (s + 3))

def capture(fn, *args):
    global out
    save = out; out = []
    fn(*args)
    got = [l.strip() for l in out if not l.strip().startswith(";")]
    out = save
    return got

class VM:
    def __init__(self): self.issued = []; self.pending = []
    def issue_now(self, tag, lines):
        for l in lines: e(l)
        self.issued.append(tag)
    def queue(self, tag, lines): self.pending.append((tag, lines))
    def pop(self, n=1):
        for _ in range(n):
            if self.pending:
                tag, lines = self.pending.pop(0); self.issue_now(tag, lines)
    def wait(self, pred):
        while any(pred(t) for t, _ in self.pending): self.pop()
        idx = [i for i, t in enumerate(self.issued) if pred(t)]
        e("s_waitcnt vmcnt(%d)" % (len(self.issued) - 1 - max(idx)))
vm = None

def x_items(r):
    return [(("x", r), ["s_add_u32 m0, s%d, %d" % (sXm1, r * XROW), "s_add_u32 s%d, s%d, s%d" % (sXm2, sXm2, sXs2),
                        "buffer_load_dwordx4 v%d, %s, 0 offen%s lds" % (vX1, sr(S_X, 4), XPOL),
                        "v_add_u32 v%d, s%d, v%d" % (vX1, sRowB, vX1)]),
            (("x", r), ["s_mov_b32 m0, s%d" % sXm2, "s_nop 0",
                        "buffer_load_dwordx4 v%d, %s, 0 offen%s lds" % (vX2, sr(S_X, 4), XPOL),
                        "v_add_u32 v%d, s%d, v%d" % (vX2, sRowB, vX2)])]

vTB = vY
vDW = vB1
def head():
    e("s_cmp_ge_u32 s2, 252")
    e("s_cbranch_scc1 L_exit")
    st("start")
    e("s_load_dwordx4 %s, s[0:1], 0" % sr(sPtr, 4))
    e("s_load_dwordx16 %s, s[0:1], 16" % sr(sPtr + 4, 16))
    if opt.pf:
        e("s_getpc_b64 %s" % sr(sEx, 2))
        lab("L_pf")
        e("s_lshr_b32 s%d, s2, 3" % sT1)
        e("s_lshl_b32 s%d, s%d, 11" % (sT1, sT1))
        e("v_lshrrev_b32 v%d, 4, v0" % vS)
        e("v_lshlrev_b32 v%d, 7, v%d" % (vS, vS))
        e("v_add_u32 v%d, s%d, v%d" % (vS, sT1, vS))
        e("v_min_u32 v%d, L_exit-L_pf, v%d" % (vS, vS))
        vm.issue_now("dw", ["global_load_dword v%d, v%d, %s" % (vTB + 6, vS, sr(sEx, 2))])
    e("s_and_b32 s%d, s2, 7" % sT0)
    e("s_lshr_b32 s%d, s2, 3" % sT1)
    e("s_and_b32 s%d, s%d, 3" % (sT2, sT0))
    e("s_mul_i32 s%d, s%d, 63" % (sT2, sT2))
    e("s_lshr_b32 s%d, s%d, 2" % (sT0, sT0))
    e("s_lshl_b32 s%d, s%d, 5" % (sT0, sT0))
    e("s_add_u32 s%d, s%d, s%d" % (sT2, sT2, sT0))
    e("s_add_u32 s%d, s%d, s%d" % (sT2, sT2, sT1))
    e("s_cmp_ge_u32 s%d, 126" % sT2)
    e("s_cselect_b32 s%d, 7, 0" % sStrip)
    e("s_cselect_b32 s%d, 126, 0" % sT0)
    e("s_sub_u32 s%d, s%d, s%d" % (sT2, sT2, sT0))
    e("s_mul_i32 s%d, s%d, 9363" % (sT0, sT2))
    e("s_lshr_b32 s%d, s%d, 16" % (sT0, sT0))
    e("s_mul_i32 s%d, s%d, 7" % (sT1, sT0))
    e("s_sub_u32 s%d, s%d, s%d" % (sT1, sT2, sT1))
    e("s_add_u32 s%d, s%d, s%d" % (sStrip, sStrip, sT1))
    e("s_mul_i32 s%d, s%d, %d" % (sRow0, sT0, 112 * 7282))
    e("s_add_u32 s%d, s%d, %d" % (sNrows, sRow0, 112 * 7282))
    e("s_lshr_b32 s%d, s%d, 16" % (sRow0, sRow0))
    e("s_lshr_b32 s%d, s%d, 16" % (sNrows, sNrows))
    e("s_sub_u32 s%d, s%d, s%d" % (sNrows, sNrows, sRow0))
    for r in range(126): assert (r * 9363) >> 16 == r // 7
    for b in range(19): assert (b * 112 * 7282) >> 16 == b * 112 // 9
    e("v_and_b32 v%d, 63, v0" % vLane)
    e("v_lshrrev_b32 v%d, 6, v0" % vTmp)
    e("s_mov_b32 s%d, %d" % (sRowB, ROWB))
    e("v_readfirstlane_b32 s%d, v%d" % (sWave, vTmp))
    t0, t1, t2 = vS, vS + 1, vS + 2
    e("s_sub_u32 s%d, s%d, 1" % (sT0, sRow0))
    e("s_mul_i32 s%d, s%d, %d" % (sT0, sT0, ROWB))
    e("s_mul_i32 s%d, s%d, 6144" % (sT1, sStrip))
    e("s_add_u32 s%d, s%d, s%d" % (sT0, sT0, sT1))
    e("s_sub_u32 s%d, s%d, 384" % (sT0, sT0))
    e("s_cmp_eq_u32 s%d, 0" % sStrip)
    e("s_cselect_b32 s%d, 1, 0" % sT1)
    e("s_cmp_eq_u32 s%d, 13" % sStrip)
    e("s_cselect_b32 s%d, 17, 18" % sT2)
    e("s_sub_u32 s%d, s%d, s%d" % (sT2, sT2, sT1))
    for P in range(512): assert (P * 2731) >> 16 == P // 24
    for vx, add in ((vX1, 0), (vX2, 256)):
        if add: e("v_add_u32 v%d, %d, v0" % (t2, add))
        src = t2 if add else 0
        e("v_mul_u32_u24 v%d, 2731, v%d" % (t0, src))
        e("v_lshrrev_b32 v%d, 16, v%d" % (t0, t0))
        e("v_mul_u32_u24 v%d, 24, v%d" % (t1, t0))
        e("v_sub_u32 v%d, v%d, v%d" % (t1, src, t1))
        e("v_bfe_u32 v%d, v%d, 1, 3" % (vx, t0))
        e("v_xor_b32 v%d, v%d, v%d" % (t1, t1, vx))
        e("v_mul_u32_u24 v%d, 384, v%d" % (vx, t0))
        e("v_lshl_add_u32 v%d, v%d, 4, v%d" % (vx, t1, vx))
        e("v_add_u32 v%d, s%d, v%d" % (vx, sT0, vx))
        e("v_subrev_u32 v%d, s%d, v%d" % (t0, sT1, t0))
        e("v_cmp_gt_u32 vcc, s%d, v%d" % (sT2, t0))
        e("v_mov_b32 v%d, 0x80000000" % t1)
        e("s_nop 0")
        e("v_cndmask_b32 v%d, v%d, v%d, vcc" % (vx, t1, vx))
    e("s_lshl_b32 s%d, s%d, 10" % (sXm1, sWave))
    e("s_add_u32 s%d, s%d, %d" % (sXm1, sXm1, XB))
    e("s_add_u32 s%d, s%d, %d" % (sXm2, sXm1, 4096 - XROW))
    e("s_cmp_eq_u32 s%d, 3" % sWave)
    e("s_cselect_b32 s%d, %d, s%d" % (sXm2, DUMMY, sXm2))
    e("s_cselect_b32 s%d, 0, %d" % (sXs2, XROW))
    e("v_lshlrev_b32 v%d, 4, v0" % vTmp)
    e("v_lshlrev_b32 v%d, 3, v0" % (vTB + 7))
    setup_early()
    e("s_waitcnt lgkmcnt(0)")
    st("kernarg")
    srd(S_T, 1, 3456)
    vm.issue_now("dw", ["buffer_load_dwordx4 %s, v%d, %s, 0 offen" % (vr(vDW, 4), vTmp, sr(S_T, 4))])
    srd(S_X, 0, XBYTES)
    for r in range(14):
        for tag, l in x_items(r): vm.queue(tag, l)
        if r == 1:
            for k, (slot, nb) in enumerate(((3, 1536), (5, 384), (6, 384))):
                vm.queue("tab", capture(srd, S_T, slot, nb) + ["buffer_load_dwordx2 %s, v%d, %s, 0 offen" % (vr(vTB + 2 * k, 2), vTB + 7, sr(S_T, 4))])
    build_diag()
    e("s_cmp_eq_u32 s%d, 13" % sNrows)
    e("s_cbranch_scc1 L_body1")

def dma_w(i, kind):
    if kind == 1:
        return (["s_add_u32 m0, s%d, %d" % (sM1, i * 1024), "s_add_u32 s%d, s%d, %d" % (sSo, sW1off, i * 12288)],
                "buffer_load_dwordx4 v%d, %s, s%d offen lds" % (vD1, sr(S_W1, 4), sSo))
    oo, t = i // 3, i % 3
    return (["s_add_u32 m0, s%d, %d" % (sM2, oo * 3072 + t * 1024), "s_add_u32 s%d, s%d, %d" % (sSo, sW2off, oo * 3072 + t * 128)],
            "buffer_load_dwordx4 v%d, %s, s%d offen lds" % (vD2, sr(S_W2, 4), sSo))

def set_dma_slot(slot_base_imm):
    e("s_mul_i32 s%d, s%d, 6144" % (sM1, sWave))
    e("s_add_u32 s%d, s%d, %d" % (sM1, sM1, slot_base_imm))
    e("s_add_u32 s%d, s%d, 24576" % (sM2, sM1))

vIA = vS + 8
vM = vCB
IST = 4112
vQ = vB1 + 8
def setup_early():
    t0, t1 = vS, vS + 1
    px, g, gl, gh = vS + 4, vS + 5, vS + 6, vS + 7
    for j in range(8):
        for k in range(4):
            if k != j // 2: e("v_mov_b32 v%d, 0" % (vQ + 4 * j + k))
    e("v_and_b32 v%d, 15, v%d" % (px, vLane))
    e("v_lshrrev_b32 v%d, 4, v%d" % (g, vLane))
    e("v_and_b32 v%d, 1, v%d" % (gl, g))
    e("v_lshrrev_b32 v%d, 1, v%d" % (gh, g))
    cm("image read addresses (invalid lanes out of range -> read 0)")
    e("v_lshrrev_b32 v%d, 3, v%d" % (t0, px))
    e("v_xor_b32 v%d, v%d, v%d" % (t0, t0, gh))
    e("v_mul_u32_u24 v%d, %d, v%d" % (t0, OOB, t0))
    e("v_lshl_add_u32 v%d, v%d, 4, v%d" % (t0, gh, t0))
    e("v_and_b32 v%d, 7, v%d" % (t1, px))
    e("v_mul_u32_u24 v%d, %d, v%d" % (t1, IST, t1))
    e("v_add_u32 v%d, v%d, v%d" % (t0, t0, t1))
    e("v_mul_u32_u24 v%d, %d, v%d" % (t1, 3 * 384, gl))
    e("v_add_u32 v%d, v%d, v%d" % (vIA, t0, t1))
    e("v_mul_u32_u24 v%d, 384, v%d" % (t1, gl))
    e("v_add_u32 v%d, v%d, v%d" % (vIA + 1, t0, t1))
    e("v_mul_u32_u24 v%d, %d, v%d" % (t1, OOB, gl))
    e("v_add_u32 v%d, v%d, v%d" % (vIA + 2, t0, t1))

def setup_late():
    t0, t1, t2, t3 = vS, vS + 1, vS + 2, vS + 3
    cm("W1 dma voffset")
    e("v_lshrrev_b32 v%d, 3, v%d" % (t0, vLane))
    e("v_and_b32 v%d, 7, v%d" % (t1, vLane))
    e("v_and_b32 v%d, 6, v%d" % (t2, t0))
    e("v_xor_b32 v%d, v%d, v%d" % (t1, t1, t2))
    e("v_mul_u32_u24 v%d, 1536, v%d" % (t0, t0))
    e("v_lshl_add_u32 v%d, v%d, 4, v%d" % (vD1, t1, t0))
    e("s_mul_i32 s%d, s%d, %d" % (sT0, sWave, 48 * 1536))
    e("v_add_u32 v%d, s%d, v%d" % (vD1, sT0, vD1))
    cm("W2 dma voffset")
    e("v_bfe_u32 v%d, v%d, 2, 3" % (t0, vLane))
    e("v_mul_u32_u24 v%d, 384, v%d" % (t0, t0))
    e("v_lshrrev_b32 v%d, 5, v%d" % (t1, vLane))
    e("v_lshl_add_u32 v%d, v%d, 6, v%d" % (t0, t1, t0))
    e("v_and_b32 v%d, 3, v%d" % (t1, vLane))
    e("v_lshl_add_u32 v%d, v%d, 4, v%d" % (vD2, t1, t0))
    e("s_mul_i32 s%d, s%d, %d" % (sT0, sWave, 16 * 384))
    e("v_add_u32 v%d, s%d, v%d" % (vD2, sT0, vD2))
    srd(S_W1, 2, 192 * 768 * 2)
    srd(S_W2, 4, 192 * 768 * 2)
    srd(S_O, 7, XBYTES)
    cm("conv B-frag addresses")
    px, g, gl, gh = vS + 4, vS + 5, vS + 6, vS + 7
    e("s_mul_i32 s%d, s%d, %d" % (sT0, sWave, XROW))
    e("s_add_u32 s%d, s%d, %d" % (sT0, sT0, XB))
    for tp in range(5):
        if tp < 3: e("v_add_u32 v%d, %d, v%d" % (t0, tp, px))
        elif tp == 3: e("v_add_u32 v%d, v%d, v%d" % (t0, gl, px))
        else: e("v_add_u32 v%d, 2, v%d" % (t0, px))
        e("v_bfe_u32 v%d, v%d, 1, 3" % (t1, t0))
        if tp == 1:
            e("v_xor_b32 v%d, v%d, v%d" % (t2, t1, g))
        e("v_xor_b32 v%d, v%d, v%d" % (t1, t1, gh))
        e("v_mul_u32_u24 v%d, 384, v%d" % (t0, t0))
        if tp == 1:
            e("v_lshl_add_u32 v%d, v%d, 4, v%d" % (t2, t2, t0))
            e("v_add_u32 v%d, %d, v%d" % (t2, XROW, t2))
            e("v_add_u32 v%d, s%d, v%d" % (vRA, sT0, t2))
            e("v_xor_b32 v%d, 64, v%d" % (vRA + 1, vRA))
        e("v_lshl_add_u32 v%d, v%d, 4, v%d" % (t0, t1, t0))
        if tp < 3:
            e("v_mul_u32_u24 v%d, %d, v%d" % (t1, XROW, gl))
            e("v_add3_u32 v%d, v%d, v%d, s%d" % (vCA + tp * 4, t0, t1, sT0))
        else:
            e("v_add_u32 v%d, %d, v%d" % (t0, 2 * XROW, t0))
            e("v_add_u32 v%d, s%d, v%d" % (vCA + tp * 4, sT0, t0))
        for k in range(1, 4):
            e("v_xor_b32 v%d, %d, v%d" % (vCA + tp * 4 + k, 32 * k, vCA + tp * 4))
    cm("main-loop LDS addresses")
    e("v_bfe_u32 v%d, v%d, 2, 3" % (t0, vLane))
    e("v_lshrrev_b32 v%d, 5, v%d" % (t1, vLane))
    e("v_and_b32 v%d, 3, v%d" % (t2, vLane))
    e("v_lshlrev_b32 v%d, 7, v%d" % (t3, t0))
    e("v_lshl_add_u32 v%d, v%d, 10, v%d" % (t3, t1, t3))
    e("v_lshl_add_u32 v%d, v%d, 3, v%d" % (t3, t2, t3))
    e("v_lshrrev_b32 v%d, 1, v%d" % (vA1, t0))
    e("v_xor_b32 v%d, s%d, v%d" % (vA1, sWave, vA1))
    e("v_lshl_add_u32 v%d, v%d, 5, v%d" % (vA1, vA1, t3))
    for p in range(1, 4): e("v_xor_b32 v%d, %d, v%d" % (vA1 + p, 32 * p, vA1))
    e("v_mul_u32_u24 v%d, 3072, v%d" % (t3, t1))
    e("v_and_b32 v%d, 31, v%d" % (t0, vLane))
    e("v_lshl_add_u32 v%d, v%d, 4, v%d" % (t3, t0, t3))
    e("v_lshlrev_b32 v%d, 4, v%d" % (t2, g))
    for p in range(4):
        e("s_xor_b32 s%d, s%d, %d" % (sT0, sWave, p))
        e("s_mul_i32 s%d, s%d, 6144" % (sT1, sT0))
        e("s_add_u32 s%d, s%d, %d" % (sT1, sT1, SLOT + 24576))
        e("v_add_u32 v%d, s%d, v%d" % (vA2 + p, sT1, t3))
        e("s_lshl_b32 s%d, s%d, 6" % (sT0, sT0))
        e("s_add_u32 s%d, s%d, %d" % (sT0, sT0, TAB_B1))
        e("v_add_u32 v%d, s%d, v%d" % (vAb + p, sT0, t2))
    e("v_lshlrev_b32 v%d, 5, v%d" % (vTab, g))
    e("v_add_u32 v%d, %d, v%d" % (vTab, TAB_B2, vTab))
    e("s_add_u32 s%d, s%d, s%d" % (sT0, sRow0, sWave))
    e("s_mul_i32 s%d, s%d, %d" % (sT0, sT0, ROWB))
    e("s_mul_i32 s%d, s%d, 6144" % (sT1, sStrip))
    e("s_add_u32 s%d, s%d, s%d" % (sT0, sT0, sT1))
    e("v_mul_u32_u24 v%d, 384, v%d" % (vOut, px))
    e("v_lshl_add_u32 v%d, v%d, 4, v%d" % (vOut, g, vOut))
    e("v_add_u32 v%d, s%d, v%d" % (vOut, sT0, vOut))

def build_diag():
    late = capture(setup_late) + capture(l_addr)
    vm.pop(2)
    for k in range(opt.ne1):
        for l in late[:opt.pe1]: e(l)
        late = late[opt.pe1:]
        vm.pop()
    st("issued")
    cm("diagonal image")
    vm.wait(lambda t: t == "dw")
    st("dwin")
    for j in range(8):
        e("v_and_b32 v%d, %s, v%d" % (vQ + 4 * j + j // 2, "0xffff0000" if j % 2 else "0xffff", vDW + j // 2))
    for j in range(8):
        e("ds_write_b128 v%d, %s offset:%d" % (vTmp, vr(vQ + 4 * j, 4), IMG + j * IST))
        if j % 4 == 3: vm.pop()
    st("img")
    e("s_waitcnt lgkmcnt(0)")
    e("s_barrier")
    st("bar")
    per = (len(late) + 7) // 8
    for f in range(60):
        cg, tp = f // 5, f % 5
        a, off = (vIA, tp * 384) if tp < 3 else ((vIA + 1, 6 * 384) if tp == 3 else (vIA + 2, 8 * 384))
        e("ds_read_b128 %s, v%d offset:%d" % (ar(4 * f, 4), a, IMG + off + cg * 32))
        if f % 6 == 5:
            vm.pop()
            for l in late[:per]: e(l)
            late = late[per:]
            if f == 53:
                vm.wait(lambda t: t == "tab")
                tables()
    assert not late
    st("diag")

def tables():
    def unpack_scale(src, dst, scale):
        e("s_mov_b32 s%d, 0x%08x" % (sT0, f2u(scale)))
        for h in range(2):
            e("v_lshlrev_b32 v%d, 16, v%d" % (dst + 2 * h, src + h))
            e("v_and_b32 v%d, 0xffff0000, v%d" % (dst + 2 * h + 1, src + h))
        for k in range(4): e("v_mul_f32 v%d, s%d, v%d" % (dst + k, sT0, dst + k))
    unpack_scale(vTB, vTB + 8, SA)
    unpack_scale(vTB + 2, vTB + 12, SA)
    unpack_scale(vTB + 4, vTB + 16, 1.0 / SA)
    e("v_add_u32 v%d, %d, v%d" % (vTmp + 1, TAB_B1, vTmp))
    e("v_cmp_gt_u32 vcc, 192, v0")
    e("s_and_saveexec_b64 %s, vcc" % sr(sEx, 2))
    e("ds_write_b128 v%d, %s" % (vTmp + 1, vr(vTB + 8, 4)))
    e("v_cmp_gt_u32 vcc, 48, v0")
    e("s_and_b64 exec, exec, vcc")
    e("ds_write_b128 v%d, %s offset:%d" % (vTmp + 1, vr(vTB + 12, 4), TAB_B2 - TAB_B1))
    e("ds_write_b128 v%d, %s offset:%d" % (vTmp + 1, vr(vTB + 16, 4), TAB_G - TAB_B1))
    e("s_mov_b64 exec, -1")

NR = 6; PD = NR - 1
def conv_rd(f, toff):
    cg, tp = f // 5, f % 5
    return "ds_read_b128 %s, v%d offset:%d" % (vr(vCB + 4 * (f % NR), 4), vCA + tp * 4 + cg % 4, toff + (cg // 4) * 128)

def res_dst(t, m):
    if t == 0: return vr(vR0 + 4 * m, 4)
    if t == 1: return vr(vR1 + 4 * m, 4) if m < 2 else ar(aR1 + 4 * (m - 2), 4)
    return ar(aR2 + 4 * m, 4)
def res_rd(t, m):
    return "ds_read_b128 %s, v%d offset:%d" % (res_dst(t, m), vRA + m % 2, t * 4 * XROW + (m // 2) * 128)

s1 = vS; s2 = vS + 2
vL = vB1 + 72
vLA = vB1 + 48
vLS = vB1 + 84
vLW = vB1 + 90
XST = XCH + 8192
def l_rd(n):
    return "ds_read_b128 %s, v%d" % (vr(vCB + 4 * ((n + 3) % NR), 4), vLA + n)
def l_addr():
    e("s_sub_u32 s%d, 12, s%d" % (sT0, sWave))
    e("s_mul_i32 s%d, s%d, %d" % (sT0, sT0, XROW))
    e("s_mul_i32 s%d, s%d, 3" % (sT1, sWave))
    for cl in range(3):
        e("s_and_b32 s%d, s%d, 3" % (sT2, sT1))
        e("s_lshl_b32 s%d, s%d, 5" % (sT2, sT2))
        e("s_lshr_b32 s%d, s%d, 2" % (sT3, sT1))
        e("s_lshl_b32 s%d, s%d, 7" % (sT3, sT3))
        e("s_add_u32 s%d, s%d, s%d" % (sT3, sT3, sT0))
        for tp in range(5): e("v_xor_b32 v%d, s%d, v%d" % (vLA + 5 * cl + tp, sT2, vCA + 4 * tp))
        for tp in range(5): e("v_add_u32 v%d, s%d, v%d" % (vLA + 5 * cl + tp, sT3, vLA + 5 * cl + tp))
        e("s_lshr_b32 s%d, s%d, 1" % (sT2, sT1))
        e("s_lshl_b32 s%d, s%d, 10" % (sT2, sT2))
        e("s_and_b32 s%d, s%d, 1" % (sT3, sT1))
        e("s_lshl_b32 s%d, s%d, 3" % (sT3, sT3))
        e("s_add_u32 s%d, s%d, s%d" % (sT2, sT2, sT3))
        e("v_lshl_add_u32 v%d, v%d, 4, s%d" % (vLW + cl, vLane, sT2))
        if cl < 2: e("s_add_u32 s%d, s%d, 1" % (sT1, sT1))
    e("s_lshr_b32 s%d, s%d, 1" % (sT2, sWave))
    e("s_lshl_b32 s%d, s%d, 7" % (sT2, sT2))
    e("s_add_u32 s%d, s%d, s%d" % (sT0, sT0, sT2))
    e("s_and_b32 s%d, s%d, 1" % (sT2, sWave))
    e("s_lshl_b32 s%d, s%d, 6" % (sT2, sT2))
    e("v_xor_b32 v%d, s%d, v%d" % (vLW + 3, sT2, vRA))
    e("v_add_u32 v%d, s%d, v%d" % (vLW + 3, sT0, vLW + 3))
    e("v_lshlrev_b32 v%d, 2, v0" % (vLW + 4))
    e("v_and_b32 v%d, 15, v%d" % (vLW + 5, vLane))
    e("v_lshlrev_b32 v%d, 2, v%d" % (vLW + 5, vLW + 5))
    e("v_add_u32 v%d, %d, v%d" % (vLW + 5, XST, vLW + 5))

def l_mfma():
    for w in range(4):
        if w < 3:
            e("s_cmp_lg_u32 s%d, %d" % (sWave, w))
            e("s_cbranch_scc1 L_lc%d" % (w + 1))
        e("s_waitcnt lgkmcnt(%d)" % (PD - 1))
        for n in range(15):
            d = vr(vL + 4 * (n // 5), 4)
            e("v_mfma_f32_16x16x32_bf16 %s, %s, %s, %s" % (d, ar(4 * (15 * w + n), 4), vr(vCB + 4 * ((n + 3) % NR), 4), d if n % 5 else "0"))
            if n < 14: e("s_waitcnt lgkmcnt(%d)" % (PD - 2))
            e(l_rd(n + PD) if n + PD < 15 else conv_rd(n + PD - 15, 8 * XROW))
        if w < 3:
            e("s_branch L_lcj")
            lab("L_lc%d" % (w + 1))
    lab("L_lcj")

def l_stats():
    a1, a2 = vLS, vLS + 1
    ops = []
    for i in range(12):
        y = vL + i
        if i == 0: ops += ["v_mov_b32 v%d, v%d" % (a1, y), "v_mul_f32 v%d, v%d, v%d" % (a2, y, y)]
        else: ops += ["v_add_f32 v%d, v%d, v%d" % (a1, a1, y), "v_fmac_f32 v%d, v%d, v%d" % (a2, y, y)]
    return ops

def conv_mfma(t, npop, pre_ops=[]):
    toff = t * 4 * XROW
    pend = []
    def stats(cg):
        ops = []
        for i in range(4):
            y = vY + 4 * cg + i
            if cg == 0 and i < 2:
                ops.append("v_mov_b32 v%d, v%d" % (s1 + i, y))
                ops.append("v_mul_f32 v%d, v%d, v%d" % (s2 + i, y, y))
            else:
                ops.append("v_add_f32 v%d, v%d, v%d" % (s1 + i % 2, s1 + i % 2, y))
                ops.append("v_fmac_f32 v%d, v%d, v%d" % (s2 + i % 2, y, y))
        return ops
    NI = 6 if not pre_ops else 4
    e("s_waitcnt lgkmcnt(%d)" % (PD - 1))
    for f in range(60):
        cg, tp = f // 5, f % 5
        d = vr(vY + 4 * cg, 4)
        e("v_mfma_f32_16x16x32_bf16 %s, %s, %s, %s" % (d, ar(4 * f, 4), vr(vCB + 4 * (f % NR), 4), d if tp else "0"))
        if f + 1 < 60: e("s_waitcnt lgkmcnt(%d)" % (min(59, f + PD - 1) - (f + 1)))
        if f + PD < 60: e(conv_rd(f + PD, toff))
        if f == 2: pend += pre_ops
        if tp == 2 and 1 <= cg <= NI: pend += stats(cg - 1)
        if npop and f % npop == 0: vm.pop()
        if pend: e(pend.pop(0))
    while pend: e(pend.pop(0))
    return NI

def ln_stats(first_cg, init=False):
    u1, u2 = vS + 6, vS + 8
    for cg in range(first_cg, 12):
        for i in (0, 2):
            y = vr(vY + 4 * cg + i, 2)
            a1, a2 = (s1, s2) if i == 0 else (u1, u2)
            if (init and cg == 0) or (i == 2 and cg == first_cg):
                e("v_pk_add_f32 %s, %s, 0 op_sel_hi:[1,0]" % (vr(a1, 2), y))
                e("v_pk_mul_f32 %s, %s, %s" % (vr(a2, 2), y, y))
            else:
                e("v_pk_add_f32 %s, %s, %s" % (vr(a1, 2), vr(a1, 2), y))
                e("v_pk_fma_f32 %s, %s, %s, %s" % (vr(a2, 2), y, y, vr(a2, 2)))
    e("v_pk_add_f32 %s, %s, %s" % (vr(s1, 2), vr(s1, 2), vr(u1, 2)))
    e("v_pk_add_f32 %s, %s, %s" % (vr(s2, 2), vr(s2, 2), vr(u2, 2)))

def ln_reduce(fill):
    fill = list(fill)
    def gap(n):
        f = fill.pop(0) if fill else []
        for l in f: e(l)
        if len(f) < n: e("s_nop %d" % (n - len(f) - 1))
    a, b = vS + 4, vS + 5
    e("v_add_f32 v%d, v%d, v%d" % (a, s1, s1 + 1))
    e("v_add_f32 v%d, v%d, v%d" % (b, s2, s2 + 1))
    gap(2)
    e("v_permlane32_swap_b32 v%d, v%d" % (a, b))
    e("v_add_f32 v%d, v%d, v%d" % (a, a, b))
    e("v_mov_b32 v%d, v%d" % (b, a))
    gap(2)
    e("v_permlane16_swap_b32 v%d, v%d" % (a, b))
    e("v_add_f32 v%d, v%d, v%d" % (a, a, b))
    e("v_mul_f32 v%d, 0x%08x, v%d" % (a, f2u(1.0 / 192.0), a))
    e("v_mov_b32 v%d, v%d" % (b, a))
    gap(2)
    e("v_permlane32_swap_b32 v%d, v%d" % (a, b))
    e("v_fma_f32 v%d, -v%d, v%d, v%d" % (b, a, a, b))
    e("v_max_f32 v%d, 0, v%d" % (b, b))
    e("v_add_f32 v%d, 0x%08x, v%d" % (b, f2u(1e-5), b))
    e("v_rsq_f32 v%d, v%d" % (b, b))
    gap(1)
    e("v_mul_f32 v%d, 0x%08x, v%d" % (vS + 6, f2u(SA), b))
    e("v_mul_f32 v%d, v%d, v%d" % (vS + 8, a, vS + 6))
    for f in fill:
        for l in f: e(l)

def ln_norm(t):
    sc, sh = vS + 6, vS + 8
    LAG = 6
    for k in range(24 + LAG):
        if k < 24:
            y = vY + 2 * k
            e("v_pk_fma_f32 %s, %s, %s, %s op_sel_hi:[1,0,0] neg_lo:[0,0,1] neg_hi:[0,0,1]" % (vr(y, 2), vr(y, 2), vr(sc, 2), vr(sh, 2)))
        if k >= LAG:
            j = k - LAG
            e("v_cvt_pk_bf16_f32 v%d, v%d, v%d" % (vB1 + 24 * t + j, vY + 2 * j, vY + 2 * j + 1))

def prologue(L):
    tag = "b%d" % L
    if L:
        for tg, l in x_items(14): vm.queue(tg, l)
    R = 15 if L else 14
    while any(tg[0] == "x" and tg[1] < 12 for tg, _ in vm.pending): vm.pop()
    vm.wait(lambda t: t[0] == "x" and t[1] < 6)
    e("s_waitcnt lgkmcnt(0)")
    e("s_barrier")
    st("x0in")
    for f in range(PD): e(conv_rd(f, 0))
    set_dma_slot(0)
    e("s_mov_b32 s%d, 0" % sW1off)
    for i in range(6):
        sc, ins = dma_w(i, 1); vm.queue("w0", sc + [ins])
    for t in range(3):
        LL = L and t == 2
        if LL: l_mfma()
        ni = conv_mfma(t, [opt.np0, 8, 4][t], l_stats() if LL else [])
        st("mf%d" % t)
        while t == 1 and vm.pending: vm.pop()
        for m in range(6): e(res_rd(t, m))
        a, b = vLS, vLS + 1
        if LL:
            e("v_permlane32_swap_b32 v%d, v%d" % (a, b))
            e("v_add_f32 v%d, v%d, v%d" % (a, a, b))
            e("ds_write_b32 v%d, v%d offset:%d" % (vLW + 4, a, XST))
        ln_stats(ni)
        fill = []
        if t < 2:
            need = [10, R][t]
            sync = capture(vm.wait, lambda x: x[0] == "x" and x[1] < need) + ["s_waitcnt lgkmcnt(0)", "s_barrier"]
            if t == 1 and L:
                rds = [l_rd(n) for n in range(PD)]
                fill = [[], [], sync + rds]
            else:
                rds = [conv_rd(f, (t + 1) * 4 * XROW) for f in range(PD)]
                fill = [[], [], sync + rds]
            if t == 1:
                fill.append(capture(set_dma_slot, SLOT) + ["s_mov_b32 s%d, 128" % sW1off, "s_mov_b32 s%d, 0" % sW2off])
                for kind in (1, 2):
                    for i in range(6):
                        sc, ins = dma_w(i, kind); vm.queue("w1", sc + [ins])
        elif LL:
            rd = []
            for w in range(4):
                for gg in range(2):
                    rd.append("ds_read2_b32 %s, v%d offset0:%d offset1:%d" % (vr(vCB + 8 + 4 * w + 2 * gg, 2), vLW + 5, w * 64 + gg * 16, w * 64 + gg * 16 + 32))
            fill = [["s_waitcnt lgkmcnt(0)", "s_barrier"] + rd]
        ln_reduce(fill)
        ln_norm(t)
        if LL:
            p = vCB + 8
            e("s_waitcnt lgkmcnt(0)")
            for k in range(4): e("v_pk_add_f32 %s, %s, %s" % (vr(p + 2 * k, 2), vr(p + 2 * k, 2), vr(p + 8 + 2 * k, 2)))
            for k in range(2): e("v_pk_add_f32 %s, %s, %s" % (vr(p + 2 * k, 2), vr(p + 2 * k, 2), vr(p + 4 + 2 * k, 2)))
            e("v_pk_add_f32 %s, %s, %s" % (vr(p, 2), vr(p, 2), vr(p + 2, 2)))
            e("v_mul_f32 v%d, 0x%08x, v%d" % (p, f2u(1.0 / 192.0), p))
            e("v_mul_f32 v%d, 0x%08x, v%d" % (p + 1, f2u(1.0 / 192.0), p + 1))
            e("v_fma_f32 v%d, -v%d, v%d, v%d" % (p + 1, p, p, p + 1))
            e("v_max_f32 v%d, 0, v%d" % (p + 1, p + 1))
            e("v_add_f32 v%d, 0x%08x, v%d" % (p + 1, f2u(1e-5), p + 1))
            e("v_rsq_f32 v%d, v%d" % (p + 1, p + 1))
            e("v_lshlrev_b32 v%d, 4, v%d" % (vTmp, vLane))
            e("v_mul_f32 v%d, 0x%08x, v%d" % (p + 2, f2u(SA), p + 1))
            e("v_mul_f32 v%d, v%d, v%d" % (p + 4, p, p + 2))
            for k in range(6):
                y = vL + 2 * k
                e("v_pk_fma_f32 %s, %s, %s, %s op_sel_hi:[1,0,0] neg_lo:[0,0,1] neg_hi:[0,0,1]" % (vr(y, 2), vr(y, 2), vr(p + 2, 2), vr(p + 4, 2)))
            for k in range(6): e("v_cvt_pk_bf16_f32 v%d, v%d, v%d" % (vLS + k, vL + 2 * k, vL + 2 * k + 1))
            for cl in range(3): e("ds_write_b64 v%d, %s offset:%d" % (vLW + cl, vr(vLS + 2 * cl, 2), XCH))
            e("ds_read_b128 %s, v%d" % (vr(vRL, 4), vLW + 3))
            e("ds_read_b128 %s, v%d offset:256" % (vr(vRL + 4, 4), vLW + 3))
            e("v_mov_b32 v%d, 0" % (vPL + 2))
            e("v_mov_b32 v%d, 0" % (vPL + 3))
        st("conv%d" % t)
    while vm.pending: vm.pop()
    e("s_waitcnt vmcnt(0) lgkmcnt(0)")
    e("s_barrier")
    if L:
        for kb in range(6): e("ds_read_b128 %s, v%d offset:%d" % (vr(vB1 + 72 + 4 * kb, 4), vTmp, XCH + kb * 1024))
        e("s_cmp_eq_u32 s%d, 0" % sWave)
        e("s_cselect_b32 s%d, 0, %d" % (sT0, OOB))
        e("v_add_u32 v%d, s%d, v%d" % (vTmp + 1, sT0, vTab))
    st("conv3")

def acc_init(L):
    r = []
    for ct in range(12):
        for t in range(3):
            r.append("ds_read_b128 %s, v%d offset:%d" % (ar(48 * t + 4 * ct, 4), vTab, (ct // 2) * 128 + (ct % 2) * 16))
        if L:
            r.append("ds_read_b128 %s, v%d offset:%d" % (ar(144 + 4 * ct, 4), vTmp + 1, (ct // 2) * 128 + (ct % 2) * 16))
    return r

def gelu_pair(x0, x1, dst, tmp):
    a, b = tmp, tmp + 1
    if opt.gelu == 1:
        return [("v_fma_f32 v%d, -v%d, v%d, -s%d" % (a, x0, x0, sK), 4), ("v_fma_f32 v%d, -v%d, v%d, -s%d" % (b, x1, x1, sK), 4),
                ("v_mul_f32 v%d, v%d, v%d" % (a, x0, a), 4), ("v_mul_f32 v%d, v%d, v%d" % (b, x1, b), 4),
                ("v_exp_f32 v%d, v%d" % (a, a), 8), ("v_exp_f32 v%d, v%d" % (b, b), 8),
                ("v_add_f32 v%d, 1.0, v%d" % (a, a), 4), ("v_add_f32 v%d, 1.0, v%d" % (b, b), 4),
                ("v_rcp_f32 v%d, v%d" % (a, a), 8), ("v_rcp_f32 v%d, v%d" % (b, b), 8),
                ("v_mul_f32 v%d, v%d, v%d" % (a, x0, a), 4), ("v_mul_f32 v%d, v%d, v%d" % (b, x1, b), 4),
                ("v_cvt_pk_bf16_f32 v%d, v%d, v%d" % (dst, a, b), 4)]
    sd = "dst_sel:WORD_1 dst_unused:UNUSED_PRESERVE src0_sel:WORD_1"
    return [("v_cvt_pk_f16_f32 v%d, v%d, v%d" % (a, x0, x1), 4),
            ("v_pk_fma_f16 v%d, v%d, v%d, s%d" % (b, a, a, sK), 4),
            ("v_pk_mul_f16 v%d, v%d, v%d neg_lo:[1,0] neg_hi:[1,0]" % (a, a, b), 4),
            ("v_exp_f16 v%d, v%d" % (b, a), 8),
            ("v_exp_f16_sdwa v%d, v%d %s" % (b, a, sd), 8),
            ("v_pk_add_f16 v%d, v%d, 1.0 op_sel_hi:[1,0]" % (a, b), 4),
            ("v_rcp_f16 v%d, v%d" % (b, a), 8),
            ("v_rcp_f16_sdwa v%d, v%d %s" % (b, a, sd), 8),
            ("v_fma_mix_f32 v%d, v%d, v%d, 0 op_sel_hi:[0,1,0]" % (a, x0, b), 4),
            ("v_fma_mix_f32 v%d, v%d, v%d, 0 op_sel:[0,1,0] op_sel_hi:[0,1,0]" % (b, x1, b), 4),
            ("v_cvt_pk_bf16_f32 v%d, v%d, v%d" % (dst, a, b), 4)]

def gelu_ops(c, L):
    hb = vH + 24 * (c % 2); pb = vP + 12 * (c % 2)
    quads = []
    for t in range(3):
        for ep in range(2):
            quads.append((hb + 8 * t + 4 * ep, pb + 4 * t + 2 * ep))
    if L and c % 2 == 0: quads.append((vHL, vPL))
    ops = []
    for n, (x, d) in enumerate(quads):
        tmp = vT + 4 * (n % 2)
        A = gelu_pair(x, x + 1, d, tmp); B = gelu_pair(x + 2, x + 3, d + 1, tmp + 2)
        if opt.gelu == 1:
            for k in range(0, 12, 2): ops += [A[k], A[k + 1], B[k], B[k + 1]]
            ops += [A[12], B[12]]
        else:
            for k in range(len(A)): ops += [A[k], B[k]]
    return ops

class Frag: pass

def step_scalars():
    return ["s_add_u32 s%d, s%d, s%d" % (sM1, sM1, sDel2),
            "s_add_u32 s%d, s%d, s%d" % (sM2, sM2, sDel2),
            "s_add_u32 s%d, s%d, 128" % (sW1off, sW1off),
            "s_add_u32 s%d, s%d, 24576" % (sW2off, sW2off),
            "s_cmp_ge_u32 s%d, 1536" % sW1off,
            "s_cselect_b32 s%d, 0, s%d" % (S_W1 + 2, S_W1 + 2),
            "s_mov_b32 s%d, s%d" % (sT0, sDel1),
            "s_mov_b32 s%d, s%d" % (sDel1, sDel2),
            "s_mov_b32 s%d, s%d" % (sDel2, sDelta),
            "s_sub_u32 s%d, s%d, 1" % (sCnt, sCnt),
            "s_cmp_lg_u32 s%d, 0" % sCnt]

def build_main(L, c_lo, c_hi, virt, xds={}, xval={}):
    groups = []
    for c in range(c_lo, c_hi + 1 + (1 if virt else 0)):
        step = (c + 1) // 2
        if c + 1 <= 23 or virt:
            c1 = c + 1
            for ep in range(2):
                pos = 2 * (c1 % 2) + ep
                for kb in range(6):
                    g = Frag(); g.kind = 1; g.period = c; g.step = step; g.pos = pos; g.kb = kb; g.chunk = c1; g.ep = ep
                    groups.append(g)
        if c - 1 >= 0:
            c2 = c - 1
            for ct in range(12):
                g = Frag(); g.kind = 2; g.period = c; g.step = step; g.ct = ct; g.chunk = c2
                groups.append(g)
    N = len(groups)
    D, R = opt.D, opt.R
    assert 24 % R == 0 and D < R and D <= 5
    nbias = 0
    for n, g in enumerate(groups):
        g.slot = aRing + 4 * (n % R)
        g.reads = []
        if g.kind == 1:
            if g.kb == 0:
                g.bias = vBias + 4 * (nbias % 2); nbias += 1
                g.reads.append("ds_read_b128 %s, v%d" % (vr(g.bias, 4), vAb + g.pos))
            for h in range(2):
                g.reads.append("ds_read_b64_tr_b16 %s, v%d offset:%d" % (ar(g.slot + 2 * h, 2), vA1 + g.pos, (g.kb * 4 + h * 2) * 1024))
            hb = vH + 24 * (g.chunk % 2)
            g.mf = []
            tiles = [0, 1, 2] + ([3] if (L and g.pos == 0) else [])
            for t in tiles:
                d = (hb + 8 * t + 4 * g.ep) if t < 3 else vHL
                cc = vr(g.bias, 4) if g.kb == 0 else vr(d, 4)
                g.mf.append("v_mfma_f32_16x16x32_bf16 %s, %s, %s, %s" % (vr(d, 4), ar(g.slot, 4), vr(vB1 + 24 * t + 4 * g.kb, 4), cc))
            g.upd = []
            if g.kb == 5: g.upd = ["v_add_u32 v%d, s%d, v%d" % (vA1 + g.pos, sDelta, vA1 + g.pos)]
            if g.kb == 0: g.upd = ["v_add_u32 v%d, 0x100, v%d" % (vAb + g.pos, vAb + g.pos)]
        else:
            m, o = g.ct // 2, g.ct % 2
            for h in range(2):
                pos = 2 * (g.chunk % 2) + h
                g.reads.append("ds_read_b64_tr_b16 %s, v%d offset:%d" % (ar(g.slot + 2 * h, 2), vA2 + pos, m * 512 + o * 8))
            pb = vP + 12 * (g.chunk % 2)
            g.mf = []
            tiles = [0, 1, 2] + ([3] if (L and g.chunk % 2 == 0) else [])
            for t in tiles:
                acc = ar(48 * t + 4 * g.ct, 4)
                g.mf.append("v_mfma_f32_16x16x32_bf16 %s, %s, %s, %s" % (acc, ar(g.slot, 4), vr(pb + 4 * t, 4) if t < 3 else vr(vPL, 4), acc))
            g.upd = []
            if g.ct == 11 and virt:
                g.upd = ["v_add_u32 v%d, s%d, v%d" % (vA2 + 2 * (g.chunk % 2) + h, sDelta, vA2 + 2 * (g.chunk % 2) + h) for h in range(2)]
    steps = [[] for _ in range(13)]
    issued = [0]; lastseq = {}
    pre = []
    def issue(n, dst):
        for r in groups[n].reads:
            dst.append(r); issued[0] += 1
        lastseq[n] = issued[0]
    for n in range(D): issue(n, pre)
    for n in range(D): pre += groups[n].upd
    first_wait = "s_waitcnt lgkmcnt(%d)" % (issued[0] - lastseq[0])
    for c in range(c_lo, c_hi + 1):
        step = (c + 1) // 2
        dst = steps[step]
        gs = [k for k in range(N) if groups[k].period == c]
        val = gelu_ops(c, L) if 0 <= c <= 23 else []
        val = val + [(x, 4) for x in xval.get(c, [])]
        xd = list(xds.get(c, []))
        nxd = (len(xd) + len(gs) - 1) // len(gs)
        if c == c_lo:
            burst = 0
            while val and burst < 120:
                pre.append(val[0][0]); burst += val[0][1]; val = val[1:]
            pre.append(first_wait)
        dmas = []; scal = []
        if step <= 11:
            if c % 2 == 1: dmas = [dma_w(i, 1) for i in range(6)] + [dma_w(i, 2) for i in range(6)]
            else: scal = step_scalars()
        nm = sum(len(groups[k].mf) for k in gs)
        tot = 8 * nm + sum(x[1] for x in val) + 12 * len(dmas) + 4 * len(xd)
        for k in gs:
            if k + D < N: tot += 4 * len(groups[k + D].reads) + 4 * len(groups[k + D].upd)
        t = 0.0; vi = 0; mi = 0
        for gi, k in enumerate(gs):
            g = groups[k]
            for j, m in enumerate(g.mf):
                dst.append(m); t += 8; mi += 1
                extra = []
                if j == len(g.mf) - 1 and k + 1 < N:
                    dst.append("s_waitcnt lgkmcnt(%d)" % min(15, issued[0] - lastseq[k + 1]))
                if j == 0:
                    if gi < len(dmas): dst.append(dmas[gi][0][0])
                    elif scal: dst.append(scal.pop(0))
                    if k + D < N:
                        issue(k + D, dst); t += 4 * len(groups[k + D].reads)
                        extra = groups[k + D].upd
                if j == len(g.mf) - 1:
                    for _ in range(nxd):
                        if xd: dst.append(xd.pop(0)); issued[0] += 1; t += 4
                if j == 1:
                    if gi < len(dmas):
                        dst.append(dmas[gi][0][1]); dst.append(dmas[gi][1]); t += 12
                    elif gi == len(gs) - 1 and step <= 11 and c % 2 == 0:
                        dst.append("s_mov_b32 s%d, s%d" % (sDelta, sT0))
                for x in extra: dst.append(x); t += 4
                lim = mi * tot / nm
                while vi < len(val) and t + val[vi][1] <= lim + 2:
                    dst.append(val[vi][0]); t += val[vi][1]; vi += 1
        while vi < len(val): dst.append(val[vi][0]); vi += 1
        assert not scal and not xd
    return pre, steps

def main_part(L):
    tag = "b%d" % L
    ai = acc_init(L)
    pre, steps = build_main(L, -1, 22, True, xds={-1: ai[:len(ai) // 2], 0: ai[len(ai) // 2:]})
    xd24, xv23, xv24 = epi_prep(L)
    pre12, steps12 = build_main(L, 23, 24, False, xds={24: xd24}, xval={23: xv23, 24: xv24})
    for j in range(3, 12): assert steps[j] == steps[2], j
    assert len(steps[1]) == len(steps[2])
    steps[1] = steps[2]
    e("s_mov_b32 s%d, 0x%08x" % (sK, f2u(KK) if opt.gelu == 1 else f2h(KK) * 0x10001))
    set_dma_slot(2 * SLOT)
    e("s_mov_b32 s%d, 256" % sW1off)
    e("s_mov_b32 s%d, 24576" % sW2off)
    e("s_mov_b32 s%d, %d" % (sDelta, SLOT))
    e("s_mov_b32 s%d, %d" % (sDel1, SLOT))
    e("s_mov_b32 s%d, %d" % (sDel2, -2 * SLOT))
    e("s_mov_b32 s%d, 12" % sCnt)
    for s in pre: e(s)
    for s in steps[0]: e(s)
    e("s_waitcnt vmcnt(0)")
    e("s_barrier")
    st("step0")
    out.append(".p2align 6")
    lab("L_loop_%s" % tag)
    for s in steps[1]: e(s)
    e("s_waitcnt vmcnt(0)")
    e("s_barrier")
    e("s_cbranch_scc1 L_loop_%s" % tag)
    st("loop")
    epi_scalars(L)
    for s in pre12: e(s)
    for s in steps12[12]: e(s)
    st("p24")
    epilogue(L)

RED = SLOT
STG = 2 * SLOT
vG = vH
vWA = vA1
vRd = vA1 + 2
vRdl = [vA1 + 2, vA1 + 3, vAb]
vSt = vAb + 1
vX0 = vB1 + 48
def epi_prep(L):
    xd = ["ds_read_b128 %s, v%d offset:%d" % (vr(vG + 4 * ct, 4), vTab, TAB_G - TAB_B2 + (ct // 2) * 128 + (ct % 2) * 16) for ct in range(12)]
    xv23 = []
    if L:
        xv23 = ["v_lshlrev_b32 v%d, 4, v%d" % (vTmp, vLane), "v_add_u32 v%d, s%d, v%d" % (vTmp + 1, sT3, vTmp)]
        xd += ["ds_write_b128 v%d, %s offset:%d" % (vTmp + 1, ar(144 + 4 * ct, 4), ct * 1024) for ct in range(12)]
    t0, t1 = vAb + 2, vAb + 3
    xv = ["v_and_b32 v%d, 15, v%d" % (t0, vLane), "v_lshrrev_b32 v%d, 4, v%d" % (t1, vLane),
          "v_mul_u32_u24 v%d, 384, v%d" % (vWA, t0), "v_and_b32 v%d, 7, v%d" % (t0, t0),
          "v_xor_b32 v%d, v%d, v%d" % (t0, t0, t1), "v_lshl_add_u32 v%d, v%d, 4, v%d" % (vWA, t0, vWA),
          "v_add_u32 v%d, s%d, v%d" % (vWA, sT2, vWA), "v_xor_b32 v%d, 64, v%d" % (vWA + 1, vWA)]
    for k in range(3):
        xv += ["v_add_u32 v%d, %d, v%d" % (t0, 64 * k, vLane), "v_mul_u32_u24 v%d, 2731, v%d" % (t1, t0),
               "v_bfe_u32 v%d, v%d, 16, 3" % (t1, t1), "v_xor_b32 v%d, v%d, v%d" % (t0, t0, t1),
               "v_lshlrev_b32 v%d, 4, v%d" % (t0, t0), "v_add_u32 v%d, s%d, v%d" % (vRdl[k], sT2, t0)]
    xv += ["v_lshlrev_b32 v%d, 4, v%d" % (vSt, vLane), "v_add_u32 v%d, s%d, v%d" % (vSt, sT1, vSt)]
    for k in range(12):
        xv += ["v_lshlrev_b32 v%d, 16, v%d" % (vX0 + 2 * k, vR0 + k), "v_and_b32 v%d, 0xffff0000, v%d" % (vX0 + 2 * k + 1, vR0 + k)]
    return xd, xv23, xv

def epi_scalars(L):
    e("s_add_u32 s%d, s%d, s%d" % (sT1, sRow0, sWave))
    e("s_mul_i32 s%d, s%d, %d" % (sT1, sT1, ROWB))
    e("s_mul_i32 s%d, s%d, 6144" % (sT2, sStrip))
    e("s_add_u32 s%d, s%d, s%d" % (sT1, sT1, sT2))
    e("s_mul_i32 s%d, s%d, 12288" % (sT2, sWave))
    e("s_add_u32 s%d, s%d, %d" % (sT3, sT2, RED))
    e("s_add_u32 s%d, s%d, %d" % (sT2, sT2, STG))

def epi_group(acc_regs, gam, xr, dst, tmp, unpacked=False):
    if not unpacked:
        for k in range(4):
            e("v_lshlrev_b32 v%d, 16, v%d" % (tmp + 2 * k, xr + k))
            e("v_and_b32 v%d, 0xffff0000, v%d" % (tmp + 2 * k + 1, xr + k))
    for k in range(4):
        e("v_pk_fma_f32 %s, %s, %s, %s" % (vr(tmp + 2 * k, 2), vr(acc_regs + 2 * k, 2), vr(gam + 2 * k, 2), vr(tmp + 2 * k, 2)))
    for k in range(4):
        e("v_cvt_pk_bf16_f32 v%d, v%d, v%d" % (dst + k, tmp + 2 * k, tmp + 2 * k + 1))

def epilogue(L):
    tag = "b%d" % L
    e("s_waitcnt lgkmcnt(0)")
    if L: e("s_barrier")
    st("gam")
    vAc = vB1; vTm = vB1 + 16; vXs = vB1 + 32; vO = vB1 + 40
    vLin = vP
    def store(t, k):
        e("buffer_store_dwordx4 %s, v%d, %s, s%d offen offset:%d%s" % (vr(vLin + 4 * k, 4), vSt, sr(S_O, 4), sT0 if k < 4 else sSo, (k % 4) * 1024, OPOL))
    n = 0
    for t in range(3):
        buf = (t % 2) * 6144
        for m in range(6):
            ac = vAc + 8 * (n % 2); tm = vTm + 8 * (n % 2); o = vO + 4 * (n % 2)
            for k in range(8): e("v_accvgpr_read_b32 v%d, a%d" % (ac + k, 48 * t + 8 * m + k))
            src = res_dst(t, m)
            base = int(src[2:src.index(":")])
            unp = (t == 0 and m < 3)
            if unp: tm = vX0 + 8 * m; xr = None
            elif src[0] == "a":
                xr = vXs + 4 * (n % 2)
                for k in range(4): e("v_accvgpr_read_b32 v%d, a%d" % (xr + k, base + k))
            else: xr = base
            epi_group(ac, vG + 8 * m, xr, o, tm, unp)
            if t > 0:
                if m == 0: e("s_waitcnt lgkmcnt(0)")
                store(t - 1, m)
            e("ds_write_b128 v%d, %s offset:%d" % (vWA + m % 2, vr(o, 4), buf + (m // 2) * 128))
            n += 1
        e("s_mov_b32 s%d, %d" % (sT0, t * 4 * ROWB))
        e("s_mov_b32 s%d, %d" % (sSo, t * 4 * ROWB + 4096))
        for k in range(6):
            e("ds_read_b128 %s, v%d offset:%d" % (vr(vLin + 4 * k, 4), vRdl[k % 3], buf + (k // 3) * 3072))
        st("t%d" % t)
    if L:
        e("s_sub_u32 s%d, 12, s%d" % (sT1, sWave))
        e("s_mul_i32 s%d, s%d, %d" % (sT1, sT1, ROWB))
        e("s_lshl_b32 s%d, s%d, 6" % (sT2, sWave))
        e("s_add_u32 s%d, s%d, s%d" % (sT1, sT1, sT2))
        e("s_lshl_b32 s%d, s%d, 11" % (sT2, sWave))
        e("s_add_u32 s%d, s%d, %d" % (sT2, sT2, RED))
        e("v_add_u32 v%d, s%d, v%d" % (vTmp, sT2, vTmp))
        e("s_lshl_b32 s%d, s%d, 7" % (sT2, sWave))
        e("v_add_u32 v%d, s%d, v%d" % (vTmp + 1, sT2, vTab))
        def lreads(half, base):
            for w in range(4):
                for o in range(2):
                    e("ds_read_b128 %s, v%d offset:%d" % (vr(base + 8 * w + 4 * o, 4), vTmp, w * 12288 + half * 8192 + o * 1024))
            for o in range(2):
                e("ds_read_b128 %s, v%d offset:%d" % (vr(base + 32 + 4 * o, 4), vTmp + 1, TAB_G - TAB_B2 + half * 512 + o * 16))
        bases = [vB1 + 48, vH]
        lreads(0, bases[0])
        e("s_waitcnt lgkmcnt(10)")
        for k in range(6): store(2, k)
        lreads(1, bases[1])
        for half in range(2):
            if half == 1:
                e("s_cmp_ge_u32 s%d, 2" % sWave)
                e("s_cbranch_scc1 L_done_%s" % tag)
            regs = [bases[half] + 8 * w for w in range(4)]
            e("s_waitcnt lgkmcnt(%d)" % (10 if half == 0 else 0))
            for k in range(0, 8, 2):
                e("v_pk_add_f32 %s, %s, %s" % (vr(regs[0] + k, 2), vr(regs[0] + k, 2), vr(regs[1] + k, 2)))
                e("v_pk_add_f32 %s, %s, %s" % (vr(regs[2] + k, 2), vr(regs[2] + k, 2), vr(regs[3] + k, 2)))
            for k in range(0, 8, 2):
                e("v_pk_add_f32 %s, %s, %s" % (vr(regs[0] + k, 2), vr(regs[0] + k, 2), vr(regs[2] + k, 2)))
            xr = vRL + 4 * half
            epi_group(regs[0], bases[half] + 32, xr, xr, vTm)
            e("buffer_store_dwordx4 %s, v%d, %s, s%d offen offset:%d%s" % (vr(xr, 4), vOut, sr(S_O, 4), sT1, half * 256, OPOL))
        lab("L_done_%s" % tag)
    else:
        e("s_waitcnt lgkmcnt(0)")
        for k in range(6): store(2, k)
    if opt.stamps:
        st("epi")
        e("s_waitcnt vmcnt(0)")
        st("drain")
        e("s_waitcnt lgkmcnt(0)")
        if opt.diag >= 0:
            e("s_add_u32 s%d, s%d, 6000" % (sT0, sStamp + 2 * min(opt.diag, 10)))
            if opt.diag == 11:
                srd(S_T, 8, 256)
                e("v_mov_b32 v2, 0")
                e("buffer_load_dword v3, v2, %s, 0 offen sc0 sc1" % sr(S_T, 4))
                e("s_waitcnt vmcnt(0)")
                e("v_readfirstlane_b32 s%d, v3" % sT0)
                e("s_not_b32 s%d, s%d" % (sT0, sT0))
                e("s_add_u32 s%d, s%d, 6000" % (sT0, sT0))
            lab("L_spin_%s" % tag)
            e("s_memrealtime %s" % sr(sEx, 2))
            e("s_waitcnt lgkmcnt(0)")
            e("s_sub_u32 s%d, s%d, s%d" % (sT1, sEx, sT0))
            e("s_cmp_lt_i32 s%d, 0" % sT1)
            e("s_cbranch_scc1 L_spin_%s" % tag)
            e("s_endpgm")
            return
        srd(S_T, 9, 1 << 20)
        e("s_lshl_b32 s%d, s2, 2" % sT0)
        e("s_add_u32 s%d, s%d, s%d" % (sT0, sT0, sWave))
        e("s_lshl_b32 s%d, s%d, 6" % (sT0, sT0))
        e("v_mov_b32 v2, 0")
        for i in range(len(SSETS[opt.sset])): e("v_writelane_b32 v2, s%d, %d" % (sStamp + 2 * i, i))
        out.append("; STAMPNAMES " + " ".join(SSETS[opt.sset]))
        e("v_writelane_b32 v2, s%d, 11" % sNrows)
        e("v_lshlrev_b32 v3, 2, v%d" % vLane)
        e("v_add_u32 v3, s%d, v3" % sT0)
        e("v_cmp_gt_u32 vcc, 16, v%d" % vLane)
        e("s_and_saveexec_b64 %s, vcc" % sr(sEx, 2))
        e("buffer_store_dword v2, v3, %s, 0 offen" % sr(S_T, 4))
    e("s_endpgm")

import copy
vm = VM()
head()
vm0 = vm
for L in (0, 1):
    vm = copy.deepcopy(vm0)
    lab("L_body%d" % L)
    prologue(L)
    main_part(L)
lab("L_exit")
e("s_endpgm")

ref = open("cdna_kernels/%s.s.ref" % NAME).read().split("\n")
hdr = [l for l in ref if l.startswith(";") and "@launch" not in l]
txt = "\n".join(hdr) + "\n; @launch grid=(252,1,1) block=(256,1,1) lds=%d\n" % LDS_SIZE
txt += """.amdgcn_target "amdgcn-amd-amdhsa--gfx950"
.text
.globl %s_kernel
.p2align 8
.type %s_kernel,@function
%s_kernel:
""" % (NAME, NAME, NAME)
txt += "\n".join(out).replace("PF_LIM", "L_exit-L_pf-0x8000") + "\n"
txt += """.section .rodata,"a"
.p2align 6
.amdhsa_kernel %s_kernel
  .amdhsa_next_free_vgpr 512
  .amdhsa_next_free_sgpr 102
  .amdhsa_accum_offset 256
  .amdhsa_group_segment_fixed_size 0
  .amdhsa_kernarg_size 80
  .amdhsa_user_sgpr_count 2
  .amdhsa_user_sgpr_kernarg_segment_ptr 1
  .amdhsa_system_sgpr_workgroup_id_x 1
.end_amdhsa_kernel
""" % NAME
dst = [a for a in sys.argv[1:] if "=" not in a]
open(dst[0] if dst else "cdna_kernels/%s.s" % NAME, "w").write(txt)
```

```python
import math, struct, sys

NAME = "standalone__modern_conv_block_convnext__vision"
def f2u(f): return struct.unpack("<I", struct.pack("<f", f))[0]
def f2h(f): return struct.unpack("<H", struct.pack("<e", f))[0]

class Opt:
    gelu = 2
    stamps = 0
    D = 4
    R = 6
    xnt = 1
    sset = 0
    wpf = 0
    dsp = 1
    nobar = 0
    unroll = 1
    e64 = 0
    barpos = 0
    ne1 = 11
    pe1 = 10
    np0 = 8
    nlate = 60
    diag = -1
    pf = 1
    ont = 2
opt = Opt()
for a in sys.argv[1:]:
    if "=" in a:
        k, v = a.split("="); assert hasattr(opt, k), k; setattr(opt, k, int(v))

C0 = 2.0 * math.sqrt(2.0 / math.pi) * math.log2(math.e)
SA = (C0 * 0.044715) ** (1.0 / 3.0)
KK = C0 / SA
if opt.gelu == 2:
    KK = struct.unpack("<e", struct.pack("<e", KK))[0]
    SA = C0 / KK

XBYTES = 224 * 224 * 384
ROWB = 86016
SLOT = 49152
XB = 49152
XROW = 7168
TAB_B1 = 156672
TAB_B2 = TAB_B1 + 3072
TAB_G = TAB_B2 + 768
DUMMY = TAB_G + 768
IMG = 0
XCH = 36864
LDS_SIZE = 163840
OOB = 0x40000
XPOL = " nt" if opt.xnt else ""
OPOL = ["", " nt", " sc1", " sc0 sc1"][opt.ont]

S_X = 8; S_W1 = 12; S_W2 = 16; S_O = 20; S_T = 24
sWave = 28; sRow0 = 29; sStrip = 30; sNrows = 31
sK = 32; sDelta = 33; sW1off = 35; sW2off = 36; sCnt = 37
sT0 = 38; sT1 = 39; sT2 = 40; sT3 = 41
sEx = 42
sRowB = 44; sM1 = 45; sM2 = 46; sSo = 47; sDel1 = 48; sDel2 = 49
sXm1 = 50; sXm2 = 51; sXs2 = 52; sLoff = 53
sPtr = 60
sStamp = 80

vLane = 1
vA1 = 2; vA2 = 6; vAb = 10
vD1 = 14; vD2 = 15; vOut = 16; vTab = 17; vTmp = 18
vBias = 20
vT = 28
vRL = 36
vHL = 44; vPL = 48
vP = 52
vH = 76
vR0 = 124
vR1 = 148
vX1 = 156; vX2 = 157; vRA = 158
vB1 = 160
vCA = 20
vS = 40
vCB = 52
vY = 76
aRing = 192
aR2 = 216
aR1 = 240

out = []
def e(s): out.append("    " + s)
def lab(s): out.append(s + ":")
def cm(s): out.append("    ; " + s)
SSETS = [["start", "issued", "diag", "conv0", "conv1", "conv2", "conv3", "step0", "loop", "epi", "drain"],
         ["start", "loop", "p24", "gam", "t0", "t1", "t2", "epi", "drain"],
         ["start", "kernarg", "issued", "setup", "dwin", "img", "bar", "diag", "x0in", "mf0", "conv0"],
         ["start", "x0in", "mf0", "conv0", "mf1", "conv1", "mf2", "conv2", "conv3", "step0", "drain"]]
def st(name):
    names = SSETS[opt.sset]
    if opt.stamps and name in names: stamp(names.index(name))
def stamp(i):
    if opt.stamps: e("%s s[%d:%d]" % ("s_memrealtime" if opt.stamps == 1 else "s_memtime", sStamp + 2 * i, sStamp + 2 * i + 1))
def vr(b, n): return "v[%d:%d]" % (b, b + n - 1)
def ar(b, n): return "a[%d:%d]" % (b, b + n - 1)
def sr(b, n): return "s[%d:%d]" % (b, b + n - 1)
def srd(s, ptr_slot, nbytes):
    e("s_mov_b32 s%d, s%d" % (s, sPtr + 2 * ptr_slot))
    e("s_and_b32 s%d, s%d, 0xffff" % (s + 1, sPtr + 2 * ptr_slot + 1))
    e("s_mov_b32 s%d, %d" % (s + 2, nbytes))
    e("s_mov_b32 s%d, 0x20000" % (s + 3))

def capture(fn, *args):
    global out
    save = out; out = []
    fn(*args)
    got = [l.strip() for l in out if not l.strip().startswith(";")]
    out = save
    return got

class VM:
    def __init__(self): self.issued = []; self.pending = []
    def issue_now(self, tag, lines):
        for l in lines: e(l)
        self.issued.append(tag)
    def queue(self, tag, lines): self.pending.append((tag, lines))
    def pop(self, n=1):
        for _ in range(n):
            if self.pending:
                tag, lines = self.pending.pop(0); self.issue_now(tag, lines)
    def wait(self, pred):
        while any(pred(t) for t, _ in self.pending): self.pop()
        idx = [i for i, t in enumerate(self.issued) if pred(t)]
        e("s_waitcnt vmcnt(%d)" % (len(self.issued) - 1 - max(idx)))
vm = None

def x_items(r):
    return [(("x", r), ["s_add_u32 m0, s%d, %d" % (sXm1, r * XROW), "s_add_u32 s%d, s%d, s%d" % (sXm2, sXm2, sXs2),
                        "buffer_load_dwordx4 v%d, %s, 0 offen%s lds" % (vX1, sr(S_X, 4), XPOL),
                        "v_add_u32 v%d, s%d, v%d" % (vX1, sRowB, vX1)]),
            (("x", r), ["s_mov_b32 m0, s%d" % sXm2, "s_nop 0",
                        "buffer_load_dwordx4 v%d, %s, 0 offen%s lds" % (vX2, sr(S_X, 4), XPOL),
                        "v_add_u32 v%d, s%d, v%d" % (vX2, sRowB, vX2)])]

vTB = vY
vDW = vB1
def head():
    e("s_cmp_ge_u32 s2, 252")
    e("s_cbranch_scc1 L_exit")
    st("start")
    e("s_load_dwordx4 %s, s[0:1], 0" % sr(sPtr, 4))
    e("s_load_dwordx16 %s, s[0:1], 16" % sr(sPtr + 4, 16))
    if opt.pf:
        e("s_getpc_b64 %s" % sr(sEx, 2))
        lab("L_pf")
        e("s_lshr_b32 s%d, s2, 3" % sT1)
        e("s_lshl_b32 s%d, s%d, 11" % (sT1, sT1))
        e("v_lshrrev_b32 v%d, 4, v0" % vS)
        e("v_lshlrev_b32 v%d, 7, v%d" % (vS, vS))
        e("v_add_u32 v%d, s%d, v%d" % (vS, sT1, vS))
        e("v_min_u32 v%d, L_exit-L_pf, v%d" % (vS, vS))
        vm.issue_now("dw", ["global_load_dword v%d, v%d, %s" % (vTB + 6, vS, sr(sEx, 2))])
    e("s_and_b32 s%d, s2, 7" % sT0)
    e("s_lshr_b32 s%d, s2, 3" % sT1)
    e("s_and_b32 s%d, s%d, 3" % (sT2, sT0))
    e("s_mul_i32 s%d, s%d, 63" % (sT2, sT2))
    e("s_lshr_b32 s%d, s%d, 2" % (sT0, sT0))
    e("s_lshl_b32 s%d, s%d, 5" % (sT0, sT0))
    e("s_add_u32 s%d, s%d, s%d" % (sT2, sT2, sT0))
    e("s_add_u32 s%d, s%d, s%d" % (sT2, sT2, sT1))
    e("s_cmp_ge_u32 s%d, 126" % sT2)
    e("s_cselect_b32 s%d, 7, 0" % sStrip)
    e("s_cselect_b32 s%d, 126, 0" % sT0)
    e("s_sub_u32 s%d, s%d, s%d" % (sT2, sT2, sT0))
    e("s_mul_i32 s%d, s%d, 9363" % (sT0, sT2))
    e("s_lshr_b32 s%d, s%d, 16" % (sT0, sT0))
    e("s_mul_i32 s%d, s%d, 7" % (sT1, sT0))
    e("s_sub_u32 s%d, s%d, s%d" % (sT1, sT2, sT1))
    e("s_add_u32 s%d, s%d, s%d" % (sStrip, sStrip, sT1))
    e("s_mul_i32 s%d, s%d, %d" % (sRow0, sT0, 112 * 7282))
    e("s_add_u32 s%d, s%d, %d" % (sNrows, sRow0, 112 * 7282))
    e("s_lshr_b32 s%d, s%d, 16" % (sRow0, sRow0))
    e("s_lshr_b32 s%d, s%d, 16" % (sNrows, sNrows))
    e("s_sub_u32 s%d, s%d, s%d" % (sNrows, sNrows, sRow0))
    for r in range(126): assert (r * 9363) >> 16 == r // 7
    for b in range(19): assert (b * 112 * 7282) >> 16 == b * 112 // 9
    e("v_and_b32 v%d, 63, v0" % vLane)
    e("v_lshrrev_b32 v%d, 6, v0" % vTmp)
    e("s_mov_b32 s%d, %d" % (sRowB, ROWB))
    e("v_readfirstlane_b32 s%d, v%d" % (sWave, vTmp))
    t0, t1, t2 = vS, vS + 1, vS + 2
    e("s_sub_u32 s%d, s%d, 1" % (sT0, sRow0))
    e("s_mul_i32 s%d, s%d, %d" % (sT0, sT0, ROWB))
    e("s_mul_i32 s%d, s%d, 6144" % (sT1, sStrip))
    e("s_add_u32 s%d, s%d, s%d" % (sT0, sT0, sT1))
    e("s_sub_u32 s%d, s%d, 384" % (sT0, sT0))
    e("s_cmp_eq_u32 s%d, 0" % sStrip)
    e("s_cselect_b32 s%d, 1, 0" % sT1)
    e("s_cmp_eq_u32 s%d, 13" % sStrip)
    e("s_cselect_b32 s%d, 17, 18" % sT2)
    e("s_sub_u32 s%d, s%d, s%d" % (sT2, sT2, sT1))
    for P in range(512): assert (P * 2731) >> 16 == P // 24
    for vx, add in ((vX1, 0), (vX2, 256)):
        if add: e("v_add_u32 v%d, %d, v0" % (t2, add))
        src = t2 if add else 0
        e("v_mul_u32_u24 v%d, 2731, v%d" % (t0, src))
        e("v_lshrrev_b32 v%d, 16, v%d" % (t0, t0))
        e("v_mul_u32_u24 v%d, 24, v%d" % (t1, t0))
        e("v_sub_u32 v%d, v%d, v%d" % (t1, src, t1))
        e("v_bfe_u32 v%d, v%d, 1, 3" % (vx, t0))
        e("v_xor_b32 v%d, v%d, v%d" % (t1, t1, vx))
        e("v_mul_u32_u24 v%d, 384, v%d" % (vx, t0))
        e("v_lshl_add_u32 v%d, v%d, 4, v%d" % (vx, t1, vx))
        e("v_add_u32 v%d, s%d, v%d" % (vx, sT0, vx))
        e("v_subrev_u32 v%d, s%d, v%d" % (t0, sT1, t0))
        e("v_cmp_gt_u32 vcc, s%d, v%d" % (sT2, t0))
        e("v_mov_b32 v%d, 0x80000000" % t1)
        e("s_nop 0")
        e("v_cndmask_b32 v%d, v%d, v%d, vcc" % (vx, t1, vx))
    e("s_lshl_b32 s%d, s%d, 10" % (sXm1, sWave))
    e("s_add_u32 s%d, s%d, %d" % (sXm1, sXm1, XB))
    e("s_add_u32 s%d, s%d, %d" % (sXm2, sXm1, 4096 - XROW))
    e("s_cmp_eq_u32 s%d, 3" % sWave)
    e("s_cselect_b32 s%d, %d, s%d" % (sXm2, DUMMY, sXm2))
    e("s_cselect_b32 s%d, 0, %d" % (sXs2, XROW))
    e("v_lshlrev_b32 v%d, 4, v0" % vTmp)
    e("v_lshlrev_b32 v%d, 3, v0" % (vTB + 7))
    setup_early()
    e("s_waitcnt lgkmcnt(0)")
    st("kernarg")
    srd(S_T, 1, 3456)
    vm.issue_now("dw", ["buffer_load_dwordx4 %s, v%d, %s, 0 offen" % (vr(vDW, 4), vTmp, sr(S_T, 4))])
    srd(S_X, 0, XBYTES)
    for r in range(14):
        for tag, l in x_items(r): vm.queue(tag, l)
        if r == 1:
            for k, (slot, nb) in enumerate(((3, 1536), (5, 384), (6, 384))):
                vm.queue("tab", capture(srd, S_T, slot, nb) + ["buffer_load_dwordx2 %s, v%d, %s, 0 offen" % (vr(vTB + 2 * k, 2), vTB + 7, sr(S_T, 4))])
    build_diag()
    e("s_cmp_eq_u32 s%d, 13" % sNrows)
    e("s_cbranch_scc1 L_body1")

def dma_w(i, kind):
    if kind == 1:
        return (["s_add_u32 m0, s%d, %d" % (sM1, i * 1024), "s_add_u32 s%d, s%d, %d" % (sSo, sW1off, i * 12288)],
                "buffer_load_dwordx4 v%d, %s, s%d offen lds" % (vD1, sr(S_W1, 4), sSo))
    oo, t = i // 3, i % 3
    return (["s_add_u32 m0, s%d, %d" % (sM2, oo * 3072 + t * 1024), "s_add_u32 s%d, s%d, %d" % (sSo, sW2off, oo * 3072 + t * 128)],
            "buffer_load_dwordx4 v%d, %s, s%d offen lds" % (vD2, sr(S_W2, 4), sSo))

def set_dma_slot(slot_base_imm):
    e("s_mul_i32 s%d, s%d, 6144" % (sM1, sWave))
    e("s_add_u32 s%d, s%d, %d" % (sM1, sM1, slot_base_imm))
    e("s_add_u32 s%d, s%d, 24576" % (sM2, sM1))

vIA = vS + 8
vM = vCB
IST = 4112
vQ = vB1 + 8
def setup_early():
    t0, t1 = vS, vS + 1
    px, g, gl, gh = vS + 4, vS + 5, vS + 6, vS + 7
    for j in range(8):
        for k in range(4):
            if k != j // 2: e("v_mov_b32 v%d, 0" % (vQ + 4 * j + k))
    e("v_and_b32 v%d, 15, v%d" % (px, vLane))
    e("v_lshrrev_b32 v%d, 4, v%d" % (g, vLane))
    e("v_and_b32 v%d, 1, v%d" % (gl, g))
    e("v_lshrrev_b32 v%d, 1, v%d" % (gh, g))
    cm("image read addresses (invalid lanes out of range -> read 0)")
    e("v_lshrrev_b32 v%d, 3, v%d" % (t0, px))
    e("v_xor_b32 v%d, v%d, v%d" % (t0, t0, gh))
    e("v_mul_u32_u24 v%d, %d, v%d" % (t0, OOB, t0))
    e("v_lshl_add_u32 v%d, v%d, 4, v%d" % (t0, gh, t0))
    e("v_and_b32 v%d, 7, v%d" % (t1, px))
    e("v_mul_u32_u24 v%d, %d, v%d" % (t1, IST, t1))
    e("v_add_u32 v%d, v%d, v%d" % (t0, t0, t1))
    e("v_mul_u32_u24 v%d, %d, v%d" % (t1, 3 * 384, gl))
    e("v_add_u32 v%d, v%d, v%d" % (vIA, t0, t1))
    e("v_mul_u32_u24 v%d, 384, v%d" % (t1, gl))
    e("v_add_u32 v%d, v%d, v%d" % (vIA + 1, t0, t1))
    e("v_mul_u32_u24 v%d, %d, v%d" % (t1, OOB, gl))
    e("v_add_u32 v%d, v%d, v%d" % (vIA + 2, t0, t1))

def setup_late():
    t0, t1, t2, t3 = vS, vS + 1, vS + 2, vS + 3
    cm("W1 dma voffset")
    e("v_lshrrev_b32 v%d, 3, v%d" % (t0, vLane))
    e("v_and_b32 v%d, 7, v%d" % (t1, vLane))
    e("v_and_b32 v%d, 6, v%d" % (t2, t0))
    e("v_xor_b32 v%d, v%d, v%d" % (t1, t1, t2))
    e("v_mul_u32_u24 v%d, 1536, v%d" % (t0, t0))
    e("v_lshl_add_u32 v%d, v%d, 4, v%d" % (vD1, t1, t0))
    e("s_mul_i32 s%d, s%d, %d" % (sT0, sWave, 48 * 1536))
    e("v_add_u32 v%d, s%d, v%d" % (vD1, sT0, vD1))
    cm("W2 dma voffset")
    e("v_bfe_u32 v%d, v%d, 2, 3" % (t0, vLane))
    e("v_mul_u32_u24 v%d, 384, v%d" % (t0, t0))
    e("v_lshrrev_b32 v%d, 5, v%d" % (t1, vLane))
    e("v_lshl_add_u32 v%d, v%d, 6, v%d" % (t0, t1, t0))
    e("v_and_b32 v%d, 3, v%d" % (t1, vLane))
    e("v_lshl_add_u32 v%d, v%d, 4, v%d" % (vD2, t1, t0))
    e("s_mul_i32 s%d, s%d, %d" % (sT0, sWave, 16 * 384))
    e("v_add_u32 v%d, s%d, v%d" % (vD2, sT0, vD2))
    srd(S_W1, 2, 192 * 768 * 2)
    srd(S_W2, 4, 192 * 768 * 2)
    srd(S_O, 7, XBYTES)
    cm("conv B-frag addresses")
    px, g, gl, gh = vS + 4, vS + 5, vS + 6, vS + 7
    e("s_mul_i32 s%d, s%d, %d" % (sT0, sWave, XROW))
    e("s_add_u32 s%d, s%d, %d" % (sT0, sT0, XB))
    for tp in range(5):
        if tp < 3: e("v_add_u32 v%d, %d, v%d" % (t0, tp, px))
        elif tp == 3: e("v_add_u32 v%d, v%d, v%d" % (t0, gl, px))
        else: e("v_add_u32 v%d, 2, v%d" % (t0, px))
        e("v_bfe_u32 v%d, v%d, 1, 3" % (t1, t0))
        if tp == 1:
            e("v_xor_b32 v%d, v%d, v%d" % (t2, t1, g))
        e("v_xor_b32 v%d, v%d, v%d" % (t1, t1, gh))
        e("v_mul_u32_u24 v%d, 384, v%d" % (t0, t0))
        if tp == 1:
            e("v_lshl_add_u32 v%d, v%d, 4, v%d" % (t2, t2, t0))
            e("v_add_u32 v%d, %d, v%d" % (t2, XROW, t2))
            e("v_add_u32 v%d, s%d, v%d" % (vRA, sT0, t2))
            e("v_xor_b32 v%d, 64, v%d" % (vRA + 1, vRA))
        e("v_lshl_add_u32 v%d, v%d, 4, v%d" % (t0, t1, t0))
        if tp < 3:
            e("v_mul_u32_u24 v%d, %d, v%d" % (t1, XROW, gl))
            e("v_add3_u32 v%d, v%d, v%d, s%d" % (vCA + tp * 4, t0, t1, sT0))
        else:
            e("v_add_u32 v%d, %d, v%d" % (t0, 2 * XROW, t0))
            e("v_add_u32 v%d, s%d, v%d" % (vCA + tp * 4, sT0, t0))
        for k in range(1, 4):
            e("v_xor_b32 v%d, %d, v%d" % (vCA + tp * 4 + k, 32 * k, vCA + tp * 4))
    cm("main-loop LDS addresses")
    e("v_bfe_u32 v%d, v%d, 2, 3" % (t0, vLane))
    e("v_lshrrev_b32 v%d, 5, v%d" % (t1, vLane))
    e("v_and_b32 v%d, 3, v%d" % (t2, vLane))
    e("v_lshlrev_b32 v%d, 7, v%d" % (t3, t0))
    e("v_lshl_add_u32 v%d, v%d, 10, v%d" % (t3, t1, t3))
    e("v_lshl_add_u32 v%d, v%d, 3, v%d" % (t3, t2, t3))
    e("v_lshrrev_b32 v%d, 1, v%d" % (vA1, t0))
    e("v_xor_b32 v%d, s%d, v%d" % (vA1, sWave, vA1))
    e("v_lshl_add_u32 v%d, v%d, 5, v%d" % (vA1, vA1, t3))
    for p in range(1, 4): e("v_xor_b32 v%d, %d, v%d" % (vA1 + p, 32 * p, vA1))
    e("v_mul_u32_u24 v%d, 3072, v%d" % (t3, t1))
    e("v_and_b32 v%d, 31, v%d" % (t0, vLane))
    e("v_lshl_add_u32 v%d, v%d, 4, v%d" % (t3, t0, t3))
    e("v_lshlrev_b32 v%d, 4, v%d" % (t2, g))
    for p in range(4):
        e("s_xor_b32 s%d, s%d, %d" % (sT0, sWave, p))
        e("s_mul_i32 s%d, s%d, 6144" % (sT1, sT0))
        e("s_add_u32 s%d, s%d, %d" % (sT1, sT1, SLOT + 24576))
        e("v_add_u32 v%d, s%d, v%d" % (vA2 + p, sT1, t3))
        e("s_lshl_b32 s%d, s%d, 6" % (sT0, sT0))
        e("s_add_u32 s%d, s%d, %d" % (sT0, sT0, TAB_B1))
        e("v_add_u32 v%d, s%d, v%d" % (vAb + p, sT0, t2))
    e("v_lshlrev_b32 v%d, 5, v%d" % (vTab, g))
    e("v_add_u32 v%d, %d, v%d" % (vTab, TAB_B2, vTab))
    e("s_add_u32 s%d, s%d, s%d" % (sT0, sRow0, sWave))
    e("s_mul_i32 s%d, s%d, %d" % (sT0, sT0, ROWB))
    e("s_mul_i32 s%d, s%d, 6144" % (sT1, sStrip))
    e("s_add_u32 s%d, s%d, s%d" % (sT0, sT0, sT1))
    e("v_mul_u32_u24 v%d, 384, v%d" % (vOut, px))
    e("v_lshl_add_u32 v%d, v%d, 4, v%d" % (vOut, g, vOut))
    e("v_add_u32 v%d, s%d, v%d" % (vOut, sT0, vOut))

def build_diag():
    late = capture(setup_late) + capture(l_addr)
    vm.pop(2)
    for k in range(opt.ne1):
        for l in late[:opt.pe1]: e(l)
        late = late[opt.pe1:]
        vm.pop()
    st("issued")
    cm("diagonal image")
    vm.wait(lambda t: t == "dw")
    st("dwin")
    for j in range(8):
        e("v_and_b32 v%d, %s, v%d" % (vQ + 4 * j + j // 2, "0xffff0000" if j % 2 else "0xffff", vDW + j // 2))
    for j in range(8):
        e("ds_write_b128 v%d, %s offset:%d" % (vTmp, vr(vQ + 4 * j, 4), IMG + j * IST))
        if j % 4 == 3: vm.pop()
    st("img")
    e("s_waitcnt lgkmcnt(0)")
    e("s_barrier")
    st("bar")
    per = (len(late) + 7) // 8
    for f in range(60):
        cg, tp = f // 5, f % 5
        a, off = (vIA, tp * 384) if tp < 3 else ((vIA + 1, 6 * 384) if tp == 3 else (vIA + 2, 8 * 384))
        e("ds_read_b128 %s, v%d offset:%d" % (ar(4 * f, 4), a, IMG + off + cg * 32))
        if f % 6 == 5:
            vm.pop()
            for l in late[:per]: e(l)
            late = late[per:]
            if f == 53:
                vm.wait(lambda t: t == "tab")
                tables()
    assert not late
    st("diag")

def tables():
    def unpack_scale(src, dst, scale):
        e("s_mov_b32 s%d, 0x%08x" % (sT0, f2u(scale)))
        for h in range(2):
            e("v_lshlrev_b32 v%d, 16, v%d" % (dst + 2 * h, src + h))
            e("v_and_b32 v%d, 0xffff0000, v%d" % (dst + 2 * h + 1, src + h))
        for k in range(4): e("v_mul_f32 v%d, s%d, v%d" % (dst + k, sT0, dst + k))
    unpack_scale(vTB, vTB + 8, SA)
    unpack_scale(vTB + 2, vTB + 12, SA)
    unpack_scale(vTB + 4, vTB + 16, 1.0 / SA)
    e("v_add_u32 v%d, %d, v%d" % (vTmp + 1, TAB_B1, vTmp))
    e("v_cmp_gt_u32 vcc, 192, v0")
    e("s_and_saveexec_b64 %s, vcc" % sr(sEx, 2))
    e("ds_write_b128 v%d, %s" % (vTmp + 1, vr(vTB + 8, 4)))
    e("v_cmp_gt_u32 vcc, 48, v0")
    e("s_and_b64 exec, exec, vcc")
    e("ds_write_b128 v%d, %s offset:%d" % (vTmp + 1, vr(vTB + 12, 4), TAB_B2 - TAB_B1))
    e("ds_write_b128 v%d, %s offset:%d" % (vTmp + 1, vr(vTB + 16, 4), TAB_G - TAB_B1))
    e("s_mov_b64 exec, -1")

NR = 6; PD = NR - 1
def conv_rd(f, toff):
    cg, tp = f // 5, f % 5
    return "ds_read_b128 %s, v%d offset:%d" % (vr(vCB + 4 * (f % NR), 4), vCA + tp * 4 + cg % 4, toff + (cg // 4) * 128)

def res_dst(t, m):
    if t == 0: return vr(vR0 + 4 * m, 4)
    if t == 1: return vr(vR1 + 4 * m, 4) if m < 2 else ar(aR1 + 4 * (m - 2), 4)
    return ar(aR2 + 4 * m, 4)
def res_rd(t, m):
    return "ds_read_b128 %s, v%d offset:%d" % (res_dst(t, m), vRA + m % 2, t * 4 * XROW + (m // 2) * 128)

s1 = vS; s2 = vS + 2
vL = vB1 + 72
vLA = vB1 + 48
vPF = vB1 + 64
vLS = vB1 + 84
vLW = vB1 + 90
XST = XCH + 8192
def l_rd(n):
    return "ds_read_b128 %s, v%d" % (vr(vCB + 4 * ((n + 3) % NR), 4), vLA + n)
def l_addr():
    e("s_sub_u32 s%d, 12, s%d" % (sT0, sWave))
    e("s_mul_i32 s%d, s%d, %d" % (sT0, sT0, XROW))
    e("s_mul_i32 s%d, s%d, 3" % (sT1, sWave))
    for cl in range(3):
        e("s_and_b32 s%d, s%d, 3" % (sT2, sT1))
        e("s_lshl_b32 s%d, s%d, 5" % (sT2, sT2))
        e("s_lshr_b32 s%d, s%d, 2" % (sT3, sT1))
        e("s_lshl_b32 s%d, s%d, 7" % (sT3, sT3))
        e("s_add_u32 s%d, s%d, s%d" % (sT3, sT3, sT0))
        for tp in range(5): e("v_xor_b32 v%d, s%d, v%d" % (vLA + 5 * cl + tp, sT2, vCA + 4 * tp))
        for tp in range(5): e("v_add_u32 v%d, s%d, v%d" % (vLA + 5 * cl + tp, sT3, vLA + 5 * cl + tp))
        e("s_lshr_b32 s%d, s%d, 1" % (sT2, sT1))
        e("s_lshl_b32 s%d, s%d, 10" % (sT2, sT2))
        e("s_and_b32 s%d, s%d, 1" % (sT3, sT1))
        e("s_lshl_b32 s%d, s%d, 3" % (sT3, sT3))
        e("s_add_u32 s%d, s%d, s%d" % (sT2, sT2, sT3))
        e("v_lshl_add_u32 v%d, v%d, 4, s%d" % (vLW + cl, vLane, sT2))
        if cl < 2: e("s_add_u32 s%d, s%d, 1" % (sT1, sT1))
    e("s_lshr_b32 s%d, s%d, 1" % (sT2, sWave))
    e("s_lshl_b32 s%d, s%d, 7" % (sT2, sT2))
    e("s_add_u32 s%d, s%d, s%d" % (sT0, sT0, sT2))
    e("s_and_b32 s%d, s%d, 1" % (sT2, sWave))
    e("s_lshl_b32 s%d, s%d, 6" % (sT2, sT2))
    e("v_xor_b32 v%d, s%d, v%d" % (vLW + 3, sT2, vRA))
    e("v_add_u32 v%d, s%d, v%d" % (vLW + 3, sT0, vLW + 3))
    e("v_lshlrev_b32 v%d, 2, v0" % (vLW + 4))
    e("v_and_b32 v%d, 15, v%d" % (vLW + 5, vLane))
    e("v_lshlrev_b32 v%d, 2, v%d" % (vLW + 5, vLW + 5))
    e("v_add_u32 v%d, %d, v%d" % (vLW + 5, XST, vLW + 5))

def l_mfma():
    for w in range(4):
        if w < 3:
            e("s_cmp_lg_u32 s%d, %d" % (sWave, w))
            e("s_cbranch_scc1 L_lc%d" % (w + 1))
        e("s_waitcnt lgkmcnt(%d)" % (PD - 1))
        for n in range(15):
            d = vr(vL + 4 * (n // 5), 4)
            e("v_mfma_f32_16x16x32_bf16 %s, %s, %s, %s" % (d, ar(4 * (15 * w + n), 4), vr(vCB + 4 * ((n + 3) % NR), 4), d if n % 5 else "0"))
            if n < 14: e("s_waitcnt lgkmcnt(%d)" % (PD - 2))
            e(l_rd(n + PD) if n + PD < 15 else conv_rd(n + PD - 15, 8 * XROW))
        if w < 3:
            e("s_branch L_lcj")
            lab("L_lc%d" % (w + 1))
    lab("L_lcj")

def l_stats():
    a1, a2 = vLS, vLS + 1
    ops = []
    for i in range(12):
        y = vL + i
        if i == 0: ops += ["v_mov_b32 v%d, v%d" % (a1, y), "v_mul_f32 v%d, v%d, v%d" % (a2, y, y)]
        else: ops += ["v_add_f32 v%d, v%d, v%d" % (a1, a1, y), "v_fmac_f32 v%d, v%d, v%d" % (a2, y, y)]
    return ops

def conv_mfma(t, npop, pre_ops=[]):
    toff = t * 4 * XROW
    pend = []
    def stats(cg):
        ops = []
        for i in range(4):
            y = vY + 4 * cg + i
            if cg == 0 and i < 2:
                ops.append("v_mov_b32 v%d, v%d" % (s1 + i, y))
                ops.append("v_mul_f32 v%d, v%d, v%d" % (s2 + i, y, y))
            else:
                ops.append("v_add_f32 v%d, v%d, v%d" % (s1 + i % 2, s1 + i % 2, y))
                ops.append("v_fmac_f32 v%d, v%d, v%d" % (s2 + i % 2, y, y))
        return ops
    NI = 6 if not pre_ops else 4
    e("s_waitcnt lgkmcnt(%d)" % (PD - 1))
    for f in range(60):
        cg, tp = f // 5, f % 5
        d = vr(vY + 4 * cg, 4)
        e("v_mfma_f32_16x16x32_bf16 %s, %s, %s, %s" % (d, ar(4 * f, 4), vr(vCB + 4 * (f % NR), 4), d if tp else "0"))
        if f + 1 < 60: e("s_waitcnt lgkmcnt(%d)" % (min(59, f + PD - 1) - (f + 1)))
        if f + PD < 60: e(conv_rd(f + PD, toff))
        if f == 2: pend += pre_ops
        if tp == 2 and 1 <= cg <= NI: pend += stats(cg - 1)
        if npop and f % npop == 0: vm.pop()
        if pend: e(pend.pop(0))
    while pend: e(pend.pop(0))
    return NI

def ln_stats(first_cg, init=False):
    u1, u2 = vS + 6, vS + 8
    for cg in range(first_cg, 12):
        for i in (0, 2):
            y = vr(vY + 4 * cg + i, 2)
            a1, a2 = (s1, s2) if i == 0 else (u1, u2)
            if (init and cg == 0) or (i == 2 and cg == first_cg):
                e("v_pk_add_f32 %s, %s, 0 op_sel_hi:[1,0]" % (vr(a1, 2), y))
                e("v_pk_mul_f32 %s, %s, %s" % (vr(a2, 2), y, y))
            else:
                e("v_pk_add_f32 %s, %s, %s" % (vr(a1, 2), vr(a1, 2), y))
                e("v_pk_fma_f32 %s, %s, %s, %s" % (vr(a2, 2), y, y, vr(a2, 2)))
    e("v_pk_add_f32 %s, %s, %s" % (vr(s1, 2), vr(s1, 2), vr(u1, 2)))
    e("v_pk_add_f32 %s, %s, %s" % (vr(s2, 2), vr(s2, 2), vr(u2, 2)))

def ln_reduce(fill):
    fill = list(fill)
    def gap(n):
        f = fill.pop(0) if fill else []
        for l in f: e(l)
        if len(f) < n: e("s_nop %d" % (n - len(f) - 1))
    a, b = vS + 4, vS + 5
    e("v_add_f32 v%d, v%d, v%d" % (a, s1, s1 + 1))
    e("v_add_f32 v%d, v%d, v%d" % (b, s2, s2 + 1))
    gap(2)
    e("v_permlane32_swap_b32 v%d, v%d" % (a, b))
    e("v_add_f32 v%d, v%d, v%d" % (a, a, b))
    e("v_mov_b32 v%d, v%d" % (b, a))
    gap(2)
    e("v_permlane16_swap_b32 v%d, v%d" % (a, b))
    e("v_add_f32 v%d, v%d, v%d" % (a, a, b))
    e("v_mul_f32 v%d, 0x%08x, v%d" % (a, f2u(1.0 / 192.0), a))
    e("v_mov_b32 v%d, v%d" % (b, a))
    gap(2)
    e("v_permlane32_swap_b32 v%d, v%d" % (a, b))
    e("v_fma_f32 v%d, -v%d, v%d, v%d" % (b, a, a, b))
    e("v_max_f32 v%d, 0, v%d" % (b, b))
    e("v_add_f32 v%d, 0x%08x, v%d" % (b, f2u(1e-5), b))
    e("v_rsq_f32 v%d, v%d" % (b, b))
    gap(1)
    e("v_mul_f32 v%d, 0x%08x, v%d" % (vS + 6, f2u(SA), b))
    e("v_mul_f32 v%d, v%d, v%d" % (vS + 8, a, vS + 6))
    for f in fill:
        for l in f: e(l)

def ln_norm(t):
    sc, sh = vS + 6, vS + 8
    LAG = 6
    for k in range(24 + LAG):
        if k < 24:
            y = vY + 2 * k
            e("v_pk_fma_f32 %s, %s, %s, %s op_sel_hi:[1,0,0] neg_lo:[0,0,1] neg_hi:[0,0,1]" % (vr(y, 2), vr(y, 2), vr(sc, 2), vr(sh, 2)))
        if k >= LAG:
            j = k - LAG
            e("v_cvt_pk_bf16_f32 v%d, v%d, v%d" % (vB1 + 24 * t + j, vY + 2 * j, vY + 2 * j + 1))

def prologue(L):
    tag = "b%d" % L
    if L:
        for tg, l in x_items(14): vm.queue(tg, l)
    R = 15 if L else 14
    if opt.wpf:
        pre = ["s_lshr_b32 s%d, s2, 3" % sT0, "s_lshl_b32 s%d, s%d, 2" % (sT0, sT0), "s_add_u32 s%d, s%d, s%d" % (sT0, sT0, sWave),
               "s_mul_i32 s%d, s%d, %d" % (sT0, sT0, 19 * 128), "v_min_u32 v%d, 18, v%d" % (vPF, vLane), "v_lshlrev_b32 v%d, 7, v%d" % (vPF, vPF),
               "v_add_u32 v%d, s%d, v%d" % (vPF, sT0, vPF)]
        for l in pre: e(l)
        vm.queue("wpf", ["buffer_load_dword v%d, v%d, %s, 0 offen" % (vPF + 1, vPF, sr(S_W1, 4))])
        vm.queue("wpf", ["buffer_load_dword v%d, v%d, %s, 0 offen" % (vPF + 2, vPF, sr(S_W2, 4))])
    while any(tg[0] == "x" and tg[1] < 12 for tg, _ in vm.pending): vm.pop()
    vm.wait(lambda t: t[0] == "x" and t[1] < 6)
    e("s_waitcnt lgkmcnt(0)")
    e("s_barrier")
    st("x0in")
    for f in range(PD): e(conv_rd(f, 0))
    set_dma_slot(0)
    e("s_mov_b32 s%d, 0" % sW1off)
    for i in range(6):
        sc, ins = dma_w(i, 1); vm.queue("w0", sc + [ins])
    for t in range(3):
        LL = L and t == 2
        if LL: l_mfma()
        ni = conv_mfma(t, [opt.np0, 8, 4][t], l_stats() if LL else [])
        st("mf%d" % t)
        while t == 1 and vm.pending: vm.pop()
        for m in range(6): e(res_rd(t, m))
        a, b = vLS, vLS + 1
        if LL:
            e("v_permlane32_swap_b32 v%d, v%d" % (a, b))
            e("v_add_f32 v%d, v%d, v%d" % (a, a, b))
            e("ds_write_b32 v%d, v%d offset:%d" % (vLW + 4, a, XST))
        ln_stats(ni)
        fill = []
        if t < 2:
            need = [10, R][t]
            sync = capture(vm.wait, lambda x: (x[0] == "x" and x[1] < need) or (t == 1 and x == "wpf")) + ["s_waitcnt lgkmcnt(0)", "s_barrier"]
            if t == 1 and L:
                rds = [l_rd(n) for n in range(PD)]
                fill = [[], [], sync + rds]
            else:
                rds = [conv_rd(f, (t + 1) * 4 * XROW) for f in range(PD)]
                fill = [[], [], sync + rds]
            if t == 1:
                fill.append(capture(set_dma_slot, SLOT) + ["s_mov_b32 s%d, 128" % sW1off, "s_mov_b32 s%d, 0" % sW2off])
                for kind in (1, 2):
                    for i in range(6):
                        sc, ins = dma_w(i, kind); vm.queue("w1", sc + [ins])
        elif LL:
            rd = []
            for w in range(4):
                for gg in range(2):
                    rd.append("ds_read2_b32 %s, v%d offset0:%d offset1:%d" % (vr(vCB + 8 + 4 * w + 2 * gg, 2), vLW + 5, w * 64 + gg * 16, w * 64 + gg * 16 + 32))
            fill = [["s_waitcnt lgkmcnt(0)", "s_barrier"] + rd]
        ln_reduce(fill)
        ln_norm(t)
        if LL:
            p = vCB + 8
            e("s_waitcnt lgkmcnt(0)")
            for k in range(4): e("v_pk_add_f32 %s, %s, %s" % (vr(p + 2 * k, 2), vr(p + 2 * k, 2), vr(p + 8 + 2 * k, 2)))
            for k in range(2): e("v_pk_add_f32 %s, %s, %s" % (vr(p + 2 * k, 2), vr(p + 2 * k, 2), vr(p + 4 + 2 * k, 2)))
            e("v_pk_add_f32 %s, %s, %s" % (vr(p, 2), vr(p, 2), vr(p + 2, 2)))
            e("v_mul_f32 v%d, 0x%08x, v%d" % (p, f2u(1.0 / 192.0), p))
            e("v_mul_f32 v%d, 0x%08x, v%d" % (p + 1, f2u(1.0 / 192.0), p + 1))
            e("v_fma_f32 v%d, -v%d, v%d, v%d" % (p + 1, p, p, p + 1))
            e("v_max_f32 v%d, 0, v%d" % (p + 1, p + 1))
            e("v_add_f32 v%d, 0x%08x, v%d" % (p + 1, f2u(1e-5), p + 1))
            e("v_rsq_f32 v%d, v%d" % (p + 1, p + 1))
            e("v_lshlrev_b32 v%d, 4, v%d" % (vTmp, vLane))
            e("v_mul_f32 v%d, 0x%08x, v%d" % (p + 2, f2u(SA), p + 1))
            e("v_mul_f32 v%d, v%d, v%d" % (p + 4, p, p + 2))
            for k in range(6):
                y = vL + 2 * k
                e("v_pk_fma_f32 %s, %s, %s, %s op_sel_hi:[1,0,0] neg_lo:[0,0,1] neg_hi:[0,0,1]" % (vr(y, 2), vr(y, 2), vr(p + 2, 2), vr(p + 4, 2)))
            for k in range(6): e("v_cvt_pk_bf16_f32 v%d, v%d, v%d" % (vLS + k, vL + 2 * k, vL + 2 * k + 1))
            for cl in range(3): e("ds_write_b64 v%d, %s offset:%d" % (vLW + cl, vr(vLS + 2 * cl, 2), XCH))
            e("ds_read_b128 %s, v%d" % (vr(vRL, 4), vLW + 3))
            e("ds_read_b128 %s, v%d offset:256" % (vr(vRL + 4, 4), vLW + 3))
            e("v_mov_b32 v%d, 0" % (vPL + 2))
            e("v_mov_b32 v%d, 0" % (vPL + 3))
        st("conv%d" % t)
    while vm.pending: vm.pop()
    e("s_waitcnt vmcnt(0) lgkmcnt(0)")
    e("s_barrier")
    if L:
        for kb in range(6): e("ds_read_b128 %s, v%d offset:%d" % (vr(vB1 + 72 + 4 * kb, 4), vTmp, XCH + kb * 1024))
        e("s_cmp_eq_u32 s%d, 0" % sWave)
        e("s_cselect_b32 s%d, 0, %d" % (sT0, OOB))
        e("v_add_u32 v%d, s%d, v%d" % (vTmp + 1, sT0, vTab))
    st("conv3")

def acc_init(L):
    r = []
    for ct in range(12):
        for t in range(3):
            r.append("ds_read_b128 %s, v%d offset:%d" % (ar(48 * t + 4 * ct, 4), vTab, (ct // 2) * 128 + (ct % 2) * 16))
        if L:
            r.append("ds_read_b128 %s, v%d offset:%d" % (ar(144 + 4 * ct, 4), vTmp + 1, (ct // 2) * 128 + (ct % 2) * 16))
    return r

def gelu_pair(x0, x1, dst, tmp):
    a, b = tmp, tmp + 1
    if opt.gelu == 1:
        return [("v_fma_f32 v%d, -v%d, v%d, -s%d" % (a, x0, x0, sK), 4), ("v_fma_f32 v%d, -v%d, v%d, -s%d" % (b, x1, x1, sK), 4),
                ("v_mul_f32 v%d, v%d, v%d" % (a, x0, a), 4), ("v_mul_f32 v%d, v%d, v%d" % (b, x1, b), 4),
                ("v_exp_f32 v%d, v%d" % (a, a), 8), ("v_exp_f32 v%d, v%d" % (b, b), 8),
                ("v_add_f32 v%d, 1.0, v%d" % (a, a), 4), ("v_add_f32 v%d, 1.0, v%d" % (b, b), 4),
                ("v_rcp_f32 v%d, v%d" % (a, a), 8), ("v_rcp_f32 v%d, v%d" % (b, b), 8),
                ("v_mul_f32 v%d, v%d, v%d" % (a, x0, a), 4), ("v_mul_f32 v%d, v%d, v%d" % (b, x1, b), 4),
                ("v_cvt_pk_bf16_f32 v%d, v%d, v%d" % (dst, a, b), 4)]
    sd = "dst_sel:WORD_1 dst_unused:UNUSED_PRESERVE src0_sel:WORD_1"
    return [("v_cvt_pk_f16_f32 v%d, v%d, v%d" % (a, x0, x1), 4),
            ("v_pk_fma_f16 v%d, v%d, v%d, s%d" % (b, a, a, sK), 4),
            ("v_pk_mul_f16 v%d, v%d, v%d neg_lo:[1,0] neg_hi:[1,0]" % (a, a, b), 4),
            ("v_exp_f16%s v%d, v%d" % ("_e64" if opt.e64 else "", b, a), 8),
            ("v_exp_f16_sdwa v%d, v%d %s" % (b, a, sd), 8),
            ("v_pk_add_f16 v%d, v%d, 1.0 op_sel_hi:[1,0]" % (a, b), 4),
            ("v_rcp_f16%s v%d, v%d" % ("_e64" if opt.e64 else "", b, a), 8),
            ("v_rcp_f16_sdwa v%d, v%d %s" % (b, a, sd), 8),
            ("v_fma_mix_f32 v%d, v%d, v%d, 0 op_sel_hi:[0,1,0]" % (a, x0, b), 4),
            ("v_fma_mix_f32 v%d, v%d, v%d, 0 op_sel:[0,1,0] op_sel_hi:[0,1,0]" % (b, x1, b), 4),
            ("v_cvt_pk_bf16_f32 v%d, v%d, v%d" % (dst, a, b), 4)]

def gelu_ops(c, L):
    hb = vH + 24 * (c % 2); pb = vP + 12 * (c % 2)
    quads = []
    for t in range(3):
        for ep in range(2):
            quads.append((hb + 8 * t + 4 * ep, pb + 4 * t + 2 * ep))
    if L and c % 2 == 0: quads.append((vHL, vPL))
    ops = []
    for n, (x, d) in enumerate(quads):
        tmp = vT + 4 * (n % 2)
        A = gelu_pair(x, x + 1, d, tmp); B = gelu_pair(x + 2, x + 3, d + 1, tmp + 2)
        if opt.gelu == 1:
            for k in range(0, 12, 2): ops += [A[k], A[k + 1], B[k], B[k + 1]]
            ops += [A[12], B[12]]
        else:
            for k in range(len(A)): ops += [A[k], B[k]]
    return ops

class Frag: pass

def step_scalars():
    return ["s_add_u32 s%d, s%d, s%d" % (sM1, sM1, sDel2),
            "s_add_u32 s%d, s%d, s%d" % (sM2, sM2, sDel2),
            "s_add_u32 s%d, s%d, 128" % (sW1off, sW1off),
            "s_add_u32 s%d, s%d, 24576" % (sW2off, sW2off),
            "s_cmp_ge_u32 s%d, 1536" % sW1off,
            "s_cselect_b32 s%d, 0, s%d" % (S_W1 + 2, S_W1 + 2),
            "s_mov_b32 s%d, s%d" % (sT0, sDel1),
            "s_mov_b32 s%d, s%d" % (sDel1, sDel2),
            "s_mov_b32 s%d, s%d" % (sDel2, sDelta),
            "s_sub_u32 s%d, s%d, 1" % (sCnt, sCnt),
            "s_cmp_lg_u32 s%d, 0" % sCnt]

def build_main(L, c_lo, c_hi, virt, xds={}, xval={}):
    groups = []
    for c in range(c_lo, c_hi + 1 + (1 if virt else 0)):
        step = (c + 1) // 2
        if c + 1 <= 23 or virt:
            c1 = c + 1
            for ep in range(2):
                pos = 2 * (c1 % 2) + ep
                for kb in range(6):
                    g = Frag(); g.kind = 1; g.period = c; g.step = step; g.pos = pos; g.kb = kb; g.chunk = c1; g.ep = ep
                    groups.append(g)
        if c - 1 >= 0:
            c2 = c - 1
            for ct in range(12):
                g = Frag(); g.kind = 2; g.period = c; g.step = step; g.ct = ct; g.chunk = c2
                groups.append(g)
    N = len(groups)
    D, R = opt.D, opt.R
    assert 24 % R == 0 and D < R and D <= 5
    nbias = 0
    for n, g in enumerate(groups):
        g.slot = aRing + 4 * (n % R)
        g.reads = []
        if g.kind == 1:
            if g.kb == 0:
                g.bias = vBias + 4 * (nbias % 2); nbias += 1
                g.reads.append("ds_read_b128 %s, v%d" % (vr(g.bias, 4), vAb + g.pos))
            for h in range(2):
                g.reads.append("ds_read_b64_tr_b16 %s, v%d offset:%d" % (ar(g.slot + 2 * h, 2), vA1 + g.pos, (g.kb * 4 + h * 2) * 1024))
            hb = vH + 24 * (g.chunk % 2)
            g.mf = []
            tiles = [0, 1, 2] + ([3] if (L and g.pos == 0) else [])
            for t in tiles:
                d = (hb + 8 * t + 4 * g.ep) if t < 3 else vHL
                cc = vr(g.bias, 4) if g.kb == 0 else vr(d, 4)
                g.mf.append("v_mfma_f32_16x16x32_bf16 %s, %s, %s, %s" % (vr(d, 4), ar(g.slot, 4), vr(vB1 + 24 * t + 4 * g.kb, 4), cc))
            g.upd = []
            if g.kb == 5: g.upd = ["v_add_u32 v%d, s%d, v%d" % (vA1 + g.pos, sDelta, vA1 + g.pos)]
            if g.kb == 0: g.upd = ["v_add_u32 v%d, 0x100, v%d" % (vAb + g.pos, vAb + g.pos)]
        else:
            m, o = g.ct // 2, g.ct % 2
            for h in range(2):
                pos = 2 * (g.chunk % 2) + h
                g.reads.append("ds_read_b64_tr_b16 %s, v%d offset:%d" % (ar(g.slot + 2 * h, 2), vA2 + pos, m * 512 + o * 8))
            pb = vP + 12 * (g.chunk % 2)
            g.mf = []
            tiles = [0, 1, 2] + ([3] if (L and g.chunk % 2 == 0) else [])
            for t in tiles:
                acc = ar(48 * t + 4 * g.ct, 4)
                g.mf.append("v_mfma_f32_16x16x32_bf16 %s, %s, %s, %s" % (acc, ar(g.slot, 4), vr(pb + 4 * t, 4) if t < 3 else vr(vPL, 4), acc))
            g.upd = []
            if g.ct == 11 and virt:
                g.upd = ["v_add_u32 v%d, s%d, v%d" % (vA2 + 2 * (g.chunk % 2) + h, sDelta, vA2 + 2 * (g.chunk % 2) + h) for h in range(2)]
    steps = [[] for _ in range(13)]
    issued = [0]; lastseq = {}
    pre = []
    def issue(n, dst):
        for r in groups[n].reads:
            dst.append(r); issued[0] += 1
        lastseq[n] = issued[0]
    for n in range(D): issue(n, pre)
    for n in range(D): pre += groups[n].upd
    first_wait = "s_waitcnt lgkmcnt(%d)" % (issued[0] - lastseq[0])
    for c in range(c_lo, c_hi + 1):
        step = (c + 1) // 2
        dst = steps[step]
        gs = [k for k in range(N) if groups[k].period == c]
        val = gelu_ops(c, L) if 0 <= c <= 23 else []
        val = val + [(x, 4) for x in xval.get(c, [])]
        xd = list(xds.get(c, []))
        nxd = (len(xd) + len(gs) - 1) // len(gs)
        if c == c_lo:
            burst = 0
            while val and burst < 120:
                pre.append(val[0][0]); burst += val[0][1]; val = val[1:]
            pre.append(first_wait)
        dmas = []; scal = []
        if step <= 11:
            if c % 2 == 1: dmas = [dma_w(i, 1) for i in range(6)] + [dma_w(i, 2) for i in range(6)]
            else: scal = step_scalars()
        nm = sum(len(groups[k].mf) for k in gs)
        tot = 8 * nm + sum(x[1] for x in val) + 12 * len(dmas) + 4 * len(xd)
        for k in gs:
            if k + D < N: tot += 4 * len(groups[k + D].reads) + 4 * len(groups[k + D].upd)
        t = 0.0; vi = 0; mi = 0
        sp = opt.dsp if len(gs) >= 24 else 1
        dmap = {sp * i: d for i, d in enumerate(dmas)}
        for gi, k in enumerate(gs):
            g = groups[k]
            for j, m in enumerate(g.mf):
                dst.append(m); t += 8; mi += 1
                extra = []
                if j == len(g.mf) - 1 and k + 1 < N:
                    dst.append("s_waitcnt lgkmcnt(%d)" % min(15, issued[0] - lastseq[k + 1]))
                if j == 0:
                    if gi in dmap: dst.append(dmap[gi][0][0])
                    elif scal: dst.append(scal.pop(0))
                    if k + D < N:
                        issue(k + D, dst); t += 4 * len(groups[k + D].reads)
                        extra = groups[k + D].upd
                if j == len(g.mf) - 1:
                    for _ in range(nxd):
                        if xd: dst.append(xd.pop(0)); issued[0] += 1; t += 4
                if j == 1:
                    if gi in dmap:
                        dst.append(dmap[gi][0][1]); dst.append(dmap[gi][1]); t += 12
                    elif gi == len(gs) - 1 and step <= 11 and c % 2 == 0:
                        dst.append("s_mov_b32 s%d, s%d" % (sDelta, sT0))
                for x in extra: dst.append(x); t += 4
                lim = mi * tot / nm
                while vi < len(val) and t + val[vi][1] <= lim + 2:
                    dst.append(val[vi][0]); t += val[vi][1]; vi += 1
        while vi < len(val): dst.append(val[vi][0]); vi += 1
        assert not scal and not xd
    return pre, steps

def main_part(L):
    tag = "b%d" % L
    ai = acc_init(L)
    pre, steps = build_main(L, -1, 22, True, xds={-1: ai[:len(ai) // 2], 0: ai[len(ai) // 2:]})
    xd24, xv23, xv24 = epi_prep(L)
    pre12, steps12 = build_main(L, 23, 24, False, xds={24: xd24}, xval={23: xv23, 24: xv24})
    for j in range(3, 12): assert steps[j] == steps[2], j
    assert len(steps[1]) == len(steps[2])
    steps[1] = steps[2]
    e("s_mov_b32 s%d, 0x%08x" % (sK, f2u(KK) if opt.gelu == 1 else f2h(KK) * 0x10001))
    set_dma_slot(2 * SLOT)
    e("s_mov_b32 s%d, 256" % sW1off)
    e("s_mov_b32 s%d, 24576" % sW2off)
    e("s_mov_b32 s%d, %d" % (sDelta, SLOT))
    e("s_mov_b32 s%d, %d" % (sDel1, SLOT))
    e("s_mov_b32 s%d, %d" % (sDel2, -2 * SLOT))
    e("s_mov_b32 s%d, 12" % sCnt)
    for s in pre: e(s)
    def with_bar(body):
        body = list(body)
        bar = ["s_waitcnt vmcnt(0)"] + ([] if opt.nobar else ["s_barrier"])
        if opt.barpos:
            idx = [i for i, l in enumerate(body) if l.startswith("v_mfma")][-opt.barpos]
            return body[:idx + 1] + bar + body[idx + 1:]
        return body + bar
    for s in with_bar(steps[0]): e(s)
    st("step0")
    if opt.unroll == 2:
        for s in with_bar(steps[1]): e(s)
    out.append(".p2align 6")
    lab("L_loop_%s" % tag)
    for u in range(opt.unroll):
        for s in with_bar(steps[1]): e(s)
    e("s_cbranch_scc1 L_loop_%s" % tag)
    st("loop")
    epi_scalars(L)
    for s in pre12: e(s)
    for s in steps12[12]: e(s)
    st("p24")
    epilogue(L)

RED = SLOT
STG = 2 * SLOT
vG = vH
vWA = vA1
vRd = vA1 + 2
vRdl = [vA1 + 2, vA1 + 3, vAb]
vSt = vAb + 1
vX0 = vB1 + 48
def epi_prep(L):
    xd = ["ds_read_b128 %s, v%d offset:%d" % (vr(vG + 4 * ct, 4), vTab, TAB_G - TAB_B2 + (ct // 2) * 128 + (ct % 2) * 16) for ct in range(12)]
    xv23 = []
    if L:
        xv23 = ["v_lshlrev_b32 v%d, 4, v%d" % (vTmp, vLane), "v_add_u32 v%d, s%d, v%d" % (vTmp + 1, sT3, vTmp)]
        xd += ["ds_write_b128 v%d, %s offset:%d" % (vTmp + 1, ar(144 + 4 * ct, 4), ct * 1024) for ct in range(12)]
    t0, t1 = vAb + 2, vAb + 3
    xv = ["v_and_b32 v%d, 15, v%d" % (t0, vLane), "v_lshrrev_b32 v%d, 4, v%d" % (t1, vLane),
          "v_mul_u32_u24 v%d, 384, v%d" % (vWA, t0), "v_and_b32 v%d, 7, v%d" % (t0, t0),
          "v_xor_b32 v%d, v%d, v%d" % (t0, t0, t1), "v_lshl_add_u32 v%d, v%d, 4, v%d" % (vWA, t0, vWA),
          "v_add_u32 v%d, s%d, v%d" % (vWA, sT2, vWA), "v_xor_b32 v%d, 64, v%d" % (vWA + 1, vWA)]
    for k in range(3):
        xv += ["v_add_u32 v%d, %d, v%d" % (t0, 64 * k, vLane), "v_mul_u32_u24 v%d, 2731, v%d" % (t1, t0),
               "v_bfe_u32 v%d, v%d, 16, 3" % (t1, t1), "v_xor_b32 v%d, v%d, v%d" % (t0, t0, t1),
               "v_lshlrev_b32 v%d, 4, v%d" % (t0, t0), "v_add_u32 v%d, s%d, v%d" % (vRdl[k], sT2, t0)]
    xv += ["v_lshlrev_b32 v%d, 4, v%d" % (vSt, vLane), "v_add_u32 v%d, s%d, v%d" % (vSt, sT1, vSt)]
    for k in range(12):
        xv += ["v_lshlrev_b32 v%d, 16, v%d" % (vX0 + 2 * k, vR0 + k), "v_and_b32 v%d, 0xffff0000, v%d" % (vX0 + 2 * k + 1, vR0 + k)]
    return xd, xv23, xv

def epi_scalars(L):
    e("s_add_u32 s%d, s%d, s%d" % (sT1, sRow0, sWave))
    e("s_mul_i32 s%d, s%d, %d" % (sT1, sT1, ROWB))
    e("s_mul_i32 s%d, s%d, 6144" % (sT2, sStrip))
    e("s_add_u32 s%d, s%d, s%d" % (sT1, sT1, sT2))
    e("s_mul_i32 s%d, s%d, 12288" % (sT2, sWave))
    e("s_add_u32 s%d, s%d, %d" % (sT3, sT2, RED))
    e("s_add_u32 s%d, s%d, %d" % (sT2, sT2, STG))

def epi_group(acc_regs, gam, xr, dst, tmp, unpacked=False):
    if not unpacked:
        for k in range(4):
            e("v_lshlrev_b32 v%d, 16, v%d" % (tmp + 2 * k, xr + k))
            e("v_and_b32 v%d, 0xffff0000, v%d" % (tmp + 2 * k + 1, xr + k))
    for k in range(4):
        e("v_pk_fma_f32 %s, %s, %s, %s" % (vr(tmp + 2 * k, 2), vr(acc_regs + 2 * k, 2), vr(gam + 2 * k, 2), vr(tmp + 2 * k, 2)))
    for k in range(4):
        e("v_cvt_pk_bf16_f32 v%d, v%d, v%d" % (dst + k, tmp + 2 * k, tmp + 2 * k + 1))

def epilogue(L):
    tag = "b%d" % L
    e("s_waitcnt lgkmcnt(0)")
    if L: e("s_barrier")
    st("gam")
    vAc = vB1; vTm = vB1 + 16; vXs = vB1 + 32; vO = vB1 + 40
    vLin = vP
    def store(t, k):
        e("buffer_store_dwordx4 %s, v%d, %s, s%d offen offset:%d%s" % (vr(vLin + 4 * k, 4), vSt, sr(S_O, 4), sT0 if k < 4 else sSo, (k % 4) * 1024, OPOL))
    n = 0
    for t in range(3):
        buf = (t % 2) * 6144
        for m in range(6):
            ac = vAc + 8 * (n % 2); tm = vTm + 8 * (n % 2); o = vO + 4 * (n % 2)
            for k in range(8): e("v_accvgpr_read_b32 v%d, a%d" % (ac + k, 48 * t + 8 * m + k))
            src = res_dst(t, m)
            base = int(src[2:src.index(":")])
            unp = (t == 0 and m < 3)
            if unp: tm = vX0 + 8 * m; xr = None
            elif src[0] == "a":
                xr = vXs + 4 * (n % 2)
                for k in range(4): e("v_accvgpr_read_b32 v%d, a%d" % (xr + k, base + k))
            else: xr = base
            epi_group(ac, vG + 8 * m, xr, o, tm, unp)
            if t > 0:
                if m == 0: e("s_waitcnt lgkmcnt(0)")
                store(t - 1, m)
            e("ds_write_b128 v%d, %s offset:%d" % (vWA + m % 2, vr(o, 4), buf + (m // 2) * 128))
            n += 1
        e("s_mov_b32 s%d, %d" % (sT0, t * 4 * ROWB))
        e("s_mov_b32 s%d, %d" % (sSo, t * 4 * ROWB + 4096))
        for k in range(6):
            e("ds_read_b128 %s, v%d offset:%d" % (vr(vLin + 4 * k, 4), vRdl[k % 3], buf + (k // 3) * 3072))
        st("t%d" % t)
    if L:
        e("s_sub_u32 s%d, 12, s%d" % (sT1, sWave))
        e("s_mul_i32 s%d, s%d, %d" % (sT1, sT1, ROWB))
        e("s_lshl_b32 s%d, s%d, 6" % (sT2, sWave))
        e("s_add_u32 s%d, s%d, s%d" % (sT1, sT1, sT2))
        e("s_lshl_b32 s%d, s%d, 11" % (sT2, sWave))
        e("s_add_u32 s%d, s%d, %d" % (sT2, sT2, RED))
        e("v_add_u32 v%d, s%d, v%d" % (vTmp, sT2, vTmp))
        e("s_lshl_b32 s%d, s%d, 7" % (sT2, sWave))
        e("v_add_u32 v%d, s%d, v%d" % (vTmp + 1, sT2, vTab))
        def lreads(half, base):
            for w in range(4):
                for o in range(2):
                    e("ds_read_b128 %s, v%d offset:%d" % (vr(base + 8 * w + 4 * o, 4), vTmp, w * 12288 + half * 8192 + o * 1024))
            for o in range(2):
                e("ds_read_b128 %s, v%d offset:%d" % (vr(base + 32 + 4 * o, 4), vTmp + 1, TAB_G - TAB_B2 + half * 512 + o * 16))
        bases = [vB1 + 48, vH]
        lreads(0, bases[0])
        e("s_waitcnt lgkmcnt(10)")
        for k in range(6): store(2, k)
        lreads(1, bases[1])
        for half in range(2):
            if half == 1:
                e("s_cmp_ge_u32 s%d, 2" % sWave)
                e("s_cbranch_scc1 L_done_%s" % tag)
            regs = [bases[half] + 8 * w for w in range(4)]
            e("s_waitcnt lgkmcnt(%d)" % (10 if half == 0 else 0))
            for k in range(0, 8, 2):
                e("v_pk_add_f32 %s, %s, %s" % (vr(regs[0] + k, 2), vr(regs[0] + k, 2), vr(regs[1] + k, 2)))
                e("v_pk_add_f32 %s, %s, %s" % (vr(regs[2] + k, 2), vr(regs[2] + k, 2), vr(regs[3] + k, 2)))
            for k in range(0, 8, 2):
                e("v_pk_add_f32 %s, %s, %s" % (vr(regs[0] + k, 2), vr(regs[0] + k, 2), vr(regs[2] + k, 2)))
            xr = vRL + 4 * half
            epi_group(regs[0], bases[half] + 32, xr, xr, vTm)
            e("buffer_store_dwordx4 %s, v%d, %s, s%d offen offset:%d%s" % (vr(xr, 4), vOut, sr(S_O, 4), sT1, half * 256, OPOL))
        lab("L_done_%s" % tag)
    else:
        e("s_waitcnt lgkmcnt(0)")
        for k in range(6): store(2, k)
    if opt.stamps:
        st("epi")
        e("s_waitcnt vmcnt(0)")
        st("drain")
        e("s_waitcnt lgkmcnt(0)")
        if opt.diag >= 0:
            e("s_add_u32 s%d, s%d, 6000" % (sT0, sStamp + 2 * min(opt.diag, 10)))
            if opt.diag == 11:
                srd(S_T, 8, 256)
                e("v_mov_b32 v2, 0")
                e("buffer_load_dword v3, v2, %s, 0 offen sc0 sc1" % sr(S_T, 4))
                e("s_waitcnt vmcnt(0)")
                e("v_readfirstlane_b32 s%d, v3" % sT0)
                e("s_not_b32 s%d, s%d" % (sT0, sT0))
                e("s_add_u32 s%d, s%d, 6000" % (sT0, sT0))
            lab("L_spin_%s" % tag)
            e("s_memrealtime %s" % sr(sEx, 2))
            e("s_waitcnt lgkmcnt(0)")
            e("s_sub_u32 s%d, s%d, s%d" % (sT1, sEx, sT0))
            e("s_cmp_lt_i32 s%d, 0" % sT1)
            e("s_cbranch_scc1 L_spin_%s" % tag)
            e("s_endpgm")
            return
        srd(S_T, 9, 1 << 20)
        e("s_lshl_b32 s%d, s2, 2" % sT0)
        e("s_add_u32 s%d, s%d, s%d" % (sT0, sT0, sWave))
        e("s_lshl_b32 s%d, s%d, 6" % (sT0, sT0))
        e("v_mov_b32 v2, 0")
        for i in range(len(SSETS[opt.sset])): e("v_writelane_b32 v2, s%d, %d" % (sStamp + 2 * i, i))
        out.append("; STAMPNAMES " + " ".join(SSETS[opt.sset]))
        e("v_writelane_b32 v2, s%d, 11" % sNrows)
        e("v_lshlrev_b32 v3, 2, v%d" % vLane)
        e("v_add_u32 v3, s%d, v3" % sT0)
        e("v_cmp_gt_u32 vcc, 16, v%d" % vLane)
        e("s_and_saveexec_b64 %s, vcc" % sr(sEx, 2))
        e("buffer_store_dword v2, v3, %s, 0 offen" % sr(S_T, 4))
    e("s_endpgm")

import copy
vm = VM()
head()
vm0 = vm
for L in (0, 1):
    vm = copy.deepcopy(vm0)
    lab("L_body%d" % L)
    prologue(L)
    main_part(L)
lab("L_exit")
e("s_endpgm")

ref = open("cdna_kernels/%s.s.ref" % NAME).read().split("\n")
hdr = [l for l in ref if l.startswith(";") and "@launch" not in l]
txt = "\n".join(hdr) + "\n; @launch grid=(252,1,1) block=(256,1,1) lds=%d\n" % LDS_SIZE
txt += """.amdgcn_target "amdgcn-amd-amdhsa--gfx950"
.text
.globl %s_kernel
.p2align 8
.type %s_kernel,@function
%s_kernel:
""" % (NAME, NAME, NAME)
txt += "\n".join(out).replace("PF_LIM", "L_exit-L_pf-0x8000") + "\n"
txt += """.section .rodata,"a"
.p2align 6
.amdhsa_kernel %s_kernel
  .amdhsa_next_free_vgpr 512
  .amdhsa_next_free_sgpr 102
  .amdhsa_accum_offset 256
  .amdhsa_group_segment_fixed_size 0
  .amdhsa_kernarg_size 80
  .amdhsa_user_sgpr_count 2
  .amdhsa_user_sgpr_kernarg_segment_ptr 1
  .amdhsa_system_sgpr_workgroup_id_x 1
.end_amdhsa_kernel
""" % NAME
dst = [a for a in sys.argv[1:] if "=" not in a]
open(dst[0] if dst else "cdna_kernels/%s.s" % NAME, "w").write(txt)
```

```python
import math, struct, sys

NAME = "standalone__modern_conv_block_convnext__vision"
def f2u(f): return struct.unpack("<I", struct.pack("<f", f))[0]
def f2h(f): return struct.unpack("<H", struct.pack("<e", f))[0]

class Opt:
    gelu = 2
    stamps = 0
    D = 4
    R = 6
    xnt = 1
    sset = 0
    dsp = 1
    nobar = 0
    unroll = 2
    e64 = 0
    barpos = 0
    dist = 12
    prio = 1
    pe1 = 6
    pf = 1
    ont = 2
opt = Opt()
for a in sys.argv[1:]:
    if "=" in a:
        k, v = a.split("="); assert hasattr(opt, k), k; setattr(opt, k, int(v))

C0 = 2.0 * math.sqrt(2.0 / math.pi) * math.log2(math.e)
SA = (C0 * 0.044715) ** (1.0 / 3.0)
KK = C0 / SA
if opt.gelu == 2:
    KK = struct.unpack("<e", struct.pack("<e", KK))[0]
    SA = C0 / KK

XBYTES = 224 * 224 * 384
ROWB = 86016
SLOT = 49408
XB = SLOT
W2E = 6160
PL = 34816
PR = 2304
TAB_B1 = XB + 3 * PL
TAB_B2 = TAB_B1 + 3072
TAB_G = TAB_B2 + 768
DUMMY = TAB_G + 768
IMG = 24576
JS = 1936
XCH = 40960
XST = XCH + 6144
LDS_SIZE = 163840
OOB = 0x40000
XPOL = " nt" if opt.xnt else ""
OPOL = ["", " nt", " sc1", " sc0 sc1"][opt.ont]
assert DUMMY + 1280 <= LDS_SIZE and IMG + 8 * JS <= XCH and XST + 1024 <= SLOT

S_X = 8; S_W1 = 12; S_W2 = 16; S_O = 20; S_T = 24
sWave = 28; sBase = 29; sNrows = 31
sK = 32; sDelta = 33; sW1off = 35; sW2off = 36; sCnt = 37
sT0 = 38; sT1 = 39; sT2 = 40; sT3 = 41
sEx = 42
sC1 = 44; sM1 = 45; sM2 = 46; sSo = 47; sDel1 = 48; sDel2 = 49
sXm7 = 30; sXm1 = 50; sXm8 = 51; sXs8 = 52; sQlo = 53; sTb = 54; sQn = 56; sC2 = 57; sLut = 58
sPtr = 60
sStamp = 80

vLane = 1
vA1 = 2; vA2 = 6; vAb = 10
vD1 = 14; vD2 = 15; vOut = 16; vTab = 17; vTmp = 18
vBias = 20
vT = 28
vRL = 36
vHL = 44; vPL = 48
vP = 52
vH = 76
vR45 = 124
vR23 = 148
vB1 = 160
aRing = 192
aRes = 216
vLW = 19
vLY = 20
vRA = 32; vLF = 34; vLG = 35
vS = 40
vIA = 48
vFb = 52
vLS = 72
vYt = [160, 76, 208]
vGb = 124
vF = 140; vGa = 144
vX = 148
vIdx = 157; vLSw = 158; vLSr = 159
aLD = 144; aFb = 180; aGb = 200
vDW = 76; vQ = 80; vTB = 96; vU = 116

out = []
def e(s): out.append("    " + s)
def lab(s): out.append(s + ":")
def cm(s): out.append("    ; " + s)
SSETS = [["start", "issued", "diag", "conv0", "conv1", "conv2", "conv3", "step0", "loop", "epi", "drain"],
         ["start", "loop", "p24", "gam", "t0", "t1", "t2", "epi", "drain"],
         ["start", "kernarg", "issued", "setup", "dwin", "img", "bar", "diag", "x0in", "mf0", "conv0"],
         ["start", "diag", "x0in", "mf0", "x1in", "mf1", "x2in", "mf2", "red", "conv3", "step0"],
         ["start", "x0in", "mf0", "conv0", "mf1", "conv1", "mf2", "conv2", "conv3", "step0", "drain"]]
def st(name):
    names = SSETS[opt.sset]
    if opt.stamps and name in names: stamp(names.index(name))
def stamp(i):
    if opt.stamps: e("%s s[%d:%d]" % ("s_memrealtime" if opt.stamps == 1 else "s_memtime", sStamp + 2 * i, sStamp + 2 * i + 1))
def vr(b, n): return "v[%d:%d]" % (b, b + n - 1)
def ar(b, n): return "a[%d:%d]" % (b, b + n - 1)
def sr(b, n): return "s[%d:%d]" % (b, b + n - 1)
def srd(s, ptr_slot, nbytes):
    e("s_mov_b32 s%d, s%d" % (s, sPtr + 2 * ptr_slot))
    e("s_and_b32 s%d, s%d, 0xffff" % (s + 1, sPtr + 2 * ptr_slot + 1))
    e("s_mov_b32 s%d, %d" % (s + 2, nbytes))
    e("s_mov_b32 s%d, 0x20000" % (s + 3))

def capture(fn, *args):
    global out
    save = out; out = []
    fn(*args)
    got = [l.strip() for l in out if not l.strip().startswith(";")]
    out = save
    return got

class VM:
    def __init__(self): self.issued = []; self.pending = []
    def issue_now(self, tag, lines):
        for l in lines: e(l)
        self.issued.append(tag)
    def queue(self, tag, lines): self.pending.append((tag, lines))
    def pop(self, n=1):
        for _ in range(n):
            if self.pending:
                tag, lines = self.pending.pop(0); self.issue_now(tag, lines)
    def wait(self, pred):
        while any(pred(t) for t, _ in self.pending): self.pop()
        idx = [i for i, t in enumerate(self.issued) if pred(t)]
        e("s_waitcnt vmcnt(%d)" % (len(self.issued) - 1 - max(idx)))
vm = None

def wg_table():
    rows = []
    for wg in range(252):
        x, n = wg & 7, wg >> 3
        idx = 63 * (x & 3) + (32 if x >= 4 else 0) + n
        h, rem = idx // 126, idx % 126
        b, strip = rem // 7, 7 * h + rem % 7
        row0 = b * 112 // 9; nrows = (b + 1) * 112 // 9 - row0
        base = ((row0 - 1) * ROWB + strip * 6144 - 384) & 0xffffffff
        qlo = 1 if strip == 0 else 0; qn = (17 if strip == 13 else 18) - qlo
        rows.append((base, qlo | qn << 8 | nrows << 16))
    return rows

def dma_w(i, kind):
    if kind == 1:
        return (["s_add_u32 m0, s%d, %d" % (sM1, i * 1024), "s_add_u32 s%d, s%d, %d" % (sSo, sW1off, i * 12288)],
                "buffer_load_dwordx4 v%d, %s, s%d offen lds" % (vD1, sr(S_W1, 4), sSo))
    oo, t = i // 3, i % 3
    return (["s_add_u32 m0, s%d, %d" % (sM2, oo * 3080 + t * 1024), "s_add_u32 s%d, s%d, %d" % (sSo, sW2off, oo * 1536 + t * 128)],
            "buffer_load_dwordx4 v%d, %s, s%d offen lds" % (vD2, sr(S_W2, 4), sSo))

def set_dma_slot(slot_base_imm):
    e("s_mul_i32 s%d, s%d, 6144" % (sM1, sWave))
    e("s_add_u32 s%d, s%d, %d" % (sM1, sM1, slot_base_imm))
    e("s_mul_i32 s%d, s%d, %d" % (sM2, sWave, W2E))
    e("s_add_u32 s%d, s%d, %d" % (sM2, sM2, slot_base_imm + 24576))


def x_item(a, i):
    off = (" offset:%d" % (128 * a)) if a else ""
    j, sec = i // 2, i % 2
    if i < 7: m = ["s_add_u32 m0, s%d, %d" % (sXm1, a * (PL - 128) + j * 9216 + sec * 4096), "s_nop 0"]
    else:
        r = sXm7 if i == 7 else sXm8
        m = ["s_mov_b32 m0, s%d" % r, "s_add_u32 s%d, s%d, s%d" % (r, r, sXs8)]
    return (("x", a), m + ["buffer_load_dwordx4 v%d, %s, 0 offen%s%s lds" % (vX + i, sr(S_X, 4), off, XPOL)])

def x_voff_a(i):
    n, r, q, f = vU, vU + 1, vU + 2 + min(i, 2), vTB + 10
    l = []
    if i == 0: l += ["v_lshrrev_b32 v%d, 3, v0" % n, "v_and_b32 v%d, 7, v0" % (vU + 5)]
    elif i == 1: l += ["v_add_u32 v%d, 32, v%d" % (n, n)]
    else: l += ["v_bfe_u32 v%d, v0, 3, 3" % n, "v_add_u32 v%d, 64, v%d" % (n, n)]
    l += ["v_mul_u32_u24 v%d, 3641, v%d" % (r, n), "v_lshrrev_b32 v%d, 16, v%d" % (r, r),
          "v_mul_u32_u24 v%d, 18, v%d" % (q, r), "v_sub_u32 v%d, v%d, v%d" % (q, n, q),
          "v_bfe_u32 v%d, v%d, 1, 3" % (f, q), "v_xor_b32 v%d, v%d, v%d" % (f, f, vU + 5),
          "v_mul_u32_u24 v%d, %d, v%d" % (r, ROWB - 18 * 384, r),
          "v_mad_u32_u24 v%d, v%d, s%d, v%d" % (r, n, sC1, r),
          "v_lshl_add_u32 v%d, v%d, 4, v%d" % (vX + i, f, r)]
    return l
def x_voff_b(i, base):
    q = vU + 2 + min(i, 2)
    return ["v_subrev_u32 v%d, s%d, v%d" % (q, sQlo, q), "v_cmp_gt_u32 vcc, s%d, v%d" % (sQn, q),
            "v_add_u32 v%d, s%d, v%d" % (vX + i, base, vX + i), "s_nop 0",
            "v_cndmask_b32 v%d, v%d, v%d, vcc" % (vX + i, vU + 6, vX + i)]
for n in range(288): assert (n * 3641) >> 16 == n // 18

def head():
    e("s_cmp_ge_u32 s2, 252")
    e("s_cbranch_scc1 L_exit")
    st("start")
    e("s_load_dwordx2 %s, s[0:1], 0" % sr(S_X, 2))
    e("s_load_dwordx2 %s, s[0:1], 8" % sr(S_T, 2))
    e("s_getpc_b64 %s" % sr(sEx, 2))
    lab("L_pf")
    e("s_lshl_b32 s%d, s2, 3" % sT0)
    e("s_add_u32 s%d, s%d, L_wgtab-L_pf" % (sT0, sT0))
    e("s_load_dwordx2 %s, %s, s%d" % (sr(sTb, 2), sr(sEx, 2), sT0))
    e("s_load_dwordx16 %s, s[0:1], 16" % sr(sPtr + 4, 16))
    if opt.pf:
        e("s_lshr_b32 s%d, s2, 3" % sT3)
        e("s_lshl_b32 s%d, s%d, 12" % (sT3, sT3))
        e("v_lshrrev_b32 v%d, 3, v0" % (vTB + 8))
        e("v_lshl_add_u32 v%d, v%d, 7, s%d" % (vTB + 8, vTB + 8, sT3))
        e("v_min_u32 v%d, L_exit-L_pf, v%d" % (vTB + 8, vTB + 8))
        vm.issue_now("dw", ["global_load_dword v%d, v%d, %s" % (vTB + 6, vTB + 8, sr(sEx, 2))])
    e("v_lshrrev_b32 v%d, 6, v0" % vS)
    e("s_movk_i32 s%d, 384" % sC1)
    e("v_readfirstlane_b32 s%d, v%d" % (sWave, vS))
    for l in x_voff_a(0): e(l)
    e("v_bfrev_b32 v%d, 2" % (vU + 6))
    e("v_lshlrev_b32 v%d, 4, v0" % vTmp)
    e("s_mov_b32 s%d, %d" % (S_X + 2, XBYTES))
    e("s_mov_b32 s%d, 0x20000" % (S_X + 3))
    e("s_movk_i32 s%d, 3456" % (S_T + 2))
    e("s_mov_b32 s%d, s%d" % (S_T + 3, S_X + 3))
    e("s_lshl_b32 s%d, s%d, 10" % (sXm1, sWave))
    e("s_add_u32 s%d, s%d, %d" % (sXm1, sXm1, XB))
    e("s_waitcnt lgkmcnt(0)")
    st("kernarg")
    vm.issue_now("dw", ["buffer_load_dwordx4 %s, v%d, %s, 0 offen" % (vr(vDW, 4), vTmp, sr(S_T, 4))])
    e("s_and_b32 s%d, s%d, 0xff" % (sQlo, sTb + 1))
    e("s_bfe_u32 s%d, s%d, 0x80008" % (sQn, sTb + 1))
    e("s_lshr_b32 s%d, s%d, 16" % (sNrows, sTb + 1))
    e("s_cmp_eq_u32 s%d, 12" % sNrows)
    e("s_cbranch_scc1 L_body0")

def issue_plane0(L):
    for l in x_voff_b(0, sTb): e(l)
    vm.issue_now(*x_item(0, 0))
    e("s_mov_b32 s%d, %d" % (sC2, 4 * ROWB))
    for i in (2, 4, 6):
        e("v_add_u32 v%d, s%d, v%d" % (vX + i, sC2, vX + i - 2))
        vm.issue_now(*x_item(0, i))
    for l in x_voff_a(1) + x_voff_b(1, sTb): e(l)
    vm.issue_now(*x_item(0, 1))
    for i in (3, 5):
        e("v_add_u32 v%d, s%d, v%d" % (vX + i, sC2, vX + i - 2))
        vm.issue_now(*x_item(0, i))
    e("s_cmp_lt_u32 s%d, %d" % (sWave, 3 if L else 1))
    e("s_cselect_b32 s%d, s%d, 0x40000000" % (sT0, sC2))
    e("v_add_u32 v%d, s%d, v%d" % (vX + 7, sT0, vX + 5))
    e("s_add_u32 s%d, s%d, %d" % (sXm7, sXm1, 3 * 9216 + 4096))
    e("s_mul_i32 s%d, s%d, 9216" % (sXm8, sWave))
    e("s_add_u32 s%d, s%d, %d" % (sXm8, sXm8, XB + 8192))
    e("s_mul_i32 s%d, s%d, s%d" % (sT1, sWave, sC2))
    e("s_add_u32 s%d, s%d, s%d" % (sT1, sT1, sTb))
    e("s_cmp_lt_u32 s%d, 3" % sWave)
    e("s_cselect_b32 s%d, s%d, %d" % (sXm7, sXm7, DUMMY))
    e("s_cselect_b32 s%d, s%d, %d" % (sXm8, sXm8, DUMMY))
    e("s_cselect_b32 s%d, %d, 0" % (sXs8, PL - 128))
    e("s_cselect_b32 s%d, s%d, 0x40000000" % (sT1, sT1))
    vm.issue_now(*x_item(0, 7))
    for l in x_voff_a(8) + x_voff_b(8, sT1): e(l)
    vm.issue_now(*x_item(0, 8))
    for a in (1, 2):
        for i in range(9): vm.queue(*x_item(a, i))

def early(L):
    first = L or not opt.prio
    for k, (slot, nb) in enumerate(((3, 1536), (5, 384), (6, 384))):
        vm.queue("tab", (["v_lshlrev_b32 v%d, 3, v0" % (vTB + 7)] if k == 0 else []) + capture(srd, S_T, slot, nb) +
                 ["buffer_load_dwordx2 %s, v%d, %s, 0 offen" % (vr(vTB + 2 * k, 2), vTB + 7, sr(S_T, 4))])
    if first: issue_plane0(L)
    e("s_add_u32 s%d, s%d, %d" % (sBase, sTb, ROWB + 384))
    st("issued")
    build_diag(L, first)

px, g_, gl, gh = vS + 4, vS + 5, vS + 6, vS + 7
def setup_early():
    t0, t1, t2 = vS, vS + 1, vS + 2
    e("v_and_b32 v%d, 63, v0" % vLane)
    for j in range(8): e("v_mov_b32 v%d, 0" % (vQ + 2 * j + 1 - j // 4))
    cm("image write address: tap = tid/24 -> (pair, half)")
    code = [0, 1, 4, 2, 3, 5, 8, 9, 7, 6, 15]
    lut = sum(c << (4 * i) for i, c in enumerate(code))
    e("s_mov_b32 s%d, 0x%08x" % (sLut, lut & 0xffffffff))
    e("s_mov_b32 s%d, 0x%08x" % (sLut + 1, lut >> 32))
    e("v_mul_u32_u24 v%d, 2731, v0" % t0)
    e("v_lshrrev_b32 v%d, 16, v%d" % (t0, t0))
    e("v_mul_u32_u24 v%d, 24, v%d" % (t1, t0))
    e("v_sub_u32 v%d, v0, v%d" % (t1, t1))
    e("v_lshlrev_b32 v%d, 2, v%d" % (t0, t0))
    e("v_lshrrev_b64 %s, v%d, %s" % (vr(t2, 2), t0, sr(sLut, 2)))
    e("v_and_b32 v%d, 1, v%d" % (t0, t2))
    e("v_lshlrev_b32 v%d, 3, v%d" % (t0, t0))
    e("v_lshl_add_u32 v%d, v%d, 4, v%d" % (t0, t1, t0))
    e("v_bfe_u32 v%d, v%d, 1, 3" % (t2, t2))
    e("v_mul_u32_u24 v%d, 384, v%d" % (t1, t2))
    e("v_cmp_gt_u32 vcc, 5, v%d" % t2)
    e("v_add_u32 v%d, v%d, v%d" % (t0, t0, t1))
    e("v_mov_b32 v%d, %d" % (t1, OOB))
    e("v_cndmask_b32 v%d, v%d, v%d, vcc" % (vU + 7, t1, t0))
    e("v_and_b32 v%d, 15, v%d" % (px, vLane))
    e("v_lshrrev_b32 v%d, 4, v%d" % (g_, vLane))
    e("v_and_b32 v%d, 1, v%d" % (gl, g_))
    e("v_lshrrev_b32 v%d, 1, v%d" % (gh, g_))
    cm("image read addresses (invalid lanes out of range -> read 0)")
    e("v_lshrrev_b32 v%d, 3, v%d" % (t0, px))
    e("v_xor_b32 v%d, v%d, v%d" % (t0, t0, gl))
    e("v_mul_u32_u24 v%d, %d, v%d" % (t0, OOB, t0))
    e("v_lshl_add_u32 v%d, v%d, 4, v%d" % (t0, gl, t0))
    e("v_and_b32 v%d, 7, v%d" % (t1, px))
    e("v_mul_u32_u24 v%d, %d, v%d" % (t1, JS, t1))
    e("v_add_u32 v%d, v%d, v%d" % (t0, t0, t1))
    e("v_mul_u32_u24 v%d, 384, v%d" % (t1, gh))
    e("v_add_u32 v%d, v%d, v%d" % (vIA, t0, t1))
    e("v_xor_b32 v%d, 1, v%d" % (t1, gh))
    e("v_mul_u32_u24 v%d, %d, v%d" % (t1, OOB, t1))
    e("v_add_u32 v%d, v%d, v%d" % (vIA + 1, t0, t1))
    e("s_lshl_b32 s%d, s%d, 5" % (sT0, sWave))
    e("v_add_u32 v%d, s%d, v%d" % (vIA + 2, sT0, vIA))
    e("v_add_u32 v%d, s%d, v%d" % (vIA + 3, sT0, vIA + 1))

def setup_late():
    t0, t1, t2, t3 = vS, vS + 1, vS + 2, vS + 3
    cm("W1 dma voffset")
    e("v_lshrrev_b32 v%d, 3, v%d" % (t0, vLane))
    e("v_and_b32 v%d, 7, v%d" % (t1, vLane))
    e("v_and_b32 v%d, 6, v%d" % (t2, t0))
    e("v_xor_b32 v%d, v%d, v%d" % (t1, t1, t2))
    e("v_mul_u32_u24 v%d, 1536, v%d" % (t0, t0))
    e("v_lshl_add_u32 v%d, v%d, 4, v%d" % (vD1, t1, t0))
    e("s_mul_i32 s%d, s%d, %d" % (sT0, sWave, 48 * 1536))
    e("v_add_u32 v%d, s%d, v%d" % (vD1, sT0, vD1))
    cm("W2 dma voffset")
    e("v_bfe_u32 v%d, v%d, 2, 3" % (t0, vLane))
    e("v_and_b32 v%d, 4, v%d" % (t1, t0))
    e("v_add_u32 v%d, v%d, v%d" % (t0, t0, t1))
    e("v_mul_u32_u24 v%d, 384, v%d" % (t0, t0))
    e("v_lshl_add_u32 v%d, v%d, 6, v%d" % (t0, gh, t0))
    e("v_and_b32 v%d, 3, v%d" % (t1, vLane))
    e("v_lshl_add_u32 v%d, v%d, 4, v%d" % (vD2, t1, t0))
    e("s_mul_i32 s%d, s%d, %d" % (sT0, sWave, 16 * 384))
    e("v_add_u32 v%d, s%d, v%d" % (vD2, sT0, vD2))
    srd(S_W1, 2, 192 * 768 * 2)
    srd(S_W2, 4, 192 * 768 * 2)
    srd(S_O, 7, XBYTES)
    set_dma_slot(0)
    e("s_mov_b32 s%d, 0" % sW1off)
    cm("sparse index: every group selects (row%4, (row+1)%4)")
    e("v_add_u32 v%d, 1, v%d" % (t0, t1))
    e("v_and_b32 v%d, 3, v%d" % (t0, t0))
    e("v_lshl_add_u32 v%d, v%d, 2, v%d" % (t0, t0, t1))
    e("v_mul_u32_u24 v%d, 0x1111, v%d" % (vIdx, t0))
    cm("conv B-frag addresses")
    e("s_mul_i32 s%d, s%d, %d" % (sT0, sWave, 3 * PR))
    e("s_add_u32 s%d, s%d, %d" % (sT0, sT0, XB))
    e("s_lshl_b32 s%d, s%d, 5" % (sT1, sWave))
    for kind, dst, ldst in ((0, vF, vLF), (1, vGa, vLG), (2, vRA, None)):
        if kind == 0: e("v_add_u32 v%d, v%d, v%d" % (t0, gl, px))
        else: e("v_add_u32 v%d, %d, v%d" % (t0, 2 if kind == 1 else 1, px))
        e("v_bfe_u32 v%d, v%d, 1, 3" % (t1, t0))
        e("v_xor_b32 v%d, v%d, v%d" % (t1, t1, gh if kind < 2 else g_))
        e("v_lshlrev_b32 v%d, 7, v%d" % (t0, t0))
        e("v_lshl_add_u32 v%d, v%d, 4, v%d" % (t0, t1, t0))
        if kind == 1:
            e("v_mul_u32_u24 v%d, %d, v%d" % (t1, PR, gl))
            e("v_add_u32 v%d, v%d, v%d" % (t0, t0, t1))
        if kind == 2: e("v_add_u32 v%d, %d, v%d" % (t0, PR, t0))
        e("v_add_u32 v%d, s%d, v%d" % (dst, sT0, t0))
        if kind < 2:
            for k in range(1, 4): e("v_xor_b32 v%d, %d, v%d" % (dst + k, 32 * k, dst))
            e("v_xor_b32 v%d, s%d, v%d" % (t0, sT1, t0))
            e("v_add_u32 v%d, %d, v%d" % (ldst, XB + 12 * PR, t0))
        else:
            e("v_xor_b32 v%d, 64, v%d" % (dst + 1, dst))
    cm("L exchange addresses")
    e("s_lshr_b32 s%d, s%d, 1" % (sT0, sWave))
    e("s_lshl_b32 s%d, s%d, 10" % (sT0, sT0))
    e("s_and_b32 s%d, s%d, 1" % (sT1, sWave))
    e("s_lshl_b32 s%d, s%d, 3" % (sT1, sT1))
    e("s_add_u32 s%d, s%d, s%d" % (sT0, sT0, sT1))
    e("v_lshl_add_u32 v%d, v%d, 4, s%d" % (vLW, vLane, sT0))
    e("v_lshlrev_b32 v%d, 5, v%d" % (vLSr, px))
    e("s_lshl_b32 s%d, s%d, 2" % (sT0, sWave))
    e("v_lshl_add_u32 v%d, v%d, 4, v%d" % (vLSw, gh, vLSr))
    e("v_add_u32 v%d, s%d, v%d" % (vLSw, sT0, vLSw))
    cm("main-loop LDS addresses")
    e("v_bfe_u32 v%d, v%d, 2, 3" % (t0, vLane))
    e("v_and_b32 v%d, 3, v%d" % (t2, vLane))
    e("v_lshlrev_b32 v%d, 7, v%d" % (t3, t0))
    e("v_lshl_add_u32 v%d, v%d, 10, v%d" % (t3, gh, t3))
    e("v_lshl_add_u32 v%d, v%d, 3, v%d" % (t3, t2, t3))
    e("v_lshrrev_b32 v%d, 1, v%d" % (vA1, t0))
    e("v_xor_b32 v%d, s%d, v%d" % (vA1, sWave, vA1))
    e("v_lshl_add_u32 v%d, v%d, 5, v%d" % (vA1, vA1, t3))
    for p in range(1, 4): e("v_xor_b32 v%d, %d, v%d" % (vA1 + p, 32 * p, vA1))
    e("v_mul_u32_u24 v%d, 3080, v%d" % (t3, gl))
    e("v_lshl_add_u32 v%d, v%d, 8, v%d" % (t3, gh, t3))
    e("v_lshl_add_u32 v%d, v%d, 4, v%d" % (t3, px, t3))
    e("v_lshlrev_b32 v%d, 4, v%d" % (t2, g_))
    for p in range(4):
        e("s_xor_b32 s%d, s%d, %d" % (sT0, sWave, p))
        e("s_mul_i32 s%d, s%d, %d" % (sT1, sT0, W2E))
        e("s_add_u32 s%d, s%d, %d" % (sT1, sT1, SLOT + 24576))
        e("v_add_u32 v%d, s%d, v%d" % (vA2 + p, sT1, t3))
        e("s_lshl_b32 s%d, s%d, 6" % (sT0, sT0))
        e("s_add_u32 s%d, s%d, %d" % (sT0, sT0, TAB_B1))
        e("v_add_u32 v%d, s%d, v%d" % (vAb + p, sT0, t2))
    e("v_lshlrev_b32 v%d, 5, v%d" % (vTab, g_))
    e("v_add_u32 v%d, %d, v%d" % (vTab, TAB_B2, vTab))
    e("v_mul_u32_u24 v%d, 384, v%d" % (vOut, px))
    e("v_add3_u32 v%d, v%d, v%d, s%d" % (vOut, vOut, t2, sBase))

def build_diag(L, first):
    early = capture(setup_early) + ["v_mov_b32 v%d, 0" % (vFb + k) for k in range(4)]
    late0 = capture(setup_late)
    zs = ["v_mfma_f32_32x32x16_bf16 %s, %s, %s, 0" % (vr(b, 16), vr(vFb, 4), vr(vFb, 4)) for b in range(160, 256, 16)]
    zs += ["v_mfma_f32_16x16x32_bf16 %s, %s, %s, 0" % (vr(b, 4), vr(vFb, 4), vr(vFb, 4)) for b in range(vLY, vLY + 12, 4)]
    late = []
    for k, l in enumerate(late0):
        late.append(l)
        if k % 10 == 9 and zs: late.append(zs.pop(0))
    assert not zs
    for k, l in enumerate(early):
        e(l)
        if k % 14 == 13: vm.pop()
    cm("sparse-diagonal image")
    vm.wait(lambda t: t == "dw")
    st("dwin")
    for j in range(8):
        d = vQ + 2 * j + j // 4
        if j % 2: e("v_lshrrev_b32 v%d, 16, v%d" % (d, vDW + j // 2))
        else: e("v_and_b32 v%d, 0xffff, v%d" % (d, vDW + j // 2))
    for j in range(8):
        e("ds_write_b64 v%d, %s offset:%d" % (vU + 7, vr(vQ + 2 * j, 2), IMG + j * JS))
    for l in late[:16]: e(l)
    late = late[16:]
    vm.pop()
    st("img")
    e("s_waitcnt lgkmcnt(0)")
    e("s_barrier")
    st("bar")
    rds = []
    for cg in range(12):
        for s_, (a, off) in enumerate(((vIA, 0), (vIA, 768), (vIA + 1, 1536))):
            rds.append("ds_read_b128 %s, v%d offset:%d" % (ar(12 * cg + 4 * s_, 4), a, IMG + off + cg * 32))
    for a_ in range(3 if L else 0):
        for s_, (a, off) in enumerate(((vIA + 2, 0), (vIA + 2, 768), (vIA + 3, 1536))):
            rds.append("ds_read_b128 %s, v%d offset:%d" % (ar(aLD + 12 * a_ + 4 * s_, 4), a, IMG + off + a_ * 128))
    per = (len(late) + 8) // 9
    if not first and opt.prio == 2: issue_plane0(L)
    for f, r in enumerate(rds):
        e(r)
        if f % (len(rds) // 9) == len(rds) // 9 - 1:
            vm.pop()
            for l in late[:per]: e(l)
            late = late[per:]
    assert not late
    if not first and opt.prio == 1: issue_plane0(L)
    for i in range(6):
        sc, ins = dma_w(i, 1); vm.queue("w0", sc + [ins])
    vm.wait(lambda t: t == "tab")
    e("v_mfma_f32_32x32x16_bf16 %s, %s, %s, 0" % (vr(76, 16), vr(vFb, 4), vr(vFb, 4)))
    tables()
    while any(tg == ("x", 1) for tg, _ in vm.pending): vm.pop()
    e("s_waitcnt lgkmcnt(0)")
    for b in (92, 108): e("v_mfma_f32_32x32x16_bf16 %s, %s, %s, 0" % (vr(b, 16), vr(vFb, 4), vr(vFb, 4)))
    st("diag")

def tables():
    def unpack_scale(src, dst, scale):
        e("s_mov_b32 s%d, 0x%08x" % (sT0, f2u(scale)))
        for h in range(2):
            e("v_lshlrev_b32 v%d, 16, v%d" % (dst + 2 * h, src + h))
            e("v_and_b32 v%d, 0xffff0000, v%d" % (dst + 2 * h + 1, src + h))
        for k in range(4): e("v_mul_f32 v%d, s%d, v%d" % (dst + k, sT0, dst + k))
    unpack_scale(vTB, vTB + 8, SA)
    unpack_scale(vTB + 2, vTB + 12, SA)
    unpack_scale(vTB + 4, vTB + 16, 1.0 / SA)
    e("v_add_u32 v%d, %d, v%d" % (vTB + 7, TAB_B1, vTmp))
    e("v_cmp_gt_u32 vcc, 192, v0")
    e("s_and_saveexec_b64 %s, vcc" % sr(sEx, 2))
    e("ds_write_b128 v%d, %s" % (vTB + 7, vr(vTB + 8, 4)))
    e("v_cmp_gt_u32 vcc, 48, v0")
    e("s_and_b64 exec, exec, vcc")
    e("ds_write_b128 v%d, %s offset:%d" % (vTB + 7, vr(vTB + 12, 4), TAB_B2 - TAB_B1))
    e("ds_write_b128 v%d, %s offset:%d" % (vTB + 7, vr(vTB + 16, 4), TAB_G - TAB_B1))
    e("s_mov_b64 exec, -1")

def res_dst(t, m):
    if m >= 4: return vr(vR45 + 8 * t + 4 * (m - 4), 4)
    if t == 0 and m >= 2: return vr(vR23 + 4 * (m - 2), 4)
    idx = m if t == 0 else 4 * t + m - 2
    return ar(aRes + 4 * idx, 4)
def poff(a): return (a % 2) * PL
def res_rd(t, m):
    return "ds_read_b128 %s, v%d offset:%d" % (res_dst(t, m), vRA + m % 2, poff(m // 2) + t * PR)

def conv_all(L):
    reads = []; mf = []
    lastuse = {}
    nitem = 0
    for a in range(3):
        items = [("m", k) for k in range(4)]
        if L: items.insert(0 if a == 2 else 2, ("l", 0))
        for kind, k in items:
            b = nitem % 2; nitem += 1
            F = (lambda h, c=1: vr(vFb + 4 * h, 4 * c)) if b else (lambda h, c=1: ar(aFb + 4 * h, 4 * c))
            G = (lambda h, c=1: vr(vGb + 4 * h, 4 * c)) if b else (lambda h, c=1: ar(aGb + 4 * h, 4 * c))
            nrow = 3 if kind == "m" else 1
            r0 = len(reads)
            for h in range(nrow + 2):
                reads.append(("ds_read_b128 %s, v%d offset:%d" % (F(h), vF + k if kind == "m" else vLF, poff(a) + h * PR), lastuse.get((b, "F", h), -1), a))
            g0 = len(reads)
            for h in range(nrow + 1):
                reads.append(("ds_read_b128 %s, v%d offset:%d" % (G(h), vGa + k if kind == "m" else vLG, poff(a) + h * PR), lastuse.get((b, "G", h), -1), a))
            A = (lambda s_: ar(12 * (4 * a + k) + 4 * s_, 4)) if kind == "m" else (lambda s_: ar(aLD + 12 * a + 4 * s_, 4))
            Dr = (lambda t: vr(vYt[t] + 4 * (4 * a + k), 4)) if kind == "m" else (lambda t: vr(vLY + 4 * a, 4))
            def sm(t, s_, B, need, uses):
                for u in uses: lastuse[u] = len(mf)
                mf.append(("v_smfmac_f32_16x16x64_bf16 %s, %s, %s, v%d" % (Dr(t), A(s_), B, vIdx), need, a))
            for t in range(nrow):
                sm(t, 0, F(t, 2), r0 + t + 1, [(b, "F", t), (b, "F", t + 1)])
                sm(t, 2, F(t + 1, 2), r0 + t + 2, [(b, "F", t + 1), (b, "F", t + 2)])
            for t in range(nrow):
                sm(t, 1, G(t, 2), g0 + t + 1, [(b, "G", t), (b, "G", t + 1)])
    return reads, mf

def stats_ops(a, L):
    ops = []
    for k in range(4):
        for i in (0, 2):
            for t in range(3):
                y = vr(vYt[t] + 16 * a + 4 * k + i, 2)
                a1, a2 = vr(vS + 4 * t, 2), vr(vS + 4 * t + 2, 2)
                if a == 0 and k == 0 and i == 0:
                    ops += ["v_pk_add_f32 %s, %s, 0 op_sel_hi:[1,0]" % (a1, y), "v_pk_mul_f32 %s, %s, %s" % (a2, y, y)]
                else:
                    ops += ["v_pk_add_f32 %s, %s, %s" % (a1, a1, y), "v_pk_fma_f32 %s, %s, %s, %s" % (a2, y, y, a2)]
        if L and k < 2 and a < 2:
            y = vr(vLY + 4 * a + 2 * k, 2); a1, a2 = vr(vLS, 2), vr(vLS + 2, 2)
            if a == 0 and k == 0: ops += ["v_pk_add_f32 %s, %s, 0 op_sel_hi:[1,0]" % (a1, y), "v_pk_mul_f32 %s, %s, %s" % (a2, y, y)]
            else: ops += ["v_pk_add_f32 %s, %s, %s" % (a1, a1, y), "v_pk_fma_f32 %s, %s, %s, %s" % (a2, y, y, a2)]
    return ops

def finish_ops(a, b, sc, sh):
    return ["v_fma_f32 v%d, -v%d, v%d, v%d" % (b, a, a, b), "v_max_f32 v%d, 0, v%d" % (b, b),
            "v_add_f32 v%d, 0x%08x, v%d" % (b, f2u(1e-5), b), "v_rsq_f32 v%d, v%d" % (b, b),
            "v_mul_f32 v%d, 0x%08x, v%d" % (sc, f2u(SA), b), "v_mul_f32 v%d, v%d, v%d" % (sh, a, sc)]

def reduce_chain(t):
    s1, s2 = vS + 4 * t, vS + 4 * t + 2
    a, b = s1 + 1, s2 + 1
    return ["v_add_f32 v%d, v%d, v%d" % (a, s1, s1 + 1), "v_add_f32 v%d, v%d, v%d" % (b, s2, s2 + 1),
            "v_permlane32_swap_b32 v%d, v%d" % (a, b), "v_add_f32 v%d, v%d, v%d" % (a, a, b), "v_mov_b32 v%d, v%d" % (b, a),
            "v_permlane16_swap_b32 v%d, v%d" % (a, b), "v_add_f32 v%d, v%d, v%d" % (a, a, b),
            "v_mul_f32 v%d, 0x%08x, v%d" % (a, f2u(1.0 / 192.0), a), "v_mov_b32 v%d, v%d" % (b, a),
            "v_permlane32_swap_b32 v%d, v%d" % (a, b)] + finish_ops(a, b, s1, s2)

def ln_norm(y0, n, dst, sc, sh):
    LAG = min(6, n)
    for k in range(n + LAG):
        if k < n:
            y = y0 + 2 * k
            e("v_pk_fma_f32 %s, %s, %s, %s op_sel_hi:[1,0,0] neg_lo:[0,0,1] neg_hi:[0,0,1]" % (vr(y, 2), vr(y, 2), vr(sc, 2), vr(sh, 2)))
        if k >= LAG:
            j = k - LAG
            e("v_cvt_pk_bf16_f32 v%d, v%d, v%d" % (dst + j, y0 + 2 * j, y0 + 2 * j + 1))

def prologue(L):
    vm.wait(lambda t: t == ("x", 0))
    e("s_barrier")
    st("x0in")
    reads, mf = conv_all(L)
    seq = [0]; rseq = {}
    def lds(txt): e(txt); seq[0] += 1
    plane = [0]
    nis = [0]
    def issue_read():
        r = reads[nis[0]]
        if r[2] > plane[0]:
            a = plane[0]
            if a == 1:
                for r_ in [vF + k for k in range(8)] + ([vLF, vLG] if L else []):
                    e("v_add_u32 v%d, %d, v%d" % (r_, 2 * PL, r_))
            vm.wait(lambda t: t == ("x", a + 1))
            e("s_barrier")
            st("x%din" % (a + 1))
            plane[0] += 1
        lds(r[0]); rseq[nis[0]] = seq[0]; nis[0] += 1
    for _ in range(opt.dist): issue_read()
    n0 = nis[0]
    e("s_waitcnt lgkmcnt(%d)" % (seq[0] - rseq[mf[0][1]]))
    pend = []
    la, lb = vLS + 1, vLS + 3
    for i, (txt, need, a) in enumerate(mf):
        e(txt)
        last_of_plane = i + 1 == len(mf) or mf[i + 1][2] != a
        if i + 1 < len(mf):
            nxt = mf[i + 1][1]
            while nis[0] <= nxt:
                assert reads[nis[0]][1] <= i
                issue_read()
            if not last_of_plane and (nxt > need or i == 0): e("s_waitcnt lgkmcnt(%d)" % min(14, seq[0] - rseq[nxt]))
            target = min(len(reads), n0 + -(-(i + 1) * len(reads) // len(mf)))
            while nis[0] < target and nis[0] - nxt <= 13 and reads[nis[0]][1] <= i: issue_read()
        first = min(k for k in range(len(mf)) if mf[k][2] == a)
        if (i - first) % [3, 5, 3][a] == 1: vm.pop()
        if a == 1 and i == first and L:
            assert not any(tg[0] == "x" for tg, _ in vm.pending)
            e("s_mul_i32 s%d, s%d, %d" % (sT0, sWave, -3 * PR))
            e("s_add_u32 s%d, s%d, %d" % (sT0, sT0, 12 * PR))
            e("s_lshr_b32 s%d, s%d, 1" % (sT1, sWave))
            e("s_mul_i32 s%d, s%d, %d" % (sT1, sT1, PL))
            e("s_add_u32 s%d, s%d, s%d" % (sT0, sT0, sT1))
            e("s_and_b32 s%d, s%d, 1" % (sT1, sWave))
            e("s_lshl_b32 s%d, s%d, 6" % (sT1, sT1))
            e("v_xor_b32 v%d, s%d, v%d" % (vX + 8, sT1, vRA))
            e("v_add_u32 v%d, s%d, v%d" % (vX + 8, sT0, vX + 8))
        if a == 2 and L and i == first + 8:
            for k in range(4):
                y = vLY + 8 + k
                pend += ["v_add_f32 v%d, v%d, v%d" % (vLS + k % 2, vLS + k % 2, y), "v_fmac_f32 v%d, v%d, v%d" % (vLS + 2 + k % 2, y, y)]
            pend += ["v_add_f32 v%d, v%d, v%d" % (la, vLS, vLS + 1), "v_add_f32 v%d, v%d, v%d" % (lb, vLS + 2, vLS + 3), None,
                     "v_permlane32_swap_b32 v%d, v%d" % (la, lb), "v_add_f32 v%d, v%d, v%d" % (la, la, lb), "v_mov_b32 v%d, v%d" % (lb, la), None,
                     "v_permlane16_swap_b32 v%d, v%d" % (la, lb), "v_add_f32 v%d, v%d, v%d" % (la, la, lb), "W"]
        if pend:
            o = pend.pop(0)
            if o == "W": lds("ds_write_b32 v%d, v%d offset:%d" % (vLSw, la, XST))
            elif o: e(o)
        if last_of_plane:
            st("mf%d" % a)
            assert not pend
            if a == 1: assert not any(tg[0] == "x" for tg, _ in vm.pending)
            for t in range(3):
                for m in (2 * a, 2 * a + 1): lds(res_rd(t, m))
            if a == 1:
                if L: lds("ds_read_b128 %s, v%d" % (vr(vRL, 4), vX + 8))
                for r_ in [vRA, vRA + 1] + ([vX + 8] if L else []): e("v_add_u32 v%d, %d, v%d" % (r_, 2 * PL, r_))
            ops = stats_ops(a, L)
            if a == 1:
                while vm.pending: vm.pop()
                for o in ops[:40]: e(o)
                ops = ops[40:]
                e("s_waitcnt lgkmcnt(0)")
                e("s_barrier")
                set_dma_slot(SLOT)
                e("s_mov_b32 s%d, 128" % sW1off)
                e("s_mov_b32 s%d, 0" % sW2off)
                for kind in (1, 2):
                    for k in range(6):
                        sc, ins = dma_w(k, kind); vm.queue("w1", sc + [ins])
            if a == 2 and L:
                for o in ops[:36]: e(o)
                ops = ops[36:]
                e("s_waitcnt lgkmcnt(0)")
                e("s_barrier")
                e("ds_read_b128 %s, v%d offset:%d" % (vr(vFb, 4), vLSr, XST))
                e("ds_read_b128 %s, v%d offset:%d" % (vr(vFb + 4, 4), vLSr, XST + 16))
            for o in ops: e(o)
            if a < 2: e("s_waitcnt lgkmcnt(%d)" % min(14, seq[0] - rseq[mf[i + 1][1]]))
            st("conv%d" % a)
    assert nis[0] == len(reads)
    while vm.pending: vm.pop()
    p = vFb
    ch = [reduce_chain(t) for t in range(3)]
    if L:
        ch.append([None, None, "s_waitcnt lgkmcnt(0)", "v_pk_add_f32 %s, %s, %s" % (vr(p, 2), vr(p, 2), vr(p + 2, 2)),
                   "v_pk_add_f32 %s, %s, %s" % (vr(p + 4, 2), vr(p + 4, 2), vr(p + 6, 2)),
                   "v_add_f32 v%d, v%d, v%d" % (p, p, p + 1), "v_add_f32 v%d, v%d, v%d" % (p + 1, p + 4, p + 5),
                   "v_mul_f32 v%d, 0x%08x, v%d" % (p, f2u(1.0 / 192.0), p), "v_mul_f32 v%d, 0x%08x, v%d" % (p + 1, f2u(1.0 / 192.0), p + 1),
                   "v_lshlrev_b32 v%d, 4, v%d" % (vTmp, vLane)] + finish_ops(p, p + 1, p + 2, p + 4))
    for k in range(len(ch[0])):
        for c in ch:
            if c[k]: e(c[k])
    st("red")
    if L:
        ln_norm(vLY, 6, vLY, p + 2, p + 4)
        for a in range(3): e("ds_write_b64 v%d, %s offset:%d" % (vLW, vr(vLY + 2 * a, 2), XCH + a * 2048))
    for t in range(3):
        ln_norm(vYt[t], 24, vB1 + 24 * t, vS + 4 * t, vS + 4 * t + 2)
        if t == 0 and L: e("ds_read_b128 %s, v%d" % (vr(vRL + 4, 4), vX + 8))
    if L:
        e("v_mov_b32 v%d, 0" % (vPL + 2))
        e("v_mov_b32 v%d, 0" % (vPL + 3))
    vm.wait(lambda t: t == "w0")
    e("s_waitcnt lgkmcnt(0)")
    e("s_barrier")
    if L:
        for kb in range(6): e("ds_read_b128 %s, v%d offset:%d" % (vr(vB1 + 72 + 4 * kb, 4), vTmp, XCH + kb * 1024))
        e("s_cmp_eq_u32 s%d, 0" % sWave)
        e("s_cselect_b32 s%d, 0, %d" % (sT0, OOB))
        e("v_add_u32 v%d, s%d, v%d" % (vTmp + 1, sT0, vTab))
    st("conv3")

def acc_init(L):
    r = []
    for ct in range(12):
        for t in range(1):
            r.append("ds_read_b128 %s, v%d offset:%d" % (ar(48 * t + 4 * ct, 4), vTab, (ct // 2) * 128 + (ct % 2) * 16))
        if L:
            r.append("ds_read_b128 %s, v%d offset:%d" % (ar(144 + 4 * ct, 4), vTmp + 1, (ct // 2) * 128 + (ct % 2) * 16))
    return r

def gelu_pair(x0, x1, dst, tmp):
    a, b = tmp, tmp + 1
    if opt.gelu == 1:
        return [("v_fma_f32 v%d, -v%d, v%d, -s%d" % (a, x0, x0, sK), 4), ("v_fma_f32 v%d, -v%d, v%d, -s%d" % (b, x1, x1, sK), 4),
                ("v_mul_f32 v%d, v%d, v%d" % (a, x0, a), 4), ("v_mul_f32 v%d, v%d, v%d" % (b, x1, b), 4),
                ("v_exp_f32 v%d, v%d" % (a, a), 8), ("v_exp_f32 v%d, v%d" % (b, b), 8),
                ("v_add_f32 v%d, 1.0, v%d" % (a, a), 4), ("v_add_f32 v%d, 1.0, v%d" % (b, b), 4),
                ("v_rcp_f32 v%d, v%d" % (a, a), 8), ("v_rcp_f32 v%d, v%d" % (b, b), 8),
                ("v_mul_f32 v%d, v%d, v%d" % (a, x0, a), 4), ("v_mul_f32 v%d, v%d, v%d" % (b, x1, b), 4),
                ("v_cvt_pk_bf16_f32 v%d, v%d, v%d" % (dst, a, b), 4)]
    sd = "dst_sel:WORD_1 dst_unused:UNUSED_PRESERVE src0_sel:WORD_1"
    return [("v_cvt_pk_f16_f32 v%d, v%d, v%d" % (a, x0, x1), 4),
            ("v_pk_fma_f16 v%d, v%d, v%d, s%d" % (b, a, a, sK), 4),
            ("v_pk_mul_f16 v%d, v%d, v%d neg_lo:[1,0] neg_hi:[1,0]" % (a, a, b), 4),
            ("v_exp_f16%s v%d, v%d" % ("_e64" if opt.e64 else "", b, a), 8),
            ("v_exp_f16_sdwa v%d, v%d %s" % (b, a, sd), 8),
            ("v_pk_add_f16 v%d, v%d, 1.0 op_sel_hi:[1,0]" % (a, b), 4),
            ("v_rcp_f16%s v%d, v%d" % ("_e64" if opt.e64 else "", b, a), 8),
            ("v_rcp_f16_sdwa v%d, v%d %s" % (b, a, sd), 8),
            ("v_fma_mix_f32 v%d, v%d, v%d, 0 op_sel_hi:[0,1,0]" % (a, x0, b), 4),
            ("v_fma_mix_f32 v%d, v%d, v%d, 0 op_sel:[0,1,0] op_sel_hi:[0,1,0]" % (b, x1, b), 4),
            ("v_cvt_pk_bf16_f32 v%d, v%d, v%d" % (dst, a, b), 4)]

def gelu_ops(c, L):
    hb = vH + 24 * (c % 2); pb = vP + 12 * (c % 2)
    quads = []
    for t in range(3):
        for ep in range(2):
            quads.append((hb + 8 * t + 4 * ep, pb + 4 * t + 2 * ep))
    if L and c % 2 == 0: quads.append((vHL, vPL))
    ops = []
    for n, (x, d) in enumerate(quads):
        tmp = vT + 4 * (n % 2)
        A = gelu_pair(x, x + 1, d, tmp); B = gelu_pair(x + 2, x + 3, d + 1, tmp + 2)
        if opt.gelu == 1:
            for k in range(0, 12, 2): ops += [A[k], A[k + 1], B[k], B[k + 1]]
            ops += [A[12], B[12]]
        else:
            for k in range(len(A)): ops += [A[k], B[k]]
    return ops

class Frag: pass

def step_scalars():
    return ["s_add_u32 s%d, s%d, s%d" % (sM1, sM1, sDel2),
            "s_add_u32 s%d, s%d, s%d" % (sM2, sM2, sDel2),
            "s_add_u32 s%d, s%d, 128" % (sW1off, sW1off),
            "s_add_u32 s%d, s%d, 24576" % (sW2off, sW2off),
            "s_cmp_ge_u32 s%d, 1536" % sW1off,
            "s_cselect_b32 s%d, 0, s%d" % (S_W1 + 2, S_W1 + 2),
            "s_mov_b32 s%d, s%d" % (sT0, sDel1),
            "s_mov_b32 s%d, s%d" % (sDel1, sDel2),
            "s_mov_b32 s%d, s%d" % (sDel2, sDelta),
            "s_sub_u32 s%d, s%d, 1" % (sCnt, sCnt),
            "s_cmp_lg_u32 s%d, 0" % sCnt]

def build_main(L, c_lo, c_hi, virt, xds={}, xval={}, xwr={}):
    groups = []
    for c in range(c_lo, c_hi + 1 + (1 if virt else 0)):
        step = (c + 1) // 2
        if c + 1 <= 23 or virt:
            c1 = c + 1
            for ep in range(2):
                pos = 2 * (c1 % 2) + ep
                for kb in range(6):
                    g = Frag(); g.kind = 1; g.period = c; g.step = step; g.pos = pos; g.kb = kb; g.chunk = c1; g.ep = ep
                    groups.append(g)
        if c - 1 >= 0:
            c2 = c - 1
            for ct in range(12):
                g = Frag(); g.kind = 2; g.period = c; g.step = step; g.ct = ct; g.chunk = c2
                groups.append(g)
    N = len(groups)
    D, R = opt.D, opt.R
    assert 24 % R == 0 and D < R and D <= 5
    nbias = 0
    for n, g in enumerate(groups):
        g.slot = aRing + 4 * (n % R)
        g.reads = []
        if g.kind == 1:
            if g.kb == 0:
                g.bias = vBias + 4 * (nbias % 2); nbias += 1
                g.reads.append("ds_read_b128 %s, v%d" % (vr(g.bias, 4), vAb + g.pos))
            for h in range(2):
                g.reads.append("ds_read_b64_tr_b16 %s, v%d offset:%d" % (ar(g.slot + 2 * h, 2), vA1 + g.pos, (g.kb * 4 + h * 2) * 1024))
            hb = vH + 24 * (g.chunk % 2)
            g.mf = []
            tiles = [0, 1, 2] + ([3] if (L and g.pos == 0) else [])
            for t in tiles:
                d = (hb + 8 * t + 4 * g.ep) if t < 3 else vHL
                cc = vr(g.bias, 4) if g.kb == 0 else vr(d, 4)
                g.mf.append("v_mfma_f32_16x16x32_bf16 %s, %s, %s, %s" % (vr(d, 4), ar(g.slot, 4), vr(vB1 + 24 * t + 4 * g.kb, 4), cc))
            g.upd = []
            if g.kb == 5: g.upd = ["v_add_u32 v%d, s%d, v%d" % (vA1 + g.pos, sDelta, vA1 + g.pos)]
            if g.kb == 0: g.upd = ["v_add_u32 v%d, 0x100, v%d" % (vAb + g.pos, vAb + g.pos)]
        else:
            m, o = g.ct // 2, g.ct % 2
            for h in range(2):
                pos = 2 * (g.chunk % 2) + h
                g.reads.append("ds_read_b64_tr_b16 %s, v%d offset:%d" % (ar(g.slot + 2 * h, 2), vA2 + pos, m * 512 + o * 8))
            pb = vP + 12 * (g.chunk % 2)
            g.mf = []
            tiles = [0, 1, 2] + ([3] if (L and g.chunk % 2 == 0) else [])
            if g.chunk == 0: tiles = tiles[1:] + [0]
            for t in tiles:
                acc = ar(48 * t + 4 * g.ct, 4)
                cin = ar(4 * g.ct, 4) if (g.chunk == 0 and t < 3) else acc
                g.mf.append("v_mfma_f32_16x16x32_bf16 %s, %s, %s, %s" % (acc, ar(g.slot, 4), vr(pb + 4 * t, 4) if t < 3 else vr(vPL, 4), cin))
            g.upd = []
            if g.ct == 11 and virt:
                g.upd = ["v_add_u32 v%d, s%d, v%d" % (vA2 + 2 * (g.chunk % 2) + h, sDelta, vA2 + 2 * (g.chunk % 2) + h) for h in range(2)]
    steps = [[] for _ in range(13)]
    issued = [0]; lastseq = {}
    pre = []
    def issue(n, dst):
        for r in groups[n].reads:
            dst.append(r); issued[0] += 1
        lastseq[n] = issued[0]
    for n in range(D): issue(n, pre)
    for n in range(D): pre += groups[n].upd
    first_wait = "s_waitcnt lgkmcnt(%d)" % (issued[0] - lastseq[0])
    for c in range(c_lo, c_hi + 1):
        step = (c + 1) // 2
        dst = steps[step]
        gs = [k for k in range(N) if groups[k].period == c]
        val = gelu_ops(c, L) if 0 <= c <= 23 else []
        val = val + [(x, 4) for x in xval.get(c, [])]
        xd = list(xds.get(c, []))
        nxd = (len(xd) + len(gs) - 1) // len(gs)
        if c == c_lo:
            burst = 0
            while val and burst < 120:
                pre.append(val[0][0]); burst += val[0][1]; val = val[1:]
            pre.append(first_wait)
        dmas = []; scal = []
        if step <= 11:
            if c % 2 == 1: dmas = [dma_w(i, 1) for i in range(6)] + [dma_w(i, 2) for i in range(6)]
            else: scal = step_scalars()
        nm = sum(len(groups[k].mf) for k in gs)
        tot = 8 * nm + sum(x[1] for x in val) + 12 * len(dmas) + 4 * len(xd) + 20 * len([1 for cc, _ in xwr if cc == c])
        for k in gs:
            if k + D < N: tot += 4 * len(groups[k + D].reads) + 4 * len(groups[k + D].upd)
        t = 0.0; vi = 0; mi = 0
        sp = opt.dsp if len(gs) >= 24 else 1
        dmap = {sp * i: d for i, d in enumerate(dmas)}
        for gi, k in enumerate(gs):
            g = groups[k]
            for j, m in enumerate(g.mf):
                dst.append(m); t += 8; mi += 1
                extra = []
                if j == len(g.mf) - 1 and k + 1 < N:
                    dst.append("s_waitcnt lgkmcnt(%d)" % min(14, issued[0] - lastseq[k + 1]))
                if j == 0:
                    if gi in dmap: dst.append(dmap[gi][0][0])
                    elif scal: dst.append(scal.pop(0))
                    if k + D < N:
                        issue(k + D, dst); t += 4 * len(groups[k + D].reads)
                        extra = groups[k + D].upd
                if j == len(g.mf) - 1:
                    for _ in range(nxd):
                        if xd: dst.append(xd.pop(0)); issued[0] += 1; t += 4
                if j == 1 and (c, gi) in xwr:
                    dst.append(xwr[(c, gi)]); issued[0] += 1; t += 20
                if j == 1:
                    if gi in dmap:
                        dst.append(dmap[gi][0][1]); dst.append(dmap[gi][1]); t += 12
                    elif gi == len(gs) - 1 and step <= 11 and c % 2 == 0:
                        dst.append("s_mov_b32 s%d, s%d" % (sDelta, sT0))
                for x in extra: dst.append(x); t += 4
                lim = mi * tot / nm
                while vi < len(val) and t + val[vi][1] <= lim + 2:
                    dst.append(val[vi][0]); t += val[vi][1]; vi += 1
        while vi < len(val): dst.append(val[vi][0]); vi += 1
        assert not scal and not xd
    return pre, steps

def main_part(L):
    tag = "b%d" % L
    ai = acc_init(L)
    pre, steps = build_main(L, -1, 22, True, xds={0: ai})
    xd24, xwr, xv24 = epi_prep(L)
    pre12, steps12 = build_main(L, 23, 24, False, xds={24: xd24}, xval={24: xv24}, xwr=xwr)
    for j in range(3, 12): assert steps[j] == steps[2], j
    assert opt.unroll in (1, 2, 5)
    e("s_mov_b32 s%d, 0x%08x" % (sK, f2u(KK) if opt.gelu == 1 else f2h(KK) * 0x10001))
    set_dma_slot(2 * SLOT)
    e("s_mov_b32 s%d, 256" % sW1off)
    e("s_mov_b32 s%d, 24576" % sW2off)
    e("s_mov_b32 s%d, %d" % (sDelta, SLOT))
    e("s_mov_b32 s%d, %d" % (sDel1, SLOT))
    e("s_mov_b32 s%d, %d" % (sDel2, -2 * SLOT))
    e("s_mov_b32 s%d, 12" % sCnt)
    for s in pre: e(s)
    def with_bar(body):
        body = list(body)
        bar = ["s_waitcnt vmcnt(0)"] + ([] if opt.nobar else ["s_barrier"])
        if opt.barpos:
            idx = [i for i, l in enumerate(body) if l.startswith("v_mfma")][-opt.barpos]
            return body[:idx + 1] + bar + body[idx + 1:]
        return body + bar
    s0 = with_bar(steps[0])
    idx = [i for i, l in enumerate(s0) if l.startswith("v_mfma")][-3 * (opt.D + 2)]
    s0 = s0[:idx + 1] + ["s_waitcnt vmcnt(12)", "s_barrier"] + s0[idx + 1:]
    for s in s0: e(s)
    st("step0")
    for s in with_bar(steps[1]): e(s)
    out.append(".p2align 6")
    lab("L_loop_%s" % tag)
    for u in range(opt.unroll):
        for s in with_bar(steps[2]): e(s)
    e("s_cbranch_scc1 L_loop_%s" % tag)
    st("loop")
    epi_scalars(L)
    for s in pre12: e(s)
    for s in steps12[12]: e(s)
    st("p24")
    epilogue(L)

RED = SLOT
STG = 2 * SLOT
vG = vH
vWA = vA1
vRd = vA1 + 2
vRdl = [vA1 + 2, vA1 + 3, vAb]
vSt = vAb + 1
vX0 = vB1 + 48
def epi_prep(L):
    xd = ["ds_read_b128 %s, v%d offset:%d" % (vr(vG + 4 * ct, 4), vTab, TAB_G - TAB_B2 + (ct // 2) * 128 + (ct % 2) * 16) for ct in range(12)]
    xv23 = {}
    if L:
        for ct in range(12):
            xv23[(23, ct + 2) if ct < 10 else (24, 2 * (ct - 10) + 1)] = "ds_write_b128 v%d, %s offset:%d" % (vTmp + 1, ar(144 + 4 * ct, 4), ct * 1024)
    t0, t1 = vAb + 2, vAb + 3
    xv = ["v_and_b32 v%d, 15, v%d" % (t0, vLane), "v_lshrrev_b32 v%d, 4, v%d" % (t1, vLane),
          "v_mul_u32_u24 v%d, 384, v%d" % (vWA, t0), "v_and_b32 v%d, 7, v%d" % (t0, t0),
          "v_xor_b32 v%d, v%d, v%d" % (t0, t0, t1), "v_lshl_add_u32 v%d, v%d, 4, v%d" % (vWA, t0, vWA),
          "v_add_u32 v%d, s%d, v%d" % (vWA, sT2, vWA), "v_xor_b32 v%d, 64, v%d" % (vWA + 1, vWA)]
    for k in range(3):
        xv += ["v_add_u32 v%d, %d, v%d" % (t0, 64 * k, vLane), "v_mul_u32_u24 v%d, 2731, v%d" % (t1, t0),
               "v_bfe_u32 v%d, v%d, 16, 3" % (t1, t1), "v_xor_b32 v%d, v%d, v%d" % (t0, t0, t1),
               "v_lshlrev_b32 v%d, 4, v%d" % (t0, t0), "v_add_u32 v%d, s%d, v%d" % (vRdl[k], sT2, t0)]
    xv += ["v_lshlrev_b32 v%d, 4, v%d" % (vSt, vLane), "v_add_u32 v%d, s%d, v%d" % (vSt, sT1, vSt)]
    for k in range(12):
        src = (vR23 + k) if k < 8 else (vR45 + k - 8)
        xv += ["v_lshlrev_b32 v%d, 16, v%d" % (vX0 + 2 * k, src), "v_and_b32 v%d, 0xffff0000, v%d" % (vX0 + 2 * k + 1, src)]
    return xd, xv23, xv

def epi_scalars(L):
    e("s_mul_i32 s%d, s%d, %d" % (sT1, sWave, 3 * ROWB))
    e("s_add_u32 s%d, s%d, s%d" % (sT1, sT1, sBase))
    e("s_mul_i32 s%d, s%d, 12288" % (sT2, sWave))
    e("s_add_u32 s%d, s%d, %d" % (sT3, sT2, RED))
    e("s_add_u32 s%d, s%d, %d" % (sT2, sT2, STG))
    if L:
        e("v_lshlrev_b32 v%d, 4, v%d" % (vTmp, vLane))
        e("v_add_u32 v%d, s%d, v%d" % (vTmp + 1, sT3, vTmp))

def epi_group(acc_regs, gam, xr, dst, tmp, unpacked=False):
    if not unpacked:
        for k in range(4):
            e("v_lshlrev_b32 v%d, 16, v%d" % (tmp + 2 * k, xr + k))
            e("v_and_b32 v%d, 0xffff0000, v%d" % (tmp + 2 * k + 1, xr + k))
    for k in range(4):
        e("v_pk_fma_f32 %s, %s, %s, %s" % (vr(tmp + 2 * k, 2), vr(acc_regs + 2 * k, 2), vr(gam + 2 * k, 2), vr(tmp + 2 * k, 2)))
    for k in range(4):
        e("v_cvt_pk_bf16_f32 v%d, v%d, v%d" % (dst + k, tmp + 2 * k, tmp + 2 * k + 1))

def epilogue(L):
    tag = "b%d" % L
    e("s_waitcnt lgkmcnt(0)")
    if L: e("s_barrier")
    st("gam")
    vAc = vB1; vTm = vB1 + 16; vXs = vB1 + 32; vO = vB1 + 40
    vLin = vP
    def store(t, k):
        e("buffer_store_dwordx4 %s, v%d, %s, s%d offen offset:%d%s" % (vr(vLin + 4 * k, 4), vSt, sr(S_O, 4), sT0 if k < 4 else sSo, (k % 4) * 1024, OPOL))
    n = 0
    for t in range(3):
        buf = (t % 2) * 6144
        for m in range(6):
            ac = vAc + 8 * (n % 2); tm = vTm + 8 * (n % 2); o = vO + 4 * (n % 2)
            for k in range(8): e("v_accvgpr_read_b32 v%d, a%d" % (ac + k, 48 * t + 8 * m + k))
            src = res_dst(t, m)
            base = int(src[2:src.index(":")])
            unp = (t == 0 and 2 <= m <= 4)
            if unp: tm = vX0 + 8 * (m - 2); xr = None
            elif src[0] == "a":
                xr = vXs + 4 * (n % 2)
                for k in range(4): e("v_accvgpr_read_b32 v%d, a%d" % (xr + k, base + k))
            else: xr = base
            epi_group(ac, vG + 8 * m, xr, o, tm, unp)
            if t > 0:
                if m == 0: e("s_waitcnt lgkmcnt(0)")
                store(t - 1, m)
            e("ds_write_b128 v%d, %s offset:%d" % (vWA + m % 2, vr(o, 4), buf + (m // 2) * 128))
            n += 1
        e("s_mov_b32 s%d, %d" % (sT0, t * ROWB))
        e("s_mov_b32 s%d, %d" % (sSo, t * ROWB + 4096))
        for k in range(6):
            e("ds_read_b128 %s, v%d offset:%d" % (vr(vLin + 4 * k, 4), vRdl[k % 3], buf + (k // 3) * 3072))
        st("t%d" % t)
    if L:
        e("s_lshl_b32 s%d, s%d, 6" % (sT1, sWave))
        e("s_add_u32 s%d, s%d, %d" % (sT1, sT1, 12 * ROWB))
        e("s_lshl_b32 s%d, s%d, 11" % (sT2, sWave))
        e("s_add_u32 s%d, s%d, %d" % (sT2, sT2, RED))
        e("v_add_u32 v%d, s%d, v%d" % (vTmp, sT2, vTmp))
        e("s_lshl_b32 s%d, s%d, 7" % (sT2, sWave))
        e("v_add_u32 v%d, s%d, v%d" % (vTmp + 1, sT2, vTab))
        def lreads(half, base):
            for w in range(4):
                for o in range(2):
                    e("ds_read_b128 %s, v%d offset:%d" % (vr(base + 8 * w + 4 * o, 4), vTmp, w * 12288 + half * 8192 + o * 1024))
            for o in range(2):
                e("ds_read_b128 %s, v%d offset:%d" % (vr(base + 32 + 4 * o, 4), vTmp + 1, TAB_G - TAB_B2 + half * 512 + o * 16))
        bases = [vB1 + 48, vH]
        lreads(0, bases[0])
        e("s_waitcnt lgkmcnt(10)")
        for k in range(6): store(2, k)
        lreads(1, bases[1])
        for half in range(2):
            if half == 1:
                e("s_cmp_ge_u32 s%d, 2" % sWave)
                e("s_cbranch_scc1 L_done_%s" % tag)
            regs = [bases[half] + 8 * w for w in range(4)]
            e("s_waitcnt lgkmcnt(%d)" % (10 if half == 0 else 0))
            for k in range(0, 8, 2):
                e("v_pk_add_f32 %s, %s, %s" % (vr(regs[0] + k, 2), vr(regs[0] + k, 2), vr(regs[1] + k, 2)))
                e("v_pk_add_f32 %s, %s, %s" % (vr(regs[2] + k, 2), vr(regs[2] + k, 2), vr(regs[3] + k, 2)))
            for k in range(0, 8, 2):
                e("v_pk_add_f32 %s, %s, %s" % (vr(regs[0] + k, 2), vr(regs[0] + k, 2), vr(regs[2] + k, 2)))
            xr = vRL + 4 * half
            epi_group(regs[0], bases[half] + 32, xr, xr, vTm)
            e("buffer_store_dwordx4 %s, v%d, %s, s%d offen offset:%d%s" % (vr(xr, 4), vOut, sr(S_O, 4), sT1, half * 256, OPOL))
        lab("L_done_%s" % tag)
    else:
        e("s_waitcnt lgkmcnt(0)")
        for k in range(6): store(2, k)
    if opt.stamps:
        st("epi")
        e("s_waitcnt vmcnt(0)")
        st("drain")
        e("s_waitcnt lgkmcnt(0)")
        srd(S_T, 9, 1 << 20)
        e("s_lshl_b32 s%d, s2, 2" % sT0)
        e("s_add_u32 s%d, s%d, s%d" % (sT0, sT0, sWave))
        e("s_lshl_b32 s%d, s%d, 6" % (sT0, sT0))
        e("v_mov_b32 v2, 0")
        for i in range(len(SSETS[opt.sset])): e("v_writelane_b32 v2, s%d, %d" % (sStamp + 2 * i, i))
        out.append("; STAMPNAMES " + " ".join(SSETS[opt.sset]))
        e("v_writelane_b32 v2, s%d, 11" % sNrows)
        e("v_lshlrev_b32 v3, 2, v%d" % vLane)
        e("v_add_u32 v3, s%d, v3" % sT0)
        e("v_cmp_gt_u32 vcc, 16, v%d" % vLane)
        e("s_and_saveexec_b64 %s, vcc" % sr(sEx, 2))
        e("buffer_store_dword v2, v3, %s, 0 offen" % sr(S_T, 4))
    e("s_endpgm")

import copy
vm = VM()
head()
vm0 = vm
for L in (1, 0):
    vm = copy.deepcopy(vm0)
    lab("L_body%d" % L)
    early(L)
    prologue(L)
    main_part(L)
lab("L_exit")
e("s_endpgm")
out.append(".p2align 3")
out.append(".type L_wgtab,@object")
lab("L_wgtab")
for a, b in wg_table(): e(".long 0x%08x, 0x%08x" % (a, b))
out.append(".size L_wgtab, %d" % (252 * 8))

ref = open("cdna_kernels/%s.s.ref" % NAME).read().split("\n")
hdr = [l for l in ref if l.startswith(";") and "@launch" not in l]
txt = "\n".join(hdr) + "\n; @launch grid=(252,1,1) block=(256,1,1) lds=%d\n" % LDS_SIZE
txt += """.amdgcn_target "amdgcn-amd-amdhsa--gfx950"
.text
.globl %s_kernel
.p2align 8
.type %s_kernel,@function
%s_kernel:
""" % (NAME, NAME, NAME)
txt += "\n".join(out).replace("PF_LIM", "L_exit-L_pf-0x8000") + "\n"
txt += """.section .rodata,"a"
.p2align 6
.amdhsa_kernel %s_kernel
  .amdhsa_next_free_vgpr 512
  .amdhsa_next_free_sgpr 102
  .amdhsa_accum_offset 256
  .amdhsa_group_segment_fixed_size 0
  .amdhsa_kernarg_size 80
  .amdhsa_user_sgpr_count 2
  .amdhsa_user_sgpr_kernarg_segment_ptr 1
  .amdhsa_system_sgpr_workgroup_id_x 1
.end_amdhsa_kernel
""" % NAME
dst = [a for a in sys.argv[1:] if "=" not in a]
open(dst[0] if dst else "cdna_kernels/%s.s" % NAME, "w").write(txt)
```

```python
import math, struct, sys

NAME = "standalone__modern_conv_block_convnext__vision"
def f2u(f): return struct.unpack("<I", struct.pack("<f", f))[0]
def f2h(f): return struct.unpack("<H", struct.pack("<e", f))[0]

class Opt:
    gelu = 2
    stamps = 0
    D = 4
    R = 6
    xnt = 0
    sset = 0
    dsp = 1
    nobar = 0
    unroll = 2
    e64 = 0
    barpos = 0
    dist = 12
    prio = 0
    dbg = 0
    pe1 = 6
    pf = 1
    ont = 2
opt = Opt()
for a in sys.argv[1:]:
    if "=" in a:
        k, v = a.split("="); assert hasattr(opt, k), k; setattr(opt, k, int(v))

C0 = 2.0 * math.sqrt(2.0 / math.pi) * math.log2(math.e)
SA = (C0 * 0.044715) ** (1.0 / 3.0)
KK = C0 / SA
if opt.gelu == 2:
    KK = struct.unpack("<e", struct.pack("<e", KK))[0]
    SA = C0 / KK

XBYTES = 224 * 224 * 384
ROWB = 86016
SLOT = 49408
XB = SLOT
W2E = 6160
PL = 34816
PR = 2304
TAB_B1 = XB + 3 * PL
TAB_B2 = TAB_B1 + 3072
TAB_G = TAB_B2 + 768
DUMMY = TAB_G + 768
IMG = 24576
JS = 1936
XCH = 40960
XST = XCH + 6144
LDS_SIZE = 163840
OOB = 0x40000
XPOL = " nt" if opt.xnt else ""
OPOL = ["", " nt", " sc1", " sc0 sc1"][opt.ont]
assert DUMMY + 1280 <= LDS_SIZE and IMG + 8 * JS <= XCH and XST + 1024 <= SLOT

S_X = 8; S_W1 = 12; S_W2 = 16; S_O = 20; S_T = 24
sWave = 28; sBase = 29; sNrows = 31
sK = 32; sDelta = 33; sW1off = 35; sW2off = 36; sCnt = 37
sT0 = 38; sT1 = 39; sT2 = 40; sT3 = 41
sEx = 42
sC1 = 44; sM1 = 45; sM2 = 46; sSo = 47; sDel1 = 48; sDel2 = 49
sXm7 = 30; sXm1 = 50; sXm8 = 51; sXs8 = 52; sQlo = 53; sTb = 54; sQn = 56; sC2 = 57; sLut = 58
sPtr = 60
sStamp = 80

vLane = 1
vA1 = 2; vA2 = 6; vAb = 10
vD1 = 14; vD2 = 15; vOut = 16; vTab = 17; vTmp = 18
vBias = 20
vT = 28
vRL = 36
vHL = 44; vPL = 48
vP = 52
vH = 76
vR45 = 124
vR23 = 148
vB1 = 160
aRing = 192
aRes = 216
vLW = 19
vLY = 20
vRA = 32; vLF = 34; vLG = 35
vS = 40
vIA = 48
vFb = 52
vLS = 72
vYt = [160, 76, 208]
vGb = 124
vF = 140; vGa = 144
vX = 148
vIdx = 157; vLSw = 158; vLSr = 159
aLD = 144; aFb = 180; aGb = 200
vDW = 76; vQ = 80; vTB = 96; vU = 116

out = []
def e(s): out.append("    " + s)
def lab(s): out.append(s + ":")
def cm(s): out.append("    ; " + s)
SSETS = [["start", "issued", "diag", "conv0", "conv1", "conv2", "conv3", "step0", "loop", "epi", "drain"],
         ["start", "loop", "p24", "gam", "t0", "t1", "t2", "epi", "drain"],
         ["start", "kernarg", "issued", "setup", "dwin", "img", "bar", "diag", "x0in", "mf0", "conv0"],
         ["start", "diag", "x0in", "mf0", "x1in", "mf1", "x2in", "mf2", "red", "conv3", "step0"],
         ["start", "x0in", "mf0", "conv0", "mf1", "conv1", "mf2", "conv2", "conv3", "step0", "drain"]]
def st(name):
    names = SSETS[opt.sset]
    if opt.stamps and name in names: stamp(names.index(name))
def stamp(i):
    if opt.stamps: e("%s s[%d:%d]" % ("s_memrealtime" if opt.stamps == 1 else "s_memtime", sStamp + 2 * i, sStamp + 2 * i + 1))
def vr(b, n): return "v[%d:%d]" % (b, b + n - 1)
def ar(b, n): return "a[%d:%d]" % (b, b + n - 1)
def sr(b, n): return "s[%d:%d]" % (b, b + n - 1)
def srd(s, ptr_slot, nbytes):
    e("s_mov_b32 s%d, s%d" % (s, sPtr + 2 * ptr_slot))
    e("s_and_b32 s%d, s%d, 0xffff" % (s + 1, sPtr + 2 * ptr_slot + 1))
    e("s_mov_b32 s%d, %d" % (s + 2, nbytes))
    e("s_mov_b32 s%d, 0x20000" % (s + 3))

def capture(fn, *args):
    global out
    save = out; out = []
    fn(*args)
    got = [l.strip() for l in out if not l.strip().startswith(";")]
    out = save
    return got

class VM:
    def __init__(self): self.issued = []; self.pending = []
    def issue_now(self, tag, lines):
        for l in lines: e(l)
        self.issued.append(tag)
    def queue(self, tag, lines): self.pending.append((tag, lines))
    def pop(self, n=1):
        for _ in range(n):
            if self.pending:
                tag, lines = self.pending.pop(0); self.issue_now(tag, lines)
    def wait(self, pred):
        while any(pred(t) for t, _ in self.pending): self.pop()
        idx = [i for i, t in enumerate(self.issued) if pred(t)]
        e("s_waitcnt vmcnt(%d)" % (len(self.issued) - 1 - max(idx)))
vm = None

def wg_table():
    rows = []
    for wg in range(252):
        x, n = wg & 7, wg >> 3
        idx = 63 * (x & 3) + (32 if x >= 4 else 0) + n
        h, rem = idx // 126, idx % 126
        b, strip = rem // 7, 7 * h + rem % 7
        row0 = b * 112 // 9; nrows = (b + 1) * 112 // 9 - row0
        base = ((row0 - 1) * ROWB + strip * 6144 - 384) & 0xffffffff
        qlo = 1 if strip == 0 else 0; qn = (17 if strip == 13 else 18) - qlo
        rows.append((base, qlo | qn << 8 | nrows << 16))
    return rows

def dma_w(i, kind):
    if kind == 1:
        return (["s_add_u32 m0, s%d, %d" % (sM1, i * 1024), "s_add_u32 s%d, s%d, %d" % (sSo, sW1off, i * 12288)],
                "buffer_load_dwordx4 v%d, %s, s%d offen lds" % (vD1, sr(S_W1, 4), sSo))
    oo, t = i // 3, i % 3
    return (["s_add_u32 m0, s%d, %d" % (sM2, oo * 3080 + t * 1024), "s_add_u32 s%d, s%d, %d" % (sSo, sW2off, oo * 1536 + t * 128)],
            "buffer_load_dwordx4 v%d, %s, s%d offen lds" % (vD2, sr(S_W2, 4), sSo))

def set_dma_slot(slot_base_imm):
    e("s_mul_i32 s%d, s%d, 6144" % (sM1, sWave))
    e("s_add_u32 s%d, s%d, %d" % (sM1, sM1, slot_base_imm))
    e("s_mul_i32 s%d, s%d, %d" % (sM2, sWave, W2E))
    e("s_add_u32 s%d, s%d, %d" % (sM2, sM2, slot_base_imm + 24576))


def x_item(a, i):
    off = (" offset:%d" % (128 * a)) if a else ""
    j, sec = i // 2, i % 2
    if i < 7: m = ["s_add_u32 m0, s%d, %d" % (sXm1, a * (PL - 128) + j * 9216 + sec * 4096), "s_nop 0"]
    else:
        r = sXm7 if i == 7 else sXm8
        m = ["s_mov_b32 m0, s%d" % r, "s_add_u32 s%d, s%d, s%d" % (r, r, sXs8)]
    return (("x", a), m + ["buffer_load_dwordx4 v%d, %s, 0 offen%s%s lds" % (vX + i, sr(S_X, 4), off, XPOL)])

def x_voff_a(i):
    n, r, q, f = vU, vU + 1, vU + 2 + min(i, 2), vTB + 10
    l = []
    if i == 0: l += ["v_lshrrev_b32 v%d, 3, v0" % n, "v_and_b32 v%d, 7, v0" % (vU + 5)]
    elif i == 1: l += ["v_add_u32 v%d, 32, v%d" % (n, n)]
    else: l += ["v_bfe_u32 v%d, v0, 3, 3" % n, "v_add_u32 v%d, 64, v%d" % (n, n)]
    l += ["v_mul_u32_u24 v%d, 3641, v%d" % (r, n), "v_lshrrev_b32 v%d, 16, v%d" % (r, r),
          "v_mul_u32_u24 v%d, 18, v%d" % (q, r), "v_sub_u32 v%d, v%d, v%d" % (q, n, q),
          "v_bfe_u32 v%d, v%d, 1, 3" % (f, q), "v_xor_b32 v%d, v%d, v%d" % (f, f, vU + 5),
          "v_mul_u32_u24 v%d, %d, v%d" % (r, ROWB - 18 * 384, r),
          "v_mad_u32_u24 v%d, v%d, s%d, v%d" % (r, n, sC1, r),
          "v_lshl_add_u32 v%d, v%d, 4, v%d" % (vX + i, f, r)]
    return l
def x_voff_b(i, base):
    q = vU + 2 + min(i, 2)
    return ["v_subrev_u32 v%d, s%d, v%d" % (q, sQlo, q), "v_cmp_gt_u32 vcc, s%d, v%d" % (sQn, q),
            "v_add_u32 v%d, s%d, v%d" % (vX + i, base, vX + i), "s_nop 0",
            "v_cndmask_b32 v%d, v%d, v%d, vcc" % (vX + i, vU + 6, vX + i)]
for n in range(288): assert (n * 3641) >> 16 == n // 18

def head():
    e("s_cmp_ge_u32 s2, 252")
    e("s_cbranch_scc1 L_exit")
    st("start")
    e("s_load_dwordx2 %s, s[0:1], 0" % sr(S_X, 2))
    e("s_load_dwordx2 %s, s[0:1], 8" % sr(S_T, 2))
    e("s_getpc_b64 %s" % sr(sEx, 2))
    lab("L_pf")
    e("s_lshl_b32 s%d, s2, 3" % sT0)
    e("s_add_u32 s%d, s%d, L_wgtab-L_pf" % (sT0, sT0))
    e("s_load_dwordx2 %s, %s, s%d" % (sr(sTb, 2), sr(sEx, 2), sT0))
    e("s_load_dwordx16 %s, s[0:1], 16" % sr(sPtr + 4, 16))
    if opt.pf:
        e("s_lshr_b32 s%d, s2, 3" % sT3)
        e("s_lshl_b32 s%d, s%d, 12" % (sT3, sT3))
        e("v_lshrrev_b32 v%d, 3, v0" % (vTB + 8))
        e("v_lshl_add_u32 v%d, v%d, 7, s%d" % (vTB + 8, vTB + 8, sT3))
        e("v_min_u32 v%d, L_exit-L_pf, v%d" % (vTB + 8, vTB + 8))
        vm.issue_now("dw", ["global_load_dword v%d, v%d, %s" % (vTB + 6, vTB + 8, sr(sEx, 2))])
    e("v_lshrrev_b32 v%d, 6, v0" % vS)
    e("s_movk_i32 s%d, 384" % sC1)
    e("v_readfirstlane_b32 s%d, v%d" % (sWave, vS))
    for l in x_voff_a(0): e(l)
    e("v_bfrev_b32 v%d, 2" % (vU + 6))
    e("v_lshlrev_b32 v%d, 4, v0" % vTmp)
    e("s_mov_b32 s%d, %d" % (S_X + 2, XBYTES))
    e("s_mov_b32 s%d, 0x20000" % (S_X + 3))
    e("s_movk_i32 s%d, 3456" % (S_T + 2))
    e("s_mov_b32 s%d, s%d" % (S_T + 3, S_X + 3))
    e("s_lshl_b32 s%d, s%d, 10" % (sXm1, sWave))
    e("s_add_u32 s%d, s%d, %d" % (sXm1, sXm1, XB))
    e("s_waitcnt lgkmcnt(0)")
    st("kernarg")
    vm.issue_now("dw", ["buffer_load_dwordx4 %s, v%d, %s, 0 offen" % (vr(vDW, 4), vTmp, sr(S_T, 4))])
    e("s_and_b32 s%d, s%d, 0xff" % (sQlo, sTb + 1))
    e("s_bfe_u32 s%d, s%d, 0x80008" % (sQn, sTb + 1))
    e("s_lshr_b32 s%d, s%d, 16" % (sNrows, sTb + 1))
    e("s_cmp_eq_u32 s%d, 12" % sNrows)
    e("s_cbranch_scc1 L_body0")

def issue_plane0(L):
    for l in x_voff_b(0, sTb): e(l)
    vm.issue_now(*x_item(0, 0))
    e("s_mov_b32 s%d, %d" % (sC2, 4 * ROWB))
    for i in (2, 4, 6):
        e("v_add_u32 v%d, s%d, v%d" % (vX + i, sC2, vX + i - 2))
        vm.issue_now(*x_item(0, i))
    for l in x_voff_a(1) + x_voff_b(1, sTb): e(l)
    vm.issue_now(*x_item(0, 1))
    for i in (3, 5):
        e("v_add_u32 v%d, s%d, v%d" % (vX + i, sC2, vX + i - 2))
        vm.issue_now(*x_item(0, i))
    e("s_cmp_lt_u32 s%d, %d" % (sWave, 3 if L else 1))
    e("s_cselect_b32 s%d, s%d, 0x40000000" % (sT0, sC2))
    e("v_add_u32 v%d, s%d, v%d" % (vX + 7, sT0, vX + 5))
    e("s_add_u32 s%d, s%d, %d" % (sXm7, sXm1, 3 * 9216 + 4096))
    e("s_mul_i32 s%d, s%d, 9216" % (sXm8, sWave))
    e("s_add_u32 s%d, s%d, %d" % (sXm8, sXm8, XB + 8192))
    e("s_mul_i32 s%d, s%d, s%d" % (sT1, sWave, sC2))
    e("s_add_u32 s%d, s%d, s%d" % (sT1, sT1, sTb))
    e("s_cmp_lt_u32 s%d, 3" % sWave)
    e("s_cselect_b32 s%d, s%d, %d" % (sXm7, sXm7, DUMMY))
    e("s_cselect_b32 s%d, s%d, %d" % (sXm8, sXm8, DUMMY))
    e("s_cselect_b32 s%d, %d, 0" % (sXs8, PL - 128))
    e("s_cselect_b32 s%d, s%d, 0x40000000" % (sT1, sT1))
    vm.issue_now(*x_item(0, 7))
    for l in x_voff_a(8) + x_voff_b(8, sT1): e(l)
    vm.issue_now(*x_item(0, 8))
    for a in (1, 2):
        for i in range(9): vm.queue(*x_item(a, i))

def early(L):
    first = L or not opt.prio
    for k, (slot, nb) in enumerate(((3, 1536), (5, 384), (6, 384))):
        vm.queue("tab", (["v_lshlrev_b32 v%d, 3, v0" % (vTB + 7)] if k == 0 else []) + capture(srd, S_T, slot, nb) +
                 ["buffer_load_dwordx2 %s, v%d, %s, 0 offen" % (vr(vTB + 2 * k, 2), vTB + 7, sr(S_T, 4))])
    if first: issue_plane0(L)
    e("s_add_u32 s%d, s%d, %d" % (sBase, sTb, ROWB + 384))
    st("issued")
    build_diag(L, first)

px, g_, gl, gh = vS + 4, vS + 5, vS + 6, vS + 7
def setup_early():
    t0, t1, t2 = vS, vS + 1, vS + 2
    e("v_and_b32 v%d, 63, v0" % vLane)
    for j in range(8): e("v_mov_b32 v%d, 0" % (vQ + 2 * j + 1 - j // 4))
    cm("image write address: tap = tid/24 -> (pair, half)")
    code = [0, 1, 4, 2, 3, 5, 8, 9, 7, 6, 15]
    lut = sum(c << (4 * i) for i, c in enumerate(code))
    e("s_mov_b32 s%d, 0x%08x" % (sLut, lut & 0xffffffff))
    e("s_mov_b32 s%d, 0x%08x" % (sLut + 1, lut >> 32))
    e("v_mul_u32_u24 v%d, 2731, v0" % t0)
    e("v_lshrrev_b32 v%d, 16, v%d" % (t0, t0))
    e("v_mul_u32_u24 v%d, 24, v%d" % (t1, t0))
    e("v_sub_u32 v%d, v0, v%d" % (t1, t1))
    e("v_lshlrev_b32 v%d, 2, v%d" % (t0, t0))
    e("v_lshrrev_b64 %s, v%d, %s" % (vr(t2, 2), t0, sr(sLut, 2)))
    e("v_and_b32 v%d, 1, v%d" % (t0, t2))
    e("v_lshlrev_b32 v%d, 3, v%d" % (t0, t0))
    e("v_lshl_add_u32 v%d, v%d, 4, v%d" % (t0, t1, t0))
    e("v_bfe_u32 v%d, v%d, 1, 3" % (t2, t2))
    e("v_mul_u32_u24 v%d, 384, v%d" % (t1, t2))
    e("v_cmp_gt_u32 vcc, 5, v%d" % t2)
    e("v_add_u32 v%d, v%d, v%d" % (t0, t0, t1))
    e("v_mov_b32 v%d, %d" % (t1, OOB))
    e("v_cndmask_b32 v%d, v%d, v%d, vcc" % (vU + 7, t1, t0))
    e("v_and_b32 v%d, 15, v%d" % (px, vLane))
    e("v_lshrrev_b32 v%d, 4, v%d" % (g_, vLane))
    e("v_and_b32 v%d, 1, v%d" % (gl, g_))
    e("v_lshrrev_b32 v%d, 1, v%d" % (gh, g_))
    cm("image read addresses (invalid lanes out of range -> read 0)")
    e("v_lshrrev_b32 v%d, 3, v%d" % (t0, px))
    e("v_xor_b32 v%d, v%d, v%d" % (t0, t0, gl))
    e("v_mul_u32_u24 v%d, %d, v%d" % (t0, OOB, t0))
    e("v_lshl_add_u32 v%d, v%d, 4, v%d" % (t0, gl, t0))
    e("v_and_b32 v%d, 7, v%d" % (t1, px))
    e("v_mul_u32_u24 v%d, %d, v%d" % (t1, JS, t1))
    e("v_add_u32 v%d, v%d, v%d" % (t0, t0, t1))
    e("v_mul_u32_u24 v%d, 384, v%d" % (t1, gh))
    e("v_add_u32 v%d, v%d, v%d" % (vIA, t0, t1))
    e("v_xor_b32 v%d, 1, v%d" % (t1, gh))
    e("v_mul_u32_u24 v%d, %d, v%d" % (t1, OOB, t1))
    e("v_add_u32 v%d, v%d, v%d" % (vIA + 1, t0, t1))
    e("s_lshl_b32 s%d, s%d, 5" % (sT0, sWave))
    e("v_add_u32 v%d, s%d, v%d" % (vIA + 2, sT0, vIA))
    e("v_add_u32 v%d, s%d, v%d" % (vIA + 3, sT0, vIA + 1))

def setup_late():
    t0, t1, t2, t3 = vS, vS + 1, vS + 2, vS + 3
    cm("W1 dma voffset")
    e("v_lshrrev_b32 v%d, 3, v%d" % (t0, vLane))
    e("v_and_b32 v%d, 7, v%d" % (t1, vLane))
    e("v_and_b32 v%d, 6, v%d" % (t2, t0))
    e("v_xor_b32 v%d, v%d, v%d" % (t1, t1, t2))
    e("v_mul_u32_u24 v%d, 1536, v%d" % (t0, t0))
    e("v_lshl_add_u32 v%d, v%d, 4, v%d" % (vD1, t1, t0))
    e("s_mul_i32 s%d, s%d, %d" % (sT0, sWave, 48 * 1536))
    e("v_add_u32 v%d, s%d, v%d" % (vD1, sT0, vD1))
    cm("W2 dma voffset")
    e("v_bfe_u32 v%d, v%d, 2, 3" % (t0, vLane))
    e("v_and_b32 v%d, 4, v%d" % (t1, t0))
    e("v_add_u32 v%d, v%d, v%d" % (t0, t0, t1))
    e("v_mul_u32_u24 v%d, 384, v%d" % (t0, t0))
    e("v_lshl_add_u32 v%d, v%d, 6, v%d" % (t0, gh, t0))
    e("v_and_b32 v%d, 3, v%d" % (t1, vLane))
    e("v_lshl_add_u32 v%d, v%d, 4, v%d" % (vD2, t1, t0))
    e("s_mul_i32 s%d, s%d, %d" % (sT0, sWave, 16 * 384))
    e("v_add_u32 v%d, s%d, v%d" % (vD2, sT0, vD2))
    srd(S_W1, 2, 192 * 768 * 2)
    srd(S_W2, 4, 192 * 768 * 2)
    srd(S_O, 7, XBYTES)
    set_dma_slot(0)
    e("s_mov_b32 s%d, 0" % sW1off)
    cm("sparse index: every group selects (row%4, (row+1)%4)")
    e("v_add_u32 v%d, 1, v%d" % (t0, t1))
    e("v_and_b32 v%d, 3, v%d" % (t0, t0))
    e("v_lshl_add_u32 v%d, v%d, 2, v%d" % (t0, t0, t1))
    e("v_mul_u32_u24 v%d, 0x1111, v%d" % (vIdx, t0))
    cm("conv B-frag addresses")
    e("s_mul_i32 s%d, s%d, %d" % (sT0, sWave, 3 * PR))
    e("s_add_u32 s%d, s%d, %d" % (sT0, sT0, XB))
    e("s_lshl_b32 s%d, s%d, 5" % (sT1, sWave))
    for kind, dst, ldst in ((0, vF, vLF), (1, vGa, vLG), (2, vRA, None)):
        if kind == 0: e("v_add_u32 v%d, v%d, v%d" % (t0, gl, px))
        else: e("v_add_u32 v%d, %d, v%d" % (t0, 2 if kind == 1 else 1, px))
        e("v_bfe_u32 v%d, v%d, 1, 3" % (t1, t0))
        e("v_xor_b32 v%d, v%d, v%d" % (t1, t1, gh if kind < 2 else g_))
        e("v_lshlrev_b32 v%d, 7, v%d" % (t0, t0))
        e("v_lshl_add_u32 v%d, v%d, 4, v%d" % (t0, t1, t0))
        if kind == 1:
            e("v_mul_u32_u24 v%d, %d, v%d" % (t1, PR, gl))
            e("v_add_u32 v%d, v%d, v%d" % (t0, t0, t1))
        if kind == 2: e("v_add_u32 v%d, %d, v%d" % (t0, PR, t0))
        e("v_add_u32 v%d, s%d, v%d" % (dst, sT0, t0))
        if kind < 2:
            for k in range(1, 4): e("v_xor_b32 v%d, %d, v%d" % (dst + k, 32 * k, dst))
            e("v_xor_b32 v%d, s%d, v%d" % (t0, sT1, t0))
            e("v_add_u32 v%d, %d, v%d" % (ldst, XB + 12 * PR, t0))
        else:
            e("v_xor_b32 v%d, 64, v%d" % (dst + 1, dst))
    cm("L exchange addresses")
    e("s_lshr_b32 s%d, s%d, 1" % (sT0, sWave))
    e("s_lshl_b32 s%d, s%d, 10" % (sT0, sT0))
    e("s_and_b32 s%d, s%d, 1" % (sT1, sWave))
    e("s_lshl_b32 s%d, s%d, 3" % (sT1, sT1))
    e("s_add_u32 s%d, s%d, s%d" % (sT0, sT0, sT1))
    e("v_lshl_add_u32 v%d, v%d, 4, s%d" % (vLW, vLane, sT0))
    e("v_lshlrev_b32 v%d, 5, v%d" % (vLSr, px))
    e("s_lshl_b32 s%d, s%d, 2" % (sT0, sWave))
    e("v_lshl_add_u32 v%d, v%d, 4, v%d" % (vLSw, gh, vLSr))
    e("v_add_u32 v%d, s%d, v%d" % (vLSw, sT0, vLSw))
    cm("main-loop LDS addresses")
    e("v_bfe_u32 v%d, v%d, 2, 3" % (t0, vLane))
    e("v_and_b32 v%d, 3, v%d" % (t2, vLane))
    e("v_lshlrev_b32 v%d, 7, v%d" % (t3, t0))
    e("v_lshl_add_u32 v%d, v%d, 10, v%d" % (t3, gh, t3))
    e("v_lshl_add_u32 v%d, v%d, 3, v%d" % (t3, t2, t3))
    e("v_lshrrev_b32 v%d, 1, v%d" % (vA1, t0))
    e("v_xor_b32 v%d, s%d, v%d" % (vA1, sWave, vA1))
    e("v_lshl_add_u32 v%d, v%d, 5, v%d" % (vA1, vA1, t3))
    for p in range(1, 4): e("v_xor_b32 v%d, %d, v%d" % (vA1 + p, 32 * p, vA1))
    e("v_mul_u32_u24 v%d, 3080, v%d" % (t3, gl))
    e("v_lshl_add_u32 v%d, v%d, 8, v%d" % (t3, gh, t3))
    e("v_lshl_add_u32 v%d, v%d, 4, v%d" % (t3, px, t3))
    e("v_lshlrev_b32 v%d, 4, v%d" % (t2, g_))
    for p in range(4):
        e("s_xor_b32 s%d, s%d, %d" % (sT0, sWave, p))
        e("s_mul_i32 s%d, s%d, %d" % (sT1, sT0, W2E))
        e("s_add_u32 s%d, s%d, %d" % (sT1, sT1, SLOT + 24576))
        e("v_add_u32 v%d, s%d, v%d" % (vA2 + p, sT1, t3))
        e("s_lshl_b32 s%d, s%d, 6" % (sT0, sT0))
        e("s_add_u32 s%d, s%d, %d" % (sT0, sT0, TAB_B1))
        e("v_add_u32 v%d, s%d, v%d" % (vAb + p, sT0, t2))
    e("v_lshlrev_b32 v%d, 5, v%d" % (vTab, g_))
    e("v_add_u32 v%d, %d, v%d" % (vTab, TAB_B2, vTab))
    e("v_mul_u32_u24 v%d, 384, v%d" % (vOut, px))
    e("v_add3_u32 v%d, v%d, v%d, s%d" % (vOut, vOut, t2, sBase))

def build_diag(L, first):
    early = capture(setup_early) + ["v_mov_b32 v%d, 0" % (vFb + k) for k in range(4)]
    late0 = capture(setup_late)
    zs = ["v_mfma_f32_32x32x16_bf16 %s, %s, %s, 0" % (vr(b, 16), vr(vFb, 4), vr(vFb, 4)) for b in range(160, 256, 16)]
    zs += ["v_mfma_f32_16x16x32_bf16 %s, %s, %s, 0" % (vr(b, 4), vr(vFb, 4), vr(vFb, 4)) for b in range(vLY, vLY + 12, 4)]
    late = []
    for k, l in enumerate(late0):
        late.append(l)
        if k % 10 == 9 and zs: late.append(zs.pop(0))
    assert not zs
    for k, l in enumerate(early):
        e(l)
        if k % 14 == 13: vm.pop()
    cm("sparse-diagonal image")
    vm.wait(lambda t: t == "dw")
    st("dwin")
    for j in range(8):
        d = vQ + 2 * j + j // 4
        if j % 2: e("v_lshrrev_b32 v%d, 16, v%d" % (d, vDW + j // 2))
        else: e("v_and_b32 v%d, 0xffff, v%d" % (d, vDW + j // 2))
    for j in range(8):
        e("ds_write_b64 v%d, %s offset:%d" % (vU + 7, vr(vQ + 2 * j, 2), IMG + j * JS))
    for l in late[:16]: e(l)
    late = late[16:]
    vm.pop()
    st("img")
    e("s_waitcnt lgkmcnt(0)")
    e("s_barrier")
    st("bar")
    rds = []
    for cg in range(12):
        for s_, (a, off) in enumerate(((vIA, 0), (vIA, 768), (vIA + 1, 1536))):
            rds.append("ds_read_b128 %s, v%d offset:%d" % (ar(12 * cg + 4 * s_, 4), a, IMG + off + cg * 32))
    for a_ in range(3 if L else 0):
        for s_, (a, off) in enumerate(((vIA + 2, 0), (vIA + 2, 768), (vIA + 3, 1536))):
            rds.append("ds_read_b128 %s, v%d offset:%d" % (ar(aLD + 12 * a_ + 4 * s_, 4), a, IMG + off + a_ * 128))
    per = (len(late) + 8) // 9
    if not first and opt.prio == 2: issue_plane0(L)
    for f, r in enumerate(rds):
        e(r)
        if f % (len(rds) // 9) == len(rds) // 9 - 1:
            vm.pop()
            for l in late[:per]: e(l)
            late = late[per:]
    assert not late
    if not first and opt.prio == 1: issue_plane0(L)
    for i in range(6):
        sc, ins = dma_w(i, 1); vm.queue("w0", sc + [ins])
    vm.wait(lambda t: t == "tab")
    e("v_mfma_f32_32x32x16_bf16 %s, %s, %s, 0" % (vr(76, 16), vr(vFb, 4), vr(vFb, 4)))
    tables()
    while any(tg == ("x", 1) for tg, _ in vm.pending): vm.pop()
    e("s_waitcnt lgkmcnt(0)")
    for b in (92, 108): e("v_mfma_f32_32x32x16_bf16 %s, %s, %s, 0" % (vr(b, 16), vr(vFb, 4), vr(vFb, 4)))
    st("diag")

def tables():
    def unpack_scale(src, dst, scale):
        e("s_mov_b32 s%d, 0x%08x" % (sT0, f2u(scale)))
        for h in range(2):
            e("v_lshlrev_b32 v%d, 16, v%d" % (dst + 2 * h, src + h))
            e("v_and_b32 v%d, 0xffff0000, v%d" % (dst + 2 * h + 1, src + h))
        for k in range(4): e("v_mul_f32 v%d, s%d, v%d" % (dst + k, sT0, dst + k))
    unpack_scale(vTB, vTB + 8, SA)
    unpack_scale(vTB + 2, vTB + 12, SA)
    unpack_scale(vTB + 4, vTB + 16, 1.0 / SA)
    e("v_add_u32 v%d, %d, v%d" % (vTB + 7, TAB_B1, vTmp))
    e("v_cmp_gt_u32 vcc, 192, v0")
    e("s_and_saveexec_b64 %s, vcc" % sr(sEx, 2))
    e("ds_write_b128 v%d, %s" % (vTB + 7, vr(vTB + 8, 4)))
    e("v_cmp_gt_u32 vcc, 48, v0")
    e("s_and_b64 exec, exec, vcc")
    e("ds_write_b128 v%d, %s offset:%d" % (vTB + 7, vr(vTB + 12, 4), TAB_B2 - TAB_B1))
    e("ds_write_b128 v%d, %s offset:%d" % (vTB + 7, vr(vTB + 16, 4), TAB_G - TAB_B1))
    e("s_mov_b64 exec, -1")

def res_dst(t, m):
    if m >= 4: return vr(vR45 + 8 * t + 4 * (m - 4), 4)
    if t == 0 and m >= 2: return vr(vR23 + 4 * (m - 2), 4)
    idx = m if t == 0 else 4 * t + m - 2
    return ar(aRes + 4 * idx, 4)
def poff(a): return (a % 2) * PL
def res_rd(t, m):
    return "ds_read_b128 %s, v%d offset:%d" % (res_dst(t, m), vRA + m % 2, poff(m // 2) + t * PR)

def conv_all(L):
    reads = []; mf = []
    lastuse = {}
    nitem = 0
    for a in range(3):
        items = [("m", k) for k in range(4)]
        if L: items.insert(0 if a == 2 else 2, ("l", 0))
        for kind, k in items:
            b = nitem % 2; nitem += 1
            F = (lambda h, c=1: vr(vFb + 4 * h, 4 * c)) if b else (lambda h, c=1: ar(aFb + 4 * h, 4 * c))
            G = (lambda h, c=1: vr(vGb + 4 * h, 4 * c)) if b else (lambda h, c=1: ar(aGb + 4 * h, 4 * c))
            nrow = 3 if kind == "m" else 1
            r0 = len(reads)
            for h in range(nrow + 2):
                reads.append(("ds_read_b128 %s, v%d offset:%d" % (F(h), vF + k if kind == "m" else vLF, poff(a) + h * PR), lastuse.get((b, "F", h), -1), a))
            g0 = len(reads)
            for h in range(nrow + 1):
                reads.append(("ds_read_b128 %s, v%d offset:%d" % (G(h), vGa + k if kind == "m" else vLG, poff(a) + h * PR), lastuse.get((b, "G", h), -1), a))
            A = (lambda s_: ar(12 * (4 * a + k) + 4 * s_, 4)) if kind == "m" else (lambda s_: ar(aLD + 12 * a + 4 * s_, 4))
            Dr = (lambda t: vr(vYt[t] + 4 * (4 * a + k), 4)) if kind == "m" else (lambda t: vr(vLY + 4 * a, 4))
            def sm(t, s_, B, need, uses):
                for u in uses: lastuse[u] = len(mf)
                mf.append(("v_smfmac_f32_16x16x64_bf16 %s, %s, %s, v%d" % (Dr(t), A(s_), B, vIdx), need, a))
            for t in range(nrow):
                sm(t, 0, F(t, 2), r0 + t + 1, [(b, "F", t), (b, "F", t + 1)])
                sm(t, 2, F(t + 1, 2), r0 + t + 2, [(b, "F", t + 1), (b, "F", t + 2)])
            for t in range(nrow):
                sm(t, 1, G(t, 2), g0 + t + 1, [(b, "G", t), (b, "G", t + 1)])
    return reads, mf

def stats_ops(a, L):
    ops = []
    for k in range(4):
        for i in (0, 2):
            for t in range(3):
                y = vr(vYt[t] + 16 * a + 4 * k + i, 2)
                a1, a2 = vr(vS + 4 * t, 2), vr(vS + 4 * t + 2, 2)
                if a == 0 and k == 0 and i == 0:
                    ops += ["v_pk_add_f32 %s, %s, 0 op_sel_hi:[1,0]" % (a1, y), "v_pk_mul_f32 %s, %s, %s" % (a2, y, y)]
                else:
                    ops += ["v_pk_add_f32 %s, %s, %s" % (a1, a1, y), "v_pk_fma_f32 %s, %s, %s, %s" % (a2, y, y, a2)]
        if L and k < 2 and a < 2:
            y = vr(vLY + 4 * a + 2 * k, 2); a1, a2 = vr(vLS, 2), vr(vLS + 2, 2)
            if a == 0 and k == 0: ops += ["v_pk_add_f32 %s, %s, 0 op_sel_hi:[1,0]" % (a1, y), "v_pk_mul_f32 %s, %s, %s" % (a2, y, y)]
            else: ops += ["v_pk_add_f32 %s, %s, %s" % (a1, a1, y), "v_pk_fma_f32 %s, %s, %s, %s" % (a2, y, y, a2)]
    return ops

def finish_ops(a, b, sc, sh):
    return ["v_fma_f32 v%d, -v%d, v%d, v%d" % (b, a, a, b), "v_max_f32 v%d, 0, v%d" % (b, b),
            "v_add_f32 v%d, 0x%08x, v%d" % (b, f2u(1e-5), b), "v_rsq_f32 v%d, v%d" % (b, b),
            "v_mul_f32 v%d, 0x%08x, v%d" % (sc, f2u(SA), b), "v_mul_f32 v%d, v%d, v%d" % (sh, a, sc)]

def reduce_chain(t):
    s1, s2 = vS + 4 * t, vS + 4 * t + 2
    a, b = s1 + 1, s2 + 1
    return ["v_add_f32 v%d, v%d, v%d" % (a, s1, s1 + 1), "v_add_f32 v%d, v%d, v%d" % (b, s2, s2 + 1),
            "v_permlane32_swap_b32 v%d, v%d" % (a, b), "v_add_f32 v%d, v%d, v%d" % (a, a, b), "v_mov_b32 v%d, v%d" % (b, a),
            "v_permlane16_swap_b32 v%d, v%d" % (a, b), "v_add_f32 v%d, v%d, v%d" % (a, a, b),
            "v_mul_f32 v%d, 0x%08x, v%d" % (a, f2u(1.0 / 192.0), a), "v_mov_b32 v%d, v%d" % (b, a),
            "v_permlane32_swap_b32 v%d, v%d" % (a, b)] + finish_ops(a, b, s1, s2)

def ln_norm(y0, n, dst, sc, sh):
    LAG = min(6, n)
    for k in range(n + LAG):
        if k < n:
            y = y0 + 2 * k
            e("v_pk_fma_f32 %s, %s, %s, %s op_sel_hi:[1,0,0] neg_lo:[0,0,1] neg_hi:[0,0,1]" % (vr(y, 2), vr(y, 2), vr(sc, 2), vr(sh, 2)))
        if k >= LAG:
            j = k - LAG
            e("v_cvt_pk_bf16_f32 v%d, v%d, v%d" % (dst + j, y0 + 2 * j, y0 + 2 * j + 1))

def prologue(L):
    vm.wait(lambda t: t == ("x", 0))
    e("s_barrier")
    st("x0in")
    reads, mf = conv_all(L)
    seq = [0]; rseq = {}
    def lds(txt): e(txt); seq[0] += 1
    plane = [0]
    nis = [0]
    def issue_read():
        r = reads[nis[0]]
        if r[2] > plane[0]:
            a = plane[0]
            if a == 1:
                for r_ in [vF + k for k in range(8)] + ([vLF, vLG] if L else []):
                    e("v_add_u32 v%d, %d, v%d" % (r_, 2 * PL, r_))
            vm.wait(lambda t: t == ("x", a + 1))
            e("s_barrier")
            st("x%din" % (a + 1))
            plane[0] += 1
        lds(r[0]); rseq[nis[0]] = seq[0]; nis[0] += 1
    for _ in range(opt.dist): issue_read()
    n0 = nis[0]
    e("s_waitcnt lgkmcnt(%d)" % (seq[0] - rseq[mf[0][1]]))
    pend = []
    la, lb = vLS + 1, vLS + 3
    for i, (txt, need, a) in enumerate(mf):
        e(txt)
        last_of_plane = i + 1 == len(mf) or mf[i + 1][2] != a
        if i + 1 < len(mf):
            nxt = mf[i + 1][1]
            while nis[0] <= nxt:
                assert reads[nis[0]][1] <= i
                issue_read()
            if not last_of_plane and (nxt > need or i == 0): e("s_waitcnt lgkmcnt(%d)" % min(14, seq[0] - rseq[nxt]))
            target = min(len(reads), n0 + -(-(i + 1) * len(reads) // len(mf)))
            while nis[0] < target and nis[0] - nxt <= 13 and reads[nis[0]][1] <= i: issue_read()
        first = min(k for k in range(len(mf)) if mf[k][2] == a)
        if (i - first) % [3, 5, 3][a] == 1: vm.pop()
        if a == 1 and i == first and L:
            assert not any(tg[0] == "x" for tg, _ in vm.pending)
            e("s_mul_i32 s%d, s%d, %d" % (sT0, sWave, -3 * PR))
            e("s_add_u32 s%d, s%d, %d" % (sT0, sT0, 12 * PR))
            e("s_lshr_b32 s%d, s%d, 1" % (sT1, sWave))
            e("s_mul_i32 s%d, s%d, %d" % (sT1, sT1, PL))
            e("s_add_u32 s%d, s%d, s%d" % (sT0, sT0, sT1))
            e("s_and_b32 s%d, s%d, 1" % (sT1, sWave))
            e("s_lshl_b32 s%d, s%d, 6" % (sT1, sT1))
            e("v_xor_b32 v%d, s%d, v%d" % (vX + 8, sT1, vRA))
            e("v_add_u32 v%d, s%d, v%d" % (vX + 8, sT0, vX + 8))
        if a == 2 and L and i == first + 8:
            for k in range(4):
                y = vLY + 8 + k
                pend += ["v_add_f32 v%d, v%d, v%d" % (vLS + k % 2, vLS + k % 2, y), "v_fmac_f32 v%d, v%d, v%d" % (vLS + 2 + k % 2, y, y)]
            pend += ["v_add_f32 v%d, v%d, v%d" % (la, vLS, vLS + 1), "v_add_f32 v%d, v%d, v%d" % (lb, vLS + 2, vLS + 3), None,
                     "v_permlane32_swap_b32 v%d, v%d" % (la, lb), "v_add_f32 v%d, v%d, v%d" % (la, la, lb), "v_mov_b32 v%d, v%d" % (lb, la), None,
                     "v_permlane16_swap_b32 v%d, v%d" % (la, lb), "v_add_f32 v%d, v%d, v%d" % (la, la, lb), "W"]
        if pend:
            o = pend.pop(0)
            if o == "W": lds("ds_write_b32 v%d, v%d offset:%d" % (vLSw, la, XST))
            elif o: e(o)
        if last_of_plane:
            st("mf%d" % a)
            assert not pend
            if a == 1: assert not any(tg[0] == "x" for tg, _ in vm.pending)
            for t in range(3):
                for m in (2 * a, 2 * a + 1): lds(res_rd(t, m))
            if a == 1:
                if L: lds("ds_read_b128 %s, v%d" % (vr(vRL, 4), vX + 8))
                for r_ in [vRA, vRA + 1] + ([vX + 8] if L else []): e("v_add_u32 v%d, %d, v%d" % (r_, 2 * PL, r_))
            ops = stats_ops(a, L)
            if a == 1:
                while vm.pending: vm.pop()
                for o in ops[:40]: e(o)
                ops = ops[40:]
                e("s_waitcnt lgkmcnt(0)")
                e("s_barrier")
                set_dma_slot(SLOT)
                e("s_mov_b32 s%d, 128" % sW1off)
                e("s_mov_b32 s%d, 0" % sW2off)
                for kind in (1, 2):
                    for k in range(6):
                        sc, ins = dma_w(k, kind); vm.queue("w1", sc + [ins])
            if a == 2 and L:
                for o in ops[:36]: e(o)
                ops = ops[36:]
                e("s_waitcnt lgkmcnt(0)")
                e("s_barrier")
                e("ds_read_b128 %s, v%d offset:%d" % (vr(vFb, 4), vLSr, XST))
                e("ds_read_b128 %s, v%d offset:%d" % (vr(vFb + 4, 4), vLSr, XST + 16))
            for o in ops: e(o)
            if a < 2: e("s_waitcnt lgkmcnt(%d)" % min(14, seq[0] - rseq[mf[i + 1][1]]))
            st("conv%d" % a)
    assert nis[0] == len(reads)
    while vm.pending: vm.pop()
    p = vFb
    ch = [reduce_chain(t) for t in range(3)]
    if L:
        ch.append([None, None, "s_waitcnt lgkmcnt(0)", "v_pk_add_f32 %s, %s, %s" % (vr(p, 2), vr(p, 2), vr(p + 2, 2)),
                   "v_pk_add_f32 %s, %s, %s" % (vr(p + 4, 2), vr(p + 4, 2), vr(p + 6, 2)),
                   "v_add_f32 v%d, v%d, v%d" % (p, p, p + 1), "v_add_f32 v%d, v%d, v%d" % (p + 1, p + 4, p + 5),
                   "v_mul_f32 v%d, 0x%08x, v%d" % (p, f2u(1.0 / 192.0), p), "v_mul_f32 v%d, 0x%08x, v%d" % (p + 1, f2u(1.0 / 192.0), p + 1),
                   "v_lshlrev_b32 v%d, 4, v%d" % (vTmp, vLane)] + finish_ops(p, p + 1, p + 2, p + 4))
    for k in range(len(ch[0])):
        for c in ch:
            if c[k]: e(c[k])
    st("red")
    if L:
        ln_norm(vLY, 6, vLY, p + 2, p + 4)
        for a in range(3): e("ds_write_b64 v%d, %s offset:%d" % (vLW, vr(vLY + 2 * a, 2), XCH + a * 2048))
    for t in range(3):
        ln_norm(vYt[t], 24, vB1 + 24 * t, vS + 4 * t, vS + 4 * t + 2)
        if t == 0 and L: e("ds_read_b128 %s, v%d" % (vr(vRL + 4, 4), vX + 8))
    if L:
        e("v_mov_b32 v%d, 0" % (vPL + 2))
        e("v_mov_b32 v%d, 0" % (vPL + 3))
    vm.wait(lambda t: t == "w0")
    e("s_waitcnt lgkmcnt(0)")
    e("s_barrier")
    if L:
        for kb in range(6): e("ds_read_b128 %s, v%d offset:%d" % (vr(vB1 + 72 + 4 * kb, 4), vTmp, XCH + kb * 1024))
        e("s_cmp_eq_u32 s%d, 0" % sWave)
        e("s_cselect_b32 s%d, 0, %d" % (sT0, OOB))
        e("v_add_u32 v%d, s%d, v%d" % (vTmp + 1, sT0, vTab))
    st("conv3")

def acc_init(L):
    r = []
    for ct in range(12):
        for t in range(1):
            r.append("ds_read_b128 %s, v%d offset:%d" % (ar(48 * t + 4 * ct, 4), vTab, (ct // 2) * 128 + (ct % 2) * 16))
        if L:
            r.append("ds_read_b128 %s, v%d offset:%d" % (ar(144 + 4 * ct, 4), vTmp + 1, (ct // 2) * 128 + (ct % 2) * 16))
    return r

def gelu_pair(x0, x1, dst, tmp):
    a, b = tmp, tmp + 1
    if opt.gelu == 1:
        return [("v_fma_f32 v%d, -v%d, v%d, -s%d" % (a, x0, x0, sK), 4), ("v_fma_f32 v%d, -v%d, v%d, -s%d" % (b, x1, x1, sK), 4),
                ("v_mul_f32 v%d, v%d, v%d" % (a, x0, a), 4), ("v_mul_f32 v%d, v%d, v%d" % (b, x1, b), 4),
                ("v_exp_f32 v%d, v%d" % (a, a), 8), ("v_exp_f32 v%d, v%d" % (b, b), 8),
                ("v_add_f32 v%d, 1.0, v%d" % (a, a), 4), ("v_add_f32 v%d, 1.0, v%d" % (b, b), 4),
                ("v_rcp_f32 v%d, v%d" % (a, a), 8), ("v_rcp_f32 v%d, v%d" % (b, b), 8),
                ("v_mul_f32 v%d, v%d, v%d" % (a, x0, a), 4), ("v_mul_f32 v%d, v%d, v%d" % (b, x1, b), 4),
                ("v_cvt_pk_bf16_f32 v%d, v%d, v%d" % (dst, a, b), 4)]
    sd = "dst_sel:WORD_1 dst_unused:UNUSED_PRESERVE src0_sel:WORD_1"
    return [("v_cvt_pk_f16_f32 v%d, v%d, v%d" % (a, x0, x1), 4),
            ("v_pk_fma_f16 v%d, v%d, v%d, s%d" % (b, a, a, sK), 4),
            ("v_pk_mul_f16 v%d, v%d, v%d neg_lo:[1,0] neg_hi:[1,0]" % (a, a, b), 4),
            ("v_exp_f16%s v%d, v%d" % ("_e64" if opt.e64 else "", b, a), 8),
            ("v_exp_f16_sdwa v%d, v%d %s" % (b, a, sd), 8),
            ("v_pk_add_f16 v%d, v%d, 1.0 op_sel_hi:[1,0]" % (a, b), 4),
            ("v_rcp_f16%s v%d, v%d" % ("_e64" if opt.e64 else "", b, a), 8),
            ("v_rcp_f16_sdwa v%d, v%d %s" % (b, a, sd), 8),
            ("v_fma_mix_f32 v%d, v%d, v%d, 0 op_sel_hi:[0,1,0]" % (a, x0, b), 4),
            ("v_fma_mix_f32 v%d, v%d, v%d, 0 op_sel:[0,1,0] op_sel_hi:[0,1,0]" % (b, x1, b), 4),
            ("v_cvt_pk_bf16_f32 v%d, v%d, v%d" % (dst, a, b), 4)]

def gelu_ops(c, L):
    hb = vH + 24 * (c % 2); pb = vP + 12 * (c % 2)
    quads = []
    for t in range(3):
        for ep in range(2):
            quads.append((hb + 8 * t + 4 * ep, pb + 4 * t + 2 * ep))
    if L and c % 2 == 0: quads.append((vHL, vPL))
    ops = []
    for n, (x, d) in enumerate(quads):
        tmp = vT + 4 * (n % 2)
        A = gelu_pair(x, x + 1, d, tmp); B = gelu_pair(x + 2, x + 3, d + 1, tmp + 2)
        if opt.gelu == 1:
            for k in range(0, 12, 2): ops += [A[k], A[k + 1], B[k], B[k + 1]]
            ops += [A[12], B[12]]
        else:
            for k in range(len(A)): ops += [A[k], B[k]]
    return ops

class Frag: pass

def step_scalars():
    return ["s_add_u32 s%d, s%d, s%d" % (sM1, sM1, sDel2),
            "s_add_u32 s%d, s%d, s%d" % (sM2, sM2, sDel2),
            "s_add_u32 s%d, s%d, 128" % (sW1off, sW1off),
            "s_add_u32 s%d, s%d, 24576" % (sW2off, sW2off),
            "s_cmp_ge_u32 s%d, 1536" % sW1off,
            "s_cselect_b32 s%d, 0, s%d" % (S_W1 + 2, S_W1 + 2),
            "s_mov_b32 s%d, s%d" % (sT0, sDel1),
            "s_mov_b32 s%d, s%d" % (sDel1, sDel2),
            "s_mov_b32 s%d, s%d" % (sDel2, sDelta),
            "s_sub_u32 s%d, s%d, 1" % (sCnt, sCnt),
            "s_cmp_lg_u32 s%d, 0" % sCnt]

def build_main(L, c_lo, c_hi, virt, xds={}, xval={}, xwr={}):
    groups = []
    for c in range(c_lo, c_hi + 1 + (1 if virt else 0)):
        step = (c + 1) // 2
        if c + 1 <= 23 or virt:
            c1 = c + 1
            for ep in range(2):
                pos = 2 * (c1 % 2) + ep
                for kb in range(6):
                    g = Frag(); g.kind = 1; g.period = c; g.step = step; g.pos = pos; g.kb = kb; g.chunk = c1; g.ep = ep
                    groups.append(g)
        if c - 1 >= 0:
            c2 = c - 1
            for ct in range(12):
                g = Frag(); g.kind = 2; g.period = c; g.step = step; g.ct = ct; g.chunk = c2
                groups.append(g)
    N = len(groups)
    D, R = opt.D, opt.R
    assert 24 % R == 0 and D < R and D <= 5
    nbias = 0
    for n, g in enumerate(groups):
        g.slot = aRing + 4 * (n % R)
        g.reads = []
        if g.kind == 1:
            if g.kb == 0:
                g.bias = vBias + 4 * (nbias % 2); nbias += 1
                g.reads.append("ds_read_b128 %s, v%d" % (vr(g.bias, 4), vAb + g.pos))
            for h in range(2):
                g.reads.append("ds_read_b64_tr_b16 %s, v%d offset:%d" % (ar(g.slot + 2 * h, 2), vA1 + g.pos, (g.kb * 4 + h * 2) * 1024))
            hb = vH + 24 * (g.chunk % 2)
            g.mf = []
            tiles = [0, 1, 2] + ([3] if (L and g.pos == 0) else [])
            for t in tiles:
                d = (hb + 8 * t + 4 * g.ep) if t < 3 else vHL
                cc = vr(g.bias, 4) if g.kb == 0 else vr(d, 4)
                g.mf.append("v_mfma_f32_16x16x32_bf16 %s, %s, %s, %s" % (vr(d, 4), ar(g.slot, 4), vr(vB1 + 24 * t + 4 * g.kb, 4), cc))
            g.upd = []
            if g.kb == 5: g.upd = ["v_add_u32 v%d, s%d, v%d" % (vA1 + g.pos, sDelta, vA1 + g.pos)]
            if g.kb == 0: g.upd = ["v_add_u32 v%d, 0x100, v%d" % (vAb + g.pos, vAb + g.pos)]
        else:
            m, o = g.ct // 2, g.ct % 2
            for h in range(2):
                pos = 2 * (g.chunk % 2) + h
                g.reads.append("ds_read_b64_tr_b16 %s, v%d offset:%d" % (ar(g.slot + 2 * h, 2), vA2 + pos, m * 512 + o * 8))
            pb = vP + 12 * (g.chunk % 2)
            g.mf = []
            tiles = [0, 1, 2] + ([3] if (L and g.chunk % 2 == 0) else [])
            if g.chunk == 0: tiles = tiles[1:] + [0]
            for t in tiles:
                acc = ar(48 * t + 4 * g.ct, 4)
                cin = ar(4 * g.ct, 4) if (g.chunk == 0 and t < 3) else acc
                g.mf.append("v_mfma_f32_16x16x32_bf16 %s, %s, %s, %s" % (acc, ar(g.slot, 4), vr(pb + 4 * t, 4) if t < 3 else vr(vPL, 4), cin))
            g.upd = []
            if g.ct == 11 and virt:
                g.upd = ["v_add_u32 v%d, s%d, v%d" % (vA2 + 2 * (g.chunk % 2) + h, sDelta, vA2 + 2 * (g.chunk % 2) + h) for h in range(2)]
    steps = [[] for _ in range(13)]
    issued = [0]; lastseq = {}
    pre = []
    def issue(n, dst):
        for r in groups[n].reads:
            dst.append(r); issued[0] += 1
        lastseq[n] = issued[0]
    for n in range(D): issue(n, pre)
    for n in range(D): pre += groups[n].upd
    first_wait = "s_waitcnt lgkmcnt(%d)" % (issued[0] - lastseq[0])
    for c in range(c_lo, c_hi + 1):
        step = (c + 1) // 2
        dst = steps[step]
        gs = [k for k in range(N) if groups[k].period == c]
        val = gelu_ops(c, L) if 0 <= c <= 23 else []
        val = val + [(x, 4) for x in xval.get(c, [])]
        xd = list(xds.get(c, []))
        nxd = (len(xd) + len(gs) - 1) // len(gs)
        if c == c_lo:
            burst = 0
            while val and burst < 120:
                pre.append(val[0][0]); burst += val[0][1]; val = val[1:]
            pre.append(first_wait)
        dmas = []; scal = []
        if step <= 11:
            if c % 2 == 1: dmas = [dma_w(i, 1) for i in range(6)] + [dma_w(i, 2) for i in range(6)]
            else: scal = step_scalars()
        nm = sum(len(groups[k].mf) for k in gs)
        tot = 8 * nm + sum(x[1] for x in val) + 12 * len(dmas) + 4 * len(xd) + 20 * len([1 for cc, _ in xwr if cc == c])
        for k in gs:
            if k + D < N: tot += 4 * len(groups[k + D].reads) + 4 * len(groups[k + D].upd)
        t = 0.0; vi = 0; mi = 0
        sp = opt.dsp if len(gs) >= 24 else 1
        dmap = {sp * i: d for i, d in enumerate(dmas)}
        for gi, k in enumerate(gs):
            g = groups[k]
            for j, m in enumerate(g.mf):
                dst.append(m); t += 8; mi += 1
                extra = []
                if j == len(g.mf) - 1 and k + 1 < N:
                    dst.append("s_waitcnt lgkmcnt(%d)" % min(14, issued[0] - lastseq[k + 1]))
                if j == 0:
                    if gi in dmap: dst.append(dmap[gi][0][0])
                    elif scal: dst.append(scal.pop(0))
                    if k + D < N:
                        issue(k + D, dst); t += 4 * len(groups[k + D].reads)
                        extra = groups[k + D].upd
                if j == len(g.mf) - 1:
                    for _ in range(nxd):
                        if xd: dst.append(xd.pop(0)); issued[0] += 1; t += 4
                if j == 1 and (c, gi) in xwr:
                    dst.append(xwr[(c, gi)]); issued[0] += 1; t += 20
                if j == 1:
                    if gi in dmap:
                        dst.append(dmap[gi][0][1]); dst.append(dmap[gi][1]); t += 12
                    elif gi == len(gs) - 1 and step <= 11 and c % 2 == 0:
                        dst.append("s_mov_b32 s%d, s%d" % (sDelta, sT0))
                for x in extra: dst.append(x); t += 4
                lim = mi * tot / nm
                while vi < len(val) and t + val[vi][1] <= lim + 2:
                    dst.append(val[vi][0]); t += val[vi][1]; vi += 1
        while vi < len(val): dst.append(val[vi][0]); vi += 1
        assert not scal and not xd
    return pre, steps

def main_part(L):
    tag = "b%d" % L
    ai = acc_init(L)
    pre, steps = build_main(L, -1, 22, True, xds={0: ai})
    xd24, xwr, xv24 = epi_prep(L)
    pre12, steps12 = build_main(L, 23, 24, False, xds={24: xd24}, xval={24: xv24}, xwr=xwr)
    for j in range(3, 12): assert steps[j] == steps[2], j
    assert opt.unroll in (1, 2, 5)
    e("s_mov_b32 s%d, 0x%08x" % (sK, f2u(KK) if opt.gelu == 1 else f2h(KK) * 0x10001))
    set_dma_slot(2 * SLOT)
    e("s_mov_b32 s%d, 256" % sW1off)
    e("s_mov_b32 s%d, 24576" % sW2off)
    e("s_mov_b32 s%d, %d" % (sDelta, SLOT))
    e("s_mov_b32 s%d, %d" % (sDel1, SLOT))
    e("s_mov_b32 s%d, %d" % (sDel2, -2 * SLOT))
    e("s_mov_b32 s%d, 12" % sCnt)
    for s in pre: e(s)
    def with_bar(body):
        body = list(body)
        bar = ["s_waitcnt vmcnt(0)"] + ([] if opt.nobar else ["s_barrier"])
        if opt.barpos:
            idx = [i for i, l in enumerate(body) if l.startswith("v_mfma")][-opt.barpos]
            return body[:idx + 1] + bar + body[idx + 1:]
        return body + bar
    s0 = with_bar(steps[0])
    idx = [i for i, l in enumerate(s0) if l.startswith("v_mfma")][-3 * (opt.D + 2)]
    s0 = s0[:idx + 1] + ["s_waitcnt vmcnt(12)", "s_barrier"] + s0[idx + 1:]
    for s in s0: e(s)
    st("step0")
    for s in with_bar(steps[1]): e(s)
    out.append(".p2align 6")
    lab("L_loop_%s" % tag)
    for u in range(opt.unroll):
        for s in with_bar(steps[2]): e(s)
    e("s_cbranch_scc1 L_loop_%s" % tag)
    st("loop")
    epi_scalars(L)
    for s in pre12: e(s)
    for s in steps12[12]: e(s)
    st("p24")
    epilogue(L)

RED = SLOT
STG = 2 * SLOT
vG = vH
vWA = vA1
vRd = vA1 + 2
vRdl = [vA1 + 2, vA1 + 3, vAb]
vSt = vAb + 1
vX0 = vB1 + 48
def epi_prep(L):
    xd = ["ds_read_b128 %s, v%d offset:%d" % (vr(vG + 4 * ct, 4), vTab, TAB_G - TAB_B2 + (ct // 2) * 128 + (ct % 2) * 16) for ct in range(12)]
    xv23 = {}
    if L:
        for ct in range(12):
            xv23[(23, ct + 2) if ct < 10 else (24, 2 * (ct - 10) + 1)] = "ds_write_b128 v%d, %s offset:%d" % (vTmp + 1, ar(144 + 4 * ct, 4), ct * 1024)
    t0, t1 = vAb + 2, vAb + 3
    xv = ["v_and_b32 v%d, 15, v%d" % (t0, vLane), "v_lshrrev_b32 v%d, 4, v%d" % (t1, vLane),
          "v_mul_u32_u24 v%d, 384, v%d" % (vWA, t0), "v_and_b32 v%d, 7, v%d" % (t0, t0),
          "v_xor_b32 v%d, v%d, v%d" % (t0, t0, t1), "v_lshl_add_u32 v%d, v%d, 4, v%d" % (vWA, t0, vWA),
          "v_add_u32 v%d, s%d, v%d" % (vWA, sT2, vWA), "v_xor_b32 v%d, 64, v%d" % (vWA + 1, vWA)]
    for k in range(3):
        xv += ["v_add_u32 v%d, %d, v%d" % (t0, 64 * k, vLane), "v_mul_u32_u24 v%d, 2731, v%d" % (t1, t0),
               "v_bfe_u32 v%d, v%d, 16, 3" % (t1, t1), "v_xor_b32 v%d, v%d, v%d" % (t0, t0, t1),
               "v_lshlrev_b32 v%d, 4, v%d" % (t0, t0), "v_add_u32 v%d, s%d, v%d" % (vRdl[k], sT2, t0)]
    xv += ["v_lshlrev_b32 v%d, 4, v%d" % (vSt, vLane), "v_add_u32 v%d, s%d, v%d" % (vSt, sT1, vSt)]
    for k in range(12):
        src = (vR23 + k) if k < 8 else (vR45 + k - 8)
        xv += ["v_lshlrev_b32 v%d, 16, v%d" % (vX0 + 2 * k, src), "v_and_b32 v%d, 0xffff0000, v%d" % (vX0 + 2 * k + 1, src)]
    return xd, xv23, xv

def epi_scalars(L):
    e("s_mul_i32 s%d, s%d, %d" % (sT1, sWave, 3 * ROWB))
    e("s_add_u32 s%d, s%d, s%d" % (sT1, sT1, sBase))
    e("s_mul_i32 s%d, s%d, 12288" % (sT2, sWave))
    e("s_add_u32 s%d, s%d, %d" % (sT3, sT2, RED))
    e("s_add_u32 s%d, s%d, %d" % (sT2, sT2, STG))
    if L:
        e("v_lshlrev_b32 v%d, 4, v%d" % (vTmp, vLane))
        e("v_add_u32 v%d, s%d, v%d" % (vTmp + 1, sT3, vTmp))

def epi_group(acc_regs, gam, xr, dst, tmp, unpacked=False):
    if not unpacked:
        for k in range(4):
            e("v_lshlrev_b32 v%d, 16, v%d" % (tmp + 2 * k, xr + k))
            e("v_and_b32 v%d, 0xffff0000, v%d" % (tmp + 2 * k + 1, xr + k))
    for k in range(4):
        e("v_pk_fma_f32 %s, %s, %s, %s" % (vr(tmp + 2 * k, 2), vr(acc_regs + 2 * k, 2), vr(gam + 2 * k, 2), vr(tmp + 2 * k, 2)))
    for k in range(4):
        e("v_cvt_pk_bf16_f32 v%d, v%d, v%d" % (dst + k, tmp + 2 * k, tmp + 2 * k + 1))

def epilogue(L):
    tag = "b%d" % L
    e("s_waitcnt lgkmcnt(0)")
    if L: e("s_barrier")
    st("gam")
    vAc = vB1; vTm = vB1 + 16; vXs = vB1 + 32; vO = vB1 + 40
    vLin = vP
    def store(t, k):
        e("buffer_store_dwordx4 %s, v%d, %s, s%d offen offset:%d%s" % (vr(vLin + 4 * k, 4), vSt, sr(S_O, 4), sT0 if k < 4 else sSo, (k % 4) * 1024, OPOL))
    n = 0
    for t in range(3):
        buf = (t % 2) * 6144
        for m in range(6):
            ac = vAc + 8 * (n % 2); tm = vTm + 8 * (n % 2); o = vO + 4 * (n % 2)
            for k in range(8): e("v_accvgpr_read_b32 v%d, a%d" % (ac + k, 48 * t + 8 * m + k))
            src = res_dst(t, m)
            base = int(src[2:src.index(":")])
            unp = (t == 0 and 2 <= m <= 4)
            if unp: tm = vX0 + 8 * (m - 2); xr = None
            elif src[0] == "a":
                xr = vXs + 4 * (n % 2)
                for k in range(4): e("v_accvgpr_read_b32 v%d, a%d" % (xr + k, base + k))
            else: xr = base
            epi_group(ac, vG + 8 * m, xr, o, tm, unp)
            if t > 0:
                if m == 0: e("s_waitcnt lgkmcnt(0)")
                store(t - 1, m)
            e("ds_write_b128 v%d, %s offset:%d" % (vWA + m % 2, vr(o, 4), buf + (m // 2) * 128))
            n += 1
        e("s_mov_b32 s%d, %d" % (sT0, t * ROWB))
        e("s_mov_b32 s%d, %d" % (sSo, t * ROWB + 4096))
        for k in range(6):
            e("ds_read_b128 %s, v%d offset:%d" % (vr(vLin + 4 * k, 4), vRdl[k % 3], buf + (k // 3) * 3072))
        st("t%d" % t)
    if L:
        e("s_lshl_b32 s%d, s%d, 6" % (sT1, sWave))
        e("s_add_u32 s%d, s%d, %d" % (sT1, sT1, 12 * ROWB))
        e("s_lshl_b32 s%d, s%d, 11" % (sT2, sWave))
        e("s_add_u32 s%d, s%d, %d" % (sT2, sT2, RED))
        e("v_add_u32 v%d, s%d, v%d" % (vTmp, sT2, vTmp))
        e("s_lshl_b32 s%d, s%d, 7" % (sT2, sWave))
        e("v_add_u32 v%d, s%d, v%d" % (vTmp + 1, sT2, vTab))
        def lreads(half, base):
            for w in range(4):
                for o in range(2):
                    e("ds_read_b128 %s, v%d offset:%d" % (vr(base + 8 * w + 4 * o, 4), vTmp, w * 12288 + half * 8192 + o * 1024))
            for o in range(2):
                e("ds_read_b128 %s, v%d offset:%d" % (vr(base + 32 + 4 * o, 4), vTmp + 1, TAB_G - TAB_B2 + half * 512 + o * 16))
        bases = [vB1 + 48, vH]
        lreads(0, bases[0])
        e("s_waitcnt lgkmcnt(10)")
        for k in range(6): store(2, k)
        lreads(1, bases[1])
        for half in range(2):
            if half == 1:
                e("s_cmp_ge_u32 s%d, 2" % sWave)
                e("s_cbranch_scc1 L_done_%s" % tag)
            regs = [bases[half] + 8 * w for w in range(4)]
            e("s_waitcnt lgkmcnt(%d)" % (10 if half == 0 else 0))
            for k in range(0, 8, 2):
                e("v_pk_add_f32 %s, %s, %s" % (vr(regs[0] + k, 2), vr(regs[0] + k, 2), vr(regs[1] + k, 2)))
                e("v_pk_add_f32 %s, %s, %s" % (vr(regs[2] + k, 2), vr(regs[2] + k, 2), vr(regs[3] + k, 2)))
            for k in range(0, 8, 2):
                e("v_pk_add_f32 %s, %s, %s" % (vr(regs[0] + k, 2), vr(regs[0] + k, 2), vr(regs[2] + k, 2)))
            xr = vRL + 4 * half
            epi_group(regs[0], bases[half] + 32, xr, xr, vTm)
            e("buffer_store_dwordx4 %s, v%d, %s, s%d offen offset:%d%s" % (vr(xr, 4), vOut, sr(S_O, 4), sT1, half * 256, OPOL))
        lab("L_done_%s" % tag)
    else:
        e("s_waitcnt lgkmcnt(0)")
        for k in range(6): store(2, k)
    if opt.stamps:
        st("epi")
        e("s_waitcnt vmcnt(0)")
        st("drain")
        e("s_waitcnt lgkmcnt(0)")
        if opt.dbg:
            srd(S_T, 8, 64)
            e("v_mov_b32 v2, 0")
            for i in range(len(SSETS[opt.sset])):
                e("s_sub_u32 s%d, s%d, s%d" % (sT0, sStamp + 2 * i, sStamp))
                e("v_writelane_b32 v2, s%d, %d" % (sT0, i))
            e("v_lshlrev_b32 v3, 2, v0")
            e("buffer_atomic_umax v2, v3, %s, 0 offen" % sr(S_T, 4))
            e("s_endpgm")
            return
        srd(S_T, 9, 1 << 20)
        e("s_lshl_b32 s%d, s2, 2" % sT0)
        e("s_add_u32 s%d, s%d, s%d" % (sT0, sT0, sWave))
        e("s_lshl_b32 s%d, s%d, 6" % (sT0, sT0))
        e("v_mov_b32 v2, 0")
        for i in range(len(SSETS[opt.sset])): e("v_writelane_b32 v2, s%d, %d" % (sStamp + 2 * i, i))
        out.append("; STAMPNAMES " + " ".join(SSETS[opt.sset]))
        e("v_writelane_b32 v2, s%d, 11" % sNrows)
        e("v_lshlrev_b32 v3, 2, v%d" % vLane)
        e("v_add_u32 v3, s%d, v3" % sT0)
        e("v_cmp_gt_u32 vcc, 16, v%d" % vLane)
        e("s_and_saveexec_b64 %s, vcc" % sr(sEx, 2))
        e("buffer_store_dword v2, v3, %s, 0 offen" % sr(S_T, 4))
    e("s_endpgm")

import copy
vm = VM()
head()
vm0 = vm
for L in (1, 0):
    vm = copy.deepcopy(vm0)
    lab("L_body%d" % L)
    early(L)
    prologue(L)
    main_part(L)
lab("L_exit")
e("s_endpgm")
out.append(".p2align 3")
out.append(".type L_wgtab,@object")
lab("L_wgtab")
for a, b in wg_table(): e(".long 0x%08x, 0x%08x" % (a, b))
out.append(".size L_wgtab, %d" % (252 * 8))

ref = open("cdna_kernels/%s.s.ref" % NAME).read().split("\n")
hdr = [l for l in ref if l.startswith(";") and "@launch" not in l]
txt = "\n".join(hdr) + "\n; @launch grid=(252,1,1) block=(256,1,1) lds=%d\n" % LDS_SIZE
txt += """.amdgcn_target "amdgcn-amd-amdhsa--gfx950"
.text
.globl %s_kernel
.p2align 8
.type %s_kernel,@function
%s_kernel:
""" % (NAME, NAME, NAME)
txt += "\n".join(out).replace("PF_LIM", "L_exit-L_pf-0x8000") + "\n"
txt += """.section .rodata,"a"
.p2align 6
.amdhsa_kernel %s_kernel
  .amdhsa_next_free_vgpr 512
  .amdhsa_next_free_sgpr 102
  .amdhsa_accum_offset 256
  .amdhsa_group_segment_fixed_size 0
  .amdhsa_kernarg_size 80
  .amdhsa_user_sgpr_count 2
  .amdhsa_user_sgpr_kernarg_segment_ptr 1
  .amdhsa_system_sgpr_workgroup_id_x 1
.end_amdhsa_kernel
""" % NAME
dst = [a for a in sys.argv[1:] if "=" not in a]
open(dst[0] if dst else "cdna_kernels/%s.s" % NAME, "w").write(txt)
```

```python
import math, struct, sys

NAME = "standalone__modern_conv_block_convnext__vision"
def f2u(f): return struct.unpack("<I", struct.pack("<f", f))[0]
def f2h(f): return struct.unpack("<H", struct.pack("<e", f))[0]

class Opt:
    gelu = 2
    stamps = 0
    D = 4
    R = 6
    xnt = 0
    sset = 0
    dsp = 1
    nobar = 0
    unroll = 2
    e64 = 0
    barpos = 0
    dist = 12
    prio = 0
    gap = 12
    dbg = 0
    pe1 = 6
    pf = 1
    ont = 2
opt = Opt()
for a in sys.argv[1:]:
    if "=" in a:
        k, v = a.split("="); assert hasattr(opt, k), k; setattr(opt, k, int(v))

C0 = 2.0 * math.sqrt(2.0 / math.pi) * math.log2(math.e)
SA = (C0 * 0.044715) ** (1.0 / 3.0)
KK = C0 / SA
if opt.gelu == 2:
    KK = struct.unpack("<e", struct.pack("<e", KK))[0]
    SA = C0 / KK

XBYTES = 224 * 224 * 384
ROWB = 86016
SLOT = 49408
XB = SLOT
W2E = 6160
PL = 34816
PR = 2304
TAB_B1 = XB + 3 * PL
TAB_B2 = TAB_B1 + 3072
TAB_G = TAB_B2 + 1024
DUMMY = TAB_G + 1024
IMG = 24576
JS = 1936
XCH = 40960
XST = XCH + 6144
LDS_SIZE = 163840
OOB = 0x40000
XPOL = " nt" if opt.xnt else ""
OPOL = ["", " nt", " sc1", " sc0 sc1"][opt.ont]
assert DUMMY + 1280 <= LDS_SIZE and IMG + 8 * JS <= XCH and XST + 1024 <= SLOT

S_X = 8; S_W1 = 12; S_W2 = 16; S_O = 20; S_T = 24
sWave = 28; sBase = 29; sNrows = 31
sK = 32; sDelta = 33; sW1off = 35; sW2off = 36; sCnt = 37
sT0 = 38; sT1 = 39; sT2 = 40; sT3 = 41
sEx = 42
sC1 = 44; sM1 = 45; sM2 = 46; sSo = 47; sDel1 = 48; sDel2 = 49
sXm7 = 30; sXm1 = 50; sXm8 = 51; sXs8 = 52; sQlo = 53; sTb = 54; sQn = 56; sC2 = 57; sLut = 58
sPtr = 60
S_B = 60; S_G = 64
sStamp = 80

vLane = 1
vA1 = 2; vA2 = 6; vAb = 10
vD1 = 14; vD2 = 15; vOut = 16; vTab = 17; vTmp = 18
vBias = 20
vT = 28
vRL = 36
vHL = 44; vPL = 48
vP = 52
vH = 76
vR45 = 124
vR23 = 148
vB1 = 160
aRing = 192
aRes = 216
vLW = 19
vLY = 20
vRA = 32; vLF = 34; vLG = 35
vS = 40
vIA = 48
vFb = 52
vLS = 72
vYt = [160, 76, 208]
vGb = 124
vF = 140; vGa = 144
vX = 148
vIdx = 157; vLSw = 158; vLSr = 159
aLD = 144; aFb = 180; aGb = 200
vDW = 76; vQ = 80; vTB = 96; vU = 116

out = []
def e(s): out.append("    " + s)
def lab(s): out.append(s + ":")
def cm(s): out.append("    ; " + s)
SSETS = [["start", "issued", "diag", "conv0", "conv1", "conv2", "conv3", "step0", "loop", "epi", "drain"],
         ["start", "loop", "p24", "gam", "t0", "t1", "t2", "epi", "drain"],
         ["start", "kernarg", "issued", "setup", "dwin", "img", "bar", "diag", "x0in", "mf0", "conv0"],
         ["start", "diag", "x0in", "mf0", "x1in", "mf1", "x2in", "mf2", "red", "conv3", "step0"],
         ["start", "x0in", "mf0", "conv0", "mf1", "conv1", "mf2", "conv2", "conv3", "step0", "drain"]]
def st(name):
    names = SSETS[opt.sset]
    if opt.stamps and name in names: stamp(names.index(name))
def stamp(i):
    if opt.stamps: e("%s s[%d:%d]" % ("s_memrealtime" if opt.stamps == 1 else "s_memtime", sStamp + 2 * i, sStamp + 2 * i + 1))
def vr(b, n): return "v[%d:%d]" % (b, b + n - 1)
def ar(b, n): return "a[%d:%d]" % (b, b + n - 1)
def sr(b, n): return "s[%d:%d]" % (b, b + n - 1)
def srd(s, ptr_slot, nbytes):
    e("s_mov_b32 s%d, s%d" % (s, sPtr + 2 * ptr_slot))
    e("s_and_b32 s%d, s%d, 0xffff" % (s + 1, sPtr + 2 * ptr_slot + 1))
    e("s_mov_b32 s%d, %d" % (s + 2, nbytes))
    e("s_mov_b32 s%d, 0x20000" % (s + 3))

def capture(fn, *args):
    global out
    save = out; out = []
    fn(*args)
    got = [l.strip() for l in out if not l.strip().startswith(";")]
    out = save
    return got

class VM:
    def __init__(self): self.issued = []; self.pending = []
    def issue_now(self, tag, lines):
        for l in lines: e(l)
        self.issued.append(tag)
    def queue(self, tag, lines): self.pending.append((tag, lines))
    def pop(self, n=1):
        for _ in range(n):
            if self.pending:
                tag, lines = self.pending.pop(0); self.issue_now(tag, lines)
    def wait(self, pred):
        while any(pred(t) for t, _ in self.pending): self.pop()
        idx = [i for i, t in enumerate(self.issued) if pred(t)]
        e("s_waitcnt vmcnt(%d)" % (len(self.issued) - 1 - max(idx)))
vm = None

def wg_table():
    rows = []
    for wg in range(252):
        x, n = wg & 7, wg >> 3
        idx = 63 * (x & 3) + (32 if x >= 4 else 0) + n
        h, rem = idx // 126, idx % 126
        b, strip = rem // 7, 7 * h + rem % 7
        row0 = b * 112 // 9; nrows = (b + 1) * 112 // 9 - row0
        base = ((row0 - 1) * ROWB + strip * 6144 - 384) & 0xffffffff
        qlo = 1 if strip == 0 else 0; qn = (17 if strip == 13 else 18) - qlo
        rows.append((base, qlo | qn << 8 | nrows << 16))
    return rows

def dma_w(i, kind):
    if kind == 1:
        return (["s_add_u32 m0, s%d, %d" % (sM1, i * 1024), "s_add_u32 s%d, s%d, %d" % (sSo, sW1off, i * 12288)],
                "buffer_load_dwordx4 v%d, %s, s%d offen lds" % (vD1, sr(S_W1, 4), sSo))
    oo, t = i // 3, i % 3
    return (["s_add_u32 m0, s%d, %d" % (sM2, oo * 3080 + t * 1024), "s_add_u32 s%d, s%d, %d" % (sSo, sW2off, oo * 1536 + t * 128)],
            "buffer_load_dwordx4 v%d, %s, s%d offen lds" % (vD2, sr(S_W2, 4), sSo))

def set_dma_slot(slot_base_imm):
    e("s_mul_i32 s%d, s%d, 6144" % (sM1, sWave))
    e("s_add_u32 s%d, s%d, %d" % (sM1, sM1, slot_base_imm))
    e("s_mul_i32 s%d, s%d, %d" % (sM2, sWave, W2E))
    e("s_add_u32 s%d, s%d, %d" % (sM2, sM2, slot_base_imm + 24576))


def x_item(a, i):
    off = (" offset:%d" % (128 * a)) if a else ""
    j, sec = i // 2, i % 2
    if i < 7: m = ["s_add_u32 m0, s%d, %d" % (sXm1, a * (PL - 128) + j * 9216 + sec * 4096), "s_nop 0"]
    else:
        r = sXm7 if i == 7 else sXm8
        m = ["s_mov_b32 m0, s%d" % r, "s_add_u32 s%d, s%d, s%d" % (r, r, sXs8)]
    return (("x", a), m + ["buffer_load_dwordx4 v%d, %s, 0 offen%s%s lds" % (vX + i, sr(S_X, 4), off, XPOL)])

def x_voff_a(i):
    n, r, q, f = vU, vU + 1, vU + 2 + min(i, 2), vTB + 10
    l = []
    if i == 0: l += ["v_lshrrev_b32 v%d, 3, v0" % n, "v_and_b32 v%d, 7, v0" % (vU + 5)]
    elif i == 1: l += ["v_add_u32 v%d, 32, v%d" % (n, n)]
    else: l += ["v_bfe_u32 v%d, v0, 3, 3" % n, "v_add_u32 v%d, 64, v%d" % (n, n)]
    l += ["v_mul_u32_u24 v%d, 3641, v%d" % (r, n), "v_lshrrev_b32 v%d, 16, v%d" % (r, r),
          "v_mul_u32_u24 v%d, 18, v%d" % (q, r), "v_sub_u32 v%d, v%d, v%d" % (q, n, q),
          "v_bfe_u32 v%d, v%d, 1, 3" % (f, q), "v_xor_b32 v%d, v%d, v%d" % (f, f, vU + 5),
          "v_mul_u32_u24 v%d, %d, v%d" % (r, ROWB - 18 * 384, r),
          "v_mad_u32_u24 v%d, v%d, s%d, v%d" % (r, n, sC1, r),
          "v_lshl_add_u32 v%d, v%d, 4, v%d" % (vX + i, f, r)]
    return l
def x_voff_b(i, base):
    q = vU + 2 + min(i, 2)
    return ["v_subrev_u32 v%d, s%d, v%d" % (q, sQlo, q), "v_cmp_gt_u32 vcc, s%d, v%d" % (sQn, q),
            "v_add_u32 v%d, s%d, v%d" % (vX + i, base, vX + i), "s_nop 0",
            "v_cndmask_b32 v%d, v%d, v%d, vcc" % (vX + i, vU + 6, vX + i)]
for n in range(288): assert (n * 3641) >> 16 == n // 18

def head():
    e("s_cmp_ge_u32 s2, 252")
    e("s_cbranch_scc1 L_exit")
    st("start")
    e("s_load_dwordx2 %s, s[0:1], 0" % sr(S_X, 2))
    e("s_load_dwordx2 %s, s[0:1], 8" % sr(S_T, 2))
    e("s_getpc_b64 %s" % sr(sEx, 2))
    lab("L_pf")
    e("s_lshl_b32 s%d, s2, 3" % sT0)
    e("s_add_u32 s%d, s%d, L_wgtab-L_pf" % (sT0, sT0))
    e("s_load_dwordx2 %s, %s, s%d" % (sr(sTb, 2), sr(sEx, 2), sT0))
    if opt.pf:
        e("s_lshr_b32 s%d, s2, 3" % sT3)
        e("s_lshl_b32 s%d, s%d, 12" % (sT3, sT3))
        e("v_lshrrev_b32 v%d, 3, v0" % (vTB + 8))
        e("v_lshl_add_u32 v%d, v%d, 7, s%d" % (vTB + 8, vTB + 8, sT3))
        e("v_min_u32 v%d, L_exit-L_pf, v%d" % (vTB + 8, vTB + 8))
        vm.issue_now("dw", ["global_load_dword v%d, v%d, %s" % (vTB + 6, vTB + 8, sr(sEx, 2))])
    e("v_lshrrev_b32 v%d, 6, v0" % vS)
    e("s_movk_i32 s%d, 384" % sC1)
    e("v_readfirstlane_b32 s%d, v%d" % (sWave, vS))
    for l in x_voff_a(0): e(l)
    e("v_bfrev_b32 v%d, 2" % (vU + 6))
    e("v_lshlrev_b32 v%d, 4, v0" % vTmp)
    e("s_mov_b32 s%d, %d" % (S_X + 2, XBYTES))
    e("s_mov_b32 s%d, 0x20000" % (S_X + 3))
    e("s_movk_i32 s%d, 3456" % (S_T + 2))
    e("s_mov_b32 s%d, s%d" % (S_T + 3, S_X + 3))
    e("s_lshl_b32 s%d, s%d, 10" % (sXm1, sWave))
    e("s_add_u32 s%d, s%d, %d" % (sXm1, sXm1, XB))
    e("s_waitcnt lgkmcnt(0)")
    st("kernarg")
    vm.issue_now("dw", ["buffer_load_dwordx4 %s, v%d, %s, 0 offen" % (vr(vDW, 4), vTmp, sr(S_T, 4))])
    e("s_load_dwordx2 %s, s[0:1], 16" % sr(S_W1, 2))
    e("s_load_dwordx2 %s, s[0:1], 32" % sr(S_W2, 2))
    e("s_load_dwordx2 %s, s[0:1], 56" % sr(S_O, 2))
    e("s_load_dwordx2 %s, s[0:1], 24" % sr(S_B, 2))
    e("s_load_dwordx4 %s, s[0:1], 40" % sr(S_G, 4))
    if opt.stamps: e("s_load_dwordx4 %s, s[0:1], 64" % sr(sPtr + 16, 4))
    e("s_and_b32 s%d, s%d, 0xff" % (sQlo, sTb + 1))
    e("s_bfe_u32 s%d, s%d, 0x80008" % (sQn, sTb + 1))
    e("s_lshr_b32 s%d, s%d, 16" % (sNrows, sTb + 1))
    e("s_cmp_eq_u32 s%d, 12" % sNrows)
    e("s_cbranch_scc1 L_body0")

def issue_plane0(L, filler):
    add = lambda i: ["v_add_u32 v%d, s%d, v%d" % (vX + i, sC2, vX + i - 2)]
    va1 = x_voff_a(1); va8 = x_voff_a(8)
    sc = ["s_add_u32 s%d, s%d, %d" % (sXm7, sXm1, 3 * 9216 + 4096), "s_mul_i32 s%d, s%d, 9216" % (sXm8, sWave),
          "s_add_u32 s%d, s%d, %d" % (sXm8, sXm8, XB + 8192), "s_mul_i32 s%d, s%d, s%d" % (sT2, sWave, sC2),
          "s_add_u32 s%d, s%d, s%d" % (sT2, sT2, sTb), "s_cmp_lt_u32 s%d, 3" % sWave,
          "s_cselect_b32 s%d, s%d, %d" % (sXm7, sXm7, DUMMY), "s_cselect_b32 s%d, s%d, %d" % (sXm8, sXm8, DUMMY),
          "s_cselect_b32 s%d, %d, 0" % (sXs8, PL - 128), "s_cselect_b32 s%d, s%d, 0x40000000" % (sT2, sT2)]
    seq = [(x_voff_b(0, sTb), 0), (["s_mov_b32 s%d, %d" % (sC2, 4 * ROWB)] + add(2), 2), (add(4) + va1, 4),
           (add(6) + x_voff_b(1, sTb), 6), (sc, 1), (add(3) + va8, 3), (add(5) + x_voff_b(8, sT2), 5),
           (["s_cmp_lt_u32 s%d, %d" % (sWave, 3 if L else 1), "s_cselect_b32 s%d, s%d, 0x40000000" % (sT3, sC2),
             "v_add_u32 v%d, s%d, v%d" % (vX + 7, sT3, vX + 5)], 7), ([], 8)]
    for n, (pre, i) in enumerate(seq):
        for l in pre: e(l)
        k = len(pre)
        while n >= 2 and k < opt.gap and filler and "vcc" not in filler[0]:
            e(filler.pop(0)); k += 1
        vm.issue_now(*x_item(0, i))
    for a in (1, 2):
        for i in range(9): vm.queue(*x_item(a, i))

def early(L):
    vm.queue("tab", ["s_waitcnt lgkmcnt(0)", "s_cmp_eq_u32 s%d, 3" % sWave, "s_cselect_b64 %s, %s, %s" % (sr(S_B, 2), sr(S_G, 2), sr(S_B, 2)),
                     "s_movk_i32 s%d, 1536" % (S_B + 2), "s_cselect_b32 s%d, 384, s%d" % (S_B + 2, S_B + 2), "s_mov_b32 s%d, s%d" % (S_B + 3, S_X + 3),
                     "s_cselect_b32 s%d, 63, -1" % sT3, "v_and_b32 v%d, s%d, v0" % (vTB + 7, sT3), "v_lshlrev_b32 v%d, 3, v%d" % (vTB + 7, vTB + 7),
                     "buffer_load_dwordx2 %s, v%d, %s, 0 offen" % (vr(vTB, 2), vTB + 7, sr(S_B, 4))])
    vm.queue("tab", ["s_mov_b64 %s, %s" % (sr(S_G, 2), sr(S_G + 2, 2)), "s_movk_i32 s%d, 384" % (S_G + 2), "s_mov_b32 s%d, s%d" % (S_G + 3, S_X + 3),
                     "v_lshlrev_b32 v%d, 3, v%d" % (vTB + 7, vLane),
                     "buffer_load_dwordx2 %s, v%d, %s, 0 offen" % (vr(vTB + 2, 2), vTB + 7, sr(S_G, 4))])
    fill = capture(setup_early) + ["v_mov_b32 v%d, 0" % (vFb + k) for k in range(4)]
    issue_plane0(L, fill)
    e("s_add_u32 s%d, s%d, %d" % (sBase, sTb, ROWB + 384))
    st("issued")
    build_diag(L, fill)

px, g_, gl, gh = vS + 4, vS + 5, vS + 6, vS + 7
def setup_early():
    t0, t1, t2 = vS, vS + 1, vS + 2
    e("v_and_b32 v%d, 63, v0" % vLane)
    for j in range(8): e("v_mov_b32 v%d, 0" % (vQ + 2 * j + 1 - j // 4))
    cm("image write address: tap = tid/24 -> (pair, half)")
    code = [0, 1, 4, 2, 3, 5, 8, 9, 7, 6, 15]
    lut = sum(c << (4 * i) for i, c in enumerate(code))
    e("s_mov_b32 s%d, 0x%08x" % (sLut, lut & 0xffffffff))
    e("s_mov_b32 s%d, 0x%08x" % (sLut + 1, lut >> 32))
    e("v_mul_u32_u24 v%d, 2731, v0" % t0)
    e("v_lshrrev_b32 v%d, 16, v%d" % (t0, t0))
    e("v_mul_u32_u24 v%d, 24, v%d" % (t1, t0))
    e("v_sub_u32 v%d, v0, v%d" % (t1, t1))
    e("v_lshlrev_b32 v%d, 2, v%d" % (t0, t0))
    e("v_lshrrev_b64 %s, v%d, %s" % (vr(t2, 2), t0, sr(sLut, 2)))
    e("v_and_b32 v%d, 1, v%d" % (t0, t2))
    e("v_lshlrev_b32 v%d, 3, v%d" % (t0, t0))
    e("v_lshl_add_u32 v%d, v%d, 4, v%d" % (t0, t1, t0))
    e("v_bfe_u32 v%d, v%d, 1, 3" % (t2, t2))
    e("v_mul_u32_u24 v%d, 384, v%d" % (t1, t2))
    e("v_cmp_gt_u32 vcc, 5, v%d" % t2)
    e("v_add_u32 v%d, v%d, v%d" % (t0, t0, t1))
    e("v_mov_b32 v%d, %d" % (t1, OOB))
    e("v_cndmask_b32 v%d, v%d, v%d, vcc" % (vU + 7, t1, t0))
    e("v_and_b32 v%d, 15, v%d" % (px, vLane))
    e("v_lshrrev_b32 v%d, 4, v%d" % (g_, vLane))
    e("v_and_b32 v%d, 1, v%d" % (gl, g_))
    e("v_lshrrev_b32 v%d, 1, v%d" % (gh, g_))
    cm("image read addresses (invalid lanes out of range -> read 0)")
    e("v_lshrrev_b32 v%d, 3, v%d" % (t0, px))
    e("v_xor_b32 v%d, v%d, v%d" % (t0, t0, gl))
    e("v_mul_u32_u24 v%d, %d, v%d" % (t0, OOB, t0))
    e("v_lshl_add_u32 v%d, v%d, 4, v%d" % (t0, gl, t0))
    e("v_and_b32 v%d, 7, v%d" % (t1, px))
    e("v_mul_u32_u24 v%d, %d, v%d" % (t1, JS, t1))
    e("v_add_u32 v%d, v%d, v%d" % (t0, t0, t1))
    e("v_mul_u32_u24 v%d, 384, v%d" % (t1, gh))
    e("v_add_u32 v%d, v%d, v%d" % (vIA, t0, t1))
    e("v_xor_b32 v%d, 1, v%d" % (t1, gh))
    e("v_mul_u32_u24 v%d, %d, v%d" % (t1, OOB, t1))
    e("v_add_u32 v%d, v%d, v%d" % (vIA + 1, t0, t1))
    e("s_lshl_b32 s%d, s%d, 5" % (sT0, sWave))
    e("v_add_u32 v%d, s%d, v%d" % (vIA + 2, sT0, vIA))
    e("v_add_u32 v%d, s%d, v%d" % (vIA + 3, sT0, vIA + 1))

def setup_late():
    t0, t1, t2, t3 = vS, vS + 1, vS + 2, vS + 3
    cm("W1 dma voffset")
    e("v_lshrrev_b32 v%d, 3, v%d" % (t0, vLane))
    e("v_and_b32 v%d, 7, v%d" % (t1, vLane))
    e("v_and_b32 v%d, 6, v%d" % (t2, t0))
    e("v_xor_b32 v%d, v%d, v%d" % (t1, t1, t2))
    e("v_mul_u32_u24 v%d, 1536, v%d" % (t0, t0))
    e("v_lshl_add_u32 v%d, v%d, 4, v%d" % (vD1, t1, t0))
    e("s_mul_i32 s%d, s%d, %d" % (sT0, sWave, 48 * 1536))
    e("v_add_u32 v%d, s%d, v%d" % (vD1, sT0, vD1))
    cm("W2 dma voffset")
    e("v_bfe_u32 v%d, v%d, 2, 3" % (t0, vLane))
    e("v_and_b32 v%d, 4, v%d" % (t1, t0))
    e("v_add_u32 v%d, v%d, v%d" % (t0, t0, t1))
    e("v_mul_u32_u24 v%d, 384, v%d" % (t0, t0))
    e("v_lshl_add_u32 v%d, v%d, 6, v%d" % (t0, gh, t0))
    e("v_and_b32 v%d, 3, v%d" % (t1, vLane))
    e("v_lshl_add_u32 v%d, v%d, 4, v%d" % (vD2, t1, t0))
    e("s_mul_i32 s%d, s%d, %d" % (sT0, sWave, 16 * 384))
    e("v_add_u32 v%d, s%d, v%d" % (vD2, sT0, vD2))
    e("s_mov_b32 s%d, %d" % (S_W1 + 2, 192 * 768 * 2))
    e("s_mov_b32 s%d, s%d" % (S_W1 + 3, S_X + 3))
    e("s_mov_b64 %s, %s" % (sr(S_W2 + 2, 2), sr(S_W1 + 2, 2)))
    e("s_mov_b64 %s, %s" % (sr(S_O + 2, 2), sr(S_X + 2, 2)))
    set_dma_slot(0)
    e("s_mov_b32 s%d, 0" % sW1off)
    cm("sparse index: every group selects (row%4, (row+1)%4)")
    e("v_add_u32 v%d, 1, v%d" % (t0, t1))
    e("v_and_b32 v%d, 3, v%d" % (t0, t0))
    e("v_lshl_add_u32 v%d, v%d, 2, v%d" % (t0, t0, t1))
    e("v_mul_u32_u24 v%d, 0x1111, v%d" % (vIdx, t0))
    cm("conv B-frag addresses")
    e("s_mul_i32 s%d, s%d, %d" % (sT0, sWave, 3 * PR))
    e("s_add_u32 s%d, s%d, %d" % (sT0, sT0, XB))
    e("s_lshl_b32 s%d, s%d, 5" % (sT1, sWave))
    for kind, dst, ldst in ((0, vF, vLF), (1, vGa, vLG), (2, vRA, None)):
        if kind == 0: e("v_add_u32 v%d, v%d, v%d" % (t0, gl, px))
        else: e("v_add_u32 v%d, %d, v%d" % (t0, 2 if kind == 1 else 1, px))
        e("v_bfe_u32 v%d, v%d, 1, 3" % (t1, t0))
        e("v_xor_b32 v%d, v%d, v%d" % (t1, t1, gh if kind < 2 else g_))
        e("v_lshlrev_b32 v%d, 7, v%d" % (t0, t0))
        e("v_lshl_add_u32 v%d, v%d, 4, v%d" % (t0, t1, t0))
        if kind == 1:
            e("v_mul_u32_u24 v%d, %d, v%d" % (t1, PR, gl))
            e("v_add_u32 v%d, v%d, v%d" % (t0, t0, t1))
        if kind == 2: e("v_add_u32 v%d, %d, v%d" % (t0, PR, t0))
        e("v_add_u32 v%d, s%d, v%d" % (dst, sT0, t0))
        if kind < 2:
            for k in range(1, 4): e("v_xor_b32 v%d, %d, v%d" % (dst + k, 32 * k, dst))
            e("v_xor_b32 v%d, s%d, v%d" % (t0, sT1, t0))
            e("v_add_u32 v%d, %d, v%d" % (ldst, XB + 12 * PR, t0))
        else:
            e("v_xor_b32 v%d, 64, v%d" % (dst + 1, dst))
    cm("L exchange addresses")
    e("s_lshr_b32 s%d, s%d, 1" % (sT0, sWave))
    e("s_lshl_b32 s%d, s%d, 10" % (sT0, sT0))
    e("s_and_b32 s%d, s%d, 1" % (sT1, sWave))
    e("s_lshl_b32 s%d, s%d, 3" % (sT1, sT1))
    e("s_add_u32 s%d, s%d, s%d" % (sT0, sT0, sT1))
    e("v_lshl_add_u32 v%d, v%d, 4, s%d" % (vLW, vLane, sT0))
    e("v_lshlrev_b32 v%d, 5, v%d" % (vLSr, px))
    e("s_lshl_b32 s%d, s%d, 2" % (sT0, sWave))
    e("v_lshl_add_u32 v%d, v%d, 4, v%d" % (vLSw, gh, vLSr))
    e("v_add_u32 v%d, s%d, v%d" % (vLSw, sT0, vLSw))
    cm("main-loop LDS addresses")
    e("v_bfe_u32 v%d, v%d, 2, 3" % (t0, vLane))
    e("v_and_b32 v%d, 3, v%d" % (t2, vLane))
    e("v_lshlrev_b32 v%d, 7, v%d" % (t3, t0))
    e("v_lshl_add_u32 v%d, v%d, 10, v%d" % (t3, gh, t3))
    e("v_lshl_add_u32 v%d, v%d, 3, v%d" % (t3, t2, t3))
    e("v_lshrrev_b32 v%d, 1, v%d" % (vA1, t0))
    e("v_xor_b32 v%d, s%d, v%d" % (vA1, sWave, vA1))
    e("v_lshl_add_u32 v%d, v%d, 5, v%d" % (vA1, vA1, t3))
    for p in range(1, 4): e("v_xor_b32 v%d, %d, v%d" % (vA1 + p, 32 * p, vA1))
    e("v_mul_u32_u24 v%d, 3080, v%d" % (t3, gl))
    e("v_lshl_add_u32 v%d, v%d, 8, v%d" % (t3, gh, t3))
    e("v_lshl_add_u32 v%d, v%d, 4, v%d" % (t3, px, t3))
    e("v_lshlrev_b32 v%d, 4, v%d" % (t2, g_))
    for p in range(4):
        e("s_xor_b32 s%d, s%d, %d" % (sT0, sWave, p))
        e("s_mul_i32 s%d, s%d, %d" % (sT1, sT0, W2E))
        e("s_add_u32 s%d, s%d, %d" % (sT1, sT1, SLOT + 24576))
        e("v_add_u32 v%d, s%d, v%d" % (vA2 + p, sT1, t3))
    assert TAB_B1 % 256 == 0
    e("s_lshl_b32 s%d, s%d, 6" % (sT0, sWave))
    e("s_add_u32 s%d, s%d, %d" % (sT0, sT0, TAB_B1))
    e("v_add_u32 v%d, s%d, v%d" % (vAb, sT0, t2))
    for p in range(1, 4): e("v_xor_b32 v%d, %d, v%d" % (vAb + p, 64 * p, vAb))
    e("v_lshlrev_b32 v%d, 5, v%d" % (vTab, g_))
    e("v_add_u32 v%d, %d, v%d" % (vTab, TAB_B2, vTab))
    e("v_mul_u32_u24 v%d, 384, v%d" % (vOut, px))
    e("v_add3_u32 v%d, v%d, v%d, s%d" % (vOut, vOut, t2, sBase))

def build_diag(L, early):
    late0 = capture(setup_late)
    zs = ["v_mfma_f32_32x32x16_bf16 %s, %s, %s, 0" % (vr(b, 16), vr(vFb, 4), vr(vFb, 4)) for b in range(160, 256, 16)]
    zs += ["v_mfma_f32_16x16x32_bf16 %s, %s, %s, 0" % (vr(b, 4), vr(vFb, 4), vr(vFb, 4)) for b in range(vLY, vLY + 12, 4)]
    late = []
    for k, l in enumerate(late0):
        late.append(l)
        if k % 10 == 9 and zs: late.append(zs.pop(0))
    assert not zs
    for k, l in enumerate(early):
        e(l)
        if k % 10 == 5: vm.pop()
    cm("sparse-diagonal image")
    vm.wait(lambda t: t == "dw")
    st("dwin")
    for j in range(8):
        d = vQ + 2 * j + j // 4
        if j % 2: e("v_lshrrev_b32 v%d, 16, v%d" % (d, vDW + j // 2))
        else: e("v_and_b32 v%d, 0xffff, v%d" % (d, vDW + j // 2))
    for j in range(8):
        e("ds_write_b64 v%d, %s offset:%d" % (vU + 7, vr(vQ + 2 * j, 2), IMG + j * JS))
    for l in late[:16]: e(l)
    late = late[16:]
    vm.pop()
    st("img")
    e("s_waitcnt lgkmcnt(0)")
    e("s_barrier")
    st("bar")
    rds = []
    for cg in range(12):
        for s_, (a, off) in enumerate(((vIA, 0), (vIA, 768), (vIA + 1, 1536))):
            rds.append("ds_read_b128 %s, v%d offset:%d" % (ar(12 * cg + 4 * s_, 4), a, IMG + off + cg * 32))
    for a_ in range(3 if L else 0):
        for s_, (a, off) in enumerate(((vIA + 2, 0), (vIA + 2, 768), (vIA + 3, 1536))):
            rds.append("ds_read_b128 %s, v%d offset:%d" % (ar(aLD + 12 * a_ + 4 * s_, 4), a, IMG + off + a_ * 128))
    per = (len(late) + 8) // 9
    for f, r in enumerate(rds):
        e(r)
        if f % (len(rds) // 9) == len(rds) // 9 - 1:
            vm.pop()
            for l in late[:per]: e(l)
            late = late[per:]
    assert not late
    for i in range(6):
        sc, ins = dma_w(i, 1); vm.queue("w0", sc + [ins])
    vm.wait(lambda t: t == "tab")
    e("v_mfma_f32_32x32x16_bf16 %s, %s, %s, 0" % (vr(76, 16), vr(vFb, 4), vr(vFb, 4)))
    tables()
    while any(tg == ("x", 1) for tg, _ in vm.pending): vm.pop()
    e("s_waitcnt lgkmcnt(0)")
    for b in (92, 108): e("v_mfma_f32_32x32x16_bf16 %s, %s, %s, 0" % (vr(b, 16), vr(vFb, 4), vr(vFb, 4)))
    st("diag")

def tables():
    def unpack_scale(src, dst, scale):
        e("s_mov_b32 s%d, 0x%08x" % (sT0, f2u(scale)))
        for h in range(2):
            e("v_lshlrev_b32 v%d, 16, v%d" % (dst + 2 * h, src + h))
            e("v_and_b32 v%d, 0xffff0000, v%d" % (dst + 2 * h + 1, src + h))
        for k in range(4): e("v_mul_f32 v%d, s%d, v%d" % (dst + k, sT0, dst + k))
    unpack_scale(vTB, vTB + 8, SA)
    unpack_scale(vTB + 2, vTB + 12, 1.0 / SA)
    e("v_add_u32 v%d, %d, v%d" % (vTB + 4, TAB_B1, vTmp))
    e("s_mov_b32 s%d, %d" % (sT0, TAB_G))
    e("v_lshl_add_u32 v%d, v%d, 4, s%d" % (vTB + 5, vLane, sT0))
    e("ds_write_b128 v%d, %s" % (vTB + 4, vr(vTB + 8, 4)))
    e("ds_write_b128 v%d, %s" % (vTB + 5, vr(vTB + 12, 4)))

def res_dst(t, m):
    if m >= 4: return vr(vR45 + 8 * t + 4 * (m - 4), 4)
    if t == 0 and m >= 2: return vr(vR23 + 4 * (m - 2), 4)
    idx = m if t == 0 else 4 * t + m - 2
    return ar(aRes + 4 * idx, 4)
def poff(a): return (a % 2) * PL
def res_rd(t, m):
    return "ds_read_b128 %s, v%d offset:%d" % (res_dst(t, m), vRA + m % 2, poff(m // 2) + t * PR)

def conv_all(L):
    reads = []; mf = []
    lastuse = {}
    nitem = 0
    for a in range(3):
        items = [("m", k) for k in range(4)]
        if L: items.insert(0 if a == 2 else 2, ("l", 0))
        for kind, k in items:
            b = nitem % 2; nitem += 1
            F = (lambda h, c=1: vr(vFb + 4 * h, 4 * c)) if b else (lambda h, c=1: ar(aFb + 4 * h, 4 * c))
            G = (lambda h, c=1: vr(vGb + 4 * h, 4 * c)) if b else (lambda h, c=1: ar(aGb + 4 * h, 4 * c))
            nrow = 3 if kind == "m" else 1
            r0 = len(reads)
            for h in range(nrow + 2):
                reads.append(("ds_read_b128 %s, v%d offset:%d" % (F(h), vF + k if kind == "m" else vLF, poff(a) + h * PR), lastuse.get((b, "F", h), -1), a))
            g0 = len(reads)
            for h in range(nrow + 1):
                reads.append(("ds_read_b128 %s, v%d offset:%d" % (G(h), vGa + k if kind == "m" else vLG, poff(a) + h * PR), lastuse.get((b, "G", h), -1), a))
            A = (lambda s_: ar(12 * (4 * a + k) + 4 * s_, 4)) if kind == "m" else (lambda s_: ar(aLD + 12 * a + 4 * s_, 4))
            Dr = (lambda t: vr(vYt[t] + 4 * (4 * a + k), 4)) if kind == "m" else (lambda t: vr(vLY + 4 * a, 4))
            def sm(t, s_, B, need, uses):
                for u in uses: lastuse[u] = len(mf)
                mf.append(("v_smfmac_f32_16x16x64_bf16 %s, %s, %s, v%d" % (Dr(t), A(s_), B, vIdx), need, a))
            for t in range(nrow):
                sm(t, 0, F(t, 2), r0 + t + 1, [(b, "F", t), (b, "F", t + 1)])
                sm(t, 2, F(t + 1, 2), r0 + t + 2, [(b, "F", t + 1), (b, "F", t + 2)])
            for t in range(nrow):
                sm(t, 1, G(t, 2), g0 + t + 1, [(b, "G", t), (b, "G", t + 1)])
    return reads, mf

def stats_ops(a, L):
    ops = []
    for k in range(4):
        for i in (0, 2):
            for t in range(3):
                y = vr(vYt[t] + 16 * a + 4 * k + i, 2)
                a1, a2 = vr(vS + 4 * t, 2), vr(vS + 4 * t + 2, 2)
                if a == 0 and k == 0 and i == 0:
                    ops += ["v_pk_add_f32 %s, %s, 0 op_sel_hi:[1,0]" % (a1, y), "v_pk_mul_f32 %s, %s, %s" % (a2, y, y)]
                else:
                    ops += ["v_pk_add_f32 %s, %s, %s" % (a1, a1, y), "v_pk_fma_f32 %s, %s, %s, %s" % (a2, y, y, a2)]
        if L and k < 2 and a < 2:
            y = vr(vLY + 4 * a + 2 * k, 2); a1, a2 = vr(vLS, 2), vr(vLS + 2, 2)
            if a == 0 and k == 0: ops += ["v_pk_add_f32 %s, %s, 0 op_sel_hi:[1,0]" % (a1, y), "v_pk_mul_f32 %s, %s, %s" % (a2, y, y)]
            else: ops += ["v_pk_add_f32 %s, %s, %s" % (a1, a1, y), "v_pk_fma_f32 %s, %s, %s, %s" % (a2, y, y, a2)]
    return ops

def finish_ops(a, b, sc, sh):
    return ["v_fma_f32 v%d, -v%d, v%d, v%d" % (b, a, a, b), "v_max_f32 v%d, 0, v%d" % (b, b),
            "v_add_f32 v%d, 0x%08x, v%d" % (b, f2u(1e-5), b), "v_rsq_f32 v%d, v%d" % (b, b),
            "v_mul_f32 v%d, 0x%08x, v%d" % (sc, f2u(SA), b), "v_mul_f32 v%d, v%d, v%d" % (sh, a, sc)]

def reduce_chain(t):
    s1, s2 = vS + 4 * t, vS + 4 * t + 2
    a, b = s1 + 1, s2 + 1
    return ["v_add_f32 v%d, v%d, v%d" % (a, s1, s1 + 1), "v_add_f32 v%d, v%d, v%d" % (b, s2, s2 + 1),
            "v_permlane32_swap_b32 v%d, v%d" % (a, b), "v_add_f32 v%d, v%d, v%d" % (a, a, b), "v_mov_b32 v%d, v%d" % (b, a),
            "v_permlane16_swap_b32 v%d, v%d" % (a, b), "v_add_f32 v%d, v%d, v%d" % (a, a, b),
            "v_mul_f32 v%d, 0x%08x, v%d" % (a, f2u(1.0 / 192.0), a), "v_mov_b32 v%d, v%d" % (b, a),
            "v_permlane32_swap_b32 v%d, v%d" % (a, b)] + finish_ops(a, b, s1, s2)

def ln_norm(y0, n, dst, sc, sh):
    LAG = min(6, n)
    for k in range(n + LAG):
        if k < n:
            y = y0 + 2 * k
            e("v_pk_fma_f32 %s, %s, %s, %s op_sel_hi:[1,0,0] neg_lo:[0,0,1] neg_hi:[0,0,1]" % (vr(y, 2), vr(y, 2), vr(sc, 2), vr(sh, 2)))
        if k >= LAG:
            j = k - LAG
            e("v_cvt_pk_bf16_f32 v%d, v%d, v%d" % (dst + j, y0 + 2 * j, y0 + 2 * j + 1))

def prologue(L):
    vm.wait(lambda t: t == ("x", 0))
    e("s_barrier")
    st("x0in")
    reads, mf = conv_all(L)
    seq = [0]; rseq = {}
    def lds(txt): e(txt); seq[0] += 1
    plane = [0]
    nis = [0]
    def issue_read():
        r = reads[nis[0]]
        if r[2] > plane[0]:
            a = plane[0]
            if a == 1:
                for r_ in [vF + k for k in range(8)] + ([vLF, vLG] if L else []):
                    e("v_add_u32 v%d, %d, v%d" % (r_, 2 * PL, r_))
            vm.wait(lambda t: t == ("x", a + 1))
            e("s_barrier")
            st("x%din" % (a + 1))
            plane[0] += 1
        lds(r[0]); rseq[nis[0]] = seq[0]; nis[0] += 1
    for _ in range(opt.dist): issue_read()
    n0 = nis[0]
    e("s_waitcnt lgkmcnt(%d)" % (seq[0] - rseq[mf[0][1]]))
    pend = []
    la, lb = vLS + 1, vLS + 3
    for i, (txt, need, a) in enumerate(mf):
        e(txt)
        last_of_plane = i + 1 == len(mf) or mf[i + 1][2] != a
        if i + 1 < len(mf):
            nxt = mf[i + 1][1]
            while nis[0] <= nxt:
                assert reads[nis[0]][1] <= i
                issue_read()
            if not last_of_plane and (nxt > need or i == 0): e("s_waitcnt lgkmcnt(%d)" % min(14, seq[0] - rseq[nxt]))
            target = min(len(reads), n0 + -(-(i + 1) * len(reads) // len(mf)))
            while nis[0] < target and nis[0] - nxt <= 13 and reads[nis[0]][1] <= i: issue_read()
        first = min(k for k in range(len(mf)) if mf[k][2] == a)
        if (i - first) % [3, 5, 3][a] == 1: vm.pop()
        if a == 1 and i == first and L:
            assert not any(tg[0] == "x" for tg, _ in vm.pending)
            e("s_mul_i32 s%d, s%d, %d" % (sT0, sWave, -3 * PR))
            e("s_add_u32 s%d, s%d, %d" % (sT0, sT0, 12 * PR))
            e("s_lshr_b32 s%d, s%d, 1" % (sT1, sWave))
            e("s_mul_i32 s%d, s%d, %d" % (sT1, sT1, PL))
            e("s_add_u32 s%d, s%d, s%d" % (sT0, sT0, sT1))
            e("s_and_b32 s%d, s%d, 1" % (sT1, sWave))
            e("s_lshl_b32 s%d, s%d, 6" % (sT1, sT1))
            e("v_xor_b32 v%d, s%d, v%d" % (vX + 8, sT1, vRA))
            e("v_add_u32 v%d, s%d, v%d" % (vX + 8, sT0, vX + 8))
        if a == 2 and L and i == first + 8:
            for k in range(4):
                y = vLY + 8 + k
                pend += ["v_add_f32 v%d, v%d, v%d" % (vLS + k % 2, vLS + k % 2, y), "v_fmac_f32 v%d, v%d, v%d" % (vLS + 2 + k % 2, y, y)]
            pend += ["v_add_f32 v%d, v%d, v%d" % (la, vLS, vLS + 1), "v_add_f32 v%d, v%d, v%d" % (lb, vLS + 2, vLS + 3), None,
                     "v_permlane32_swap_b32 v%d, v%d" % (la, lb), "v_add_f32 v%d, v%d, v%d" % (la, la, lb), "v_mov_b32 v%d, v%d" % (lb, la), None,
                     "v_permlane16_swap_b32 v%d, v%d" % (la, lb), "v_add_f32 v%d, v%d, v%d" % (la, la, lb), "W"]
        if pend:
            o = pend.pop(0)
            if o == "W": lds("ds_write_b32 v%d, v%d offset:%d" % (vLSw, la, XST))
            elif o: e(o)
        if last_of_plane:
            st("mf%d" % a)
            assert not pend
            if a == 1: assert not any(tg[0] == "x" for tg, _ in vm.pending)
            for t in range(3):
                for m in (2 * a, 2 * a + 1): lds(res_rd(t, m))
            if a == 1:
                if L: lds("ds_read_b128 %s, v%d" % (vr(vRL, 4), vX + 8))
                for r_ in [vRA, vRA + 1] + ([vX + 8] if L else []): e("v_add_u32 v%d, %d, v%d" % (r_, 2 * PL, r_))
            ops = stats_ops(a, L)
            if a == 1:
                while vm.pending: vm.pop()
                for o in ops[:40]: e(o)
                ops = ops[40:]
                e("s_waitcnt lgkmcnt(0)")
                e("s_barrier")
                set_dma_slot(SLOT)
                e("s_mov_b32 s%d, 128" % sW1off)
                e("s_mov_b32 s%d, 0" % sW2off)
                for kind in (1, 2):
                    for k in range(6):
                        sc, ins = dma_w(k, kind); vm.queue("w1", sc + [ins])
            if a == 2 and L:
                for o in ops[:36]: e(o)
                ops = ops[36:]
                e("s_waitcnt lgkmcnt(0)")
                e("s_barrier")
                e("ds_read_b128 %s, v%d offset:%d" % (vr(vFb, 4), vLSr, XST))
                e("ds_read_b128 %s, v%d offset:%d" % (vr(vFb + 4, 4), vLSr, XST + 16))
            for o in ops: e(o)
            if a < 2: e("s_waitcnt lgkmcnt(%d)" % min(14, seq[0] - rseq[mf[i + 1][1]]))
            st("conv%d" % a)
    assert nis[0] == len(reads)
    while vm.pending: vm.pop()
    p = vFb
    ch = [reduce_chain(t) for t in range(3)]
    if L:
        ch.append([None, None, "s_waitcnt lgkmcnt(0)", "v_pk_add_f32 %s, %s, %s" % (vr(p, 2), vr(p, 2), vr(p + 2, 2)),
                   "v_pk_add_f32 %s, %s, %s" % (vr(p + 4, 2), vr(p + 4, 2), vr(p + 6, 2)),
                   "v_add_f32 v%d, v%d, v%d" % (p, p, p + 1), "v_add_f32 v%d, v%d, v%d" % (p + 1, p + 4, p + 5),
                   "v_mul_f32 v%d, 0x%08x, v%d" % (p, f2u(1.0 / 192.0), p), "v_mul_f32 v%d, 0x%08x, v%d" % (p + 1, f2u(1.0 / 192.0), p + 1),
                   "v_lshlrev_b32 v%d, 4, v%d" % (vTmp, vLane)] + finish_ops(p, p + 1, p + 2, p + 4))
    for k in range(len(ch[0])):
        for c in ch:
            if c[k]: e(c[k])
    st("red")
    if L:
        ln_norm(vLY, 6, vLY, p + 2, p + 4)
        for a in range(3): e("ds_write_b64 v%d, %s offset:%d" % (vLW, vr(vLY + 2 * a, 2), XCH + a * 2048))
    for t in range(3):
        ln_norm(vYt[t], 24, vB1 + 24 * t, vS + 4 * t, vS + 4 * t + 2)
        if t == 0 and L: e("ds_read_b128 %s, v%d" % (vr(vRL + 4, 4), vX + 8))
    if L:
        e("v_mov_b32 v%d, 0" % (vPL + 2))
        e("v_mov_b32 v%d, 0" % (vPL + 3))
    vm.wait(lambda t: t == "w0")
    e("s_waitcnt lgkmcnt(0)")
    e("s_barrier")
    if L:
        for kb in range(6): e("ds_read_b128 %s, v%d offset:%d" % (vr(vB1 + 72 + 4 * kb, 4), vTmp, XCH + kb * 1024))
        e("s_cmp_eq_u32 s%d, 0" % sWave)
        e("s_cselect_b32 s%d, 0, %d" % (sT0, OOB))
        e("v_add_u32 v%d, s%d, v%d" % (vTmp + 1, sT0, vTab))
    st("conv3")

def acc_init(L):
    r = []
    for ct in range(12):
        for t in range(1):
            r.append("ds_read_b128 %s, v%d offset:%d" % (ar(48 * t + 4 * ct, 4), vTab, (ct // 2) * 128 + (ct % 2) * 16))
        if L:
            r.append("ds_read_b128 %s, v%d offset:%d" % (ar(144 + 4 * ct, 4), vTmp + 1, (ct // 2) * 128 + (ct % 2) * 16))
    return r

def gelu_pair(x0, x1, dst, tmp):
    a, b = tmp, tmp + 1
    if opt.gelu == 1:
        return [("v_fma_f32 v%d, -v%d, v%d, -s%d" % (a, x0, x0, sK), 4), ("v_fma_f32 v%d, -v%d, v%d, -s%d" % (b, x1, x1, sK), 4),
                ("v_mul_f32 v%d, v%d, v%d" % (a, x0, a), 4), ("v_mul_f32 v%d, v%d, v%d" % (b, x1, b), 4),
                ("v_exp_f32 v%d, v%d" % (a, a), 8), ("v_exp_f32 v%d, v%d" % (b, b), 8),
                ("v_add_f32 v%d, 1.0, v%d" % (a, a), 4), ("v_add_f32 v%d, 1.0, v%d" % (b, b), 4),
                ("v_rcp_f32 v%d, v%d" % (a, a), 8), ("v_rcp_f32 v%d, v%d" % (b, b), 8),
                ("v_mul_f32 v%d, v%d, v%d" % (a, x0, a), 4), ("v_mul_f32 v%d, v%d, v%d" % (b, x1, b), 4),
                ("v_cvt_pk_bf16_f32 v%d, v%d, v%d" % (dst, a, b), 4)]
    sd = "dst_sel:WORD_1 dst_unused:UNUSED_PRESERVE src0_sel:WORD_1"
    return [("v_cvt_pk_f16_f32 v%d, v%d, v%d" % (a, x0, x1), 4),
            ("v_pk_fma_f16 v%d, v%d, v%d, s%d" % (b, a, a, sK), 4),
            ("v_pk_mul_f16 v%d, v%d, v%d neg_lo:[1,0] neg_hi:[1,0]" % (a, a, b), 4),
            ("v_exp_f16%s v%d, v%d" % ("_e64" if opt.e64 else "", b, a), 8),
            ("v_exp_f16_sdwa v%d, v%d %s" % (b, a, sd), 8),
            ("v_pk_add_f16 v%d, v%d, 1.0 op_sel_hi:[1,0]" % (a, b), 4),
            ("v_rcp_f16%s v%d, v%d" % ("_e64" if opt.e64 else "", b, a), 8),
            ("v_rcp_f16_sdwa v%d, v%d %s" % (b, a, sd), 8),
            ("v_fma_mix_f32 v%d, v%d, v%d, 0 op_sel_hi:[0,1,0]" % (a, x0, b), 4),
            ("v_fma_mix_f32 v%d, v%d, v%d, 0 op_sel:[0,1,0] op_sel_hi:[0,1,0]" % (b, x1, b), 4),
            ("v_cvt_pk_bf16_f32 v%d, v%d, v%d" % (dst, a, b), 4)]

def gelu_ops(c, L):
    hb = vH + 24 * (c % 2); pb = vP + 12 * (c % 2)
    quads = []
    for t in range(3):
        for ep in range(2):
            quads.append((hb + 8 * t + 4 * ep, pb + 4 * t + 2 * ep))
    if L and c % 2 == 0: quads.append((vHL, vPL))
    ops = []
    for n, (x, d) in enumerate(quads):
        tmp = vT + 4 * (n % 2)
        A = gelu_pair(x, x + 1, d, tmp); B = gelu_pair(x + 2, x + 3, d + 1, tmp + 2)
        if opt.gelu == 1:
            for k in range(0, 12, 2): ops += [A[k], A[k + 1], B[k], B[k + 1]]
            ops += [A[12], B[12]]
        else:
            for k in range(len(A)): ops += [A[k], B[k]]
    return ops

class Frag: pass

def step_scalars():
    return ["s_add_u32 s%d, s%d, s%d" % (sM1, sM1, sDel2),
            "s_add_u32 s%d, s%d, s%d" % (sM2, sM2, sDel2),
            "s_add_u32 s%d, s%d, 128" % (sW1off, sW1off),
            "s_add_u32 s%d, s%d, 24576" % (sW2off, sW2off),
            "s_cmp_ge_u32 s%d, 1536" % sW1off,
            "s_cselect_b32 s%d, 0, s%d" % (S_W1 + 2, S_W1 + 2),
            "s_mov_b32 s%d, s%d" % (sT0, sDel1),
            "s_mov_b32 s%d, s%d" % (sDel1, sDel2),
            "s_mov_b32 s%d, s%d" % (sDel2, sDelta),
            "s_sub_u32 s%d, s%d, 1" % (sCnt, sCnt),
            "s_cmp_lg_u32 s%d, 0" % sCnt]

def build_main(L, c_lo, c_hi, virt, xds={}, xval={}, xwr={}):
    groups = []
    for c in range(c_lo, c_hi + 1 + (1 if virt else 0)):
        step = (c + 1) // 2
        if c + 1 <= 23 or virt:
            c1 = c + 1
            for ep in range(2):
                pos = 2 * (c1 % 2) + ep
                for kb in range(6):
                    g = Frag(); g.kind = 1; g.period = c; g.step = step; g.pos = pos; g.kb = kb; g.chunk = c1; g.ep = ep
                    groups.append(g)
        if c - 1 >= 0:
            c2 = c - 1
            for ct in range(12):
                g = Frag(); g.kind = 2; g.period = c; g.step = step; g.ct = ct; g.chunk = c2
                groups.append(g)
    N = len(groups)
    D, R = opt.D, opt.R
    assert 24 % R == 0 and D < R and D <= 5
    nbias = 0
    for n, g in enumerate(groups):
        g.slot = aRing + 4 * (n % R)
        g.reads = []
        if g.kind == 1:
            if g.kb == 0:
                g.bias = vBias + 4 * (nbias % 2); nbias += 1
                g.reads.append("ds_read_b128 %s, v%d" % (vr(g.bias, 4), vAb + g.pos))
            for h in range(2):
                g.reads.append("ds_read_b64_tr_b16 %s, v%d offset:%d" % (ar(g.slot + 2 * h, 2), vA1 + g.pos, (g.kb * 4 + h * 2) * 1024))
            hb = vH + 24 * (g.chunk % 2)
            g.mf = []
            tiles = [0, 1, 2] + ([3] if (L and g.pos == 0) else [])
            for t in tiles:
                d = (hb + 8 * t + 4 * g.ep) if t < 3 else vHL
                cc = vr(g.bias, 4) if g.kb == 0 else vr(d, 4)
                g.mf.append("v_mfma_f32_16x16x32_bf16 %s, %s, %s, %s" % (vr(d, 4), ar(g.slot, 4), vr(vB1 + 24 * t + 4 * g.kb, 4), cc))
            g.upd = []
            if g.kb == 5: g.upd = ["v_add_u32 v%d, s%d, v%d" % (vA1 + g.pos, sDelta, vA1 + g.pos)]
            if g.kb == 0: g.upd = ["v_add_u32 v%d, 0x100, v%d" % (vAb + g.pos, vAb + g.pos)]
        else:
            m, o = g.ct // 2, g.ct % 2
            for h in range(2):
                pos = 2 * (g.chunk % 2) + h
                g.reads.append("ds_read_b64_tr_b16 %s, v%d offset:%d" % (ar(g.slot + 2 * h, 2), vA2 + pos, m * 512 + o * 8))
            pb = vP + 12 * (g.chunk % 2)
            g.mf = []
            tiles = [0, 1, 2] + ([3] if (L and g.chunk % 2 == 0) else [])
            if g.chunk == 0: tiles = tiles[1:] + [0]
            for t in tiles:
                acc = ar(48 * t + 4 * g.ct, 4)
                cin = ar(4 * g.ct, 4) if (g.chunk == 0 and t < 3) else acc
                g.mf.append("v_mfma_f32_16x16x32_bf16 %s, %s, %s, %s" % (acc, ar(g.slot, 4), vr(pb + 4 * t, 4) if t < 3 else vr(vPL, 4), cin))
            g.upd = []
            if g.ct == 11 and virt:
                g.upd = ["v_add_u32 v%d, s%d, v%d" % (vA2 + 2 * (g.chunk % 2) + h, sDelta, vA2 + 2 * (g.chunk % 2) + h) for h in range(2)]
    steps = [[] for _ in range(13)]
    issued = [0]; lastseq = {}
    pre = []
    def issue(n, dst):
        for r in groups[n].reads:
            dst.append(r); issued[0] += 1
        lastseq[n] = issued[0]
    for n in range(D): issue(n, pre)
    for n in range(D): pre += groups[n].upd
    first_wait = "s_waitcnt lgkmcnt(%d)" % (issued[0] - lastseq[0])
    for c in range(c_lo, c_hi + 1):
        step = (c + 1) // 2
        dst = steps[step]
        gs = [k for k in range(N) if groups[k].period == c]
        val = gelu_ops(c, L) if 0 <= c <= 23 else []
        val = val + [(x, 4) for x in xval.get(c, [])]
        xd = list(xds.get(c, []))
        nxd = (len(xd) + len(gs) - 1) // len(gs)
        if c == c_lo:
            burst = 0
            while val and burst < 120:
                pre.append(val[0][0]); burst += val[0][1]; val = val[1:]
            pre.append(first_wait)
        dmas = []; scal = []
        if step <= 11:
            if c % 2 == 1: dmas = [dma_w(i, 1) for i in range(6)] + [dma_w(i, 2) for i in range(6)]
            else: scal = step_scalars()
        nm = sum(len(groups[k].mf) for k in gs)
        tot = 8 * nm + sum(x[1] for x in val) + 12 * len(dmas) + 4 * len(xd) + 20 * len([1 for cc, _ in xwr if cc == c])
        for k in gs:
            if k + D < N: tot += 4 * len(groups[k + D].reads) + 4 * len(groups[k + D].upd)
        t = 0.0; vi = 0; mi = 0
        sp = opt.dsp if len(gs) >= 24 else 1
        dmap = {sp * i: d for i, d in enumerate(dmas)}
        for gi, k in enumerate(gs):
            g = groups[k]
            for j, m in enumerate(g.mf):
                dst.append(m); t += 8; mi += 1
                extra = []
                if j == len(g.mf) - 1 and k + 1 < N:
                    dst.append("s_waitcnt lgkmcnt(%d)" % min(14, issued[0] - lastseq[k + 1]))
                if j == 0:
                    if gi in dmap: dst.append(dmap[gi][0][0])
                    elif scal: dst.append(scal.pop(0))
                    if k + D < N:
                        issue(k + D, dst); t += 4 * len(groups[k + D].reads)
                        extra = groups[k + D].upd
                if j == len(g.mf) - 1:
                    for _ in range(nxd):
                        if xd: dst.append(xd.pop(0)); issued[0] += 1; t += 4
                if j == 1 and (c, gi) in xwr:
                    dst.append(xwr[(c, gi)]); issued[0] += 1; t += 20
                if j == 1:
                    if gi in dmap:
                        dst.append(dmap[gi][0][1]); dst.append(dmap[gi][1]); t += 12
                    elif gi == len(gs) - 1 and step <= 11 and c % 2 == 0:
                        dst.append("s_mov_b32 s%d, s%d" % (sDelta, sT0))
                for x in extra: dst.append(x); t += 4
                lim = mi * tot / nm
                while vi < len(val) and t + val[vi][1] <= lim + 2:
                    dst.append(val[vi][0]); t += val[vi][1]; vi += 1
        while vi < len(val): dst.append(val[vi][0]); vi += 1
        assert not scal and not xd
    return pre, steps

def main_part(L):
    tag = "b%d" % L
    ai = acc_init(L)
    pre, steps = build_main(L, -1, 22, True, xds={0: ai})
    xd24, xwr, xv24 = epi_prep(L)
    pre12, steps12 = build_main(L, 23, 24, False, xds={24: xd24}, xval={24: xv24}, xwr=xwr)
    for j in range(3, 12): assert steps[j] == steps[2], j
    assert opt.unroll in (1, 2, 5)
    e("s_mov_b32 s%d, 0x%08x" % (sK, f2u(KK) if opt.gelu == 1 else f2h(KK) * 0x10001))
    set_dma_slot(2 * SLOT)
    e("s_mov_b32 s%d, 256" % sW1off)
    e("s_mov_b32 s%d, 24576" % sW2off)
    e("s_mov_b32 s%d, %d" % (sDelta, SLOT))
    e("s_mov_b32 s%d, %d" % (sDel1, SLOT))
    e("s_mov_b32 s%d, %d" % (sDel2, -2 * SLOT))
    e("s_mov_b32 s%d, 12" % sCnt)
    for s in pre: e(s)
    def with_bar(body):
        body = list(body)
        bar = ["s_waitcnt vmcnt(0)"] + ([] if opt.nobar else ["s_barrier"])
        if opt.barpos:
            idx = [i for i, l in enumerate(body) if l.startswith("v_mfma")][-opt.barpos]
            return body[:idx + 1] + bar + body[idx + 1:]
        return body + bar
    s0 = with_bar(steps[0])
    idx = [i for i, l in enumerate(s0) if l.startswith("v_mfma")][-3 * (opt.D + 2)]
    s0 = s0[:idx + 1] + ["s_waitcnt vmcnt(12)", "s_barrier"] + s0[idx + 1:]
    for s in s0: e(s)
    st("step0")
    for s in with_bar(steps[1]): e(s)
    out.append(".p2align 6")
    lab("L_loop_%s" % tag)
    for u in range(opt.unroll):
        for s in with_bar(steps[2]): e(s)
    e("s_cbranch_scc1 L_loop_%s" % tag)
    st("loop")
    epi_scalars(L)
    for s in pre12: e(s)
    for s in steps12[12]: e(s)
    st("p24")
    epilogue(L)

RED = SLOT
STG = 2 * SLOT
vG = vH
vWA = vA1
vRd = vA1 + 2
vSt = vA1 + 3
vX0 = vB1 + 48
def epi_prep(L):
    xd = ["ds_read_b128 %s, v%d offset:%d" % (vr(vG + 4 * ct, 4), vTab, TAB_G - TAB_B2 + (ct // 2) * 128 + (ct % 2) * 16) for ct in range(12)]
    xv23 = {}
    if L:
        for ct in range(12):
            xv23[(23, ct + 2) if ct < 10 else (24, 2 * (ct - 10) + 1)] = "ds_write_b128 v%d, %s offset:%d" % (vTmp + 1, ar(144 + 4 * ct, 4), ct * 1024)
    t0, t1 = vAb + 2, vAb + 3
    xv = ["v_and_b32 v%d, 15, v%d" % (t0, vLane), "v_lshrrev_b32 v%d, 4, v%d" % (t1, vLane),
          "v_lshl_add_u32 v%d, v%d, 7, s%d" % (vWA, t0, sT2), "v_and_b32 v%d, 7, v%d" % (t0, t0),
          "v_xor_b32 v%d, v%d, v%d" % (t1, t0, t1), "v_lshl_add_u32 v%d, v%d, 4, v%d" % (vWA, t1, vWA),
          "v_xor_b32 v%d, 64, v%d" % (vWA + 1, vWA),
          "v_lshrrev_b32 v%d, 3, v%d" % (t1, vLane), "v_xor_b32 v%d, v%d, v%d" % (vRd, t1, vLane),
          "v_lshl_add_u32 v%d, v%d, 4, s%d" % (vRd, vRd, sT2),
          "v_mul_u32_u24 v%d, 384, v%d" % (t1, t1), "v_lshl_add_u32 v%d, v%d, 4, v%d" % (vSt, t0, t1),
          "v_add_u32 v%d, s%d, v%d" % (vSt, sT1, vSt)]
    for k in range(16):
        src = (vR23 + k) if k < 8 else (vR45 + k - 8)
        xv += ["v_lshlrev_b32 v%d, 16, v%d" % (vX0 + 2 * k, src), "v_and_b32 v%d, 0xffff0000, v%d" % (vX0 + 2 * k + 1, src)]
    return xd, xv23, xv

def epi_scalars(L):
    e("s_mul_i32 s%d, s%d, %d" % (sT1, sWave, 3 * ROWB))
    e("s_add_u32 s%d, s%d, s%d" % (sT1, sT1, sBase))
    e("s_mul_i32 s%d, s%d, 12288" % (sT2, sWave))
    e("s_add_u32 s%d, s%d, %d" % (sT3, sT2, RED))
    e("s_add_u32 s%d, s%d, %d" % (sT2, sT2, STG))
    assert STG % 128 == 0
    if L:
        e("v_lshlrev_b32 v%d, 4, v%d" % (vTmp, vLane))
        e("v_add_u32 v%d, s%d, v%d" % (vTmp + 1, sT3, vTmp))

def epi_group(acc_regs, gam, xr, dst, tmp, unpacked=False):
    if not unpacked:
        for k in range(4):
            e("v_lshlrev_b32 v%d, 16, v%d" % (tmp + 2 * k, xr + k))
            e("v_and_b32 v%d, 0xffff0000, v%d" % (tmp + 2 * k + 1, xr + k))
    for k in range(4):
        e("v_pk_fma_f32 %s, %s, %s, %s" % (vr(tmp + 2 * k, 2), vr(acc_regs + 2 * k, 2), vr(gam + 2 * k, 2), vr(tmp + 2 * k, 2)))
    for k in range(4):
        e("v_cvt_pk_bf16_f32 v%d, v%d, v%d" % (dst + k, tmp + 2 * k, tmp + 2 * k + 1))

def epilogue(L):
    tag = "b%d" % L
    e("s_waitcnt lgkmcnt(0)")
    vAc = vB1; vTm = vB1 + 16; vXs = vB1 + 32; vO = vB1 + 40
    vLin = vP
    if L:
        e("s_barrier")
        e("s_lshl_b32 s%d, s%d, 6" % (sT1, sWave))
        e("s_add_u32 s%d, s%d, %d" % (sT1, sT1, 12 * ROWB))
        e("s_lshl_b32 s%d, s%d, 11" % (sT2, sWave))
        e("s_add_u32 s%d, s%d, %d" % (sT2, sT2, RED))
        e("v_add_u32 v%d, s%d, v%d" % (vTmp, sT2, vTmp))
        e("s_lshl_b32 s%d, s%d, 7" % (sT2, sWave))
        e("v_add_u32 v%d, s%d, v%d" % (vTmp + 1, sT2, vTab))
        lregs = [vBias, vT, vHL, vB1 + 80]; lgam = vB1 + 88
        def lreads(half):
            for w in range(4):
                for o in range(2):
                    e("ds_read_b128 %s, v%d offset:%d" % (vr(lregs[w] + 4 * o, 4), vTmp, w * 12288 + half * 8192 + o * 1024))
            for o in range(2):
                e("ds_read_b128 %s, v%d offset:%d" % (vr(lgam + 4 * o, 4), vTmp + 1, TAB_G - TAB_B2 + half * 512 + o * 16))
        def lfinish(half):
            r = lregs
            for k in range(0, 8, 2):
                e("v_pk_add_f32 %s, %s, %s" % (vr(r[0] + k, 2), vr(r[0] + k, 2), vr(r[1] + k, 2)))
                e("v_pk_add_f32 %s, %s, %s" % (vr(r[2] + k, 2), vr(r[2] + k, 2), vr(r[3] + k, 2)))
            for k in range(0, 8, 2):
                e("v_pk_add_f32 %s, %s, %s" % (vr(r[0] + k, 2), vr(r[0] + k, 2), vr(r[2] + k, 2)))
            xr = vRL + 4 * half
            epi_group(r[0], lgam, xr, xr, r[1])
            e("buffer_store_dwordx4 %s, v%d, %s, s%d offen offset:%d%s" % (vr(xr, 4), vOut, sr(S_O, 4), sT1, half * 256, OPOL))
        lreads(0)
    st("gam")
    e("s_mov_b32 s%d, %d" % (sT0, ROWB))
    e("s_mov_b32 s%d, %d" % (sSo, 2 * ROWB))
    def store(u, k):
        t, a = u // 3, u % 3
        e("buffer_store_dwordx4 %s, v%d, %s, %s offen offset:%d%s" % (vr(vLin + 8 * (u % 2) + 4 * k, 4), vSt, sr(S_O, 4),
                                                                     ["0", "s%d" % sT0, "s%d" % sSo][t], a * 128 + k * 3072, OPOL))
    n = 0
    for t in range(3):
        for m in range(6):
            u = 3 * t + m // 2
            buf = (u % 4) * 2048
            ac = vAc + 8 * (n % 2); tm = vTm + 8 * (n % 2); o = vO + 4 * (n % 2)
            for k in range(8): e("v_accvgpr_read_b32 v%d, a%d" % (ac + k, 48 * t + 8 * m + k))
            src = res_dst(t, m)
            base = int(src[2:src.index(":")])
            unp = (t == 0 and m >= 2)
            if unp: tm = vX0 + 8 * (m - 2); xr = None
            elif src[0] == "a":
                xr = vXs + 4 * (n % 2)
                for k in range(4): e("v_accvgpr_read_b32 v%d, a%d" % (xr + k, base + k))
            else: xr = base
            epi_group(ac, vG + 8 * m, xr, o, tm, unp)
            if u > 0:
                if m % 2 == 0: e("s_waitcnt lgkmcnt(0)")
                store(u - 1, m % 2)
            e("ds_write_b128 v%d, %s offset:%d" % (vWA + m % 2, vr(o, 4), buf))
            if m % 2 == 1:
                for k in range(2): e("ds_read_b128 %s, v%d offset:%d" % (vr(vLin + 8 * (u % 2) + 4 * k, 4), vRd, buf + k * 1024))
            n += 1
            if L and n == 1:
                e("s_waitcnt lgkmcnt(1)")
                lfinish(0)
                lreads(1)
            if L and n == 3:
                e("s_cmp_ge_u32 s%d, 2" % sWave)
                e("s_cbranch_scc1 L_done_%s" % tag)
                lfinish(1)
                lab("L_done_%s" % tag)
        st("t%d" % t)
    e("s_waitcnt lgkmcnt(0)")
    for k in range(2): store(8, k)
    if opt.stamps:
        st("epi")
        e("s_waitcnt vmcnt(0)")
        st("drain")
        e("s_waitcnt lgkmcnt(0)")
        if opt.dbg:
            srd(S_T, 8, 64)
            e("v_mov_b32 v2, 0")
            for i in range(len(SSETS[opt.sset])):
                e("s_sub_u32 s%d, s%d, s%d" % (sT0, sStamp + 2 * i, sStamp))
                e("v_writelane_b32 v2, s%d, %d" % (sT0, i))
            e("v_lshlrev_b32 v3, 2, v0")
            e("buffer_atomic_umax v2, v3, %s, 0 offen" % sr(S_T, 4))
            e("s_endpgm")
            return
        srd(S_T, 9, 1 << 20)
        e("s_lshl_b32 s%d, s2, 2" % sT0)
        e("s_add_u32 s%d, s%d, s%d" % (sT0, sT0, sWave))
        e("s_lshl_b32 s%d, s%d, 6" % (sT0, sT0))
        e("v_mov_b32 v2, 0")
        for i in range(len(SSETS[opt.sset])): e("v_writelane_b32 v2, s%d, %d" % (sStamp + 2 * i, i))
        out.append("; STAMPNAMES " + " ".join(SSETS[opt.sset]))
        e("v_writelane_b32 v2, s%d, 11" % sNrows)
        e("v_lshlrev_b32 v3, 2, v%d" % vLane)
        e("v_add_u32 v3, s%d, v3" % sT0)
        e("v_cmp_gt_u32 vcc, 16, v%d" % vLane)
        e("s_and_saveexec_b64 %s, vcc" % sr(sEx, 2))
        e("buffer_store_dword v2, v3, %s, 0 offen" % sr(S_T, 4))
    e("s_endpgm")

import copy
vm = VM()
head()
vm0 = vm
for L in (1, 0):
    vm = copy.deepcopy(vm0)
    lab("L_body%d" % L)
    early(L)
    prologue(L)
    main_part(L)
lab("L_exit")
e("s_endpgm")
out.append(".p2align 3")
out.append(".type L_wgtab,@object")
lab("L_wgtab")
for a, b in wg_table(): e(".long 0x%08x, 0x%08x" % (a, b))
out.append(".size L_wgtab, %d" % (252 * 8))

ref = open("cdna_kernels/%s.s.ref" % NAME).read().split("\n")
hdr = [l for l in ref if l.startswith(";") and "@launch" not in l]
txt = "\n".join(hdr) + "\n; @launch grid=(252,1,1) block=(256,1,1) lds=%d\n" % LDS_SIZE
txt += """.amdgcn_target "amdgcn-amd-amdhsa--gfx950"
.text
.globl %s_kernel
.p2align 8
.type %s_kernel,@function
%s_kernel:
""" % (NAME, NAME, NAME)
txt += "\n".join(out).replace("PF_LIM", "L_exit-L_pf-0x8000") + "\n"
txt += """.section .rodata,"a"
.p2align 6
.amdhsa_kernel %s_kernel
  .amdhsa_next_free_vgpr 512
  .amdhsa_next_free_sgpr 102
  .amdhsa_accum_offset 256
  .amdhsa_group_segment_fixed_size 0
  .amdhsa_kernarg_size 80
  .amdhsa_user_sgpr_count 2
  .amdhsa_user_sgpr_kernarg_segment_ptr 1
  .amdhsa_system_sgpr_workgroup_id_x 1
.end_amdhsa_kernel
""" % NAME
dst = [a for a in sys.argv[1:] if "=" not in a]
open(dst[0] if dst else "cdna_kernels/%s.s" % NAME, "w").write(txt)
```

```python
import math, struct, sys

NAME = "standalone__modern_conv_block_convnext__vision"
def f2u(f): return struct.unpack("<I", struct.pack("<f", f))[0]
def f2h(f): return struct.unpack("<H", struct.pack("<e", f))[0]

class Opt:
    gelu = 2
    stamps = 0
    D = 4
    R = 6
    xnt = 0
    sset = 0
    dsp = 1
    nobar = 0
    unroll = 2
    e64 = 0
    barpos = 0
    dist = 12
    prio = 0
    map = 7
    fast = 1
    gap = 12
    dbg = 0
    pe1 = 6
    pf = 1
    ont = 2
opt = Opt()
for a in sys.argv[1:]:
    if "=" in a:
        k, v = a.split("="); assert hasattr(opt, k), k; setattr(opt, k, int(v))

C0 = 2.0 * math.sqrt(2.0 / math.pi) * math.log2(math.e)
SA = (C0 * 0.044715) ** (1.0 / 3.0)
KK = C0 / SA
if opt.gelu == 2:
    KK = struct.unpack("<e", struct.pack("<e", KK))[0]
    SA = C0 / KK

XBYTES = 224 * 224 * 384
ROWB = 86016
SLOT = 49408
XB = SLOT
W2E = 6160
PL = 34816
PR = 2304
TAB_B1 = XB + 3 * PL
TAB_B2 = TAB_B1 + 3072
TAB_G = TAB_B2 + 1024
DUMMY = TAB_G + 1024
IMG = 24576
JS = 1936
XCH = 40960
XST = XCH + 6144
LDS_SIZE = 163840
OOB = 0x40000
XPOL = " nt" if opt.xnt else ""
OPOL = ["", " nt", " sc1", " sc0 sc1"][opt.ont]
assert DUMMY + 1280 <= LDS_SIZE and IMG + 8 * JS <= XCH and XST + 1024 <= SLOT

S_X = 8; S_W1 = 12; S_W2 = 16; S_O = 20; S_T = 24
sWave = 28; sBase = 29; sNrows = 31
sK = 32; sDelta = 33; sW1off = 35; sW2off = 36; sCnt = 37
sT0 = 38; sT1 = 39; sT2 = 40; sT3 = 41
sEx = 42
sC1 = 44; sM1 = 45; sM2 = 46; sSo = 47; sDel1 = 48; sDel2 = 49
sXm7 = 30; sXm1 = 50; sXm8 = 51; sXs8 = 52; sQlo = 53; sTb = 54; sQn = 56; sC2 = 57; sLut = 58
sPtr = 60
S_B = 60; S_G = 64
sStamp = 80

vLane = 1
vA1 = 2; vA2 = 6; vAb = 10
vD1 = 14; vD2 = 15; vOut = 16; vTab = 17; vTmp = 18
vBias = 20
vT = 28
vRL = 36
vHL = 44; vPL = 48
vP = 52
vH = 76
vR45 = 124
vR23 = 148
vB1 = 160
aRing = 192
aRes = 216
vLW = 19
vLY = 20
vRA = 32; vLF = 34; vLG = 35
vS = 40
vIA = 48
vFb = 52
vLS = 72
vYt = [160, 76, 208]
vGb = 124
vF = 140; vGa = 144
vX = 148
vIdx = 157; vLSw = 158; vLSr = 159
aLD = 144; aFb = 180; aGb = 200
vDW = 76; vQ = 80; vTB = 96; vU = 116

out = []
def e(s): out.append("    " + s)
def lab(s): out.append(s + ":")
def cm(s): out.append("    ; " + s)
SSETS = [["start", "issued", "diag", "conv0", "conv1", "conv2", "conv3", "step0", "loop", "epi", "drain"],
         ["start", "loop", "p24", "gam", "t0", "t1", "t2", "epi", "drain"],
         ["start", "kernarg", "issued", "setup", "dwin", "img", "bar", "diag", "x0in", "mf0", "conv0"],
         ["start", "diag", "x0in", "mf0", "x1in", "mf1", "x2in", "mf2", "red", "conv3", "step0"],
         ["start", "x0in", "mf0", "conv0", "mf1", "conv1", "mf2", "conv2", "conv3", "step0", "drain"]]
def st(name):
    names = SSETS[opt.sset]
    if opt.stamps and name in names: stamp(names.index(name))
def stamp(i):
    if opt.stamps: e("%s s[%d:%d]" % ("s_memrealtime" if opt.stamps == 1 else "s_memtime", sStamp + 2 * i, sStamp + 2 * i + 1))
def vr(b, n): return "v[%d:%d]" % (b, b + n - 1)
def ar(b, n): return "a[%d:%d]" % (b, b + n - 1)
def sr(b, n): return "s[%d:%d]" % (b, b + n - 1)
def srd(s, ptr_slot, nbytes):
    e("s_mov_b32 s%d, s%d" % (s, sPtr + 2 * ptr_slot))
    e("s_and_b32 s%d, s%d, 0xffff" % (s + 1, sPtr + 2 * ptr_slot + 1))
    e("s_mov_b32 s%d, %d" % (s + 2, nbytes))
    e("s_mov_b32 s%d, 0x20000" % (s + 3))

def capture(fn, *args):
    global out
    save = out; out = []
    fn(*args)
    got = [l.strip() for l in out if not l.strip().startswith(";")]
    out = save
    return got

class VM:
    def __init__(self): self.issued = []; self.pending = []
    def issue_now(self, tag, lines):
        for l in lines: e(l)
        self.issued.append(tag)
    def queue(self, tag, lines): self.pending.append((tag, lines))
    def pop(self, n=1):
        for _ in range(n):
            if self.pending:
                tag, lines = self.pending.pop(0); self.issue_now(tag, lines)
    def wait(self, pred):
        while any(pred(t) for t, _ in self.pending): self.pop()
        idx = [i for i, t in enumerate(self.issued) if pred(t)]
        e("s_waitcnt vmcnt(%d)" % (len(self.issued) - 1 - max(idx)))
vm = None

NWG = 256 if opt.map else 252
def wg_table():
    rows = []
    seen = set()
    if opt.map >= 7:
        own = {x: [] for x in range(8)}
        def deal(blocks, plan):
            for x, k in plan:
                own[x] += blocks[:k]; blocks = blocks[k:]
            assert not blocks
        band = lambda r0, h, nb: [(r0 + h * b, st_, h) for st_ in range(14) for b in range(nb)]
        if opt.map == 7:
            deal(band(0, 13, 4), [(0, 28), (2, 28)]); deal(band(52, 13, 4), [(4, 21), (1, 14), (6, 21)])
            deal(band(104, 12, 3), [(4, 11), (1, 18), (6, 11), (0, 2)]); deal(band(140, 12, 7), [(3, 32), (5, 32), (7, 32), (2, 2)])
        elif opt.map == 11:
            hs = [13, 13, 12, 13, 12, 13, 12, 13, 12, 13, 13, 12, 13, 12, 12, 12, 12, 12]
            r0 = [sum(hs[:b]) for b in range(18)]
            left = []
            for half, (xu, xl) in enumerate(((0, 4), (2, 6))):
                bl = [(r0[b], 5 * half + k, hs[b]) for b in range(13) for k in range(5)]
                own[xu] += bl[:32]; left.append(bl[32]); own[xl] += bl[33:]
            h2 = [12, 12, 12, 11, 12, 12, 12, 12, 11, 12, 12, 12, 12, 11, 12, 12, 12, 12, 11]
            right = [(sum(h2[:b]), 10 + k, h2[b]) for b in range(19) for k in range(4)]
            bottom = [(r0[b], st_, 12) for st_ in range(9, -1, -1) for b in range(13, 18)]
            deal(right + bottom + left, [(1, 32), (3, 32), (5, 32), (7, 32)])
        elif opt.map == 9:
            deal(band(0, 13, 4), [(0, 28), (2, 28)]); deal(band(52, 13, 4), [(4, 24), (1, 8), (6, 24)])
            deal(band(104, 12, 3), [(4, 7), (0, 3), (1, 24), (2, 1), (6, 7)]); deal(band(140, 12, 7), [(3, 32), (5, 32), (7, 32), (2, 2)])
        elif opt.map == 10:
            deal(band(0, 13, 4), [(0, 28), (2, 28)]); deal(band(52, 13, 4), [(4, 21), (1, 14), (6, 21)])
            deal(band(104, 12, 3), [(4, 10), (0, 4), (1, 16), (2, 2), (6, 10)]); deal(band(140, 12, 7), [(3, 32), (5, 32), (7, 32), (2, 2)])
        else:
            deal(band(0, 13, 4), [(0, 24), (1, 8), (2, 24)]); deal(band(52, 13, 4), [(4, 22), (1, 12), (6, 22)])
            deal(band(104, 12, 3), [(4, 9), (0, 7), (1, 12), (2, 5), (6, 9)]); deal(band(140, 12, 7), [(3, 32), (5, 32), (7, 32), (2, 2)])
    for wg in range(NWG):
        x, n = wg & 7, wg >> 3
        if opt.map == 0:
            idx = 63 * (x & 3) + (32 if x >= 4 else 0) + n
            h, rem = idx // 126, idx % 126
            b, strip = rem // 7, 7 * h + rem % 7
            row0 = b * 112 // 9; nrows = (b + 1) * 112 // 9 - row0
        elif opt.map >= 7:
            if n >= len(own[x]):
                rows.append((0, 0)); continue
            row0, strip, nrows = own[x][n]
        elif opt.map in (5, 6):
            h, v = (x // 2) % 2, x // 4
            ne = 3 if opt.map == 5 else 4
            no = 35 - ne
            if x % 2 == 0 and n < 28:
                strip = 7 * h + n % 7; row0 = 13 * (4 * v + n // 7); nrows = 13
            elif n >= (28 + ne if x % 2 == 0 else no):
                rows.append((0, 0)); continue
            else:
                k = (ne * v + n - 28) if x % 2 == 0 else (2 * ne + no * v + n)
                strip = 7 * h + k % 7; row0 = 104 + 12 * (k // 7); nrows = 12
        elif opt.map >= 2:
            order = {0: 0, 4: 1, 1: 2, 5: 3, 2: 0, 6: 1, 3: 2, 7: 3}
            h = 0 if x in (0, 4, 1, 5) else 1
            if opt.map == 2:
                cnt = [32, 32, 30, 32]; hs = [13, 12, 13, 13, 12, 13, 13, 12, 13, 12, 13, 12, 13, 12, 12, 12, 12, 12]
            elif opt.map == 3:
                cnt = [32, 32, 31, 31]; hs = [13, 13, 12, 13, 13, 13, 13, 12, 13, 12, 12, 13, 12, 12, 12, 12, 12, 12]
            else:
                cnt = [32, 32, 32, 30]; hs = [13, 12, 13, 13, 12, 13, 12, 13, 12, 12, 13, 12, 13, 12, 12, 13, 12, 12]
            assert sum(hs) == 224 and sum(cnt) == 126
            o = order[x]
            if n >= cnt[o]:
                rows.append((0, 0)); continue
            k = sum(cnt[:o]) + n
            strip = 7 * h + k % 7; row0 = sum(hs[:k // 7]); nrows = hs[k // 7]
        else:
            h, v = x % 2, (x % 4) // 2
            if x < 4 and n < 28:
                strip = 7 * h + n % 7; row0 = 13 * (4 * v + n // 7); nrows = 13
            elif x < 4 and n == 31:
                rows.append((0, 0)); continue
            else:
                k = (3 * v + n - 28) if x < 4 else (6 + 32 * v + n)
                strip = 7 * h + k % 7; row0 = 104 + 12 * (k // 7); nrows = 12
        for r in range(row0, row0 + nrows):
            assert (r, strip) not in seen; seen.add((r, strip))
        base = ((row0 - 1) * ROWB + strip * 6144 - 384) & 0xffffffff
        qlo = 1 if strip == 0 else 0; qn = (17 if strip == 13 else 18) - qlo
        rows.append((base, qlo | qn << 8 | nrows << 16))
    assert len(seen) == 224 * 14
    return rows

def dma_w(i, kind):
    if kind == 1:
        return (["s_add_u32 m0, s%d, %d" % (sM1, i * 1024), "s_add_u32 s%d, s%d, %d" % (sSo, sW1off, i * 12288)],
                "buffer_load_dwordx4 v%d, %s, s%d offen lds" % (vD1, sr(S_W1, 4), sSo))
    oo, t = i // 3, i % 3
    return (["s_add_u32 m0, s%d, %d" % (sM2, oo * 3080 + t * 1024), "s_add_u32 s%d, s%d, %d" % (sSo, sW2off, oo * 1536 + t * 128)],
            "buffer_load_dwordx4 v%d, %s, s%d offen lds" % (vD2, sr(S_W2, 4), sSo))

def set_dma_slot(slot_base_imm):
    e("s_mul_i32 s%d, s%d, 6144" % (sM1, sWave))
    e("s_add_u32 s%d, s%d, %d" % (sM1, sM1, slot_base_imm))
    e("s_mul_i32 s%d, s%d, %d" % (sM2, sWave, W2E))
    e("s_add_u32 s%d, s%d, %d" % (sM2, sM2, slot_base_imm + 24576))


def x_item(a, i):
    off = (" offset:%d" % (128 * a)) if a else ""
    j, sec = i // 2, i % 2
    if i < 7: m = ["s_add_u32 m0, s%d, %d" % (sXm1, a * (PL - 128) + j * 9216 + sec * 4096), "s_nop 0"]
    else:
        r = sXm7 if i == 7 else sXm8
        m = ["s_mov_b32 m0, s%d" % r, "s_add_u32 s%d, s%d, s%d" % (r, r, sXs8)]
    return (("x", a), m + ["buffer_load_dwordx4 v%d, %s, 0 offen%s%s lds" % (vX + i, sr(S_X, 4), off, XPOL)])

def x_voff_a(i):
    n, r, q, f = vU, vU + 1, vU + 2 + min(i, 2), vTB + 10
    l = []
    if i == 0: l += ["v_lshrrev_b32 v%d, 3, v0" % n, "v_and_b32 v%d, 7, v0" % (vU + 5)]
    elif i == 1: l += ["v_add_u32 v%d, 32, v%d" % (n, n)]
    else: l += ["v_bfe_u32 v%d, v0, 3, 3" % n, "v_add_u32 v%d, 64, v%d" % (n, n)]
    l += ["v_mul_u32_u24 v%d, 3641, v%d" % (r, n), "v_lshrrev_b32 v%d, 16, v%d" % (r, r),
          "v_mul_u32_u24 v%d, 18, v%d" % (q, r), "v_sub_u32 v%d, v%d, v%d" % (q, n, q),
          "v_bfe_u32 v%d, v%d, 1, 3" % (f, q), "v_xor_b32 v%d, v%d, v%d" % (f, f, vU + 5),
          "v_mul_u32_u24 v%d, %d, v%d" % (r, ROWB - 18 * 384, r),
          "v_mad_u32_u24 v%d, v%d, s%d, v%d" % (r, n, sC1, r),
          "v_lshl_add_u32 v%d, v%d, 4, v%d" % (vX + i, f, r)]
    return l
def x_voff_b(i, base):
    q = vU + 2 + min(i, 2)
    return ["v_subrev_u32 v%d, s%d, v%d" % (q, sQlo, q), "v_cmp_gt_u32 vcc, s%d, v%d" % (sQn, q),
            "v_add_u32 v%d, s%d, v%d" % (vX + i, base, vX + i), "s_nop 0",
            "v_cndmask_b32 v%d, v%d, v%d, vcc" % (vX + i, vU + 6, vX + i)]
for n in range(288): assert (n * 3641) >> 16 == n // 18

def head():
    e("s_cmp_ge_u32 s2, %d" % NWG)
    e("s_cbranch_scc1 L_exit")
    st("start")
    e("s_load_dwordx2 %s, s[0:1], 0" % sr(S_X, 2))
    e("s_load_dwordx2 %s, s[0:1], 8" % sr(S_T, 2))
    e("s_getpc_b64 %s" % sr(sEx, 2))
    lab("L_pf")
    e("s_lshl_b32 s%d, s2, 3" % sT0)
    e("s_add_u32 s%d, s%d, L_wgtab-L_pf" % (sT0, sT0))
    e("s_load_dwordx2 %s, %s, s%d" % (sr(sTb, 2), sr(sEx, 2), sT0))
    if opt.pf:
        e("s_lshr_b32 s%d, s2, 3" % sT3)
        e("s_lshl_b32 s%d, s%d, 12" % (sT3, sT3))
        e("v_lshrrev_b32 v%d, 3, v0" % (vTB + 8))
        e("v_lshl_add_u32 v%d, v%d, 7, s%d" % (vTB + 8, vTB + 8, sT3))
        e("v_min_u32 v%d, L_exit-L_pf, v%d" % (vTB + 8, vTB + 8))
        vm.issue_now("dw", ["global_load_dword v%d, v%d, %s" % (vTB + 6, vTB + 8, sr(sEx, 2))])
    e("v_lshrrev_b32 v%d, 6, v0" % vS)
    e("s_movk_i32 s%d, 384" % sC1)
    e("v_readfirstlane_b32 s%d, v%d" % (sWave, vS))
    for l in x_voff_a(0): e(l)
    e("v_bfrev_b32 v%d, 2" % (vU + 6))
    e("v_lshlrev_b32 v%d, 4, v0" % vTmp)
    e("s_mov_b32 s%d, %d" % (S_X + 2, XBYTES))
    e("s_mov_b32 s%d, 0x20000" % (S_X + 3))
    e("s_movk_i32 s%d, 3456" % (S_T + 2))
    e("s_mov_b32 s%d, s%d" % (S_T + 3, S_X + 3))
    e("s_lshl_b32 s%d, s%d, 10" % (sXm1, sWave))
    e("s_add_u32 s%d, s%d, %d" % (sXm1, sXm1, XB))
    e("s_waitcnt lgkmcnt(0)")
    st("kernarg")
    vm.issue_now("dw", ["buffer_load_dwordx4 %s, v%d, %s, 0 offen" % (vr(vDW, 4), vTmp, sr(S_T, 4))])
    e("s_load_dwordx2 %s, s[0:1], 16" % sr(S_W1, 2))
    e("s_load_dwordx2 %s, s[0:1], 32" % sr(S_W2, 2))
    e("s_load_dwordx2 %s, s[0:1], 56" % sr(S_O, 2))
    e("s_load_dwordx2 %s, s[0:1], 24" % sr(S_B, 2))
    e("s_load_dwordx4 %s, s[0:1], 40" % sr(S_G, 4))
    if opt.stamps: e("s_load_dwordx4 %s, s[0:1], 64" % sr(sPtr + 16, 4))
    e("s_and_b32 s%d, s%d, 0xff" % (sQlo, sTb + 1))
    e("s_bfe_u32 s%d, s%d, 0x80008" % (sQn, sTb + 1))
    e("s_lshr_b32 s%d, s%d, 16" % (sNrows, sTb + 1))
    if opt.map == 11:
        e("s_cmp_lt_u32 s%d, 13" % sNrows)
        e("s_cbranch_scc1 L_body0")
    else:
        e("s_cmp_eq_u32 s%d, 12" % sNrows)
        e("s_cbranch_scc1 L_body0")
        if opt.map:
            e("s_cmp_eq_u32 s%d, 0" % sNrows)
            e("s_cbranch_scc1 L_exit")

def issue_plane0(L, filler):
    add = lambda i: ["v_add_u32 v%d, s%d, v%d" % (vX + i, sC2, vX + i - 2)]
    va1 = x_voff_a(1); va8 = x_voff_a(8)
    sc = ["s_add_u32 s%d, s%d, %d" % (sXm7, sXm1, 3 * 9216 + 4096), "s_mul_i32 s%d, s%d, 9216" % (sXm8, sWave),
          "s_add_u32 s%d, s%d, %d" % (sXm8, sXm8, XB + 8192), "s_mul_i32 s%d, s%d, s%d" % (sT2, sWave, sC2),
          "s_add_u32 s%d, s%d, s%d" % (sT2, sT2, sTb), "s_cmp_lt_u32 s%d, 3" % sWave,
          "s_cselect_b32 s%d, s%d, %d" % (sXm7, sXm7, DUMMY), "s_cselect_b32 s%d, s%d, %d" % (sXm8, sXm8, DUMMY),
          "s_cselect_b32 s%d, %d, 0" % (sXs8, PL - 128), "s_cselect_b32 s%d, s%d, 0x40000000" % (sT2, sT2)]
    seq = [(x_voff_b(0, sTb), 0), (["s_mov_b32 s%d, %d" % (sC2, 4 * ROWB)] + add(2), 2), (add(4) + va1, 4),
           (add(6) + x_voff_b(1, sTb), 6), (sc, 1), (add(3) + va8, 3), (add(5) + x_voff_b(8, sT2), 5),
           (["s_cmp_lt_u32 s%d, %d" % (sWave, 3 if L else 1), "s_cselect_b32 s%d, s%d, 0x40000000" % (sT3, sC2),
             "v_add_u32 v%d, s%d, v%d" % (vX + 7, sT3, vX + 5)], 7), ([], 8)]
    for n, (pre, i) in enumerate(seq):
        for l in pre: e(l)
        k = len(pre)
        while n >= 2 and k < opt.gap and filler and "vcc" not in filler[0]:
            e(filler.pop(0)); k += 1
        vm.issue_now(*x_item(0, i))
    for a in (1, 2):
        for i in range(9): vm.queue(*x_item(a, i))

def early(L):
    vm.queue("tab", ["s_waitcnt lgkmcnt(0)", "s_cmp_eq_u32 s%d, 3" % sWave, "s_cselect_b64 %s, %s, %s" % (sr(S_B, 2), sr(S_G, 2), sr(S_B, 2)),
                     "s_movk_i32 s%d, 1536" % (S_B + 2), "s_cselect_b32 s%d, 384, s%d" % (S_B + 2, S_B + 2), "s_mov_b32 s%d, s%d" % (S_B + 3, S_X + 3),
                     "s_cselect_b32 s%d, 63, -1" % sT3, "v_and_b32 v%d, s%d, v0" % (vTB + 7, sT3), "v_lshlrev_b32 v%d, 3, v%d" % (vTB + 7, vTB + 7),
                     "buffer_load_dwordx2 %s, v%d, %s, 0 offen" % (vr(vTB, 2), vTB + 7, sr(S_B, 4))])
    vm.queue("tab", ["s_mov_b64 %s, %s" % (sr(S_G, 2), sr(S_G + 2, 2)), "s_movk_i32 s%d, 384" % (S_G + 2), "s_mov_b32 s%d, s%d" % (S_G + 3, S_X + 3),
                     "v_lshlrev_b32 v%d, 3, v%d" % (vTB + 7, vLane),
                     "buffer_load_dwordx2 %s, v%d, %s, 0 offen" % (vr(vTB + 2, 2), vTB + 7, sr(S_G, 4))])
    fill = capture(setup_early) + ["v_mov_b32 v%d, 0" % (vFb + k) for k in range(4)]
    if L or not opt.prio: issue_plane0(L, fill)
    e("s_add_u32 s%d, s%d, %d" % (sBase, sTb, ROWB + 384))
    st("issued")
    build_diag(L, fill)

px, g_, gl, gh = vS + 4, vS + 5, vS + 6, vS + 7
def setup_early():
    t0, t1, t2 = vS, vS + 1, vS + 2
    e("v_and_b32 v%d, 63, v0" % vLane)
    for j in range(8): e("v_mov_b32 v%d, 0" % (vQ + 2 * j + 1 - j // 4))
    cm("image write address: tap = tid/24 -> (pair, half)")
    code = [0, 1, 4, 2, 3, 5, 8, 9, 7, 6, 15]
    lut = sum(c << (4 * i) for i, c in enumerate(code))
    e("s_mov_b32 s%d, 0x%08x" % (sLut, lut & 0xffffffff))
    e("s_mov_b32 s%d, 0x%08x" % (sLut + 1, lut >> 32))
    e("v_mul_u32_u24 v%d, 2731, v0" % t0)
    e("v_lshrrev_b32 v%d, 16, v%d" % (t0, t0))
    e("v_mul_u32_u24 v%d, 24, v%d" % (t1, t0))
    e("v_sub_u32 v%d, v0, v%d" % (t1, t1))
    e("v_lshlrev_b32 v%d, 2, v%d" % (t0, t0))
    e("v_lshrrev_b64 %s, v%d, %s" % (vr(t2, 2), t0, sr(sLut, 2)))
    e("v_and_b32 v%d, 1, v%d" % (t0, t2))
    e("v_lshlrev_b32 v%d, 3, v%d" % (t0, t0))
    e("v_lshl_add_u32 v%d, v%d, 4, v%d" % (t0, t1, t0))
    e("v_bfe_u32 v%d, v%d, 1, 3" % (t2, t2))
    e("v_mul_u32_u24 v%d, 384, v%d" % (t1, t2))
    e("v_cmp_gt_u32 vcc, 5, v%d" % t2)
    e("v_add_u32 v%d, v%d, v%d" % (t0, t0, t1))
    e("v_mov_b32 v%d, %d" % (t1, OOB))
    e("v_cndmask_b32 v%d, v%d, v%d, vcc" % (vU + 7, t1, t0))
    e("v_and_b32 v%d, 15, v%d" % (px, vLane))
    e("v_lshrrev_b32 v%d, 4, v%d" % (g_, vLane))
    e("v_and_b32 v%d, 1, v%d" % (gl, g_))
    e("v_lshrrev_b32 v%d, 1, v%d" % (gh, g_))
    cm("image read addresses (invalid lanes out of range -> read 0)")
    e("v_lshrrev_b32 v%d, 3, v%d" % (t0, px))
    e("v_xor_b32 v%d, v%d, v%d" % (t0, t0, gl))
    e("v_mul_u32_u24 v%d, %d, v%d" % (t0, OOB, t0))
    e("v_lshl_add_u32 v%d, v%d, 4, v%d" % (t0, gl, t0))
    e("v_and_b32 v%d, 7, v%d" % (t1, px))
    e("v_mul_u32_u24 v%d, %d, v%d" % (t1, JS, t1))
    e("v_add_u32 v%d, v%d, v%d" % (t0, t0, t1))
    e("v_mul_u32_u24 v%d, 384, v%d" % (t1, gh))
    e("v_add_u32 v%d, v%d, v%d" % (vIA, t0, t1))
    e("v_xor_b32 v%d, 1, v%d" % (t1, gh))
    e("v_mul_u32_u24 v%d, %d, v%d" % (t1, OOB, t1))
    e("v_add_u32 v%d, v%d, v%d" % (vIA + 1, t0, t1))
    e("s_lshl_b32 s%d, s%d, 5" % (sT0, sWave))
    e("v_add_u32 v%d, s%d, v%d" % (vIA + 2, sT0, vIA))
    e("v_add_u32 v%d, s%d, v%d" % (vIA + 3, sT0, vIA + 1))

def setup_late():
    t0, t1, t2, t3 = vS, vS + 1, vS + 2, vS + 3
    cm("W1 dma voffset")
    e("v_lshrrev_b32 v%d, 3, v%d" % (t0, vLane))
    e("v_and_b32 v%d, 7, v%d" % (t1, vLane))
    e("v_and_b32 v%d, 6, v%d" % (t2, t0))
    e("v_xor_b32 v%d, v%d, v%d" % (t1, t1, t2))
    e("v_mul_u32_u24 v%d, 1536, v%d" % (t0, t0))
    e("v_lshl_add_u32 v%d, v%d, 4, v%d" % (vD1, t1, t0))
    e("s_mul_i32 s%d, s%d, %d" % (sT0, sWave, 48 * 1536))
    e("v_add_u32 v%d, s%d, v%d" % (vD1, sT0, vD1))
    cm("W2 dma voffset")
    e("v_bfe_u32 v%d, v%d, 2, 3" % (t0, vLane))
    e("v_and_b32 v%d, 4, v%d" % (t1, t0))
    e("v_add_u32 v%d, v%d, v%d" % (t0, t0, t1))
    e("v_mul_u32_u24 v%d, 384, v%d" % (t0, t0))
    e("v_lshl_add_u32 v%d, v%d, 6, v%d" % (t0, gh, t0))
    e("v_and_b32 v%d, 3, v%d" % (t1, vLane))
    e("v_lshl_add_u32 v%d, v%d, 4, v%d" % (vD2, t1, t0))
    e("s_mul_i32 s%d, s%d, %d" % (sT0, sWave, 16 * 384))
    e("v_add_u32 v%d, s%d, v%d" % (vD2, sT0, vD2))
    e("s_mov_b32 s%d, %d" % (S_W1 + 2, 192 * 768 * 2))
    e("s_mov_b32 s%d, s%d" % (S_W1 + 3, S_X + 3))
    e("s_mov_b64 %s, %s" % (sr(S_W2 + 2, 2), sr(S_W1 + 2, 2)))
    e("s_mov_b64 %s, %s" % (sr(S_O + 2, 2), sr(S_X + 2, 2)))
    set_dma_slot(0)
    e("s_mov_b32 s%d, 0" % sW1off)
    cm("sparse index: every group selects (row%4, (row+1)%4)")
    e("v_add_u32 v%d, 1, v%d" % (t0, t1))
    e("v_and_b32 v%d, 3, v%d" % (t0, t0))
    e("v_lshl_add_u32 v%d, v%d, 2, v%d" % (t0, t0, t1))
    e("v_mul_u32_u24 v%d, 0x1111, v%d" % (vIdx, t0))
    cm("conv B-frag addresses")
    e("s_mul_i32 s%d, s%d, %d" % (sT0, sWave, 3 * PR))
    e("s_add_u32 s%d, s%d, %d" % (sT0, sT0, XB))
    e("s_lshl_b32 s%d, s%d, 5" % (sT1, sWave))
    for kind, dst, ldst in ((0, vF, vLF), (1, vGa, vLG), (2, vRA, None)):
        if kind == 0: e("v_add_u32 v%d, v%d, v%d" % (t0, gl, px))
        else: e("v_add_u32 v%d, %d, v%d" % (t0, 2 if kind == 1 else 1, px))
        e("v_bfe_u32 v%d, v%d, 1, 3" % (t1, t0))
        e("v_xor_b32 v%d, v%d, v%d" % (t1, t1, gh if kind < 2 else g_))
        e("v_lshlrev_b32 v%d, 7, v%d" % (t0, t0))
        e("v_lshl_add_u32 v%d, v%d, 4, v%d" % (t0, t1, t0))
        if kind == 1:
            e("v_mul_u32_u24 v%d, %d, v%d" % (t1, PR, gl))
            e("v_add_u32 v%d, v%d, v%d" % (t0, t0, t1))
        if kind == 2: e("v_add_u32 v%d, %d, v%d" % (t0, PR, t0))
        e("v_add_u32 v%d, s%d, v%d" % (dst, sT0, t0))
        if kind < 2:
            for k in range(1, 4): e("v_xor_b32 v%d, %d, v%d" % (dst + k, 32 * k, dst))
            e("v_xor_b32 v%d, s%d, v%d" % (t0, sT1, t0))
            e("v_add_u32 v%d, %d, v%d" % (ldst, XB + 12 * PR, t0))
        else:
            e("v_xor_b32 v%d, 64, v%d" % (dst + 1, dst))
    cm("L exchange addresses")
    e("s_lshr_b32 s%d, s%d, 1" % (sT0, sWave))
    e("s_lshl_b32 s%d, s%d, 10" % (sT0, sT0))
    e("s_and_b32 s%d, s%d, 1" % (sT1, sWave))
    e("s_lshl_b32 s%d, s%d, 3" % (sT1, sT1))
    e("s_add_u32 s%d, s%d, s%d" % (sT0, sT0, sT1))
    e("v_lshl_add_u32 v%d, v%d, 4, s%d" % (vLW, vLane, sT0))
    e("v_lshlrev_b32 v%d, 5, v%d" % (vLSr, px))
    e("s_lshl_b32 s%d, s%d, 2" % (sT0, sWave))
    e("v_lshl_add_u32 v%d, v%d, 4, v%d" % (vLSw, gh, vLSr))
    e("v_add_u32 v%d, s%d, v%d" % (vLSw, sT0, vLSw))
    cm("main-loop LDS addresses")
    e("v_bfe_u32 v%d, v%d, 2, 3" % (t0, vLane))
    e("v_and_b32 v%d, 3, v%d" % (t2, vLane))
    e("v_lshlrev_b32 v%d, 7, v%d" % (t3, t0))
    e("v_lshl_add_u32 v%d, v%d, 10, v%d" % (t3, gh, t3))
    e("v_lshl_add_u32 v%d, v%d, 3, v%d" % (t3, t2, t3))
    e("v_lshrrev_b32 v%d, 1, v%d" % (vA1, t0))
    e("v_xor_b32 v%d, s%d, v%d" % (vA1, sWave, vA1))
    e("v_lshl_add_u32 v%d, v%d, 5, v%d" % (vA1, vA1, t3))
    for p in range(1, 4): e("v_xor_b32 v%d, %d, v%d" % (vA1 + p, 32 * p, vA1))
    e("v_mul_u32_u24 v%d, 3080, v%d" % (t3, gl))
    e("v_lshl_add_u32 v%d, v%d, 8, v%d" % (t3, gh, t3))
    e("v_lshl_add_u32 v%d, v%d, 4, v%d" % (t3, px, t3))
    e("v_lshlrev_b32 v%d, 4, v%d" % (t2, g_))
    for p in range(4):
        e("s_xor_b32 s%d, s%d, %d" % (sT0, sWave, p))
        e("s_mul_i32 s%d, s%d, %d" % (sT1, sT0, W2E))
        e("s_add_u32 s%d, s%d, %d" % (sT1, sT1, SLOT + 24576))
        e("v_add_u32 v%d, s%d, v%d" % (vA2 + p, sT1, t3))
    assert TAB_B1 % 256 == 0
    e("s_lshl_b32 s%d, s%d, 6" % (sT0, sWave))
    e("s_add_u32 s%d, s%d, %d" % (sT0, sT0, TAB_B1))
    e("v_add_u32 v%d, s%d, v%d" % (vAb, sT0, t2))
    for p in range(1, 4): e("v_xor_b32 v%d, %d, v%d" % (vAb + p, 64 * p, vAb))
    e("v_lshlrev_b32 v%d, 5, v%d" % (vTab, g_))
    e("v_add_u32 v%d, %d, v%d" % (vTab, TAB_B2, vTab))
    e("v_mul_u32_u24 v%d, 384, v%d" % (vOut, px))
    e("v_add3_u32 v%d, v%d, v%d, s%d" % (vOut, vOut, t2, sBase))

def build_diag(L, early):
    late0 = capture(setup_late)
    zs = ["v_mfma_f32_32x32x16_bf16 %s, %s, %s, 0" % (vr(b, 16), vr(vFb, 4), vr(vFb, 4)) for b in range(160, 256, 16)]
    zs += ["v_mfma_f32_16x16x32_bf16 %s, %s, %s, 0" % (vr(b, 4), vr(vFb, 4), vr(vFb, 4)) for b in range(vLY, vLY + 12, 4)]
    late = []
    for k, l in enumerate(late0):
        late.append(l)
        if k % 10 == 9 and zs: late.append(zs.pop(0))
    assert not zs
    for k, l in enumerate(early):
        e(l)
        if k % 10 == 5: vm.pop()
    cm("sparse-diagonal image")
    vm.wait(lambda t: t == "dw")
    st("dwin")
    for j in range(8):
        d = vQ + 2 * j + j // 4
        if j % 2: e("v_lshrrev_b32 v%d, 16, v%d" % (d, vDW + j // 2))
        else: e("v_and_b32 v%d, 0xffff, v%d" % (d, vDW + j // 2))
    for j in range(8):
        e("ds_write_b64 v%d, %s offset:%d" % (vU + 7, vr(vQ + 2 * j, 2), IMG + j * JS))
    for l in late[:16]: e(l)
    late = late[16:]
    vm.pop()
    st("img")
    e("s_waitcnt lgkmcnt(0)")
    e("s_barrier")
    st("bar")
    rds = []
    for cg in range(12):
        for s_, (a, off) in enumerate(((vIA, 0), (vIA, 768), (vIA + 1, 1536))):
            rds.append("ds_read_b128 %s, v%d offset:%d" % (ar(12 * cg + 4 * s_, 4), a, IMG + off + cg * 32))
    for a_ in range(3 if L else 0):
        for s_, (a, off) in enumerate(((vIA + 2, 0), (vIA + 2, 768), (vIA + 3, 1536))):
            rds.append("ds_read_b128 %s, v%d offset:%d" % (ar(aLD + 12 * a_ + 4 * s_, 4), a, IMG + off + a_ * 128))
    per = (len(late) + 8) // 9
    for f, r in enumerate(rds):
        e(r)
        if f % (len(rds) // 9) == len(rds) // 9 - 1:
            vm.pop()
            for l in late[:per // 2]: e(l)
            if L and opt.fast == 2: vm.pop()
            for l in late[per // 2:per]: e(l)
            late = late[per:]
    assert not late
    if not L and opt.prio == 1: issue_plane0(L, [])
    for i in range(6):
        sc, ins = dma_w(i, 1); vm.queue("w0", sc + [ins])
    vm.wait(lambda t: t == "tab")
    e("v_mfma_f32_32x32x16_bf16 %s, %s, %s, 0" % (vr(76, 16), vr(vFb, 4), vr(vFb, 4)))
    tables()
    if L:
        e("s_mul_i32 s%d, s%d, %d" % (sT0, sWave, -3 * PR))
        e("s_add_u32 s%d, s%d, %d" % (sT0, sT0, 12 * PR))
        e("s_lshr_b32 s%d, s%d, 1" % (sT1, sWave))
        e("s_mul_i32 s%d, s%d, %d" % (sT1, sT1, PL))
        e("s_add_u32 s%d, s%d, s%d" % (sT0, sT0, sT1))
        e("s_and_b32 s%d, s%d, 1" % (sT1, sWave))
        e("s_lshl_b32 s%d, s%d, 6" % (sT1, sT1))
        e("v_xor_b32 v%d, s%d, v%d" % (vTmp, sT1, vRA))
        e("v_add_u32 v%d, s%d, v%d" % (vTmp, sT0, vTmp))
    if not L and opt.prio == 2:
        w0 = vm.pending; vm.pending = []
        issue_plane0(L, [])
        vm.pending += w0
    while any(tg == ("x", 1) for tg, _ in vm.pending): vm.pop()
    e("s_waitcnt lgkmcnt(0)")
    for b in (92, 108): e("v_mfma_f32_32x32x16_bf16 %s, %s, %s, 0" % (vr(b, 16), vr(vFb, 4), vr(vFb, 4)))
    st("diag")

def tables():
    def unpack_scale(src, dst, scale):
        e("s_mov_b32 s%d, 0x%08x" % (sT0, f2u(scale)))
        for h in range(2):
            e("v_lshlrev_b32 v%d, 16, v%d" % (dst + 2 * h, src + h))
            e("v_and_b32 v%d, 0xffff0000, v%d" % (dst + 2 * h + 1, src + h))
        for k in range(4): e("v_mul_f32 v%d, s%d, v%d" % (dst + k, sT0, dst + k))
    unpack_scale(vTB, vTB + 8, SA)
    unpack_scale(vTB + 2, vTB + 12, 1.0 / SA)
    e("v_add_u32 v%d, %d, v%d" % (vTB + 4, TAB_B1, vTmp))
    e("s_mov_b32 s%d, %d" % (sT0, TAB_G))
    e("v_lshl_add_u32 v%d, v%d, 4, s%d" % (vTB + 5, vLane, sT0))
    e("ds_write_b128 v%d, %s" % (vTB + 4, vr(vTB + 8, 4)))
    e("ds_write_b128 v%d, %s" % (vTB + 5, vr(vTB + 12, 4)))

def res_dst(t, m):
    if m >= 4: return vr(vR45 + 8 * t + 4 * (m - 4), 4)
    if t == 0 and m >= 2: return vr(vR23 + 4 * (m - 2), 4)
    idx = m if t == 0 else 4 * t + m - 2
    return ar(aRes + 4 * idx, 4)
def poff(a): return (a % 2) * PL
def res_rd(t, m):
    return "ds_read_b128 %s, v%d offset:%d" % (res_dst(t, m), vRA + m % 2, poff(m // 2) + t * PR)

def conv_all(L):
    reads = []; mf = []
    lastuse = {}
    nitem = 0
    for a in range(3):
        items = [("m", k) for k in range(4)]
        if L: items.insert(0 if a == 2 else 2, ("l", 0))
        for kind, k in items:
            b = nitem % 2; nitem += 1
            F = (lambda h, c=1: vr(vFb + 4 * h, 4 * c)) if b else (lambda h, c=1: ar(aFb + 4 * h, 4 * c))
            G = (lambda h, c=1: vr(vGb + 4 * h, 4 * c)) if b else (lambda h, c=1: ar(aGb + 4 * h, 4 * c))
            nrow = 3 if kind == "m" else 1
            r0 = len(reads)
            for h in range(nrow + 2):
                reads.append(("ds_read_b128 %s, v%d offset:%d" % (F(h), vF + k if kind == "m" else vLF, poff(a) + h * PR), lastuse.get((b, "F", h), -1), a))
            g0 = len(reads)
            for h in range(nrow + 1):
                reads.append(("ds_read_b128 %s, v%d offset:%d" % (G(h), vGa + k if kind == "m" else vLG, poff(a) + h * PR), lastuse.get((b, "G", h), -1), a))
            A = (lambda s_: ar(12 * (4 * a + k) + 4 * s_, 4)) if kind == "m" else (lambda s_: ar(aLD + 12 * a + 4 * s_, 4))
            Dr = (lambda t: vr(vYt[t] + 4 * (4 * a + k), 4)) if kind == "m" else (lambda t: vr(vLY + 4 * a, 4))
            def sm(t, s_, B, need, uses):
                for u in uses: lastuse[u] = len(mf)
                mf.append(("v_smfmac_f32_16x16x64_bf16 %s, %s, %s, v%d" % (Dr(t), A(s_), B, vIdx), need, a))
            for t in range(nrow):
                sm(t, 0, F(t, 2), r0 + t + 1, [(b, "F", t), (b, "F", t + 1)])
                sm(t, 2, F(t + 1, 2), r0 + t + 2, [(b, "F", t + 1), (b, "F", t + 2)])
            for t in range(nrow):
                sm(t, 1, G(t, 2), g0 + t + 1, [(b, "G", t), (b, "G", t + 1)])
    return reads, mf

def stats_ops(a, L):
    ops = []
    for k in range(4):
        for i in (0, 2):
            for t in range(3):
                y = vr(vYt[t] + 16 * a + 4 * k + i, 2)
                a1, a2 = vr(vS + 4 * t, 2), vr(vS + 4 * t + 2, 2)
                if a == 0 and k == 0 and i == 0:
                    ops += ["v_pk_add_f32 %s, %s, 0 op_sel_hi:[1,0]" % (a1, y), "v_pk_mul_f32 %s, %s, %s" % (a2, y, y)]
                else:
                    ops += ["v_pk_add_f32 %s, %s, %s" % (a1, a1, y), "v_pk_fma_f32 %s, %s, %s, %s" % (a2, y, y, a2)]
        if L and k < 2 and a < 2:
            y = vr(vLY + 4 * a + 2 * k, 2); a1, a2 = vr(vLS, 2), vr(vLS + 2, 2)
            if a == 0 and k == 0: ops += ["v_pk_add_f32 %s, %s, 0 op_sel_hi:[1,0]" % (a1, y), "v_pk_mul_f32 %s, %s, %s" % (a2, y, y)]
            else: ops += ["v_pk_add_f32 %s, %s, %s" % (a1, a1, y), "v_pk_fma_f32 %s, %s, %s, %s" % (a2, y, y, a2)]
    return ops

def finish_ops(a, b, sc, sh):
    return ["v_fma_f32 v%d, -v%d, v%d, v%d" % (b, a, a, b), "v_max_f32 v%d, 0, v%d" % (b, b),
            "v_add_f32 v%d, 0x%08x, v%d" % (b, f2u(1e-5), b), "v_rsq_f32 v%d, v%d" % (b, b),
            "v_mul_f32 v%d, 0x%08x, v%d" % (sc, f2u(SA), b), "v_mul_f32 v%d, v%d, v%d" % (sh, a, sc)]

def reduce_chain(t):
    s1, s2 = vS + 4 * t, vS + 4 * t + 2
    a, b = s1 + 1, s2 + 1
    return ["v_add_f32 v%d, v%d, v%d" % (a, s1, s1 + 1), "v_add_f32 v%d, v%d, v%d" % (b, s2, s2 + 1),
            "v_permlane32_swap_b32 v%d, v%d" % (a, b), "v_add_f32 v%d, v%d, v%d" % (a, a, b), "v_mov_b32 v%d, v%d" % (b, a),
            "v_permlane16_swap_b32 v%d, v%d" % (a, b), "v_add_f32 v%d, v%d, v%d" % (a, a, b),
            "v_mul_f32 v%d, 0x%08x, v%d" % (a, f2u(1.0 / 192.0), a), "v_mov_b32 v%d, v%d" % (b, a),
            "v_permlane32_swap_b32 v%d, v%d" % (a, b)] + finish_ops(a, b, s1, s2)

def ln_norm(y0, n, dst, sc, sh):
    LAG = min(6, n)
    for k in range(n + LAG):
        if k < n:
            y = y0 + 2 * k
            e("v_pk_fma_f32 %s, %s, %s, %s op_sel_hi:[1,0,0] neg_lo:[0,0,1] neg_hi:[0,0,1]" % (vr(y, 2), vr(y, 2), vr(sc, 2), vr(sh, 2)))
        if k >= LAG:
            j = k - LAG
            e("v_cvt_pk_bf16_f32 v%d, v%d, v%d" % (dst + j, y0 + 2 * j, y0 + 2 * j + 1))
        if k % 8 == 7: vm.pop()

def prologue(L):
    vm.wait(lambda t: t == ("x", 0))
    e("s_barrier")
    st("x0in")
    reads, mf = conv_all(L)
    seq = [0]; rseq = {}
    def lds(txt): e(txt); seq[0] += 1
    plane = [0]
    nis = [0]
    def issue_read():
        r = reads[nis[0]]
        if r[2] > plane[0]:
            a = plane[0]
            if a == 1:
                for r_ in [vF + k for k in range(8)] + ([vLF, vLG] if L else []):
                    e("v_add_u32 v%d, %d, v%d" % (r_, 2 * PL, r_))
            vm.wait(lambda t: t == ("x", a + 1))
            e("s_barrier")
            st("x%din" % (a + 1))
            plane[0] += 1
        lds(r[0]); rseq[nis[0]] = seq[0]; nis[0] += 1
    for _ in range(opt.dist): issue_read()
    n0 = nis[0]
    e("s_waitcnt lgkmcnt(%d)" % (seq[0] - rseq[mf[0][1]]))
    pend = []
    la, lb = vLS + 1, vLS + 3
    for i, (txt, need, a) in enumerate(mf):
        e(txt)
        last_of_plane = i + 1 == len(mf) or mf[i + 1][2] != a
        if i + 1 < len(mf):
            nxt = mf[i + 1][1]
            while nis[0] <= nxt:
                assert reads[nis[0]][1] <= i
                issue_read()
            if not last_of_plane and (nxt > need or i == 0): e("s_waitcnt lgkmcnt(%d)" % min(14, seq[0] - rseq[nxt]))
            target = min(len(reads), n0 + -(-(i + 1) * len(reads) // len(mf)))
            while nis[0] < target and nis[0] - nxt <= 13 and reads[nis[0]][1] <= i: issue_read()
        first = min(k for k in range(len(mf)) if mf[k][2] == a)
        if (i - first) % [3, 5, 3][a] == 1: vm.pop()
        if a == 2 and L and i == first + 8:
            for k in range(4):
                y = vLY + 8 + k
                pend += ["v_add_f32 v%d, v%d, v%d" % (vLS + k % 2, vLS + k % 2, y), "v_fmac_f32 v%d, v%d, v%d" % (vLS + 2 + k % 2, y, y)]
            pend += ["v_add_f32 v%d, v%d, v%d" % (la, vLS, vLS + 1), "v_add_f32 v%d, v%d, v%d" % (lb, vLS + 2, vLS + 3), None,
                     "v_permlane32_swap_b32 v%d, v%d" % (la, lb), "v_add_f32 v%d, v%d, v%d" % (la, la, lb), "v_mov_b32 v%d, v%d" % (lb, la), None,
                     "v_permlane16_swap_b32 v%d, v%d" % (la, lb), "v_add_f32 v%d, v%d, v%d" % (la, la, lb), "W"]
        if pend:
            o = pend.pop(0)
            if o == "W": lds("ds_write_b32 v%d, v%d offset:%d" % (vLSw, la, XST))
            elif o: e(o)
        if last_of_plane:
            st("mf%d" % a)
            assert not pend
            if a == 1: assert not any(tg[0] == "x" for tg, _ in vm.pending)
            for t in range(3):
                for m in (2 * a, 2 * a + 1): lds(res_rd(t, m))
            if a == 1:
                if L: lds("ds_read_b128 %s, v%d" % (vr(vRL, 4), vTmp))
                for r_ in [vRA, vRA + 1] + ([vTmp] if L else []): e("v_add_u32 v%d, %d, v%d" % (r_, 2 * PL, r_))
            ops = stats_ops(a, L)
            if a == 2:
                while vm.pending: vm.pop()
                for o in ops[:36]: e(o)
                ops = ops[36:]
                vm.wait(lambda t: t == "w0")
                e("s_waitcnt lgkmcnt(0)")
                e("s_barrier")
                if L:
                    e("ds_read_b128 %s, v%d offset:%d" % (vr(vFb, 4), vLSr, XST))
                    e("ds_read_b128 %s, v%d offset:%d" % (vr(vFb + 4, 4), vLSr, XST + 16))
                set_dma_slot(SLOT)
                e("s_mov_b32 s%d, 128" % sW1off)
                e("s_mov_b32 s%d, 0" % sW2off)
                for kind in (1, 2):
                    for k in range(6):
                        sc, ins = dma_w(k, kind); vm.queue("w1", sc + [ins])
                vm.pop()
            for o in ops: e(o)
            if a < 2: e("s_waitcnt lgkmcnt(%d)" % min(14, seq[0] - rseq[mf[i + 1][1]]))
            st("conv%d" % a)
    assert nis[0] == len(reads)
    p = vFb
    ch = [reduce_chain(t) for t in range(3)]
    if L:
        ch.append([None, None, "s_waitcnt lgkmcnt(0)", "v_pk_add_f32 %s, %s, %s" % (vr(p, 2), vr(p, 2), vr(p + 2, 2)),
                   "v_pk_add_f32 %s, %s, %s" % (vr(p + 4, 2), vr(p + 4, 2), vr(p + 6, 2)),
                   "v_add_f32 v%d, v%d, v%d" % (p, p, p + 1), "v_add_f32 v%d, v%d, v%d" % (p + 1, p + 4, p + 5),
                   "v_mul_f32 v%d, 0x%08x, v%d" % (p, f2u(1.0 / 192.0), p), "v_mul_f32 v%d, 0x%08x, v%d" % (p + 1, f2u(1.0 / 192.0), p + 1),
                   "v_lshlrev_b32 v%d, 4, v%d" % (vX + 8, vLane)] + finish_ops(p, p + 1, p + 2, p + 4))
    for k in range(len(ch[0])):
        for c in ch:
            if c[k]: e(c[k])
        if k % 5 == 1: vm.pop()
    st("red")
    if L:
        ln_norm(vLY, 6, vLY, p + 2, p + 4)
        for a in range(3): e("ds_write_b64 v%d, %s offset:%d" % (vLW, vr(vLY + 2 * a, 2), XCH + a * 2048))
    for t in range(3):
        ln_norm(vYt[t], 24, vB1 + 24 * t, vS + 4 * t, vS + 4 * t + 2)
        if t == 0 and L: e("ds_read_b128 %s, v%d" % (vr(vRL + 4, 4), vTmp))
    if L:
        e("v_mov_b32 v%d, 0" % (vPL + 2))
        e("v_mov_b32 v%d, 0" % (vPL + 3))
    while vm.pending: vm.pop()
    if L:
        e("s_waitcnt lgkmcnt(0)")
        e("s_barrier")
        for kb in range(6): e("ds_read_b128 %s, v%d offset:%d" % (vr(vB1 + 72 + 4 * kb, 4), vX + 8, XCH + kb * 1024))
        e("s_cmp_eq_u32 s%d, 0" % sWave)
        e("s_cselect_b32 s%d, 0, %d" % (sT0, OOB))
        e("v_add_u32 v%d, s%d, v%d" % (vTmp + 1, sT0, vTab))
    st("conv3")

def acc_init(L):
    r = []
    for ct in range(12):
        for t in range(1):
            r.append("ds_read_b128 %s, v%d offset:%d" % (ar(48 * t + 4 * ct, 4), vTab, (ct // 2) * 128 + (ct % 2) * 16))
        if L:
            r.append("ds_read_b128 %s, v%d offset:%d" % (ar(144 + 4 * ct, 4), vTmp + 1, (ct // 2) * 128 + (ct % 2) * 16))
    return r

def gelu_pair(x0, x1, dst, tmp):
    a, b = tmp, tmp + 1
    if opt.gelu == 1:
        return [("v_fma_f32 v%d, -v%d, v%d, -s%d" % (a, x0, x0, sK), 4), ("v_fma_f32 v%d, -v%d, v%d, -s%d" % (b, x1, x1, sK), 4),
                ("v_mul_f32 v%d, v%d, v%d" % (a, x0, a), 4), ("v_mul_f32 v%d, v%d, v%d" % (b, x1, b), 4),
                ("v_exp_f32 v%d, v%d" % (a, a), 8), ("v_exp_f32 v%d, v%d" % (b, b), 8),
                ("v_add_f32 v%d, 1.0, v%d" % (a, a), 4), ("v_add_f32 v%d, 1.0, v%d" % (b, b), 4),
                ("v_rcp_f32 v%d, v%d" % (a, a), 8), ("v_rcp_f32 v%d, v%d" % (b, b), 8),
                ("v_mul_f32 v%d, v%d, v%d" % (a, x0, a), 4), ("v_mul_f32 v%d, v%d, v%d" % (b, x1, b), 4),
                ("v_cvt_pk_bf16_f32 v%d, v%d, v%d" % (dst, a, b), 4)]
    sd = "dst_sel:WORD_1 dst_unused:UNUSED_PRESERVE src0_sel:WORD_1"
    return [("v_cvt_pk_f16_f32 v%d, v%d, v%d" % (a, x0, x1), 4),
            ("v_pk_fma_f16 v%d, v%d, v%d, s%d" % (b, a, a, sK), 4),
            ("v_pk_mul_f16 v%d, v%d, v%d neg_lo:[1,0] neg_hi:[1,0]" % (a, a, b), 4),
            ("v_exp_f16%s v%d, v%d" % ("_e64" if opt.e64 else "", b, a), 8),
            ("v_exp_f16_sdwa v%d, v%d %s" % (b, a, sd), 8),
            ("v_pk_add_f16 v%d, v%d, 1.0 op_sel_hi:[1,0]" % (a, b), 4),
            ("v_rcp_f16%s v%d, v%d" % ("_e64" if opt.e64 else "", b, a), 8),
            ("v_rcp_f16_sdwa v%d, v%d %s" % (b, a, sd), 8),
            ("v_fma_mix_f32 v%d, v%d, v%d, 0 op_sel_hi:[0,1,0]" % (a, x0, b), 4),
            ("v_fma_mix_f32 v%d, v%d, v%d, 0 op_sel:[0,1,0] op_sel_hi:[0,1,0]" % (b, x1, b), 4),
            ("v_cvt_pk_bf16_f32 v%d, v%d, v%d" % (dst, a, b), 4)]

def gelu_ops(c, L):
    hb = vH + 24 * (c % 2); pb = vP + 12 * (c % 2)
    quads = []
    for t in range(3):
        for ep in range(2):
            quads.append((hb + 8 * t + 4 * ep, pb + 4 * t + 2 * ep))
    if L and c % 2 == 0: quads.append((vHL, vPL))
    ops = []
    for n, (x, d) in enumerate(quads):
        tmp = vT + 4 * (n % 2)
        A = gelu_pair(x, x + 1, d, tmp); B = gelu_pair(x + 2, x + 3, d + 1, tmp + 2)
        if opt.gelu == 1:
            for k in range(0, 12, 2): ops += [A[k], A[k + 1], B[k], B[k + 1]]
            ops += [A[12], B[12]]
        else:
            for k in range(len(A)): ops += [A[k], B[k]]
    return ops

class Frag: pass

def step_scalars():
    return ["s_add_u32 s%d, s%d, s%d" % (sM1, sM1, sDel2),
            "s_add_u32 s%d, s%d, s%d" % (sM2, sM2, sDel2),
            "s_add_u32 s%d, s%d, 128" % (sW1off, sW1off),
            "s_add_u32 s%d, s%d, 24576" % (sW2off, sW2off),
            "s_mov_b32 s%d, s%d" % (sT0, sDel1),
            "s_mov_b32 s%d, s%d" % (sDel1, sDel2),
            "s_mov_b32 s%d, s%d" % (sDel2, sDelta),
            "s_sub_u32 s%d, s%d, 1" % (sCnt, sCnt),
            "s_cmp_lg_u32 s%d, 0" % sCnt]

def build_main(L, c_lo, c_hi, virt, xds={}, xval={}, xwr={}):
    groups = []
    for c in range(c_lo, c_hi + 1 + (1 if virt else 0)):
        step = (c + 1) // 2
        if c + 1 <= 23 or virt:
            c1 = c + 1
            for ep in range(2):
                pos = 2 * (c1 % 2) + ep
                for kb in range(6):
                    g = Frag(); g.kind = 1; g.period = c; g.step = step; g.pos = pos; g.kb = kb; g.chunk = c1; g.ep = ep
                    groups.append(g)
        if c - 1 >= 0:
            c2 = c - 1
            for ct in range(12):
                g = Frag(); g.kind = 2; g.period = c; g.step = step; g.ct = ct; g.chunk = c2
                groups.append(g)
    N = len(groups)
    D, R = opt.D, opt.R
    assert 24 % R == 0 and D < R and D <= 5
    nbias = 0
    for n, g in enumerate(groups):
        g.slot = aRing + 4 * (n % R)
        g.reads = []
        if g.kind == 1:
            if g.kb == 0:
                g.bias = vBias + 4 * (nbias % 2); nbias += 1
                g.reads.append("ds_read_b128 %s, v%d" % (vr(g.bias, 4), vAb + g.pos))
            for h in range(2):
                g.reads.append("ds_read_b64_tr_b16 %s, v%d offset:%d" % (ar(g.slot + 2 * h, 2), vA1 + g.pos, (g.kb * 4 + h * 2) * 1024))
            hb = vH + 24 * (g.chunk % 2)
            g.mf = []
            tiles = [0, 1, 2] + ([3] if (L and g.pos == 0) else [])
            for t in tiles:
                d = (hb + 8 * t + 4 * g.ep) if t < 3 else vHL
                cc = vr(g.bias, 4) if g.kb == 0 else vr(d, 4)
                g.mf.append("v_mfma_f32_16x16x32_bf16 %s, %s, %s, %s" % (vr(d, 4), ar(g.slot, 4), vr(vB1 + 24 * t + 4 * g.kb, 4), cc))
            g.upd = []
            if g.kb == 5 and g.step <= 10: g.upd = ["v_add_u32 v%d, s%d, v%d" % (vA1 + g.pos, sDelta, vA1 + g.pos)]
            if g.kb == 0 and g.step <= 10: g.upd = ["v_add_u32 v%d, 0x100, v%d" % (vAb + g.pos, vAb + g.pos)]
        else:
            m, o = g.ct // 2, g.ct % 2
            for h in range(2):
                pos = 2 * (g.chunk % 2) + h
                g.reads.append("ds_read_b64_tr_b16 %s, v%d offset:%d" % (ar(g.slot + 2 * h, 2), vA2 + pos, m * 512 + o * 8))
            pb = vP + 12 * (g.chunk % 2)
            g.mf = []
            tiles = [0, 1, 2] + ([3] if (L and g.chunk % 2 == 0) else [])
            if g.chunk == 0: tiles = tiles[1:] + [0]
            for t in tiles:
                acc = ar(48 * t + 4 * g.ct, 4)
                cin = ar(4 * g.ct, 4) if (g.chunk == 0 and t < 3) else acc
                g.mf.append("v_mfma_f32_16x16x32_bf16 %s, %s, %s, %s" % (acc, ar(g.slot, 4), vr(pb + 4 * t, 4) if t < 3 else vr(vPL, 4), cin))
            g.upd = []
            if g.ct == 11 and g.step <= 11:
                g.upd = ["v_add_u32 v%d, s%d, v%d" % (vA2 + 2 * (g.chunk % 2) + h, sDelta, vA2 + 2 * (g.chunk % 2) + h) for h in range(2)]
    steps = [[] for _ in range(13)]
    issued = [0]; lastseq = {}
    pre = []
    def issue(n, dst):
        for r in groups[n].reads:
            dst.append(r); issued[0] += 1
        lastseq[n] = issued[0]
    for n in range(D): issue(n, pre)
    for n in range(D): pre += groups[n].upd
    first_wait = "s_waitcnt lgkmcnt(%d)" % (issued[0] - lastseq[0])
    for c in range(c_lo, c_hi + 1):
        step = (c + 1) // 2
        dst = steps[step]
        gs = [k for k in range(N) if groups[k].period == c]
        val = gelu_ops(c, L) if 0 <= c <= 23 else []
        val = val + [(x, 4) for x in xval.get(c, [])]
        xd = list(xds.get(c, []))
        nxd = (len(xd) + len(gs) - 1) // len(gs)
        if c == c_lo:
            burst = 0
            while val and burst < 120:
                pre.append(val[0][0]); burst += val[0][1]; val = val[1:]
            pre.append(first_wait)
        dmas = []; scal = []
        if step <= 11:
            if c % 2 == 1: dmas = [dma_w(i, 1) for i in range(6 if step <= 9 else 0)] + [dma_w(i, 2) for i in range(6 if step <= 10 else 0)]
            else: scal = step_scalars()
        nm = sum(len(groups[k].mf) for k in gs)
        tot = 8 * nm + sum(x[1] for x in val) + 12 * len(dmas) + 4 * len(xd) + 20 * len([1 for cc, _ in xwr if cc == c])
        for k in gs:
            if k + D < N: tot += 4 * len(groups[k + D].reads) + 4 * len(groups[k + D].upd)
        t = 0.0; vi = 0; mi = 0
        sp = opt.dsp if len(gs) >= 24 else 1
        dmap = {sp * i: d for i, d in enumerate(dmas)}
        for gi, k in enumerate(gs):
            g = groups[k]
            for j, m in enumerate(g.mf):
                dst.append(m); t += 8; mi += 1
                extra = []
                if j == len(g.mf) - 1 and k + 1 < N:
                    dst.append("s_waitcnt lgkmcnt(%d)" % min(14, issued[0] - lastseq[k + 1]))
                if j == 0:
                    if gi in dmap: dst.append(dmap[gi][0][0])
                    elif scal: dst.append(scal.pop(0))
                    if k + D < N:
                        issue(k + D, dst); t += 4 * len(groups[k + D].reads)
                        extra = groups[k + D].upd
                if j == len(g.mf) - 1:
                    for _ in range(nxd):
                        if xd: dst.append(xd.pop(0)); issued[0] += 1; t += 4
                if j == 1 and (c, gi) in xwr:
                    dst.append(xwr[(c, gi)]); issued[0] += 1; t += 20
                if j == 1:
                    if gi in dmap:
                        dst.append(dmap[gi][0][1]); dst.append(dmap[gi][1]); t += 12
                    elif gi == len(gs) - 1 and step <= 11 and c % 2 == 0:
                        dst.append("s_mov_b32 s%d, s%d" % (sDelta, sT0))
                for x in extra: dst.append(x); t += 4
                lim = mi * tot / nm
                while vi < len(val) and t + val[vi][1] <= lim + 2:
                    dst.append(val[vi][0]); t += val[vi][1]; vi += 1
        while vi < len(val): dst.append(val[vi][0]); vi += 1
        assert not scal and not xd
    return pre, steps

def main_part(L):
    tag = "b%d" % L
    ai = acc_init(L)
    xd24, xwr, xv24 = epi_prep(L)
    pre, steps = build_main(L, -1, 24, False, xds={0: ai, 24: xd24}, xval={24: xv24}, xwr=xwr)
    for j in range(3, 10): assert steps[j] == steps[2], j
    assert opt.unroll in (1, 2, 4)
    e("s_mov_b32 s%d, 0x%08x" % (sK, f2u(KK) if opt.gelu == 1 else f2h(KK) * 0x10001))
    set_dma_slot(2 * SLOT)
    e("s_mov_b32 s%d, 256" % sW1off)
    e("s_mov_b32 s%d, 24576" % sW2off)
    e("s_mov_b32 s%d, %d" % (sDelta, SLOT))
    e("s_mov_b32 s%d, %d" % (sDel1, SLOT))
    e("s_mov_b32 s%d, %d" % (sDel2, -2 * SLOT))
    e("s_mov_b32 s%d, 10" % sCnt)
    for s in pre: e(s)
    def with_bar(body):
        body = list(body)
        bar = ["s_waitcnt vmcnt(0)"] + ([] if opt.nobar else ["s_barrier"])
        if opt.barpos:
            idx = [i for i, l in enumerate(body) if l.startswith("v_mfma")][-opt.barpos]
            return body[:idx + 1] + bar + body[idx + 1:]
        return body + bar
    s0 = with_bar(steps[0])
    idx = [i for i, l in enumerate(s0) if l.startswith("v_mfma")][-3 * (opt.D + 2)]
    s0 = s0[:idx + 1] + ["s_waitcnt vmcnt(12)", "s_barrier"] + s0[idx + 1:]
    for s in s0: e(s)
    st("step0")
    for s in with_bar(steps[1]): e(s)
    out.append(".p2align 6")
    lab("L_loop_%s" % tag)
    for u in range(opt.unroll):
        for s in with_bar(steps[2]): e(s)
    e("s_cbranch_scc1 L_loop_%s" % tag)
    for s in with_bar(steps[10]): e(s)
    for s in steps[11]: e(s)
    st("loop")
    epi_scalars(L)
    for s in steps[12]: e(s)
    st("p24")
    epilogue(L)

RED = SLOT
STG = 2 * SLOT
vG = vH
vWA = vA1
vRd = vA1 + 2
vSt = vA1 + 3
vX0 = vB1 + 48
def epi_prep(L):
    xd = ["ds_read_b128 %s, v%d offset:%d" % (vr(vG + 4 * ct, 4), vTab, TAB_G - TAB_B2 + (ct // 2) * 128 + (ct % 2) * 16) for ct in range(12)]
    xv23 = {}
    if L:
        for ct in range(12):
            xv23[(23, ct + 2) if ct < 10 else (24, 2 * (ct - 10) + 1)] = "ds_write_b128 v%d, %s offset:%d" % (vTmp + 1, ar(144 + 4 * ct, 4), ct * 1024)
    t0, t1 = vAb + 2, vAb + 3
    xv = ["v_and_b32 v%d, 15, v%d" % (t0, vLane), "v_lshrrev_b32 v%d, 4, v%d" % (t1, vLane),
          "v_lshl_add_u32 v%d, v%d, 7, s%d" % (vWA, t0, sT2), "v_and_b32 v%d, 7, v%d" % (t0, t0),
          "v_xor_b32 v%d, v%d, v%d" % (t1, t0, t1), "v_lshl_add_u32 v%d, v%d, 4, v%d" % (vWA, t1, vWA),
          "v_xor_b32 v%d, 64, v%d" % (vWA + 1, vWA),
          "v_lshrrev_b32 v%d, 3, v%d" % (t1, vLane), "v_xor_b32 v%d, v%d, v%d" % (vRd, t1, vLane),
          "v_lshl_add_u32 v%d, v%d, 4, s%d" % (vRd, vRd, sT2),
          "v_mul_u32_u24 v%d, 384, v%d" % (t1, t1), "v_lshl_add_u32 v%d, v%d, 4, v%d" % (vSt, t0, t1),
          "v_add_u32 v%d, s%d, v%d" % (vSt, sT1, vSt)]
    for k in range(16):
        src = (vR23 + k) if k < 8 else (vR45 + k - 8)
        xv += ["v_lshlrev_b32 v%d, 16, v%d" % (vX0 + 2 * k, src), "v_and_b32 v%d, 0xffff0000, v%d" % (vX0 + 2 * k + 1, src)]
    return xd, xv23, xv

def epi_scalars(L):
    e("s_mul_i32 s%d, s%d, %d" % (sT1, sWave, 3 * ROWB))
    e("s_add_u32 s%d, s%d, s%d" % (sT1, sT1, sBase))
    e("s_mul_i32 s%d, s%d, 12288" % (sT2, sWave))
    e("s_add_u32 s%d, s%d, %d" % (sT3, sT2, RED))
    e("s_add_u32 s%d, s%d, %d" % (sT2, sT2, STG if L else RED))
    assert STG % 128 == 0 and RED % 128 == 0
    if L:
        e("v_lshlrev_b32 v%d, 4, v%d" % (vTmp, vLane))
        e("v_add_u32 v%d, s%d, v%d" % (vTmp + 1, sT3, vTmp))

def epi_group(acc_regs, gam, xr, dst, tmp, unpacked=False):
    if not unpacked:
        for k in range(4):
            e("v_lshlrev_b32 v%d, 16, v%d" % (tmp + 2 * k, xr + k))
            e("v_and_b32 v%d, 0xffff0000, v%d" % (tmp + 2 * k + 1, xr + k))
    for k in range(4):
        e("v_pk_fma_f32 %s, %s, %s, %s" % (vr(tmp + 2 * k, 2), vr(acc_regs + 2 * k, 2), vr(gam + 2 * k, 2), vr(tmp + 2 * k, 2)))
    for k in range(4):
        e("v_cvt_pk_bf16_f32 v%d, v%d, v%d" % (dst + k, tmp + 2 * k, tmp + 2 * k + 1))

def epilogue(L):
    tag = "b%d" % L
    e("s_waitcnt lgkmcnt(0)")
    vAc = vB1; vTm = vB1 + 16; vXs = vB1 + 32; vO = vB1 + 40
    vLin = vP
    if L:
        e("s_barrier")
        e("s_lshl_b32 s%d, s%d, 6" % (sT1, sWave))
        e("s_add_u32 s%d, s%d, %d" % (sT1, sT1, 12 * ROWB))
        e("s_lshl_b32 s%d, s%d, 11" % (sT2, sWave))
        e("s_add_u32 s%d, s%d, %d" % (sT2, sT2, RED))
        e("v_add_u32 v%d, s%d, v%d" % (vTmp, sT2, vTmp))
        e("s_lshl_b32 s%d, s%d, 7" % (sT2, sWave))
        e("v_add_u32 v%d, s%d, v%d" % (vTmp + 1, sT2, vTab))
        lregs = [vBias, vT, vHL, vB1 + 80]; lgam = vB1 + 88
        def lreads(half):
            for w in range(4):
                for o in range(2):
                    e("ds_read_b128 %s, v%d offset:%d" % (vr(lregs[w] + 4 * o, 4), vTmp, w * 12288 + half * 8192 + o * 1024))
            for o in range(2):
                e("ds_read_b128 %s, v%d offset:%d" % (vr(lgam + 4 * o, 4), vTmp + 1, TAB_G - TAB_B2 + half * 512 + o * 16))
        def lfinish(half):
            r = lregs
            for k in range(0, 8, 2):
                e("v_pk_add_f32 %s, %s, %s" % (vr(r[0] + k, 2), vr(r[0] + k, 2), vr(r[1] + k, 2)))
                e("v_pk_add_f32 %s, %s, %s" % (vr(r[2] + k, 2), vr(r[2] + k, 2), vr(r[3] + k, 2)))
            for k in range(0, 8, 2):
                e("v_pk_add_f32 %s, %s, %s" % (vr(r[0] + k, 2), vr(r[0] + k, 2), vr(r[2] + k, 2)))
            xr = vRL + 4 * half
            epi_group(r[0], lgam, xr, xr, r[1])
            e("buffer_store_dwordx4 %s, v%d, %s, s%d offen offset:%d%s" % (vr(xr, 4), vOut, sr(S_O, 4), sT1, half * 256, OPOL))
        lreads(0)
    st("gam")
    e("s_mov_b32 s%d, %d" % (sT0, ROWB))
    e("s_mov_b32 s%d, %d" % (sSo, 2 * ROWB))
    if not L:
        e("s_sub_u32 s%d, s%d, s%d" % (sT3, sNrows, sWave))
        e("s_cmp_eq_u32 s%d, 8" % sT3)
        e("s_cselect_b32 s%d, 0x40000000, s%d" % (sSo, sSo))
    def store(u, k):
        t, a = u // 3, u % 3
        e("buffer_store_dwordx4 %s, v%d, %s, %s offen offset:%d%s" % (vr(vLin + 8 * (u % 2) + 4 * k, 4), vSt, sr(S_O, 4),
                                                                     ["0", "s%d" % sT0, "s%d" % sSo][t], a * 128 + k * 3072, OPOL))
    n = 0
    for t in range(3):
        for m in range(6):
            u = 3 * t + m // 2
            buf = (u % 4) * 2048
            ac = vAc + 8 * (n % 2); tm = vTm + 8 * (n % 2); o = vO + 4 * (n % 2)
            for k in range(8): e("v_accvgpr_read_b32 v%d, a%d" % (ac + k, 48 * t + 8 * m + k))
            src = res_dst(t, m)
            base = int(src[2:src.index(":")])
            unp = (t == 0 and m >= 2)
            if unp: tm = vX0 + 8 * (m - 2); xr = None
            elif src[0] == "a":
                xr = vXs + 4 * (n % 2)
                for k in range(4): e("v_accvgpr_read_b32 v%d, a%d" % (xr + k, base + k))
            else: xr = base
            epi_group(ac, vG + 8 * m, xr, o, tm, unp)
            if u > 0:
                if m % 2 == 0: e("s_waitcnt lgkmcnt(0)")
                store(u - 1, m % 2)
            e("ds_write_b128 v%d, %s offset:%d" % (vWA + m % 2, vr(o, 4), buf))
            if m % 2 == 1:
                for k in range(2): e("ds_read_b128 %s, v%d offset:%d" % (vr(vLin + 8 * (u % 2) + 4 * k, 4), vRd, buf + k * 1024))
            n += 1
            if L and n == 1:
                e("s_waitcnt lgkmcnt(1)")
                lfinish(0)
                lreads(1)
            if L and n == 3:
                e("s_cmp_ge_u32 s%d, 2" % sWave)
                e("s_cbranch_scc1 L_done_%s" % tag)
                lfinish(1)
                lab("L_done_%s" % tag)
        st("t%d" % t)
    e("s_waitcnt lgkmcnt(0)")
    for k in range(2): store(8, k)
    if opt.stamps:
        st("epi")
        e("s_waitcnt vmcnt(0)")
        st("drain")
        e("s_waitcnt lgkmcnt(0)")
        if opt.dbg:
            srd(S_T, 8, 64)
            e("v_mov_b32 v2, 0")
            for i in range(len(SSETS[opt.sset])):
                e("s_sub_u32 s%d, s%d, s%d" % (sT0, sStamp + 2 * i, sStamp))
                e("v_writelane_b32 v2, s%d, %d" % (sT0, i))
            e("v_lshlrev_b32 v3, 2, v0")
            e("buffer_atomic_umax v2, v3, %s, 0 offen" % sr(S_T, 4))
            e("s_endpgm")
            return
        srd(S_T, 9, 1 << 20)
        e("s_lshl_b32 s%d, s2, 2" % sT0)
        e("s_add_u32 s%d, s%d, s%d" % (sT0, sT0, sWave))
        e("s_lshl_b32 s%d, s%d, 6" % (sT0, sT0))
        e("v_mov_b32 v2, 0")
        for i in range(len(SSETS[opt.sset])): e("v_writelane_b32 v2, s%d, %d" % (sStamp + 2 * i, i))
        out.append("; STAMPNAMES " + " ".join(SSETS[opt.sset]))
        e("v_writelane_b32 v2, s%d, 11" % sNrows)
        e("v_lshlrev_b32 v3, 2, v%d" % vLane)
        e("v_add_u32 v3, s%d, v3" % sT0)
        e("v_cmp_gt_u32 vcc, 16, v%d" % vLane)
        e("s_and_saveexec_b64 %s, vcc" % sr(sEx, 2))
        e("buffer_store_dword v2, v3, %s, 0 offen" % sr(S_T, 4))
    e("s_endpgm")

import copy
vm = VM()
head()
vm0 = vm
for L in (1, 0):
    vm = copy.deepcopy(vm0)
    lab("L_body%d" % L)
    early(L)
    prologue(L)
    main_part(L)
lab("L_exit")
e("s_endpgm")
out.append(".p2align 3")
out.append(".type L_wgtab,@object")
lab("L_wgtab")
for a, b in wg_table(): e(".long 0x%08x, 0x%08x" % (a, b))
out.append(".size L_wgtab, %d" % (NWG * 8))

ref = open("cdna_kernels/%s.s.ref" % NAME).read().split("\n")
hdr = [l for l in ref if l.startswith(";") and "@launch" not in l]
txt = "\n".join(hdr) + "\n; @launch grid=(%d,1,1) block=(256,1,1) lds=%d\n" % (NWG, LDS_SIZE)
txt += """.amdgcn_target "amdgcn-amd-amdhsa--gfx950"
.text
.globl %s_kernel
.p2align 8
.type %s_kernel,@function
%s_kernel:
""" % (NAME, NAME, NAME)
txt += "\n".join(out).replace("PF_LIM", "L_exit-L_pf-0x8000") + "\n"
txt += """.section .rodata,"a"
.p2align 6
.amdhsa_kernel %s_kernel
  .amdhsa_next_free_vgpr 512
  .amdhsa_next_free_sgpr 102
  .amdhsa_accum_offset 256
  .amdhsa_group_segment_fixed_size 0
  .amdhsa_kernarg_size 80
  .amdhsa_user_sgpr_count 2
  .amdhsa_user_sgpr_kernarg_segment_ptr 1
  .amdhsa_system_sgpr_workgroup_id_x 1
.end_amdhsa_kernel
""" % NAME
dst = [a for a in sys.argv[1:] if "=" not in a]
open(dst[0] if dst else "cdna_kernels/%s.s" % NAME, "w").write(txt)
```

```python
import math, struct, sys

NAME = "standalone__modern_conv_block_convnext__vision"
def f2u(f): return struct.unpack("<I", struct.pack("<f", f))[0]
def f2h(f): return struct.unpack("<H", struct.pack("<e", f))[0]

class Opt:
    gelu = 2
    stamps = 0
    D = 4
    R = 6
    xnt = 0
    sset = 0
    dsp = 1
    nobar = 0
    unroll = 2
    e64 = 0
    barpos = 0
    dist = 12
    prio = 0
    tm = 1
    map = 11
    fast = 1
    gap = 12
    dbg = 0
    pe1 = 6
    pf = 1
    ont = 2
opt = Opt()
for a in sys.argv[1:]:
    if "=" in a:
        k, v = a.split("="); assert hasattr(opt, k), k; setattr(opt, k, int(v))

C0 = 2.0 * math.sqrt(2.0 / math.pi) * math.log2(math.e)
SA = (C0 * 0.044715) ** (1.0 / 3.0)
KK = C0 / SA
if opt.gelu == 2:
    KK = struct.unpack("<e", struct.pack("<e", KK))[0]
    SA = C0 / KK

XBYTES = 224 * 224 * 384
ROWB = 86016
SLOT = 49408
XB = SLOT
W2E = 6160
PL = 34816
PR = 2304
TAB_B1 = XB + 3 * PL
TAB_B2 = TAB_B1 + 3072
TAB_G = TAB_B2 + 1024
DUMMY = TAB_G + 1024
IMG = 24576
JS = 1936
XCH = 40960
XST = XCH + 6144
LDS_SIZE = 163840
OOB = 0x40000
XPOL = " nt" if opt.xnt else ""
OPOL = ["", " nt", " sc1", " sc0 sc1"][opt.ont]
assert DUMMY + 1280 <= LDS_SIZE and IMG + 8 * JS <= XCH and XST + 1024 <= SLOT

S_X = 8; S_W1 = 12; S_W2 = 16; S_O = 20; S_T = 24
sWave = 28; sBase = 29; sNrows = 31
sK = 32; sDelta = 33; sW1off = 35; sW2off = 36; sCnt = 37
sT0 = 38; sT1 = 39; sT2 = 40; sT3 = 41
sEx = 42
sC1 = 44; sM1 = 45; sM2 = 46; sSo = 47; sDel1 = 48; sDel2 = 49
sXm7 = 30; sXm1 = 50; sXm8 = 51; sXs8 = 52; sQlo = 53; sTb = 54; sQn = 56; sC2 = 57; sLut = 58
sPtr = 60
S_B = 60; S_G = 64
sStamp = 80

vLane = 1
vA1 = 2; vA2 = 6; vAb = 10
vD1 = 14; vD2 = 15; vOut = 16; vTab = 17; vTmp = 18
vBias = 20
vT = 28
vRL = 36
vHL = 44; vPL = 48
vP = 52
vH = 76
vR45 = 124
vR23 = 148
vB1 = 160
aRing = 192
aRes = 216
vLW = 19
vLY = 20
vRA = 32; vLF = 34; vLG = 35
vS = 40
vIA = 48
vFb = 52
vLS = 72
vYt = [160, 76, 208]
vGb = 124
vF = 140; vGa = 144
vX = 148
vIdx = 157; vLSw = 158; vLSr = 159
aLD = 144; aFb = 180; aGb = 200
vDW = 76; vQ = 80; vTB = 96; vU = 116

out = []
def e(s): out.append("    " + s)
def lab(s): out.append(s + ":")
def cm(s): out.append("    ; " + s)
SSETS = [["start", "issued", "diag", "conv0", "conv1", "conv2", "conv3", "step0", "loop", "epi", "drain"],
         ["start", "loop", "p24", "gam", "t0", "t1", "t2", "epi", "drain"],
         ["start", "kernarg", "issued", "setup", "dwin", "img", "bar", "diag", "x0in", "mf0", "conv0"],
         ["start", "diag", "x0in", "mf0", "x1in", "mf1", "x2in", "mf2", "red", "conv3", "step0"],
         ["start", "x0in", "mf0", "conv0", "mf1", "conv1", "mf2", "conv2", "conv3", "step0", "drain"]]
def st(name):
    names = SSETS[opt.sset]
    if opt.stamps and name in names: stamp(names.index(name))
def stamp(i):
    if opt.stamps: e("%s s[%d:%d]" % ("s_memrealtime" if opt.stamps == 1 else "s_memtime", sStamp + 2 * i, sStamp + 2 * i + 1))
def vr(b, n): return "v[%d:%d]" % (b, b + n - 1)
def ar(b, n): return "a[%d:%d]" % (b, b + n - 1)
def sr(b, n): return "s[%d:%d]" % (b, b + n - 1)
def srd(s, ptr_slot, nbytes):
    e("s_mov_b32 s%d, s%d" % (s, sPtr + 2 * ptr_slot))
    e("s_and_b32 s%d, s%d, 0xffff" % (s + 1, sPtr + 2 * ptr_slot + 1))
    e("s_mov_b32 s%d, %d" % (s + 2, nbytes))
    e("s_mov_b32 s%d, 0x20000" % (s + 3))

def capture(fn, *args):
    global out
    save = out; out = []
    fn(*args)
    got = [l.strip() for l in out if not l.strip().startswith(";")]
    out = save
    return got

class VM:
    def __init__(self): self.issued = []; self.pending = []; self.cap = False
    def issue_now(self, tag, lines):
        for l in lines: e(l)
        self.issued.append(tag)
    def queue(self, tag, lines): self.pending.append((tag, lines))
    def pop(self, n=1):
        for _ in range(n):
            if self.pending and not (self.cap and self.pending[0][0] == ("x", 2)):
                tag, lines = self.pending.pop(0); self.issue_now(tag, lines)
    def wait(self, pred):
        while any(pred(t) for t, _ in self.pending): self.pop()
        idx = [i for i, t in enumerate(self.issued) if pred(t)]
        e("s_waitcnt vmcnt(%d)" % (len(self.issued) - 1 - max(idx)))
vm = None

NWG = 256 if opt.map else 252
def wg_table():
    rows = []
    seen = set()
    if opt.map >= 7:
        own = {x: [] for x in range(8)}
        def deal(blocks, plan):
            for x, k in plan:
                own[x] += blocks[:k]; blocks = blocks[k:]
            assert not blocks
        band = lambda r0, h, nb: [(r0 + h * b, st_, h) for st_ in range(14) for b in range(nb)]
        if opt.map == 7:
            deal(band(0, 13, 4), [(0, 28), (2, 28)]); deal(band(52, 13, 4), [(4, 21), (1, 14), (6, 21)])
            deal(band(104, 12, 3), [(4, 11), (1, 18), (6, 11), (0, 2)]); deal(band(140, 12, 7), [(3, 32), (5, 32), (7, 32), (2, 2)])
        elif opt.map == 11:
            hs = [13, 13, 12, 13, 12, 13, 12, 13, 12, 13, 13, 12, 13, 12, 12, 12, 12, 12]
            r0 = [sum(hs[:b]) for b in range(18)]
            left = []
            for half, (xu, xl) in enumerate(((0, 4), (2, 6))):
                bl = [(r0[b], 5 * half + k, hs[b]) for b in range(13) for k in range(5)]
                own[xu] += bl[:32]; left.append(bl[32]); own[xl] += bl[33:]
            h2 = [12, 12, 12, 11, 12, 12, 12, 12, 11, 12, 12, 12, 12, 11, 12, 12, 12, 12, 11]
            right = [(sum(h2[:b]), 10 + k, h2[b]) for b in range(19) for k in range(4)]
            bottom = [(r0[b], st_, 12) for st_ in range(9, -1, -1) for b in range(13, 18)]
            deal(right + bottom + left, [(1, 32), (3, 32), (5, 32), (7, 32)])
        elif opt.map == 9:
            deal(band(0, 13, 4), [(0, 28), (2, 28)]); deal(band(52, 13, 4), [(4, 24), (1, 8), (6, 24)])
            deal(band(104, 12, 3), [(4, 7), (0, 3), (1, 24), (2, 1), (6, 7)]); deal(band(140, 12, 7), [(3, 32), (5, 32), (7, 32), (2, 2)])
        elif opt.map == 10:
            deal(band(0, 13, 4), [(0, 28), (2, 28)]); deal(band(52, 13, 4), [(4, 21), (1, 14), (6, 21)])
            deal(band(104, 12, 3), [(4, 10), (0, 4), (1, 16), (2, 2), (6, 10)]); deal(band(140, 12, 7), [(3, 32), (5, 32), (7, 32), (2, 2)])
        else:
            deal(band(0, 13, 4), [(0, 24), (1, 8), (2, 24)]); deal(band(52, 13, 4), [(4, 22), (1, 12), (6, 22)])
            deal(band(104, 12, 3), [(4, 9), (0, 7), (1, 12), (2, 5), (6, 9)]); deal(band(140, 12, 7), [(3, 32), (5, 32), (7, 32), (2, 2)])
    for wg in range(NWG):
        x, n = wg & 7, wg >> 3
        if opt.map == 0:
            idx = 63 * (x & 3) + (32 if x >= 4 else 0) + n
            h, rem = idx // 126, idx % 126
            b, strip = rem // 7, 7 * h + rem % 7
            row0 = b * 112 // 9; nrows = (b + 1) * 112 // 9 - row0
        elif opt.map >= 7:
            if n >= len(own[x]):
                rows.append((0, 0)); continue
            row0, strip, nrows = own[x][n]
        elif opt.map in (5, 6):
            h, v = (x // 2) % 2, x // 4
            ne = 3 if opt.map == 5 else 4
            no = 35 - ne
            if x % 2 == 0 and n < 28:
                strip = 7 * h + n % 7; row0 = 13 * (4 * v + n // 7); nrows = 13
            elif n >= (28 + ne if x % 2 == 0 else no):
                rows.append((0, 0)); continue
            else:
                k = (ne * v + n - 28) if x % 2 == 0 else (2 * ne + no * v + n)
                strip = 7 * h + k % 7; row0 = 104 + 12 * (k // 7); nrows = 12
        elif opt.map >= 2:
            order = {0: 0, 4: 1, 1: 2, 5: 3, 2: 0, 6: 1, 3: 2, 7: 3}
            h = 0 if x in (0, 4, 1, 5) else 1
            if opt.map == 2:
                cnt = [32, 32, 30, 32]; hs = [13, 12, 13, 13, 12, 13, 13, 12, 13, 12, 13, 12, 13, 12, 12, 12, 12, 12]
            elif opt.map == 3:
                cnt = [32, 32, 31, 31]; hs = [13, 13, 12, 13, 13, 13, 13, 12, 13, 12, 12, 13, 12, 12, 12, 12, 12, 12]
            else:
                cnt = [32, 32, 32, 30]; hs = [13, 12, 13, 13, 12, 13, 12, 13, 12, 12, 13, 12, 13, 12, 12, 13, 12, 12]
            assert sum(hs) == 224 and sum(cnt) == 126
            o = order[x]
            if n >= cnt[o]:
                rows.append((0, 0)); continue
            k = sum(cnt[:o]) + n
            strip = 7 * h + k % 7; row0 = sum(hs[:k // 7]); nrows = hs[k // 7]
        else:
            h, v = x % 2, (x % 4) // 2
            if x < 4 and n < 28:
                strip = 7 * h + n % 7; row0 = 13 * (4 * v + n // 7); nrows = 13
            elif x < 4 and n == 31:
                rows.append((0, 0)); continue
            else:
                k = (3 * v + n - 28) if x < 4 else (6 + 32 * v + n)
                strip = 7 * h + k % 7; row0 = 104 + 12 * (k // 7); nrows = 12
        for r in range(row0, row0 + nrows):
            assert (r, strip) not in seen; seen.add((r, strip))
        base = ((row0 - 1) * ROWB + strip * 6144 - 384) & 0xffffffff
        qlo = 1 if strip == 0 else 0; qn = (17 if strip == 13 else 18) - qlo
        defer = 1 if (opt.prio == 3 and nrows < 13 and x % 2 == 0) else 0
        rows.append((base, qlo | qn << 8 | nrows << 16 | defer << 24))
    assert len(seen) == 224 * 14
    return rows

def dma_w(i, kind):
    if kind == 1:
        return (["s_add_u32 m0, s%d, %d" % (sM1, i * 1024), "s_add_u32 s%d, s%d, %d" % (sSo, sW1off, i * 12288)],
                "buffer_load_dwordx4 v%d, %s, s%d offen lds" % (vD1, sr(S_W1, 4), sSo))
    oo, t = i // 3, i % 3
    return (["s_add_u32 m0, s%d, %d" % (sM2, oo * 3080 + t * 1024), "s_add_u32 s%d, s%d, %d" % (sSo, sW2off, oo * 1536 + t * 128)],
            "buffer_load_dwordx4 v%d, %s, s%d offen lds" % (vD2, sr(S_W2, 4), sSo))

def set_dma_slot(slot_base_imm):
    e("s_mul_i32 s%d, s%d, 6144" % (sM1, sWave))
    e("s_add_u32 s%d, s%d, %d" % (sM1, sM1, slot_base_imm))
    e("s_mul_i32 s%d, s%d, %d" % (sM2, sWave, W2E))
    e("s_add_u32 s%d, s%d, %d" % (sM2, sM2, slot_base_imm + 24576))


def x_item(a, i):
    off = (" offset:%d" % (128 * a)) if a else ""
    j, sec = i // 2, i % 2
    if i < 7: m = ["s_add_u32 m0, s%d, %d" % (sXm1, a * (PL - 128) + j * 9216 + sec * 4096), "s_nop 0"]
    else:
        r = sXm7 if i == 7 else sXm8
        m = ["s_mov_b32 m0, s%d" % r, "s_add_u32 s%d, s%d, s%d" % (r, r, sXs8)]
    return (("x", a), m + ["buffer_load_dwordx4 v%d, %s, 0 offen%s%s lds" % (vX + i, sr(S_X, 4), off, XPOL)])

def x_voff_a(i):
    n, r, q, f = vU, vU + 1, vU + 2 + min(i, 2), vTB + 10
    l = []
    if i == 0: l += ["v_lshrrev_b32 v%d, 3, v0" % n, "v_and_b32 v%d, 7, v0" % (vU + 5)]
    elif i == 1: l += ["v_add_u32 v%d, 32, v%d" % (n, n)]
    else: l += ["v_bfe_u32 v%d, v0, 3, 3" % n, "v_add_u32 v%d, 64, v%d" % (n, n)]
    l += ["v_mul_u32_u24 v%d, 3641, v%d" % (r, n), "v_lshrrev_b32 v%d, 16, v%d" % (r, r),
          "v_mul_u32_u24 v%d, 18, v%d" % (q, r), "v_sub_u32 v%d, v%d, v%d" % (q, n, q),
          "v_bfe_u32 v%d, v%d, 1, 3" % (f, q), "v_xor_b32 v%d, v%d, v%d" % (f, f, vU + 5),
          "v_mul_u32_u24 v%d, %d, v%d" % (r, ROWB - 18 * 384, r),
          "v_mad_u32_u24 v%d, v%d, s%d, v%d" % (r, n, sC1, r),
          "v_lshl_add_u32 v%d, v%d, 4, v%d" % (vX + i, f, r)]
    return l
def x_voff_b(i, base):
    q = vU + 2 + min(i, 2)
    return ["v_subrev_u32 v%d, s%d, v%d" % (q, sQlo, q), "v_cmp_gt_u32 vcc, s%d, v%d" % (sQn, q),
            "v_add_u32 v%d, s%d, v%d" % (vX + i, base, vX + i), "s_nop 0",
            "v_cndmask_b32 v%d, v%d, v%d, vcc" % (vX + i, vU + 6, vX + i)]
for n in range(288): assert (n * 3641) >> 16 == n // 18

def head():
    e("s_cmp_ge_u32 s2, %d" % NWG)
    e("s_cbranch_scc1 L_exit")
    st("start")
    e("s_load_dwordx2 %s, s[0:1], 0" % sr(S_X, 2))
    e("s_load_dwordx2 %s, s[0:1], 8" % sr(S_T, 2))
    e("s_getpc_b64 %s" % sr(sEx, 2))
    lab("L_pf")
    e("s_lshl_b32 s%d, s2, 3" % sT0)
    e("s_add_u32 s%d, s%d, L_wgtab-L_pf" % (sT0, sT0))
    e("s_load_dwordx2 %s, %s, s%d" % (sr(sTb, 2), sr(sEx, 2), sT0))
    if opt.pf:
        e("s_lshr_b32 s%d, s2, 3" % sT3)
        e("s_lshl_b32 s%d, s%d, 12" % (sT3, sT3))
        e("v_lshrrev_b32 v%d, 3, v0" % (vTB + 8))
        e("v_lshl_add_u32 v%d, v%d, 7, s%d" % (vTB + 8, vTB + 8, sT3))
        e("v_min_u32 v%d, L_exit-L_pf, v%d" % (vTB + 8, vTB + 8))
        vm.issue_now("dw", ["global_load_dword v%d, v%d, %s" % (vTB + 6, vTB + 8, sr(sEx, 2))])
    e("v_lshrrev_b32 v%d, 6, v0" % vS)
    e("s_movk_i32 s%d, 384" % sC1)
    e("v_readfirstlane_b32 s%d, v%d" % (sWave, vS))
    for l in x_voff_a(0): e(l)
    e("v_bfrev_b32 v%d, 2" % (vU + 6))
    e("v_lshlrev_b32 v%d, 4, v0" % vTmp)
    e("s_mov_b32 s%d, %d" % (S_X + 2, XBYTES))
    e("s_mov_b32 s%d, 0x20000" % (S_X + 3))
    e("s_movk_i32 s%d, 3456" % (S_T + 2))
    e("s_mov_b32 s%d, s%d" % (S_T + 3, S_X + 3))
    e("s_lshl_b32 s%d, s%d, 10" % (sXm1, sWave))
    e("s_add_u32 s%d, s%d, %d" % (sXm1, sXm1, XB))
    e("s_waitcnt lgkmcnt(0)")
    st("kernarg")
    vm.issue_now("dw", ["buffer_load_dwordx4 %s, v%d, %s, 0 offen" % (vr(vDW, 4), vTmp, sr(S_T, 4))])
    e("s_load_dwordx2 %s, s[0:1], 16" % sr(S_W1, 2))
    e("s_load_dwordx2 %s, s[0:1], 32" % sr(S_W2, 2))
    e("s_load_dwordx2 %s, s[0:1], 56" % sr(S_O, 2))
    e("s_load_dwordx2 %s, s[0:1], 24" % sr(S_B, 2))
    e("s_load_dwordx4 %s, s[0:1], 40" % sr(S_G, 4))
    if opt.stamps: e("s_load_dwordx4 %s, s[0:1], 64" % sr(sPtr + 16, 4))
    e("s_and_b32 s%d, s%d, 0xff" % (sQlo, sTb + 1))
    e("s_bfe_u32 s%d, s%d, 0x80008" % (sQn, sTb + 1))
    e("s_bfe_u32 s%d, s%d, 0x80010" % (sNrows, sTb + 1))
    if opt.map == 11:
        e("s_cmp_lt_u32 s%d, 13" % sNrows)
        e("s_cbranch_scc1 L_body0")
    else:
        e("s_cmp_eq_u32 s%d, 12" % sNrows)
        e("s_cbranch_scc1 L_body0")
        if opt.map:
            e("s_cmp_eq_u32 s%d, 0" % sNrows)
            e("s_cbranch_scc1 L_exit")

def issue_plane0(L, filler):
    add = lambda i: ["v_add_u32 v%d, s%d, v%d" % (vX + i, sC2, vX + i - 2)]
    va1 = x_voff_a(1); va8 = x_voff_a(8)
    sc = ["s_add_u32 s%d, s%d, %d" % (sXm7, sXm1, 3 * 9216 + 4096), "s_mul_i32 s%d, s%d, 9216" % (sXm8, sWave),
          "s_add_u32 s%d, s%d, %d" % (sXm8, sXm8, XB + 8192), "s_mul_i32 s%d, s%d, s%d" % (sT2, sWave, sC2),
          "s_add_u32 s%d, s%d, s%d" % (sT2, sT2, sTb), "s_cmp_lt_u32 s%d, 3" % sWave,
          "s_cselect_b32 s%d, s%d, %d" % (sXm7, sXm7, DUMMY), "s_cselect_b32 s%d, s%d, %d" % (sXm8, sXm8, DUMMY),
          "s_cselect_b32 s%d, %d, 0" % (sXs8, PL - 128), "s_cselect_b32 s%d, s%d, 0x40000000" % (sT2, sT2)]
    seq = [(x_voff_b(0, sTb), 0), (["s_mov_b32 s%d, %d" % (sC2, 4 * ROWB)] + add(2), 2), (add(4) + va1, 4),
           (add(6) + x_voff_b(1, sTb), 6), (sc, 1), (add(3) + va8, 3), (add(5) + x_voff_b(8, sT2), 5),
           (["s_cmp_lt_u32 s%d, %d" % (sWave, 3 if L else 1), "s_cselect_b32 s%d, s%d, 0x40000000" % (sT3, sC2),
             "v_add_u32 v%d, s%d, v%d" % (vX + 7, sT3, vX + 5)], 7), ([], 8)]
    for n, (pre, i) in enumerate(seq):
        for l in pre: e(l)
        k = len(pre)
        while n >= 2 and k < opt.gap and filler and "vcc" not in filler[0]:
            e(filler.pop(0)); k += 1
        vm.issue_now(*x_item(0, i))
    for a in (1, 2):
        for i in range(9): vm.queue(*x_item(a, i))

def early(L, defer=False, cap=False):
    vm.queue("tab", ["s_waitcnt lgkmcnt(0)", "s_cmp_eq_u32 s%d, 3" % sWave, "s_cselect_b64 %s, %s, %s" % (sr(S_B, 2), sr(S_G, 2), sr(S_B, 2)),
                     "s_movk_i32 s%d, 1536" % (S_B + 2), "s_cselect_b32 s%d, 384, s%d" % (S_B + 2, S_B + 2), "s_mov_b32 s%d, s%d" % (S_B + 3, S_X + 3),
                     "s_cselect_b32 s%d, 63, -1" % sT3, "v_and_b32 v%d, s%d, v0" % (vTB + 7, sT3), "v_lshlrev_b32 v%d, 3, v%d" % (vTB + 7, vTB + 7),
                     "buffer_load_dwordx2 %s, v%d, %s, 0 offen" % (vr(vTB, 2), vTB + 7, sr(S_B, 4))])
    vm.queue("tab", ["s_mov_b64 %s, %s" % (sr(S_G, 2), sr(S_G + 2, 2)), "s_movk_i32 s%d, 384" % (S_G + 2), "s_mov_b32 s%d, s%d" % (S_G + 3, S_X + 3),
                     "v_lshlrev_b32 v%d, 3, v%d" % (vTB + 7, vLane),
                     "buffer_load_dwordx2 %s, v%d, %s, 0 offen" % (vr(vTB + 2, 2), vTB + 7, sr(S_G, 4))])
    fill = capture(setup_early) + ["v_mov_b32 v%d, 0" % (vFb + k) for k in range(4)]
    vm.cap = cap
    if not defer: issue_plane0(L, fill)
    e("s_add_u32 s%d, s%d, %d" % (sBase, sTb, ROWB + 384))
    st("issued")
    build_diag(L, fill, defer)
    vm.cap = False

px, g_, gl, gh = vS + 4, vS + 5, vS + 6, vS + 7
def setup_early():
    t0, t1, t2 = vS, vS + 1, vS + 2
    e("v_and_b32 v%d, 63, v0" % vLane)
    for j in range(8): e("v_mov_b32 v%d, 0" % (vQ + 2 * j + 1 - j // 4))
    cm("image write address: tap = tid/24 -> (pair, half)")
    code = [0, 1, 4, 2, 3, 5, 8, 9, 7, 6, 15]
    lut = sum(c << (4 * i) for i, c in enumerate(code))
    e("s_mov_b32 s%d, 0x%08x" % (sLut, lut & 0xffffffff))
    e("s_mov_b32 s%d, 0x%08x" % (sLut + 1, lut >> 32))
    e("v_mul_u32_u24 v%d, 2731, v0" % t0)
    e("v_lshrrev_b32 v%d, 16, v%d" % (t0, t0))
    e("v_mul_u32_u24 v%d, 24, v%d" % (t1, t0))
    e("v_sub_u32 v%d, v0, v%d" % (t1, t1))
    e("v_lshlrev_b32 v%d, 2, v%d" % (t0, t0))
    e("v_lshrrev_b64 %s, v%d, %s" % (vr(t2, 2), t0, sr(sLut, 2)))
    e("v_and_b32 v%d, 1, v%d" % (t0, t2))
    e("v_lshlrev_b32 v%d, 3, v%d" % (t0, t0))
    e("v_lshl_add_u32 v%d, v%d, 4, v%d" % (t0, t1, t0))
    e("v_bfe_u32 v%d, v%d, 1, 3" % (t2, t2))
    e("v_mul_u32_u24 v%d, 384, v%d" % (t1, t2))
    e("v_cmp_gt_u32 vcc, 5, v%d" % t2)
    e("v_add_u32 v%d, v%d, v%d" % (t0, t0, t1))
    e("v_mov_b32 v%d, %d" % (t1, OOB))
    e("v_cndmask_b32 v%d, v%d, v%d, vcc" % (vU + 7, t1, t0))
    e("v_and_b32 v%d, 15, v%d" % (px, vLane))
    e("v_lshrrev_b32 v%d, 4, v%d" % (g_, vLane))
    e("v_and_b32 v%d, 1, v%d" % (gl, g_))
    e("v_lshrrev_b32 v%d, 1, v%d" % (gh, g_))
    cm("image read addresses (invalid lanes out of range -> read 0)")
    e("v_lshrrev_b32 v%d, 3, v%d" % (t0, px))
    e("v_xor_b32 v%d, v%d, v%d" % (t0, t0, gl))
    e("v_mul_u32_u24 v%d, %d, v%d" % (t0, OOB, t0))
    e("v_lshl_add_u32 v%d, v%d, 4, v%d" % (t0, gl, t0))
    e("v_and_b32 v%d, 7, v%d" % (t1, px))
    e("v_mul_u32_u24 v%d, %d, v%d" % (t1, JS, t1))
    e("v_add_u32 v%d, v%d, v%d" % (t0, t0, t1))
    e("v_mul_u32_u24 v%d, 384, v%d" % (t1, gh))
    e("v_add_u32 v%d, v%d, v%d" % (vIA, t0, t1))
    e("v_xor_b32 v%d, 1, v%d" % (t1, gh))
    e("v_mul_u32_u24 v%d, %d, v%d" % (t1, OOB, t1))
    e("v_add_u32 v%d, v%d, v%d" % (vIA + 1, t0, t1))
    e("s_lshl_b32 s%d, s%d, 5" % (sT0, sWave))
    e("v_add_u32 v%d, s%d, v%d" % (vIA + 2, sT0, vIA))
    e("v_add_u32 v%d, s%d, v%d" % (vIA + 3, sT0, vIA + 1))

def setup_late():
    t0, t1, t2, t3 = vS, vS + 1, vS + 2, vS + 3
    cm("W1 dma voffset")
    e("v_lshrrev_b32 v%d, 3, v%d" % (t0, vLane))
    e("v_and_b32 v%d, 7, v%d" % (t1, vLane))
    e("v_and_b32 v%d, 6, v%d" % (t2, t0))
    e("v_xor_b32 v%d, v%d, v%d" % (t1, t1, t2))
    e("v_mul_u32_u24 v%d, 1536, v%d" % (t0, t0))
    e("v_lshl_add_u32 v%d, v%d, 4, v%d" % (vD1, t1, t0))
    e("s_mul_i32 s%d, s%d, %d" % (sT0, sWave, 48 * 1536))
    e("v_add_u32 v%d, s%d, v%d" % (vD1, sT0, vD1))
    cm("W2 dma voffset")
    e("v_bfe_u32 v%d, v%d, 2, 3" % (t0, vLane))
    e("v_and_b32 v%d, 4, v%d" % (t1, t0))
    e("v_add_u32 v%d, v%d, v%d" % (t0, t0, t1))
    e("v_mul_u32_u24 v%d, 384, v%d" % (t0, t0))
    e("v_lshl_add_u32 v%d, v%d, 6, v%d" % (t0, gh, t0))
    e("v_and_b32 v%d, 3, v%d" % (t1, vLane))
    e("v_lshl_add_u32 v%d, v%d, 4, v%d" % (vD2, t1, t0))
    e("s_mul_i32 s%d, s%d, %d" % (sT0, sWave, 16 * 384))
    e("v_add_u32 v%d, s%d, v%d" % (vD2, sT0, vD2))
    e("s_mov_b32 s%d, %d" % (S_W1 + 2, 192 * 768 * 2))
    e("s_mov_b32 s%d, s%d" % (S_W1 + 3, S_X + 3))
    e("s_mov_b64 %s, %s" % (sr(S_W2 + 2, 2), sr(S_W1 + 2, 2)))
    e("s_mov_b64 %s, %s" % (sr(S_O + 2, 2), sr(S_X + 2, 2)))
    set_dma_slot(0)
    e("s_mov_b32 s%d, 0" % sW1off)
    cm("sparse index: every group selects (row%4, (row+1)%4)")
    e("v_add_u32 v%d, 1, v%d" % (t0, t1))
    e("v_and_b32 v%d, 3, v%d" % (t0, t0))
    e("v_lshl_add_u32 v%d, v%d, 2, v%d" % (t0, t0, t1))
    e("v_mul_u32_u24 v%d, 0x1111, v%d" % (vIdx, t0))
    cm("conv B-frag addresses")
    e("s_mul_i32 s%d, s%d, %d" % (sT0, sWave, 3 * PR))
    e("s_add_u32 s%d, s%d, %d" % (sT0, sT0, XB))
    e("s_lshl_b32 s%d, s%d, 5" % (sT1, sWave))
    for kind, dst, ldst in ((0, vF, vLF), (1, vGa, vLG), (2, vRA, None)):
        if kind == 0: e("v_add_u32 v%d, v%d, v%d" % (t0, gl, px))
        else: e("v_add_u32 v%d, %d, v%d" % (t0, 2 if kind == 1 else 1, px))
        e("v_bfe_u32 v%d, v%d, 1, 3" % (t1, t0))
        e("v_xor_b32 v%d, v%d, v%d" % (t1, t1, gh if kind < 2 else g_))
        e("v_lshlrev_b32 v%d, 7, v%d" % (t0, t0))
        e("v_lshl_add_u32 v%d, v%d, 4, v%d" % (t0, t1, t0))
        if kind == 1:
            e("v_mul_u32_u24 v%d, %d, v%d" % (t1, PR, gl))
            e("v_add_u32 v%d, v%d, v%d" % (t0, t0, t1))
        if kind == 2: e("v_add_u32 v%d, %d, v%d" % (t0, PR, t0))
        e("v_add_u32 v%d, s%d, v%d" % (dst, sT0, t0))
        if kind < 2:
            for k in range(1, 4): e("v_xor_b32 v%d, %d, v%d" % (dst + k, 32 * k, dst))
            e("v_xor_b32 v%d, s%d, v%d" % (t0, sT1, t0))
            e("v_add_u32 v%d, %d, v%d" % (ldst, XB + 12 * PR, t0))
        else:
            e("v_xor_b32 v%d, 64, v%d" % (dst + 1, dst))
    cm("L exchange addresses")
    e("s_lshr_b32 s%d, s%d, 1" % (sT0, sWave))
    e("s_lshl_b32 s%d, s%d, 10" % (sT0, sT0))
    e("s_and_b32 s%d, s%d, 1" % (sT1, sWave))
    e("s_lshl_b32 s%d, s%d, 3" % (sT1, sT1))
    e("s_add_u32 s%d, s%d, s%d" % (sT0, sT0, sT1))
    e("v_lshl_add_u32 v%d, v%d, 4, s%d" % (vLW, vLane, sT0))
    e("v_lshlrev_b32 v%d, 5, v%d" % (vLSr, px))
    e("s_lshl_b32 s%d, s%d, 2" % (sT0, sWave))
    e("v_lshl_add_u32 v%d, v%d, 4, v%d" % (vLSw, gh, vLSr))
    e("v_add_u32 v%d, s%d, v%d" % (vLSw, sT0, vLSw))
    cm("main-loop LDS addresses")
    e("v_bfe_u32 v%d, v%d, 2, 3" % (t0, vLane))
    e("v_and_b32 v%d, 3, v%d" % (t2, vLane))
    e("v_lshlrev_b32 v%d, 7, v%d" % (t3, t0))
    e("v_lshl_add_u32 v%d, v%d, 10, v%d" % (t3, gh, t3))
    e("v_lshl_add_u32 v%d, v%d, 3, v%d" % (t3, t2, t3))
    e("v_lshrrev_b32 v%d, 1, v%d" % (vA1, t0))
    e("v_xor_b32 v%d, s%d, v%d" % (vA1, sWave, vA1))
    e("v_lshl_add_u32 v%d, v%d, 5, v%d" % (vA1, vA1, t3))
    for p in range(1, 4): e("v_xor_b32 v%d, %d, v%d" % (vA1 + p, 32 * p, vA1))
    e("v_mul_u32_u24 v%d, 3080, v%d" % (t3, gl))
    e("v_lshl_add_u32 v%d, v%d, 8, v%d" % (t3, gh, t3))
    e("v_lshl_add_u32 v%d, v%d, 4, v%d" % (t3, px, t3))
    e("v_lshlrev_b32 v%d, 4, v%d" % (t2, g_))
    for p in range(4):
        e("s_xor_b32 s%d, s%d, %d" % (sT0, sWave, p))
        e("s_mul_i32 s%d, s%d, %d" % (sT1, sT0, W2E))
        e("s_add_u32 s%d, s%d, %d" % (sT1, sT1, SLOT + 24576))
        e("v_add_u32 v%d, s%d, v%d" % (vA2 + p, sT1, t3))
    assert TAB_B1 % 256 == 0
    e("s_lshl_b32 s%d, s%d, 6" % (sT0, sWave))
    e("s_add_u32 s%d, s%d, %d" % (sT0, sT0, TAB_B1))
    e("v_add_u32 v%d, s%d, v%d" % (vAb, sT0, t2))
    for p in range(1, 4): e("v_xor_b32 v%d, %d, v%d" % (vAb + p, 64 * p, vAb))
    e("v_lshlrev_b32 v%d, 5, v%d" % (vTab, g_))
    e("v_add_u32 v%d, %d, v%d" % (vTab, TAB_B2, vTab))
    e("v_mul_u32_u24 v%d, 384, v%d" % (vOut, px))
    e("v_add3_u32 v%d, v%d, v%d, s%d" % (vOut, vOut, t2, sBase))

def build_diag(L, early, defer):
    late0 = capture(setup_late)
    zs = ["v_mfma_f32_32x32x16_bf16 %s, %s, %s, 0" % (vr(b, 16), vr(vFb, 4), vr(vFb, 4)) for b in range(160, 256, 16)]
    zs += ["v_mfma_f32_16x16x32_bf16 %s, %s, %s, 0" % (vr(b, 4), vr(vFb, 4), vr(vFb, 4)) for b in range(vLY, vLY + 12, 4)]
    late = []
    for k, l in enumerate(late0):
        late.append(l)
        if k % 10 == 9 and zs: late.append(zs.pop(0))
    assert not zs
    for k, l in enumerate(early):
        e(l)
        if k % 10 == 5: vm.pop()
    cm("sparse-diagonal image")
    vm.wait(lambda t: t == "dw")
    st("dwin")
    for j in range(8):
        d = vQ + 2 * j + j // 4
        if j % 2: e("v_lshrrev_b32 v%d, 16, v%d" % (d, vDW + j // 2))
        else: e("v_and_b32 v%d, 0xffff, v%d" % (d, vDW + j // 2))
    for j in range(8):
        e("ds_write_b64 v%d, %s offset:%d" % (vU + 7, vr(vQ + 2 * j, 2), IMG + j * JS))
    for l in late[:16]: e(l)
    late = late[16:]
    vm.pop()
    st("img")
    e("s_waitcnt lgkmcnt(0)")
    e("s_barrier")
    st("bar")
    rds = []
    for cg in range(12):
        for s_, (a, off) in enumerate(((vIA, 0), (vIA, 768), (vIA + 1, 1536))):
            rds.append("ds_read_b128 %s, v%d offset:%d" % (ar(12 * cg + 4 * s_, 4), a, IMG + off + cg * 32))
    for a_ in range(3 if L else 0):
        for s_, (a, off) in enumerate(((vIA + 2, 0), (vIA + 2, 768), (vIA + 3, 1536))):
            rds.append("ds_read_b128 %s, v%d offset:%d" % (ar(aLD + 12 * a_ + 4 * s_, 4), a, IMG + off + a_ * 128))
    per = (len(late) + 8) // 9
    for f, r in enumerate(rds):
        e(r)
        if f % (len(rds) // 9) == len(rds) // 9 - 1:
            vm.pop()
            for l in late[:per // 2]: e(l)
            if L and opt.fast == 2: vm.pop()
            for l in late[per // 2:per]: e(l)
            late = late[per:]
    assert not late
    for i in range(6):
        sc, ins = dma_w(i, 1); vm.queue("w0", sc + [ins])
    vm.wait(lambda t: t == "tab")
    e("v_mfma_f32_32x32x16_bf16 %s, %s, %s, 0" % (vr(76, 16), vr(vFb, 4), vr(vFb, 4)))
    tables()
    if L:
        e("s_mul_i32 s%d, s%d, %d" % (sT0, sWave, -3 * PR))
        e("s_add_u32 s%d, s%d, %d" % (sT0, sT0, 12 * PR))
        e("s_lshr_b32 s%d, s%d, 1" % (sT1, sWave))
        e("s_mul_i32 s%d, s%d, %d" % (sT1, sT1, PL))
        e("s_add_u32 s%d, s%d, s%d" % (sT0, sT0, sT1))
        e("s_and_b32 s%d, s%d, 1" % (sT1, sWave))
        e("s_lshl_b32 s%d, s%d, 6" % (sT1, sT1))
        e("v_xor_b32 v%d, s%d, v%d" % (vTmp, sT1, vRA))
        e("v_add_u32 v%d, s%d, v%d" % (vTmp, sT0, vTmp))
    if defer:
        w0 = vm.pending; vm.pending = []
        issue_plane0(L, [])
        vm.pending += w0
    while any(tg == ("x", 1) for tg, _ in vm.pending): vm.pop()
    e("s_waitcnt lgkmcnt(0)")
    for b in (92, 108): e("v_mfma_f32_32x32x16_bf16 %s, %s, %s, 0" % (vr(b, 16), vr(vFb, 4), vr(vFb, 4)))
    st("diag")

def tables():
    def unpack_scale(src, dst, scale):
        e("s_mov_b32 s%d, 0x%08x" % (sT0, f2u(scale)))
        for h in range(2):
            e("v_lshlrev_b32 v%d, 16, v%d" % (dst + 2 * h, src + h))
            e("v_and_b32 v%d, 0xffff0000, v%d" % (dst + 2 * h + 1, src + h))
        for k in range(4): e("v_mul_f32 v%d, s%d, v%d" % (dst + k, sT0, dst + k))
    unpack_scale(vTB, vTB + 8, SA)
    unpack_scale(vTB + 2, vTB + 12, 1.0 / SA)
    e("v_add_u32 v%d, %d, v%d" % (vTB + 4, TAB_B1, vTmp))
    e("s_mov_b32 s%d, %d" % (sT0, TAB_G))
    e("v_lshl_add_u32 v%d, v%d, 4, s%d" % (vTB + 5, vLane, sT0))
    e("ds_write_b128 v%d, %s" % (vTB + 4, vr(vTB + 8, 4)))
    e("ds_write_b128 v%d, %s" % (vTB + 5, vr(vTB + 12, 4)))

def res_dst(t, m):
    if m >= 4: return vr(vR45 + 8 * t + 4 * (m - 4), 4)
    if t == 0 and m >= 2: return vr(vR23 + 4 * (m - 2), 4)
    idx = m if t == 0 else 4 * t + m - 2
    return ar(aRes + 4 * idx, 4)
def poff(a): return (a % 2) * PL
def res_rd(t, m):
    return "ds_read_b128 %s, v%d offset:%d" % (res_dst(t, m), vRA + m % 2, poff(m // 2) + t * PR)

def conv_all(L):
    reads = []; mf = []
    lastuse = {}
    nitem = 0
    for a in range(3):
        items = [("m", k) for k in range(4)]
        if L: items.insert(0 if a == 2 else 2, ("l", 0))
        for kind, k in items:
            b = nitem % 2; nitem += 1
            F = (lambda h, c=1: vr(vFb + 4 * h, 4 * c)) if b else (lambda h, c=1: ar(aFb + 4 * h, 4 * c))
            G = (lambda h, c=1: vr(vGb + 4 * h, 4 * c)) if b else (lambda h, c=1: ar(aGb + 4 * h, 4 * c))
            nrow = 3 if kind == "m" else 1
            r0 = len(reads)
            for h in range(nrow + 2):
                reads.append(("ds_read_b128 %s, v%d offset:%d" % (F(h), vF + k if kind == "m" else vLF, poff(a) + h * PR), lastuse.get((b, "F", h), -1), a))
            g0 = len(reads)
            for h in range(nrow + 1):
                reads.append(("ds_read_b128 %s, v%d offset:%d" % (G(h), vGa + k if kind == "m" else vLG, poff(a) + h * PR), lastuse.get((b, "G", h), -1), a))
            A = (lambda s_: ar(12 * (4 * a + k) + 4 * s_, 4)) if kind == "m" else (lambda s_: ar(aLD + 12 * a + 4 * s_, 4))
            Dr = (lambda t: vr(vYt[t] + 4 * (4 * a + k), 4)) if kind == "m" else (lambda t: vr(vLY + 4 * a, 4))
            def sm(t, s_, B, need, uses):
                for u in uses: lastuse[u] = len(mf)
                mf.append(("v_smfmac_f32_16x16x64_bf16 %s, %s, %s, v%d" % (Dr(t), A(s_), B, vIdx), need, a))
            for t in range(nrow):
                sm(t, 0, F(t, 2), r0 + t + 1, [(b, "F", t), (b, "F", t + 1)])
                sm(t, 2, F(t + 1, 2), r0 + t + 2, [(b, "F", t + 1), (b, "F", t + 2)])
            for t in range(nrow):
                sm(t, 1, G(t, 2), g0 + t + 1, [(b, "G", t), (b, "G", t + 1)])
    return reads, mf

def stats_ops(a, L):
    ops = []
    for k in range(4):
        for i in (0, 2):
            for t in range(3):
                y = vr(vYt[t] + 16 * a + 4 * k + i, 2)
                a1, a2 = vr(vS + 4 * t, 2), vr(vS + 4 * t + 2, 2)
                if a == 0 and k == 0 and i == 0:
                    ops += ["v_pk_add_f32 %s, %s, 0 op_sel_hi:[1,0]" % (a1, y), "v_pk_mul_f32 %s, %s, %s" % (a2, y, y)]
                else:
                    ops += ["v_pk_add_f32 %s, %s, %s" % (a1, a1, y), "v_pk_fma_f32 %s, %s, %s, %s" % (a2, y, y, a2)]
        if L and k < 2 and a < 2:
            y = vr(vLY + 4 * a + 2 * k, 2); a1, a2 = vr(vLS, 2), vr(vLS + 2, 2)
            if a == 0 and k == 0: ops += ["v_pk_add_f32 %s, %s, 0 op_sel_hi:[1,0]" % (a1, y), "v_pk_mul_f32 %s, %s, %s" % (a2, y, y)]
            else: ops += ["v_pk_add_f32 %s, %s, %s" % (a1, a1, y), "v_pk_fma_f32 %s, %s, %s, %s" % (a2, y, y, a2)]
    return ops

def finish_ops(a, b, sc, sh):
    return ["v_fma_f32 v%d, -v%d, v%d, v%d" % (b, a, a, b), "v_max_f32 v%d, 0, v%d" % (b, b),
            "v_add_f32 v%d, 0x%08x, v%d" % (b, f2u(1e-5), b), "v_rsq_f32 v%d, v%d" % (b, b),
            "v_mul_f32 v%d, 0x%08x, v%d" % (sc, f2u(SA), b), "v_mul_f32 v%d, v%d, v%d" % (sh, a, sc)]

def reduce_chain(t):
    s1, s2 = vS + 4 * t, vS + 4 * t + 2
    a, b = s1 + 1, s2 + 1
    return ["v_add_f32 v%d, v%d, v%d" % (a, s1, s1 + 1), "v_add_f32 v%d, v%d, v%d" % (b, s2, s2 + 1),
            "v_permlane32_swap_b32 v%d, v%d" % (a, b), "v_add_f32 v%d, v%d, v%d" % (a, a, b), "v_mov_b32 v%d, v%d" % (b, a),
            "v_permlane16_swap_b32 v%d, v%d" % (a, b), "v_add_f32 v%d, v%d, v%d" % (a, a, b),
            "v_mul_f32 v%d, 0x%08x, v%d" % (a, f2u(1.0 / 192.0), a), "v_mov_b32 v%d, v%d" % (b, a),
            "v_permlane32_swap_b32 v%d, v%d" % (a, b)] + finish_ops(a, b, s1, s2)

def ln_norm(y0, n, dst, sc, sh):
    LAG = min(6, n)
    for k in range(n + LAG):
        if k < n:
            y = y0 + 2 * k
            e("v_pk_fma_f32 %s, %s, %s, %s op_sel_hi:[1,0,0] neg_lo:[0,0,1] neg_hi:[0,0,1]" % (vr(y, 2), vr(y, 2), vr(sc, 2), vr(sh, 2)))
        if k >= LAG:
            j = k - LAG
            e("v_cvt_pk_bf16_f32 v%d, v%d, v%d" % (dst + j, y0 + 2 * j, y0 + 2 * j + 1))
        if k % 8 == 7: vm.pop()

def prologue(L):
    vm.wait(lambda t: t == ("x", 0))
    e("s_barrier")
    st("x0in")
    reads, mf = conv_all(L)
    seq = [0]; rseq = {}
    def lds(txt): e(txt); seq[0] += 1
    plane = [0]
    nis = [0]
    def issue_read():
        r = reads[nis[0]]
        if r[2] > plane[0]:
            a = plane[0]
            if a == 1:
                for r_ in [vF + k for k in range(8)] + ([vLF, vLG] if L else []):
                    e("v_add_u32 v%d, %d, v%d" % (r_, 2 * PL, r_))
            vm.wait(lambda t: t == ("x", a + 1))
            e("s_barrier")
            st("x%din" % (a + 1))
            plane[0] += 1
        lds(r[0]); rseq[nis[0]] = seq[0]; nis[0] += 1
    for _ in range(opt.dist): issue_read()
    n0 = nis[0]
    e("s_waitcnt lgkmcnt(%d)" % (seq[0] - rseq[mf[0][1]]))
    pend = []
    la, lb = vLS + 1, vLS + 3
    for i, (txt, need, a) in enumerate(mf):
        e(txt)
        last_of_plane = i + 1 == len(mf) or mf[i + 1][2] != a
        if i + 1 < len(mf):
            nxt = mf[i + 1][1]
            while nis[0] <= nxt:
                assert reads[nis[0]][1] <= i
                issue_read()
            if not last_of_plane and (nxt > need or i == 0): e("s_waitcnt lgkmcnt(%d)" % min(14, seq[0] - rseq[nxt]))
            target = min(len(reads), n0 + -(-(i + 1) * len(reads) // len(mf)))
            while nis[0] < target and nis[0] - nxt <= 13 and reads[nis[0]][1] <= i: issue_read()
        first = min(k for k in range(len(mf)) if mf[k][2] == a)
        if (i - first) % [3, 5, 3][a] == 1: vm.pop()
        if a == 2 and L and i == first + 8:
            for k in range(4):
                y = vLY + 8 + k
                pend += ["v_add_f32 v%d, v%d, v%d" % (vLS + k % 2, vLS + k % 2, y), "v_fmac_f32 v%d, v%d, v%d" % (vLS + 2 + k % 2, y, y)]
            pend += ["v_add_f32 v%d, v%d, v%d" % (la, vLS, vLS + 1), "v_add_f32 v%d, v%d, v%d" % (lb, vLS + 2, vLS + 3), None,
                     "v_permlane32_swap_b32 v%d, v%d" % (la, lb), "v_add_f32 v%d, v%d, v%d" % (la, la, lb), "v_mov_b32 v%d, v%d" % (lb, la), None,
                     "v_permlane16_swap_b32 v%d, v%d" % (la, lb), "v_add_f32 v%d, v%d, v%d" % (la, la, lb), "W"]
        if pend:
            o = pend.pop(0)
            if o == "W": lds("ds_write_b32 v%d, v%d offset:%d" % (vLSw, la, XST))
            elif o: e(o)
        if last_of_plane:
            st("mf%d" % a)
            assert not pend
            if a == 1: assert not any(tg[0] == "x" for tg, _ in vm.pending)
            for t in range(3):
                for m in (2 * a, 2 * a + 1): lds(res_rd(t, m))
            if a == 1:
                if L: lds("ds_read_b128 %s, v%d" % (vr(vRL, 4), vTmp))
                for r_ in [vRA, vRA + 1] + ([vTmp] if L else []): e("v_add_u32 v%d, %d, v%d" % (r_, 2 * PL, r_))
            ops = stats_ops(a, L)
            if a == 2:
                while vm.pending: vm.pop()
                for o in ops[:36]: e(o)
                ops = ops[36:]
                vm.wait(lambda t: t == "w0")
                e("s_waitcnt lgkmcnt(0)")
                e("s_barrier")
                if L:
                    e("ds_read_b128 %s, v%d offset:%d" % (vr(vFb, 4), vLSr, XST))
                    e("ds_read_b128 %s, v%d offset:%d" % (vr(vFb + 4, 4), vLSr, XST + 16))
                set_dma_slot(SLOT)
                e("s_mov_b32 s%d, 128" % sW1off)
                e("s_mov_b32 s%d, 0" % sW2off)
                for kind in (1, 2):
                    for k in range(6):
                        sc, ins = dma_w(k, kind); vm.queue("w1", sc + [ins])
                vm.pop()
            for o in ops: e(o)
            if a < 2: e("s_waitcnt lgkmcnt(%d)" % min(14, seq[0] - rseq[mf[i + 1][1]]))
            st("conv%d" % a)
    assert nis[0] == len(reads)
    p = vFb
    ch = [reduce_chain(t) for t in range(3)]
    if L:
        ch.append([None, None, "s_waitcnt lgkmcnt(0)", "v_pk_add_f32 %s, %s, %s" % (vr(p, 2), vr(p, 2), vr(p + 2, 2)),
                   "v_pk_add_f32 %s, %s, %s" % (vr(p + 4, 2), vr(p + 4, 2), vr(p + 6, 2)),
                   "v_add_f32 v%d, v%d, v%d" % (p, p, p + 1), "v_add_f32 v%d, v%d, v%d" % (p + 1, p + 4, p + 5),
                   "v_mul_f32 v%d, 0x%08x, v%d" % (p, f2u(1.0 / 192.0), p), "v_mul_f32 v%d, 0x%08x, v%d" % (p + 1, f2u(1.0 / 192.0), p + 1),
                   "v_lshlrev_b32 v%d, 4, v%d" % (vX + 8, vLane)] + finish_ops(p, p + 1, p + 2, p + 4))
    for k in range(len(ch[0])):
        for c in ch:
            if c[k]: e(c[k])
        if k % 5 == 1: vm.pop()
    st("red")
    if L:
        ln_norm(vLY, 6, vLY, p + 2, p + 4)
        for a in range(3): e("ds_write_b64 v%d, %s offset:%d" % (vLW, vr(vLY + 2 * a, 2), XCH + a * 2048))
    for t in range(3):
        ln_norm(vYt[t], 24, vB1 + 24 * t, vS + 4 * t, vS + 4 * t + 2)
        if t == 0 and L: e("ds_read_b128 %s, v%d" % (vr(vRL + 4, 4), vTmp))
    if L:
        e("v_mov_b32 v%d, 0" % (vPL + 2))
        e("v_mov_b32 v%d, 0" % (vPL + 3))
    while vm.pending: vm.pop()
    if L:
        e("s_waitcnt lgkmcnt(0)")
        e("s_barrier")
        for kb in range(6): e("ds_read_b128 %s, v%d offset:%d" % (vr(vB1 + 72 + 4 * kb, 4), vX + 8, XCH + kb * 1024))
        e("s_cmp_eq_u32 s%d, 0" % sWave)
        e("s_cselect_b32 s%d, 0, %d" % (sT0, OOB))
        e("v_add_u32 v%d, s%d, v%d" % (vTmp + 1, sT0, vTab))
    st("conv3")

def acc_init(L):
    r = []
    for ct in range(12):
        for t in range(1):
            r.append("ds_read_b128 %s, v%d offset:%d" % (ar(48 * t + 4 * ct, 4), vTab, (ct // 2) * 128 + (ct % 2) * 16))
        if L:
            r.append("ds_read_b128 %s, v%d offset:%d" % (ar(144 + 4 * ct, 4), vTmp + 1, (ct // 2) * 128 + (ct % 2) * 16))
    return r

def gelu_pair(x0, x1, dst, tmp):
    a, b = tmp, tmp + 1
    if opt.gelu == 1:
        return [("v_fma_f32 v%d, -v%d, v%d, -s%d" % (a, x0, x0, sK), 4), ("v_fma_f32 v%d, -v%d, v%d, -s%d" % (b, x1, x1, sK), 4),
                ("v_mul_f32 v%d, v%d, v%d" % (a, x0, a), 4), ("v_mul_f32 v%d, v%d, v%d" % (b, x1, b), 4),
                ("v_exp_f32 v%d, v%d" % (a, a), 8), ("v_exp_f32 v%d, v%d" % (b, b), 8),
                ("v_add_f32 v%d, 1.0, v%d" % (a, a), 4), ("v_add_f32 v%d, 1.0, v%d" % (b, b), 4),
                ("v_rcp_f32 v%d, v%d" % (a, a), 8), ("v_rcp_f32 v%d, v%d" % (b, b), 8),
                ("v_mul_f32 v%d, v%d, v%d" % (a, x0, a), 4), ("v_mul_f32 v%d, v%d, v%d" % (b, x1, b), 4),
                ("v_cvt_pk_bf16_f32 v%d, v%d, v%d" % (dst, a, b), 4)]
    sd = "dst_sel:WORD_1 dst_unused:UNUSED_PRESERVE src0_sel:WORD_1"
    return [("v_cvt_pk_f16_f32 v%d, v%d, v%d" % (a, x0, x1), 4),
            ("v_pk_fma_f16 v%d, v%d, v%d, s%d" % (b, a, a, sK), 4),
            ("v_pk_mul_f16 v%d, v%d, v%d neg_lo:[1,0] neg_hi:[1,0]" % (a, a, b), 4),
            ("v_exp_f16%s v%d, v%d" % ("_e64" if opt.e64 else "", b, a), 8),
            ("v_exp_f16_sdwa v%d, v%d %s" % (b, a, sd), 8),
            ("v_pk_add_f16 v%d, v%d, 1.0 op_sel_hi:[1,0]" % (a, b), 4),
            ("v_rcp_f16%s v%d, v%d" % ("_e64" if opt.e64 else "", b, a), 8),
            ("v_rcp_f16_sdwa v%d, v%d %s" % (b, a, sd), 8),
            ("v_fma_mix_f32 v%d, v%d, v%d, 0 op_sel_hi:[0,1,0]" % (a, x0, b), 4),
            ("v_fma_mix_f32 v%d, v%d, v%d, 0 op_sel:[0,1,0] op_sel_hi:[0,1,0]" % (b, x1, b), 4),
            ("v_cvt_pk_bf16_f32 v%d, v%d, v%d" % (dst, a, b), 4)]

def gelu_ops(c, L, tiles=(0, 1, 2)):
    hb = vH + 24 * (c % 2); pb = vP + 12 * (c % 2)
    quads = []
    for t in tiles:
        for ep in range(2):
            quads.append((hb + 8 * t + 4 * ep, pb + 4 * t + 2 * ep))
    if L and c % 2 == 0: quads.append((vHL, vPL))
    ops = []
    for n, (x, d) in enumerate(quads):
        tmp = vT + 4 * (n % 2)
        A = gelu_pair(x, x + 1, d, tmp); B = gelu_pair(x + 2, x + 3, d + 1, tmp + 2)
        if opt.gelu == 1:
            for k in range(0, 12, 2): ops += [A[k], A[k + 1], B[k], B[k + 1]]
            ops += [A[12], B[12]]
        else:
            for k in range(len(A)): ops += [A[k], B[k]]
    return ops

class Frag: pass

def step_scalars():
    return ["s_add_u32 s%d, s%d, s%d" % (sM1, sM1, sDel2),
            "s_add_u32 s%d, s%d, s%d" % (sM2, sM2, sDel2),
            "s_add_u32 s%d, s%d, 128" % (sW1off, sW1off),
            "s_add_u32 s%d, s%d, 24576" % (sW2off, sW2off),
            "s_mov_b32 s%d, s%d" % (sT0, sDel1),
            "s_mov_b32 s%d, s%d" % (sDel1, sDel2),
            "s_mov_b32 s%d, s%d" % (sDel2, sDelta),
            "s_sub_u32 s%d, s%d, 1" % (sCnt, sCnt),
            "s_cmp_lg_u32 s%d, 0" % sCnt]

def build_main(L, c_lo, c_hi, virt, xds={}, xval={}, xwr={}):
    groups = []
    TM = c_hi == 26
    for c in range(c_lo, c_hi + 1 + (1 if virt else 0)):
        step = (c + 1) // 2 if c < 24 or not TM else c - 11
        if c + 1 <= 23 or virt:
            c1 = c + 1
            for ep in range(2):
                pos = 2 * (c1 % 2) + ep
                for kb in range(6):
                    g = Frag(); g.kind = 1; g.period = c; g.step = step; g.pos = pos; g.kb = kb; g.chunk = c1; g.ep = ep
                    groups.append(g)
        if c - 1 >= 0:
            c2 = min(c - 1, 23)
            for ct in range(12):
                g = Frag(); g.kind = 2; g.period = c; g.step = step; g.ct = ct; g.chunk = c2
                groups.append(g)
    N = len(groups)
    D, R = opt.D, opt.R
    assert 24 % R == 0 and D < R and D <= 5
    nbias = 0
    for n, g in enumerate(groups):
        g.slot = aRing + 4 * (n % R)
        g.reads = []
        if g.kind == 1:
            if g.kb == 0:
                g.bias = vBias + 4 * (nbias % 2); nbias += 1
                g.reads.append("ds_read_b128 %s, v%d" % (vr(g.bias, 4), vAb + g.pos))
            for h in range(2):
                g.reads.append("ds_read_b64_tr_b16 %s, v%d offset:%d" % (ar(g.slot + 2 * h, 2), vA1 + g.pos, (g.kb * 4 + h * 2) * 1024))
            hb = vH + 24 * (g.chunk % 2)
            g.mf = []
            tiles = [0, 1, 2] + ([3] if (L and g.pos == 0) else [])
            for t in tiles:
                d = (hb + 8 * t + 4 * g.ep) if t < 3 else vHL
                cc = vr(g.bias, 4) if g.kb == 0 else vr(d, 4)
                g.mf.append("v_mfma_f32_16x16x32_bf16 %s, %s, %s, %s" % (vr(d, 4), ar(g.slot, 4), vr(vB1 + 24 * t + 4 * g.kb, 4), cc))
            g.upd = []
            if g.kb == 5 and g.step <= 10: g.upd = ["v_add_u32 v%d, s%d, v%d" % (vA1 + g.pos, sDelta, vA1 + g.pos)]
            if g.kb == 0 and g.step <= 10: g.upd = ["v_add_u32 v%d, 0x100, v%d" % (vAb + g.pos, vAb + g.pos)]
        else:
            m, o = g.ct // 2, g.ct % 2
            for h in range(2):
                pos = 2 * (g.chunk % 2) + h
                g.reads.append("ds_read_b64_tr_b16 %s, v%d offset:%d" % (ar(g.slot + 2 * h, 2), vA2 + pos, m * 512 + o * 8))
            pb = vP + 12 * (g.chunk % 2)
            g.mf = []
            tiles = [0, 1, 2] + ([3] if (L and g.chunk % 2 == 0) else [])
            if g.chunk == 0: tiles = tiles[1:] + [0]
            if TM and g.period >= 24: tiles = [g.period - 24]
            for t in tiles:
                acc = ar(48 * t + 4 * g.ct, 4)
                cin = ar(4 * g.ct, 4) if (g.chunk == 0 and t < 3) else acc
                g.mf.append("v_mfma_f32_16x16x32_bf16 %s, %s, %s, %s" % (acc, ar(g.slot, 4), vr(pb + 4 * t, 4) if t < 3 else vr(vPL, 4), cin))
            g.upd = []
            if g.ct == 11 and g.step <= 11:
                g.upd = ["v_add_u32 v%d, s%d, v%d" % (vA2 + 2 * (g.chunk % 2) + h, sDelta, vA2 + 2 * (g.chunk % 2) + h) for h in range(2)]
    steps = [[] for _ in range(16)]
    issued = [0]; lastseq = {}
    pre = []
    def issue(n, dst):
        for r in groups[n].reads:
            dst.append(r); issued[0] += 1
        lastseq[n] = issued[0]
    for n in range(D): issue(n, pre)
    for n in range(D): pre += groups[n].upd
    first_wait = "s_waitcnt lgkmcnt(%d)" % (issued[0] - lastseq[0])
    for c in range(c_lo, c_hi + 1):
        step = (c + 1) // 2 if c < 24 or not TM else c - 11
        dst = steps[step]
        gs = [k for k in range(N) if groups[k].period == c]
        val = gelu_ops(c, L) if 0 <= c <= 23 else []
        if TM and 23 <= c <= 25: val = gelu_ops(23, L, (c - 23,))
        val = val + [(x, 4) for x in xval.get(c, [])]
        xd = list(xds.get(c, []))
        nxd = (len(xd) + len(gs) - 1) // len(gs)
        if c == c_lo:
            burst = 0
            while val and burst < 120:
                pre.append(val[0][0]); burst += val[0][1]; val = val[1:]
            pre.append(first_wait)
        dmas = []; scal = []
        if step <= 11:
            if c % 2 == 1: dmas = [dma_w(i, 1) for i in range(6 if step <= 9 else 0)] + [dma_w(i, 2) for i in range(6 if step <= 10 else 0)]
            else: scal = step_scalars()
        nm = sum(len(groups[k].mf) for k in gs)
        tot = 8 * nm + sum(x[1] for x in val) + 12 * len(dmas) + 4 * len(xd) + 20 * len([1 for cc, _ in xwr if cc == c])
        for k in gs:
            if k + D < N: tot += 4 * len(groups[k + D].reads) + 4 * len(groups[k + D].upd)
        t = 0.0; vi = 0; mi = 0
        sp = opt.dsp if len(gs) >= 24 else 1
        dmap = {sp * i: d for i, d in enumerate(dmas)}
        for gi, k in enumerate(gs):
            g = groups[k]
            for j, m in enumerate(g.mf):
                dst.append(m); t += 8; mi += 1
                extra = []
                if j == len(g.mf) - 1 and k + 1 < N:
                    dst.append("s_waitcnt lgkmcnt(%d)" % min(14, issued[0] - lastseq[k + 1]))
                if j == 0:
                    if gi in dmap: dst.append(dmap[gi][0][0])
                    elif scal: dst.append(scal.pop(0))
                    if k + D < N:
                        issue(k + D, dst); t += 4 * len(groups[k + D].reads)
                        extra = groups[k + D].upd
                if j == len(g.mf) - 1:
                    for _ in range(nxd):
                        if xd: dst.append(xd.pop(0)); issued[0] += 1; t += 4
                if j == 1 and (c, gi) in xwr:
                    dst.append(xwr[(c, gi)]); issued[0] += 1; t += 20
                if j == 1:
                    if gi in dmap:
                        dst.append(dmap[gi][0][1]); dst.append(dmap[gi][1]); t += 12
                    elif gi == len(gs) - 1 and step <= 11 and c % 2 == 0:
                        dst.append("s_mov_b32 s%d, s%d" % (sDelta, sT0))
                for x in extra: dst.append(x); t += 4
                lim = mi * tot / nm
                while vi < len(val) and t + val[vi][1] <= lim + 2:
                    dst.append(val[vi][0]); t += val[vi][1]; vi += 1
        while vi < len(val): dst.append(val[vi][0]); vi += 1
        assert not scal and not xd
    return pre, steps

def main_part(L):
    tag = "b%d" % L
    ai = acc_init(L)
    xd24, xwr, xv24 = epi_prep(L)
    TM = opt.tm and not L
    if TM: pre, steps = build_main(L, -1, 26, False, xds={0: ai, 23: xd24}, xval={23: xv24, 26: unpack_t2()})
    else: pre, steps = build_main(L, -1, 24, False, xds={0: ai, 24: xd24}, xval={24: xv24}, xwr=xwr)
    for j in range(3, 10): assert steps[j] == steps[2], j
    assert opt.unroll in (1, 2, 4)
    e("s_mov_b32 s%d, 0x%08x" % (sK, f2u(KK) if opt.gelu == 1 else f2h(KK) * 0x10001))
    set_dma_slot(2 * SLOT)
    e("s_mov_b32 s%d, 256" % sW1off)
    e("s_mov_b32 s%d, 24576" % sW2off)
    e("s_mov_b32 s%d, %d" % (sDelta, SLOT))
    e("s_mov_b32 s%d, %d" % (sDel1, SLOT))
    e("s_mov_b32 s%d, %d" % (sDel2, -2 * SLOT))
    e("s_mov_b32 s%d, 10" % sCnt)
    for s in pre: e(s)
    def with_bar(body):
        body = list(body)
        bar = ["s_waitcnt vmcnt(0)"] + ([] if opt.nobar else ["s_barrier"])
        if opt.barpos:
            idx = [i for i, l in enumerate(body) if l.startswith("v_mfma")][-opt.barpos]
            return body[:idx + 1] + bar + body[idx + 1:]
        return body + bar
    s0 = with_bar(steps[0])
    idx = [i for i, l in enumerate(s0) if l.startswith("v_mfma")][-3 * (opt.D + 2)]
    s0 = s0[:idx + 1] + ["s_waitcnt vmcnt(12)", "s_barrier"] + s0[idx + 1:]
    for s in s0: e(s)
    st("step0")
    for s in with_bar(steps[1]): e(s)
    out.append(".p2align 6")
    lab("L_loop_%s" % tag)
    for u in range(opt.unroll):
        for s in with_bar(steps[2]): e(s)
    e("s_cbranch_scc1 L_loop_%s" % tag)
    for s in with_bar(steps[10]): e(s)
    for s in steps[11]: e(s)
    st("loop")
    epi_scalars(L)
    for s in steps[12]: e(s)
    st("p24")
    epilogue(L, steps[13:16] if TM else None)

RED = SLOT
STG = 2 * SLOT
vG = vH
vWA = vA1
vRd = vA1 + 2
vSt = vA1 + 3
vX0 = vB1 + 48
def gam(L, m):
    if opt.tm and not L and m >= 3: return vB1 + 72 + 8 * (m - 3)
    return vG + 8 * m
def unp_reg(L, t, m):
    if opt.tm and not L:
        if t == 0 and 2 <= m <= 4: return vX0 + 8 * (m - 2)
        if t == 2: return (vX0 + 8 * m) if m < 3 else (vH + 24 + 8 * (m - 3))
        return None
    return vX0 + 8 * (m - 2) if (t == 0 and m >= 2) else None
def unpack_t2():
    ops = []
    for m in range(6):
        src = res_dst(2, m); base = int(src[2:src.index(":")]); d = unp_reg(0, 2, m)
        if src[0] == "a":
            for k in range(4): ops.append("v_accvgpr_read_b32 v%d, a%d" % (d + 2 * k + 1, base + k))
            for k in range(4):
                ops += ["v_lshlrev_b32 v%d, 16, v%d" % (d + 2 * k, d + 2 * k + 1), "v_and_b32 v%d, 0xffff0000, v%d" % (d + 2 * k + 1, d + 2 * k + 1)]
        else:
            for k in range(4):
                ops += ["v_lshlrev_b32 v%d, 16, v%d" % (d + 2 * k, base + k), "v_and_b32 v%d, 0xffff0000, v%d" % (d + 2 * k + 1, base + k)]
    return ops
def epi_prep(L):
    xd = ["ds_read_b128 %s, v%d offset:%d" % (vr(gam(L, ct // 2) + 4 * (ct % 2), 4), vTab, TAB_G - TAB_B2 + (ct // 2) * 128 + (ct % 2) * 16) for ct in range(12)]
    xv23 = {}
    if L:
        for ct in range(12):
            xv23[(23, ct + 2) if ct < 10 else (24, 2 * (ct - 10) + 1)] = "ds_write_b128 v%d, %s offset:%d" % (vTmp + 1, ar(144 + 4 * ct, 4), ct * 1024)
    t0, t1 = vAb + 2, vAb + 3
    xv = ["v_and_b32 v%d, 15, v%d" % (t0, vLane), "v_lshrrev_b32 v%d, 4, v%d" % (t1, vLane),
          "v_lshl_add_u32 v%d, v%d, 7, s%d" % (vWA, t0, sT2), "v_and_b32 v%d, 7, v%d" % (t0, t0),
          "v_xor_b32 v%d, v%d, v%d" % (t1, t0, t1), "v_lshl_add_u32 v%d, v%d, 4, v%d" % (vWA, t1, vWA),
          "v_xor_b32 v%d, 64, v%d" % (vWA + 1, vWA),
          "v_lshrrev_b32 v%d, 3, v%d" % (t1, vLane), "v_xor_b32 v%d, v%d, v%d" % (vRd, t1, vLane),
          "v_lshl_add_u32 v%d, v%d, 4, s%d" % (vRd, vRd, sT2),
          "v_mul_u32_u24 v%d, 384, v%d" % (t1, t1), "v_lshl_add_u32 v%d, v%d, 4, v%d" % (vSt, t0, t1),
          "v_add_u32 v%d, s%d, v%d" % (vSt, sT1, vSt)]
    for k in range(12 if (opt.tm and not L) else 16):
        src = (vR23 + k) if k < 8 else (vR45 + k - 8)
        xv += ["v_lshlrev_b32 v%d, 16, v%d" % (vX0 + 2 * k, src), "v_and_b32 v%d, 0xffff0000, v%d" % (vX0 + 2 * k + 1, src)]
    return xd, xv23, xv

def epi_scalars(L):
    e("s_mul_i32 s%d, s%d, %d" % (sT1, sWave, 3 * ROWB))
    e("s_add_u32 s%d, s%d, s%d" % (sT1, sT1, sBase))
    e("s_mul_i32 s%d, s%d, 12288" % (sT2, sWave))
    e("s_add_u32 s%d, s%d, %d" % (sT3, sT2, RED))
    e("s_add_u32 s%d, s%d, %d" % (sT2, sT2, STG if L else RED))
    assert STG % 128 == 0 and RED % 128 == 0
    if L:
        e("v_lshlrev_b32 v%d, 4, v%d" % (vTmp, vLane))
        e("v_add_u32 v%d, s%d, v%d" % (vTmp + 1, sT3, vTmp))

def epi_group(acc_regs, gam, xr, dst, tmp, unpacked=False):
    if not unpacked:
        for k in range(4):
            e("v_lshlrev_b32 v%d, 16, v%d" % (tmp + 2 * k, xr + k))
            e("v_and_b32 v%d, 0xffff0000, v%d" % (tmp + 2 * k + 1, xr + k))
    for k in range(4):
        e("v_pk_fma_f32 %s, %s, %s, %s" % (vr(tmp + 2 * k, 2), vr(acc_regs + 2 * k, 2), vr(gam + 2 * k, 2), vr(tmp + 2 * k, 2)))
    for k in range(4):
        e("v_cvt_pk_bf16_f32 v%d, v%d, v%d" % (dst + k, tmp + 2 * k, tmp + 2 * k + 1))

def epilogue(L, tmsteps):
    tag = "b%d" % L
    if not tmsteps: e("s_waitcnt lgkmcnt(0)")
    vAc = vB1; vTm = vB1 + 16; vXs = vB1 + 32; vO = vB1 + 40
    vLin = vRL if tmsteps else vP
    if L:
        e("s_barrier")
        e("s_lshl_b32 s%d, s%d, 6" % (sT1, sWave))
        e("s_add_u32 s%d, s%d, %d" % (sT1, sT1, 12 * ROWB))
        e("s_lshl_b32 s%d, s%d, 11" % (sT2, sWave))
        e("s_add_u32 s%d, s%d, %d" % (sT2, sT2, RED))
        e("v_add_u32 v%d, s%d, v%d" % (vTmp, sT2, vTmp))
        e("s_lshl_b32 s%d, s%d, 7" % (sT2, sWave))
        e("v_add_u32 v%d, s%d, v%d" % (vTmp + 1, sT2, vTab))
        lregs = [vBias, vT, vHL, vB1 + 80]; lgam = vB1 + 88
        def lreads(half):
            for w in range(4):
                for o in range(2):
                    e("ds_read_b128 %s, v%d offset:%d" % (vr(lregs[w] + 4 * o, 4), vTmp, w * 12288 + half * 8192 + o * 1024))
            for o in range(2):
                e("ds_read_b128 %s, v%d offset:%d" % (vr(lgam + 4 * o, 4), vTmp + 1, TAB_G - TAB_B2 + half * 512 + o * 16))
        def lfinish(half):
            r = lregs
            for k in range(0, 8, 2):
                e("v_pk_add_f32 %s, %s, %s" % (vr(r[0] + k, 2), vr(r[0] + k, 2), vr(r[1] + k, 2)))
                e("v_pk_add_f32 %s, %s, %s" % (vr(r[2] + k, 2), vr(r[2] + k, 2), vr(r[3] + k, 2)))
            for k in range(0, 8, 2):
                e("v_pk_add_f32 %s, %s, %s" % (vr(r[0] + k, 2), vr(r[0] + k, 2), vr(r[2] + k, 2)))
            xr = vRL + 4 * half
            epi_group(r[0], lgam, xr, xr, r[1])
            e("buffer_store_dwordx4 %s, v%d, %s, s%d offen offset:%d%s" % (vr(xr, 4), vOut, sr(S_O, 4), sT1, half * 256, OPOL))
        lreads(0)
    st("gam")
    e("s_mov_b32 s%d, %d" % (sT0, ROWB))
    e("s_mov_b32 s%d, %d" % (sSo, 2 * ROWB))
    if not L:
        e("s_sub_u32 s%d, s%d, s%d" % (sT3, sNrows, sWave))
        e("s_cmp_eq_u32 s%d, 8" % sT3)
        e("s_cselect_b32 s%d, 0x40000000, s%d" % (sSo, sSo))
    def store(u, k):
        t, a = u // 3, u % 3
        e("buffer_store_dwordx4 %s, v%d, %s, %s offen offset:%d%s" % (vr(vLin + 8 * (u % 2) + 4 * k, 4), vSt, sr(S_O, 4),
                                                                     ["0", "s%d" % sT0, "s%d" % sSo][t], a * 128 + k * 3072, OPOL))
    n = 0
    for t in range(3):
        if tmsteps:
            body = list(tmsteps[t])
            if t > 0:
                ix = [i for i, l in enumerate(body) if l.startswith("s_waitcnt")][opt.D]
                body = body[:ix + 1] + capture(store, 3 * t - 1, 0) + capture(store, 3 * t - 1, 1) + body[ix + 1:]
            for l in body: e(l)
        for m in range(6):
            u = 3 * t + m // 2
            buf = (u % 4) * 2048
            ac = vAc + 8 * (n % 2); tm = vTm + 8 * (n % 2); o = vO + 4 * (n % 2)
            for k in range(8): e("v_accvgpr_read_b32 v%d, a%d" % (ac + k, 48 * t + 8 * m + k))
            src = res_dst(t, m)
            base = int(src[2:src.index(":")])
            unp = unp_reg(L, t, m) is not None
            if unp: tm = unp_reg(L, t, m); xr = None
            elif src[0] == "a":
                xr = vXs + 4 * (n % 2)
                for k in range(4): e("v_accvgpr_read_b32 v%d, a%d" % (xr + k, base + k))
            else: xr = base
            epi_group(ac, gam(L, m), xr, o, tm, unp)
            if u > 0 and not (tmsteps and m < 2):
                if m % 2 == 0: e("s_waitcnt lgkmcnt(0)")
                store(u - 1, m % 2)
            e("ds_write_b128 v%d, %s offset:%d" % (vWA + m % 2, vr(o, 4), buf))
            if m % 2 == 1:
                for k in range(2): e("ds_read_b128 %s, v%d offset:%d" % (vr(vLin + 8 * (u % 2) + 4 * k, 4), vRd, buf + k * 1024))
            n += 1
            if L and n == 1:
                e("s_waitcnt lgkmcnt(1)")
                lfinish(0)
                lreads(1)
            if L and n == 3:
                e("s_cmp_ge_u32 s%d, 2" % sWave)
                e("s_cbranch_scc1 L_done_%s" % tag)
                lfinish(1)
                lab("L_done_%s" % tag)
        st("t%d" % t)
    e("s_waitcnt lgkmcnt(0)")
    for k in range(2): store(8, k)
    if opt.stamps:
        st("epi")
        e("s_waitcnt vmcnt(0)")
        st("drain")
        e("s_waitcnt lgkmcnt(0)")
        if opt.dbg:
            srd(S_T, 8, 64)
            e("v_mov_b32 v2, 0")
            for i in range(len(SSETS[opt.sset])):
                e("s_sub_u32 s%d, s%d, s%d" % (sT0, sStamp + 2 * i, sStamp))
                e("v_writelane_b32 v2, s%d, %d" % (sT0, i))
            e("v_lshlrev_b32 v3, 2, v0")
            e("buffer_atomic_umax v2, v3, %s, 0 offen" % sr(S_T, 4))
            e("s_endpgm")
            return
        srd(S_T, 9, 1 << 20)
        e("s_lshl_b32 s%d, s2, 2" % sT0)
        e("s_add_u32 s%d, s%d, s%d" % (sT0, sT0, sWave))
        e("s_lshl_b32 s%d, s%d, 6" % (sT0, sT0))
        e("v_mov_b32 v2, 0")
        for i in range(len(SSETS[opt.sset])): e("v_writelane_b32 v2, s%d, %d" % (sStamp + 2 * i, i))
        out.append("; STAMPNAMES " + " ".join(SSETS[opt.sset]))
        e("v_writelane_b32 v2, s%d, 11" % sNrows)
        e("v_lshlrev_b32 v3, 2, v%d" % vLane)
        e("v_add_u32 v3, s%d, v3" % sT0)
        e("v_cmp_gt_u32 vcc, 16, v%d" % vLane)
        e("s_and_saveexec_b64 %s, vcc" % sr(sEx, 2))
        e("buffer_store_dword v2, v3, %s, 0 offen" % sr(S_T, 4))
    e("s_endpgm")

import copy
vm = VM()
head()
vm0 = vm
for L in (1, 0):
    vm = copy.deepcopy(vm0)
    lab("L_body%d" % L)
    if not L and opt.prio == 3:
        e("s_bitcmp1_b32 s%d, 24" % (sTb + 1))
        e("s_cbranch_scc1 L_defer")
        early(L, False, True)
        pend = [t for t, _ in vm.pending]
        e("s_branch L_join")
        lab("L_defer")
        vm = copy.deepcopy(vm0)
        early(L, True, True)
        assert pend == [t for t, _ in vm.pending]
        lab("L_join")
    else:
        early(L, (not L) and opt.prio == 2)
    prologue(L)
    main_part(L)
lab("L_exit")
e("s_endpgm")
out.append(".p2align 3")
out.append(".type L_wgtab,@object")
lab("L_wgtab")
for a, b in wg_table(): e(".long 0x%08x, 0x%08x" % (a, b))
out.append(".size L_wgtab, %d" % (NWG * 8))

ref = open("cdna_kernels/%s.s.ref" % NAME).read().split("\n")
hdr = [l for l in ref if l.startswith(";") and "@launch" not in l]
txt = "\n".join(hdr) + "\n; @launch grid=(%d,1,1) block=(256,1,1) lds=%d\n" % (NWG, LDS_SIZE)
txt += """.amdgcn_target "amdgcn-amd-amdhsa--gfx950"
.text
.globl %s_kernel
.p2align 8
.type %s_kernel,@function
%s_kernel:
""" % (NAME, NAME, NAME)
txt += "\n".join(out).replace("PF_LIM", "L_exit-L_pf-0x8000") + "\n"
txt += """.section .rodata,"a"
.p2align 6
.amdhsa_kernel %s_kernel
  .amdhsa_next_free_vgpr 512
  .amdhsa_next_free_sgpr 102
  .amdhsa_accum_offset 256
  .amdhsa_group_segment_fixed_size 0
  .amdhsa_kernarg_size 80
  .amdhsa_user_sgpr_count 2
  .amdhsa_user_sgpr_kernarg_segment_ptr 1
  .amdhsa_system_sgpr_workgroup_id_x 1
.end_amdhsa_kernel
""" % NAME
dst = [a for a in sys.argv[1:] if "=" not in a]
open(dst[0] if dst else "cdna_kernels/%s.s" % NAME, "w").write(txt)
```

```python
import math, struct, sys

NAME = "standalone__modern_conv_block_convnext__vision"
def f2u(f): return struct.unpack("<I", struct.pack("<f", f))[0]
def f2h(f): return struct.unpack("<H", struct.pack("<e", f))[0]

class Opt:
    gelu = 2
    stamps = 0
    D = 4
    R = 6
    xnt = 0
    sset = 0
    dsp = 1
    nobar = 0
    unroll = 2
    e64 = 0
    barpos = 0
    dist = 12
    prio = 3
    tm = 1
    odef = 2
    map = 11
    fast = 1
    gap = 12
    dbg = 0
    pe1 = 6
    pf = 1
    ont = 2
opt = Opt()
for a in sys.argv[1:]:
    if "=" in a:
        k, v = a.split("="); assert hasattr(opt, k), k; setattr(opt, k, int(v))

C0 = 2.0 * math.sqrt(2.0 / math.pi) * math.log2(math.e)
SA = (C0 * 0.044715) ** (1.0 / 3.0)
KK = C0 / SA
if opt.gelu == 2:
    KK = struct.unpack("<e", struct.pack("<e", KK))[0]
    SA = C0 / KK

XBYTES = 224 * 224 * 384
ROWB = 86016
SLOT = 49408
XB = SLOT
W2E = 6160
PL = 34816
PR = 2304
TAB_B1 = XB + 3 * PL
TAB_B2 = TAB_B1 + 3072
TAB_G = TAB_B2 + 1024
DUMMY = TAB_G + 1024
IMG = 24576
JS = 1936
XCH = 40960
XST = XCH + 6144
LDS_SIZE = 163840
OOB = 0x40000
XPOL = " nt" if opt.xnt else ""
OPOL = ["", " nt", " sc1", " sc0 sc1"][opt.ont]
assert DUMMY + 1280 <= LDS_SIZE and IMG + 8 * JS <= XCH and XST + 1024 <= SLOT

S_X = 8; S_W1 = 12; S_W2 = 16; S_O = 20; S_T = 24
sWave = 28; sBase = 29; sNrows = 31
sK = 32; sDelta = 33; sW1off = 35; sW2off = 36; sCnt = 37
sT0 = 38; sT1 = 39; sT2 = 40; sT3 = 41
sEx = 42
sC1 = 44; sM1 = 45; sM2 = 46; sSo = 47; sDel1 = 48; sDel2 = 49
sXm7 = 30; sXm1 = 50; sXm8 = 51; sXs8 = 52; sQlo = 53; sTb = 54; sQn = 56; sC2 = 57; sLut = 58
sPtr = 60
S_B = 60; S_G = 64
sStamp = 80

vLane = 1
vA1 = 2; vA2 = 6; vAb = 10
vD1 = 14; vD2 = 15; vOut = 16; vTab = 17; vTmp = 18
vBias = 20
vT = 28
vRL = 36
vHL = 44; vPL = 48
vP = 52
vH = 76
vR45 = 124
vR23 = 148
vB1 = 160
aRing = 192
aRes = 216
vLW = 19
vLY = 20
vRA = 32; vLF = 34; vLG = 35
vS = 40
vIA = 48
vFb = 52
vLS = 72
vYt = [160, 76, 208]
vGb = 124
vF = 140; vGa = 144
vX = 148
vIdx = 157; vLSw = 158; vLSr = 159
aLD = 144; aFb = 180; aGb = 200
vDW = 76; vQ = 80; vTB = 96; vU = 116

out = []
def e(s): out.append("    " + s)
def lab(s): out.append(s + ":")
def cm(s): out.append("    ; " + s)
SSETS = [["start", "issued", "diag", "conv0", "conv1", "conv2", "conv3", "step0", "loop", "epi", "drain"],
         ["start", "loop", "p24", "gam", "t0", "t1", "t2", "epi", "drain"],
         ["start", "kernarg", "issued", "setup", "dwin", "img", "bar", "diag", "x0in", "mf0", "conv0"],
         ["start", "diag", "x0in", "mf0", "x1in", "mf1", "x2in", "mf2", "red", "conv3", "step0"],
         ["start", "x0in", "mf0", "conv0", "mf1", "conv1", "mf2", "conv2", "conv3", "step0", "drain"]]
def st(name):
    names = SSETS[opt.sset]
    if opt.stamps and name in names: stamp(names.index(name))
def stamp(i):
    if opt.stamps: e("%s s[%d:%d]" % ("s_memrealtime" if opt.stamps == 1 else "s_memtime", sStamp + 2 * i, sStamp + 2 * i + 1))
def vr(b, n): return "v[%d:%d]" % (b, b + n - 1)
def ar(b, n): return "a[%d:%d]" % (b, b + n - 1)
def sr(b, n): return "s[%d:%d]" % (b, b + n - 1)
def srd(s, ptr_slot, nbytes):
    e("s_mov_b32 s%d, s%d" % (s, sPtr + 2 * ptr_slot))
    e("s_and_b32 s%d, s%d, 0xffff" % (s + 1, sPtr + 2 * ptr_slot + 1))
    e("s_mov_b32 s%d, %d" % (s + 2, nbytes))
    e("s_mov_b32 s%d, 0x20000" % (s + 3))

def capture(fn, *args):
    global out
    save = out; out = []
    fn(*args)
    got = [l.strip() for l in out if not l.strip().startswith(";")]
    out = save
    return got

class VM:
    def __init__(self): self.issued = []; self.pending = []; self.cap = False
    def issue_now(self, tag, lines):
        for l in lines: e(l)
        self.issued.append(tag)
    def queue(self, tag, lines): self.pending.append((tag, lines))
    def pop(self, n=1):
        for _ in range(n):
            if self.pending and not (self.cap and self.pending[0][0] == ("x", 2)):
                tag, lines = self.pending.pop(0); self.issue_now(tag, lines)
    def wait(self, pred):
        while any(pred(t) for t, _ in self.pending): self.pop()
        idx = [i for i, t in enumerate(self.issued) if pred(t)]
        e("s_waitcnt vmcnt(%d)" % (len(self.issued) - 1 - max(idx)))
vm = None

NWG = 256 if opt.map else 252
def wg_table():
    rows = []
    seen = set()
    if opt.map >= 7:
        own = {x: [] for x in range(8)}
        def deal(blocks, plan):
            for x, k in plan:
                own[x] += blocks[:k]; blocks = blocks[k:]
            assert not blocks
        band = lambda r0, h, nb: [(r0 + h * b, st_, h) for st_ in range(14) for b in range(nb)]
        if opt.map == 7:
            deal(band(0, 13, 4), [(0, 28), (2, 28)]); deal(band(52, 13, 4), [(4, 21), (1, 14), (6, 21)])
            deal(band(104, 12, 3), [(4, 11), (1, 18), (6, 11), (0, 2)]); deal(band(140, 12, 7), [(3, 32), (5, 32), (7, 32), (2, 2)])
        elif opt.map == 11:
            hs = [13, 13, 12, 13, 12, 13, 12, 13, 12, 13, 13, 12, 13, 12, 12, 12, 12, 12]
            r0 = [sum(hs[:b]) for b in range(18)]
            left = []
            for half, (xu, xl) in enumerate(((0, 4), (2, 6))):
                bl = [(r0[b], 5 * half + k, hs[b]) for b in range(13) for k in range(5)]
                own[xu] += bl[:32]; left.append(bl[32]); own[xl] += bl[33:]
            h2 = [12, 12, 12, 11, 12, 12, 12, 12, 11, 12, 12, 12, 12, 11, 12, 12, 12, 12, 11]
            right = [(sum(h2[:b]), 10 + k, h2[b]) for b in range(19) for k in range(4)]
            bottom = [(r0[b], st_, 12) for st_ in range(9, -1, -1) for b in range(13, 18)]
            deal(right + bottom + left, [(1, 32), (3, 32), (5, 32), (7, 32)])
        elif opt.map == 9:
            deal(band(0, 13, 4), [(0, 28), (2, 28)]); deal(band(52, 13, 4), [(4, 24), (1, 8), (6, 24)])
            deal(band(104, 12, 3), [(4, 7), (0, 3), (1, 24), (2, 1), (6, 7)]); deal(band(140, 12, 7), [(3, 32), (5, 32), (7, 32), (2, 2)])
        elif opt.map == 10:
            deal(band(0, 13, 4), [(0, 28), (2, 28)]); deal(band(52, 13, 4), [(4, 21), (1, 14), (6, 21)])
            deal(band(104, 12, 3), [(4, 10), (0, 4), (1, 16), (2, 2), (6, 10)]); deal(band(140, 12, 7), [(3, 32), (5, 32), (7, 32), (2, 2)])
        else:
            deal(band(0, 13, 4), [(0, 24), (1, 8), (2, 24)]); deal(band(52, 13, 4), [(4, 22), (1, 12), (6, 22)])
            deal(band(104, 12, 3), [(4, 9), (0, 7), (1, 12), (2, 5), (6, 9)]); deal(band(140, 12, 7), [(3, 32), (5, 32), (7, 32), (2, 2)])
    for wg in range(NWG):
        x, n = wg & 7, wg >> 3
        if opt.map == 0:
            idx = 63 * (x & 3) + (32 if x >= 4 else 0) + n
            h, rem = idx // 126, idx % 126
            b, strip = rem // 7, 7 * h + rem % 7
            row0 = b * 112 // 9; nrows = (b + 1) * 112 // 9 - row0
        elif opt.map >= 7:
            if n >= len(own[x]):
                rows.append((0, 0)); continue
            row0, strip, nrows = own[x][n]
        elif opt.map in (5, 6):
            h, v = (x // 2) % 2, x // 4
            ne = 3 if opt.map == 5 else 4
            no = 35 - ne
            if x % 2 == 0 and n < 28:
                strip = 7 * h + n % 7; row0 = 13 * (4 * v + n // 7); nrows = 13
            elif n >= (28 + ne if x % 2 == 0 else no):
                rows.append((0, 0)); continue
            else:
                k = (ne * v + n - 28) if x % 2 == 0 else (2 * ne + no * v + n)
                strip = 7 * h + k % 7; row0 = 104 + 12 * (k // 7); nrows = 12
        elif opt.map >= 2:
            order = {0: 0, 4: 1, 1: 2, 5: 3, 2: 0, 6: 1, 3: 2, 7: 3}
            h = 0 if x in (0, 4, 1, 5) else 1
            if opt.map == 2:
                cnt = [32, 32, 30, 32]; hs = [13, 12, 13, 13, 12, 13, 13, 12, 13, 12, 13, 12, 13, 12, 12, 12, 12, 12]
            elif opt.map == 3:
                cnt = [32, 32, 31, 31]; hs = [13, 13, 12, 13, 13, 13, 13, 12, 13, 12, 12, 13, 12, 12, 12, 12, 12, 12]
            else:
                cnt = [32, 32, 32, 30]; hs = [13, 12, 13, 13, 12, 13, 12, 13, 12, 12, 13, 12, 13, 12, 12, 13, 12, 12]
            assert sum(hs) == 224 and sum(cnt) == 126
            o = order[x]
            if n >= cnt[o]:
                rows.append((0, 0)); continue
            k = sum(cnt[:o]) + n
            strip = 7 * h + k % 7; row0 = sum(hs[:k // 7]); nrows = hs[k // 7]
        else:
            h, v = x % 2, (x % 4) // 2
            if x < 4 and n < 28:
                strip = 7 * h + n % 7; row0 = 13 * (4 * v + n // 7); nrows = 13
            elif x < 4 and n == 31:
                rows.append((0, 0)); continue
            else:
                k = (3 * v + n - 28) if x < 4 else (6 + 32 * v + n)
                strip = 7 * h + k % 7; row0 = 104 + 12 * (k // 7); nrows = 12
        for r in range(row0, row0 + nrows):
            assert (r, strip) not in seen; seen.add((r, strip))
        base = ((row0 - 1) * ROWB + strip * 6144 - 384) & 0xffffffff
        qlo = 1 if strip == 0 else 0; qn = (17 if strip == 13 else 18) - qlo
        defer = 1 if (opt.prio == 3 and nrows < 13 and (x % 2 == 0 or (n % 4) < opt.odef)) else 0
        rows.append((base, qlo | qn << 8 | nrows << 16 | defer << 24))
    assert len(seen) == 224 * 14
    return rows

def dma_w(i, kind):
    if kind == 1:
        return (["s_add_u32 m0, s%d, %d" % (sM1, i * 1024), "s_add_u32 s%d, s%d, %d" % (sSo, sW1off, i * 12288)],
                "buffer_load_dwordx4 v%d, %s, s%d offen lds" % (vD1, sr(S_W1, 4), sSo))
    oo, t = i // 3, i % 3
    return (["s_add_u32 m0, s%d, %d" % (sM2, oo * 3080 + t * 1024), "s_add_u32 s%d, s%d, %d" % (sSo, sW2off, oo * 1536 + t * 128)],
            "buffer_load_dwordx4 v%d, %s, s%d offen lds" % (vD2, sr(S_W2, 4), sSo))

def set_dma_slot(slot_base_imm):
    e("s_mul_i32 s%d, s%d, 6144" % (sM1, sWave))
    e("s_add_u32 s%d, s%d, %d" % (sM1, sM1, slot_base_imm))
    e("s_mul_i32 s%d, s%d, %d" % (sM2, sWave, W2E))
    e("s_add_u32 s%d, s%d, %d" % (sM2, sM2, slot_base_imm + 24576))


def x_item(a, i):
    off = (" offset:%d" % (128 * a)) if a else ""
    j, sec = i // 2, i % 2
    if i < 7: m = ["s_add_u32 m0, s%d, %d" % (sXm1, a * (PL - 128) + j * 9216 + sec * 4096), "s_nop 0"]
    else:
        r = sXm7 if i == 7 else sXm8
        m = ["s_mov_b32 m0, s%d" % r, "s_add_u32 s%d, s%d, s%d" % (r, r, sXs8)]
    return (("x", a), m + ["buffer_load_dwordx4 v%d, %s, 0 offen%s%s lds" % (vX + i, sr(S_X, 4), off, XPOL)])

def x_voff_a(i):
    n, r, q, f = vU, vU + 1, vU + 2 + min(i, 2), vTB + 10
    l = []
    if i == 0: l += ["v_lshrrev_b32 v%d, 3, v0" % n, "v_and_b32 v%d, 7, v0" % (vU + 5)]
    elif i == 1: l += ["v_add_u32 v%d, 32, v%d" % (n, n)]
    else: l += ["v_bfe_u32 v%d, v0, 3, 3" % n, "v_add_u32 v%d, 64, v%d" % (n, n)]
    l += ["v_mul_u32_u24 v%d, 3641, v%d" % (r, n), "v_lshrrev_b32 v%d, 16, v%d" % (r, r),
          "v_mul_u32_u24 v%d, 18, v%d" % (q, r), "v_sub_u32 v%d, v%d, v%d" % (q, n, q),
          "v_bfe_u32 v%d, v%d, 1, 3" % (f, q), "v_xor_b32 v%d, v%d, v%d" % (f, f, vU + 5),
          "v_mul_u32_u24 v%d, %d, v%d" % (r, ROWB - 18 * 384, r),
          "v_mad_u32_u24 v%d, v%d, s%d, v%d" % (r, n, sC1, r),
          "v_lshl_add_u32 v%d, v%d, 4, v%d" % (vX + i, f, r)]
    return l
def x_voff_b(i, base):
    q = vU + 2 + min(i, 2)
    return ["v_subrev_u32 v%d, s%d, v%d" % (q, sQlo, q), "v_cmp_gt_u32 vcc, s%d, v%d" % (sQn, q),
            "v_add_u32 v%d, s%d, v%d" % (vX + i, base, vX + i), "s_nop 0",
            "v_cndmask_b32 v%d, v%d, v%d, vcc" % (vX + i, vU + 6, vX + i)]
for n in range(288): assert (n * 3641) >> 16 == n // 18

def head():
    e("s_cmp_ge_u32 s2, %d" % NWG)
    e("s_cbranch_scc1 L_exit")
    st("start")
    e("s_load_dwordx2 %s, s[0:1], 0" % sr(S_X, 2))
    e("s_load_dwordx2 %s, s[0:1], 8" % sr(S_T, 2))
    e("s_getpc_b64 %s" % sr(sEx, 2))
    lab("L_pf")
    e("s_lshl_b32 s%d, s2, 3" % sT0)
    e("s_add_u32 s%d, s%d, L_wgtab-L_pf" % (sT0, sT0))
    e("s_load_dwordx2 %s, %s, s%d" % (sr(sTb, 2), sr(sEx, 2), sT0))
    if opt.pf:
        e("s_lshr_b32 s%d, s2, 3" % sT3)
        e("s_lshl_b32 s%d, s%d, 12" % (sT3, sT3))
        e("v_lshrrev_b32 v%d, 3, v0" % (vTB + 8))
        e("v_lshl_add_u32 v%d, v%d, 7, s%d" % (vTB + 8, vTB + 8, sT3))
        e("v_min_u32 v%d, L_exit-L_pf, v%d" % (vTB + 8, vTB + 8))
        vm.issue_now("dw", ["global_load_dword v%d, v%d, %s" % (vTB + 6, vTB + 8, sr(sEx, 2))])
    e("v_lshrrev_b32 v%d, 6, v0" % vS)
    e("s_movk_i32 s%d, 384" % sC1)
    e("v_readfirstlane_b32 s%d, v%d" % (sWave, vS))
    for l in x_voff_a(0): e(l)
    e("v_bfrev_b32 v%d, 2" % (vU + 6))
    e("v_lshlrev_b32 v%d, 4, v0" % vTmp)
    e("s_mov_b32 s%d, %d" % (S_X + 2, XBYTES))
    e("s_mov_b32 s%d, 0x20000" % (S_X + 3))
    e("s_movk_i32 s%d, 3456" % (S_T + 2))
    e("s_mov_b32 s%d, s%d" % (S_T + 3, S_X + 3))
    e("s_lshl_b32 s%d, s%d, 10" % (sXm1, sWave))
    e("s_add_u32 s%d, s%d, %d" % (sXm1, sXm1, XB))
    e("s_waitcnt lgkmcnt(0)")
    st("kernarg")
    vm.issue_now("dw", ["buffer_load_dwordx4 %s, v%d, %s, 0 offen" % (vr(vDW, 4), vTmp, sr(S_T, 4))])
    e("s_load_dwordx2 %s, s[0:1], 16" % sr(S_W1, 2))
    e("s_load_dwordx2 %s, s[0:1], 32" % sr(S_W2, 2))
    e("s_load_dwordx2 %s, s[0:1], 56" % sr(S_O, 2))
    e("s_load_dwordx2 %s, s[0:1], 24" % sr(S_B, 2))
    e("s_load_dwordx4 %s, s[0:1], 40" % sr(S_G, 4))
    if opt.stamps: e("s_load_dwordx4 %s, s[0:1], 64" % sr(sPtr + 16, 4))
    e("s_and_b32 s%d, s%d, 0xff" % (sQlo, sTb + 1))
    e("s_bfe_u32 s%d, s%d, 0x80008" % (sQn, sTb + 1))
    e("s_bfe_u32 s%d, s%d, 0x80010" % (sNrows, sTb + 1))
    if opt.map == 11:
        e("s_cmp_lt_u32 s%d, 13" % sNrows)
        e("s_cbranch_scc1 L_body0")
    else:
        e("s_cmp_eq_u32 s%d, 12" % sNrows)
        e("s_cbranch_scc1 L_body0")
        if opt.map:
            e("s_cmp_eq_u32 s%d, 0" % sNrows)
            e("s_cbranch_scc1 L_exit")

def issue_plane0(L, filler):
    add = lambda i: ["v_add_u32 v%d, s%d, v%d" % (vX + i, sC2, vX + i - 2)]
    va1 = x_voff_a(1); va8 = x_voff_a(8)
    sc = ["s_add_u32 s%d, s%d, %d" % (sXm7, sXm1, 3 * 9216 + 4096), "s_mul_i32 s%d, s%d, 9216" % (sXm8, sWave),
          "s_add_u32 s%d, s%d, %d" % (sXm8, sXm8, XB + 8192), "s_mul_i32 s%d, s%d, s%d" % (sT2, sWave, sC2),
          "s_add_u32 s%d, s%d, s%d" % (sT2, sT2, sTb), "s_cmp_lt_u32 s%d, 3" % sWave,
          "s_cselect_b32 s%d, s%d, %d" % (sXm7, sXm7, DUMMY), "s_cselect_b32 s%d, s%d, %d" % (sXm8, sXm8, DUMMY),
          "s_cselect_b32 s%d, %d, 0" % (sXs8, PL - 128), "s_cselect_b32 s%d, s%d, 0x40000000" % (sT2, sT2)]
    seq = [(x_voff_b(0, sTb), 0), (["s_mov_b32 s%d, %d" % (sC2, 4 * ROWB)] + add(2), 2), (add(4) + va1, 4),
           (add(6) + x_voff_b(1, sTb), 6), (sc, 1), (add(3) + va8, 3), (add(5) + x_voff_b(8, sT2), 5),
           (["s_cmp_lt_u32 s%d, %d" % (sWave, 3 if L else 1), "s_cselect_b32 s%d, s%d, 0x40000000" % (sT3, sC2),
             "v_add_u32 v%d, s%d, v%d" % (vX + 7, sT3, vX + 5)], 7), ([], 8)]
    for n, (pre, i) in enumerate(seq):
        for l in pre: e(l)
        k = len(pre)
        while n >= 2 and k < opt.gap and filler and "vcc" not in filler[0]:
            e(filler.pop(0)); k += 1
        vm.issue_now(*x_item(0, i))
    for a in (1, 2):
        for i in range(9): vm.queue(*x_item(a, i))

def early(L, defer=False, cap=False):
    vm.queue("tab", ["s_waitcnt lgkmcnt(0)", "s_cmp_eq_u32 s%d, 3" % sWave, "s_cselect_b64 %s, %s, %s" % (sr(S_B, 2), sr(S_G, 2), sr(S_B, 2)),
                     "s_movk_i32 s%d, 1536" % (S_B + 2), "s_cselect_b32 s%d, 384, s%d" % (S_B + 2, S_B + 2), "s_mov_b32 s%d, s%d" % (S_B + 3, S_X + 3),
                     "s_cselect_b32 s%d, 63, -1" % sT3, "v_and_b32 v%d, s%d, v0" % (vTB + 7, sT3), "v_lshlrev_b32 v%d, 3, v%d" % (vTB + 7, vTB + 7),
                     "buffer_load_dwordx2 %s, v%d, %s, 0 offen" % (vr(vTB, 2), vTB + 7, sr(S_B, 4))])
    vm.queue("tab", ["s_mov_b64 %s, %s" % (sr(S_G, 2), sr(S_G + 2, 2)), "s_movk_i32 s%d, 384" % (S_G + 2), "s_mov_b32 s%d, s%d" % (S_G + 3, S_X + 3),
                     "v_lshlrev_b32 v%d, 3, v%d" % (vTB + 7, vLane),
                     "buffer_load_dwordx2 %s, v%d, %s, 0 offen" % (vr(vTB + 2, 2), vTB + 7, sr(S_G, 4))])
    fill = capture(setup_early) + ["v_mov_b32 v%d, 0" % (vFb + k) for k in range(4)]
    vm.cap = cap
    if not defer: issue_plane0(L, fill)
    e("s_add_u32 s%d, s%d, %d" % (sBase, sTb, ROWB + 384))
    st("issued")
    build_diag(L, fill, defer)
    vm.cap = False

px, g_, gl, gh = vS + 4, vS + 5, vS + 6, vS + 7
def setup_early():
    t0, t1, t2 = vS, vS + 1, vS + 2
    e("v_and_b32 v%d, 63, v0" % vLane)
    for j in range(8): e("v_mov_b32 v%d, 0" % (vQ + 2 * j + 1 - j // 4))
    cm("image write address: tap = tid/24 -> (pair, half)")
    code = [0, 1, 4, 2, 3, 5, 8, 9, 7, 6, 15]
    lut = sum(c << (4 * i) for i, c in enumerate(code))
    e("s_mov_b32 s%d, 0x%08x" % (sLut, lut & 0xffffffff))
    e("s_mov_b32 s%d, 0x%08x" % (sLut + 1, lut >> 32))
    e("v_mul_u32_u24 v%d, 2731, v0" % t0)
    e("v_lshrrev_b32 v%d, 16, v%d" % (t0, t0))
    e("v_mul_u32_u24 v%d, 24, v%d" % (t1, t0))
    e("v_sub_u32 v%d, v0, v%d" % (t1, t1))
    e("v_lshlrev_b32 v%d, 2, v%d" % (t0, t0))
    e("v_lshrrev_b64 %s, v%d, %s" % (vr(t2, 2), t0, sr(sLut, 2)))
    e("v_and_b32 v%d, 1, v%d" % (t0, t2))
    e("v_lshlrev_b32 v%d, 3, v%d" % (t0, t0))
    e("v_lshl_add_u32 v%d, v%d, 4, v%d" % (t0, t1, t0))
    e("v_bfe_u32 v%d, v%d, 1, 3" % (t2, t2))
    e("v_mul_u32_u24 v%d, 384, v%d" % (t1, t2))
    e("v_cmp_gt_u32 vcc, 5, v%d" % t2)
    e("v_add_u32 v%d, v%d, v%d" % (t0, t0, t1))
    e("v_mov_b32 v%d, %d" % (t1, OOB))
    e("v_cndmask_b32 v%d, v%d, v%d, vcc" % (vU + 7, t1, t0))
    e("v_and_b32 v%d, 15, v%d" % (px, vLane))
    e("v_lshrrev_b32 v%d, 4, v%d" % (g_, vLane))
    e("v_and_b32 v%d, 1, v%d" % (gl, g_))
    e("v_lshrrev_b32 v%d, 1, v%d" % (gh, g_))
    cm("image read addresses (invalid lanes out of range -> read 0)")
    e("v_lshrrev_b32 v%d, 3, v%d" % (t0, px))
    e("v_xor_b32 v%d, v%d, v%d" % (t0, t0, gl))
    e("v_mul_u32_u24 v%d, %d, v%d" % (t0, OOB, t0))
    e("v_lshl_add_u32 v%d, v%d, 4, v%d" % (t0, gl, t0))
    e("v_and_b32 v%d, 7, v%d" % (t1, px))
    e("v_mul_u32_u24 v%d, %d, v%d" % (t1, JS, t1))
    e("v_add_u32 v%d, v%d, v%d" % (t0, t0, t1))
    e("v_mul_u32_u24 v%d, 384, v%d" % (t1, gh))
    e("v_add_u32 v%d, v%d, v%d" % (vIA, t0, t1))
    e("v_xor_b32 v%d, 1, v%d" % (t1, gh))
    e("v_mul_u32_u24 v%d, %d, v%d" % (t1, OOB, t1))
    e("v_add_u32 v%d, v%d, v%d" % (vIA + 1, t0, t1))
    e("s_lshl_b32 s%d, s%d, 5" % (sT0, sWave))
    e("v_add_u32 v%d, s%d, v%d" % (vIA + 2, sT0, vIA))
    e("v_add_u32 v%d, s%d, v%d" % (vIA + 3, sT0, vIA + 1))

def setup_late():
    t0, t1, t2, t3 = vS, vS + 1, vS + 2, vS + 3
    cm("W1 dma voffset")
    e("v_lshrrev_b32 v%d, 3, v%d" % (t0, vLane))
    e("v_and_b32 v%d, 7, v%d" % (t1, vLane))
    e("v_and_b32 v%d, 6, v%d" % (t2, t0))
    e("v_xor_b32 v%d, v%d, v%d" % (t1, t1, t2))
    e("v_mul_u32_u24 v%d, 1536, v%d" % (t0, t0))
    e("v_lshl_add_u32 v%d, v%d, 4, v%d" % (vD1, t1, t0))
    e("s_mul_i32 s%d, s%d, %d" % (sT0, sWave, 48 * 1536))
    e("v_add_u32 v%d, s%d, v%d" % (vD1, sT0, vD1))
    cm("W2 dma voffset")
    e("v_bfe_u32 v%d, v%d, 2, 3" % (t0, vLane))
    e("v_and_b32 v%d, 4, v%d" % (t1, t0))
    e("v_add_u32 v%d, v%d, v%d" % (t0, t0, t1))
    e("v_mul_u32_u24 v%d, 384, v%d" % (t0, t0))
    e("v_lshl_add_u32 v%d, v%d, 6, v%d" % (t0, gh, t0))
    e("v_and_b32 v%d, 3, v%d" % (t1, vLane))
    e("v_lshl_add_u32 v%d, v%d, 4, v%d" % (vD2, t1, t0))
    e("s_mul_i32 s%d, s%d, %d" % (sT0, sWave, 16 * 384))
    e("v_add_u32 v%d, s%d, v%d" % (vD2, sT0, vD2))
    e("s_mov_b32 s%d, %d" % (S_W1 + 2, 192 * 768 * 2))
    e("s_mov_b32 s%d, s%d" % (S_W1 + 3, S_X + 3))
    e("s_mov_b64 %s, %s" % (sr(S_W2 + 2, 2), sr(S_W1 + 2, 2)))
    e("s_mov_b64 %s, %s" % (sr(S_O + 2, 2), sr(S_X + 2, 2)))
    set_dma_slot(0)
    e("s_mov_b32 s%d, 0" % sW1off)
    cm("sparse index: every group selects (row%4, (row+1)%4)")
    e("v_add_u32 v%d, 1, v%d" % (t0, t1))
    e("v_and_b32 v%d, 3, v%d" % (t0, t0))
    e("v_lshl_add_u32 v%d, v%d, 2, v%d" % (t0, t0, t1))
    e("v_mul_u32_u24 v%d, 0x1111, v%d" % (vIdx, t0))
    cm("conv B-frag addresses")
    e("s_mul_i32 s%d, s%d, %d" % (sT0, sWave, 3 * PR))
    e("s_add_u32 s%d, s%d, %d" % (sT0, sT0, XB))
    e("s_lshl_b32 s%d, s%d, 5" % (sT1, sWave))
    for kind, dst, ldst in ((0, vF, vLF), (1, vGa, vLG), (2, vRA, None)):
        if kind == 0: e("v_add_u32 v%d, v%d, v%d" % (t0, gl, px))
        else: e("v_add_u32 v%d, %d, v%d" % (t0, 2 if kind == 1 else 1, px))
        e("v_bfe_u32 v%d, v%d, 1, 3" % (t1, t0))
        e("v_xor_b32 v%d, v%d, v%d" % (t1, t1, gh if kind < 2 else g_))
        e("v_lshlrev_b32 v%d, 7, v%d" % (t0, t0))
        e("v_lshl_add_u32 v%d, v%d, 4, v%d" % (t0, t1, t0))
        if kind == 1:
            e("v_mul_u32_u24 v%d, %d, v%d" % (t1, PR, gl))
            e("v_add_u32 v%d, v%d, v%d" % (t0, t0, t1))
        if kind == 2: e("v_add_u32 v%d, %d, v%d" % (t0, PR, t0))
        e("v_add_u32 v%d, s%d, v%d" % (dst, sT0, t0))
        if kind < 2:
            for k in range(1, 4): e("v_xor_b32 v%d, %d, v%d" % (dst + k, 32 * k, dst))
            e("v_xor_b32 v%d, s%d, v%d" % (t0, sT1, t0))
            e("v_add_u32 v%d, %d, v%d" % (ldst, XB + 12 * PR, t0))
        else:
            e("v_xor_b32 v%d, 64, v%d" % (dst + 1, dst))
    cm("L exchange addresses")
    e("s_lshr_b32 s%d, s%d, 1" % (sT0, sWave))
    e("s_lshl_b32 s%d, s%d, 10" % (sT0, sT0))
    e("s_and_b32 s%d, s%d, 1" % (sT1, sWave))
    e("s_lshl_b32 s%d, s%d, 3" % (sT1, sT1))
    e("s_add_u32 s%d, s%d, s%d" % (sT0, sT0, sT1))
    e("v_lshl_add_u32 v%d, v%d, 4, s%d" % (vLW, vLane, sT0))
    e("v_lshlrev_b32 v%d, 5, v%d" % (vLSr, px))
    e("s_lshl_b32 s%d, s%d, 2" % (sT0, sWave))
    e("v_lshl_add_u32 v%d, v%d, 4, v%d" % (vLSw, gh, vLSr))
    e("v_add_u32 v%d, s%d, v%d" % (vLSw, sT0, vLSw))
    cm("main-loop LDS addresses")
    e("v_bfe_u32 v%d, v%d, 2, 3" % (t0, vLane))
    e("v_and_b32 v%d, 3, v%d" % (t2, vLane))
    e("v_lshlrev_b32 v%d, 7, v%d" % (t3, t0))
    e("v_lshl_add_u32 v%d, v%d, 10, v%d" % (t3, gh, t3))
    e("v_lshl_add_u32 v%d, v%d, 3, v%d" % (t3, t2, t3))
    e("v_lshrrev_b32 v%d, 1, v%d" % (vA1, t0))
    e("v_xor_b32 v%d, s%d, v%d" % (vA1, sWave, vA1))
    e("v_lshl_add_u32 v%d, v%d, 5, v%d" % (vA1, vA1, t3))
    for p in range(1, 4): e("v_xor_b32 v%d, %d, v%d" % (vA1 + p, 32 * p, vA1))
    e("v_mul_u32_u24 v%d, 3080, v%d" % (t3, gl))
    e("v_lshl_add_u32 v%d, v%d, 8, v%d" % (t3, gh, t3))
    e("v_lshl_add_u32 v%d, v%d, 4, v%d" % (t3, px, t3))
    e("v_lshlrev_b32 v%d, 4, v%d" % (t2, g_))
    for p in range(4):
        e("s_xor_b32 s%d, s%d, %d" % (sT0, sWave, p))
        e("s_mul_i32 s%d, s%d, %d" % (sT1, sT0, W2E))
        e("s_add_u32 s%d, s%d, %d" % (sT1, sT1, SLOT + 24576))
        e("v_add_u32 v%d, s%d, v%d" % (vA2 + p, sT1, t3))
    assert TAB_B1 % 256 == 0
    e("s_lshl_b32 s%d, s%d, 6" % (sT0, sWave))
    e("s_add_u32 s%d, s%d, %d" % (sT0, sT0, TAB_B1))
    e("v_add_u32 v%d, s%d, v%d" % (vAb, sT0, t2))
    for p in range(1, 4): e("v_xor_b32 v%d, %d, v%d" % (vAb + p, 64 * p, vAb))
    e("v_lshlrev_b32 v%d, 5, v%d" % (vTab, g_))
    e("v_add_u32 v%d, %d, v%d" % (vTab, TAB_B2, vTab))
    e("v_mul_u32_u24 v%d, 384, v%d" % (vOut, px))
    e("v_add3_u32 v%d, v%d, v%d, s%d" % (vOut, vOut, t2, sBase))

def build_diag(L, early, defer):
    late0 = capture(setup_late)
    zs = ["v_mfma_f32_32x32x16_bf16 %s, %s, %s, 0" % (vr(b, 16), vr(vFb, 4), vr(vFb, 4)) for b in range(160, 256, 16)]
    zs += ["v_mfma_f32_16x16x32_bf16 %s, %s, %s, 0" % (vr(b, 4), vr(vFb, 4), vr(vFb, 4)) for b in range(vLY, vLY + 12, 4)]
    late = []
    for k, l in enumerate(late0):
        late.append(l)
        if k % 10 == 9 and zs: late.append(zs.pop(0))
    assert not zs
    for k, l in enumerate(early):
        e(l)
        if k % 10 == 5: vm.pop()
    cm("sparse-diagonal image")
    vm.wait(lambda t: t == "dw")
    st("dwin")
    for j in range(8):
        d = vQ + 2 * j + j // 4
        if j % 2: e("v_lshrrev_b32 v%d, 16, v%d" % (d, vDW + j // 2))
        else: e("v_and_b32 v%d, 0xffff, v%d" % (d, vDW + j // 2))
    for j in range(8):
        e("ds_write_b64 v%d, %s offset:%d" % (vU + 7, vr(vQ + 2 * j, 2), IMG + j * JS))
    for l in late[:16]: e(l)
    late = late[16:]
    vm.pop()
    st("img")
    e("s_waitcnt lgkmcnt(0)")
    e("s_barrier")
    st("bar")
    rds = []
    for cg in range(12):
        for s_, (a, off) in enumerate(((vIA, 0), (vIA, 768), (vIA + 1, 1536))):
            rds.append("ds_read_b128 %s, v%d offset:%d" % (ar(12 * cg + 4 * s_, 4), a, IMG + off + cg * 32))
    for a_ in range(3 if L else 0):
        for s_, (a, off) in enumerate(((vIA + 2, 0), (vIA + 2, 768), (vIA + 3, 1536))):
            rds.append("ds_read_b128 %s, v%d offset:%d" % (ar(aLD + 12 * a_ + 4 * s_, 4), a, IMG + off + a_ * 128))
    per = (len(late) + 8) // 9
    for f, r in enumerate(rds):
        e(r)
        if f % (len(rds) // 9) == len(rds) // 9 - 1:
            vm.pop()
            for l in late[:per // 2]: e(l)
            if L and opt.fast == 2: vm.pop()
            for l in late[per // 2:per]: e(l)
            late = late[per:]
    assert not late
    for i in range(6):
        sc, ins = dma_w(i, 1); vm.queue("w0", sc + [ins])
    vm.wait(lambda t: t == "tab")
    e("v_mfma_f32_32x32x16_bf16 %s, %s, %s, 0" % (vr(76, 16), vr(vFb, 4), vr(vFb, 4)))
    tables()
    if L:
        e("s_mul_i32 s%d, s%d, %d" % (sT0, sWave, -3 * PR))
        e("s_add_u32 s%d, s%d, %d" % (sT0, sT0, 12 * PR))
        e("s_lshr_b32 s%d, s%d, 1" % (sT1, sWave))
        e("s_mul_i32 s%d, s%d, %d" % (sT1, sT1, PL))
        e("s_add_u32 s%d, s%d, s%d" % (sT0, sT0, sT1))
        e("s_and_b32 s%d, s%d, 1" % (sT1, sWave))
        e("s_lshl_b32 s%d, s%d, 6" % (sT1, sT1))
        e("v_xor_b32 v%d, s%d, v%d" % (vTmp, sT1, vRA))
        e("v_add_u32 v%d, s%d, v%d" % (vTmp, sT0, vTmp))
    if defer:
        w0 = vm.pending; vm.pending = []
        issue_plane0(L, [])
        vm.pending += w0
    while any(tg == ("x", 1) for tg, _ in vm.pending): vm.pop()
    e("s_waitcnt lgkmcnt(0)")
    for b in (92, 108): e("v_mfma_f32_32x32x16_bf16 %s, %s, %s, 0" % (vr(b, 16), vr(vFb, 4), vr(vFb, 4)))
    st("diag")

def tables():
    def unpack_scale(src, dst, scale):
        e("s_mov_b32 s%d, 0x%08x" % (sT0, f2u(scale)))
        for h in range(2):
            e("v_lshlrev_b32 v%d, 16, v%d" % (dst + 2 * h, src + h))
            e("v_and_b32 v%d, 0xffff0000, v%d" % (dst + 2 * h + 1, src + h))
        for k in range(4): e("v_mul_f32 v%d, s%d, v%d" % (dst + k, sT0, dst + k))
    unpack_scale(vTB, vTB + 8, SA)
    unpack_scale(vTB + 2, vTB + 12, 1.0 / SA)
    e("v_add_u32 v%d, %d, v%d" % (vTB + 4, TAB_B1, vTmp))
    e("s_mov_b32 s%d, %d" % (sT0, TAB_G))
    e("v_lshl_add_u32 v%d, v%d, 4, s%d" % (vTB + 5, vLane, sT0))
    e("ds_write_b128 v%d, %s" % (vTB + 4, vr(vTB + 8, 4)))
    e("ds_write_b128 v%d, %s" % (vTB + 5, vr(vTB + 12, 4)))

def res_dst(t, m):
    if m >= 4: return vr(vR45 + 8 * t + 4 * (m - 4), 4)
    if t == 0 and m >= 2: return vr(vR23 + 4 * (m - 2), 4)
    idx = m if t == 0 else 4 * t + m - 2
    return ar(aRes + 4 * idx, 4)
def poff(a): return (a % 2) * PL
def res_rd(t, m):
    return "ds_read_b128 %s, v%d offset:%d" % (res_dst(t, m), vRA + m % 2, poff(m // 2) + t * PR)

def conv_all(L):
    reads = []; mf = []
    lastuse = {}
    nitem = 0
    for a in range(3):
        items = [("m", k) for k in range(4)]
        if L: items.insert(0 if a == 2 else 2, ("l", 0))
        for kind, k in items:
            b = nitem % 2; nitem += 1
            F = (lambda h, c=1: vr(vFb + 4 * h, 4 * c)) if b else (lambda h, c=1: ar(aFb + 4 * h, 4 * c))
            G = (lambda h, c=1: vr(vGb + 4 * h, 4 * c)) if b else (lambda h, c=1: ar(aGb + 4 * h, 4 * c))
            nrow = 3 if kind == "m" else 1
            r0 = len(reads)
            for h in range(nrow + 2):
                reads.append(("ds_read_b128 %s, v%d offset:%d" % (F(h), vF + k if kind == "m" else vLF, poff(a) + h * PR), lastuse.get((b, "F", h), -1), a))
            g0 = len(reads)
            for h in range(nrow + 1):
                reads.append(("ds_read_b128 %s, v%d offset:%d" % (G(h), vGa + k if kind == "m" else vLG, poff(a) + h * PR), lastuse.get((b, "G", h), -1), a))
            A = (lambda s_: ar(12 * (4 * a + k) + 4 * s_, 4)) if kind == "m" else (lambda s_: ar(aLD + 12 * a + 4 * s_, 4))
            Dr = (lambda t: vr(vYt[t] + 4 * (4 * a + k), 4)) if kind == "m" else (lambda t: vr(vLY + 4 * a, 4))
            def sm(t, s_, B, need, uses):
                for u in uses: lastuse[u] = len(mf)
                mf.append(("v_smfmac_f32_16x16x64_bf16 %s, %s, %s, v%d" % (Dr(t), A(s_), B, vIdx), need, a))
            for t in range(nrow):
                sm(t, 0, F(t, 2), r0 + t + 1, [(b, "F", t), (b, "F", t + 1)])
                sm(t, 2, F(t + 1, 2), r0 + t + 2, [(b, "F", t + 1), (b, "F", t + 2)])
            for t in range(nrow):
                sm(t, 1, G(t, 2), g0 + t + 1, [(b, "G", t), (b, "G", t + 1)])
    return reads, mf

def stats_ops(a, L):
    ops = []
    for k in range(4):
        for i in (0, 2):
            for t in range(3):
                y = vr(vYt[t] + 16 * a + 4 * k + i, 2)
                a1, a2 = vr(vS + 4 * t, 2), vr(vS + 4 * t + 2, 2)
                if a == 0 and k == 0 and i == 0:
                    ops += ["v_pk_add_f32 %s, %s, 0 op_sel_hi:[1,0]" % (a1, y), "v_pk_mul_f32 %s, %s, %s" % (a2, y, y)]
                else:
                    ops += ["v_pk_add_f32 %s, %s, %s" % (a1, a1, y), "v_pk_fma_f32 %s, %s, %s, %s" % (a2, y, y, a2)]
        if L and k < 2 and a < 2:
            y = vr(vLY + 4 * a + 2 * k, 2); a1, a2 = vr(vLS, 2), vr(vLS + 2, 2)
            if a == 0 and k == 0: ops += ["v_pk_add_f32 %s, %s, 0 op_sel_hi:[1,0]" % (a1, y), "v_pk_mul_f32 %s, %s, %s" % (a2, y, y)]
            else: ops += ["v_pk_add_f32 %s, %s, %s" % (a1, a1, y), "v_pk_fma_f32 %s, %s, %s, %s" % (a2, y, y, a2)]
    return ops

def finish_ops(a, b, sc, sh):
    return ["v_fma_f32 v%d, -v%d, v%d, v%d" % (b, a, a, b), "v_max_f32 v%d, 0, v%d" % (b, b),
            "v_add_f32 v%d, 0x%08x, v%d" % (b, f2u(1e-5), b), "v_rsq_f32 v%d, v%d" % (b, b),
            "v_mul_f32 v%d, 0x%08x, v%d" % (sc, f2u(SA), b), "v_mul_f32 v%d, v%d, v%d" % (sh, a, sc)]

def reduce_chain(t):
    s1, s2 = vS + 4 * t, vS + 4 * t + 2
    a, b = s1 + 1, s2 + 1
    return ["v_add_f32 v%d, v%d, v%d" % (a, s1, s1 + 1), "v_add_f32 v%d, v%d, v%d" % (b, s2, s2 + 1),
            "v_permlane32_swap_b32 v%d, v%d" % (a, b), "v_add_f32 v%d, v%d, v%d" % (a, a, b), "v_mov_b32 v%d, v%d" % (b, a),
            "v_permlane16_swap_b32 v%d, v%d" % (a, b), "v_add_f32 v%d, v%d, v%d" % (a, a, b),
            "v_mul_f32 v%d, 0x%08x, v%d" % (a, f2u(1.0 / 192.0), a), "v_mov_b32 v%d, v%d" % (b, a),
            "v_permlane32_swap_b32 v%d, v%d" % (a, b)] + finish_ops(a, b, s1, s2)

def ln_norm(y0, n, dst, sc, sh):
    LAG = min(6, n)
    for k in range(n + LAG):
        if k < n:
            y = y0 + 2 * k
            e("v_pk_fma_f32 %s, %s, %s, %s op_sel_hi:[1,0,0] neg_lo:[0,0,1] neg_hi:[0,0,1]" % (vr(y, 2), vr(y, 2), vr(sc, 2), vr(sh, 2)))
        if k >= LAG:
            j = k - LAG
            e("v_cvt_pk_bf16_f32 v%d, v%d, v%d" % (dst + j, y0 + 2 * j, y0 + 2 * j + 1))
        if k % 8 == 7: vm.pop()

def prologue(L):
    vm.wait(lambda t: t == ("x", 0))
    e("s_barrier")
    st("x0in")
    reads, mf = conv_all(L)
    seq = [0]; rseq = {}
    def lds(txt): e(txt); seq[0] += 1
    plane = [0]
    nis = [0]
    def issue_read():
        r = reads[nis[0]]
        if r[2] > plane[0]:
            a = plane[0]
            if a == 1:
                for r_ in [vF + k for k in range(8)] + ([vLF, vLG] if L else []):
                    e("v_add_u32 v%d, %d, v%d" % (r_, 2 * PL, r_))
            vm.wait(lambda t: t == ("x", a + 1))
            e("s_barrier")
            st("x%din" % (a + 1))
            plane[0] += 1
        lds(r[0]); rseq[nis[0]] = seq[0]; nis[0] += 1
    for _ in range(opt.dist): issue_read()
    n0 = nis[0]
    e("s_waitcnt lgkmcnt(%d)" % (seq[0] - rseq[mf[0][1]]))
    pend = []
    la, lb = vLS + 1, vLS + 3
    for i, (txt, need, a) in enumerate(mf):
        e(txt)
        last_of_plane = i + 1 == len(mf) or mf[i + 1][2] != a
        if i + 1 < len(mf):
            nxt = mf[i + 1][1]
            while nis[0] <= nxt:
                assert reads[nis[0]][1] <= i
                issue_read()
            if not last_of_plane and (nxt > need or i == 0): e("s_waitcnt lgkmcnt(%d)" % min(14, seq[0] - rseq[nxt]))
            target = min(len(reads), n0 + -(-(i + 1) * len(reads) // len(mf)))
            while nis[0] < target and nis[0] - nxt <= 13 and reads[nis[0]][1] <= i: issue_read()
        first = min(k for k in range(len(mf)) if mf[k][2] == a)
        if (i - first) % [3, 5, 3][a] == 1: vm.pop()
        if a == 2 and L and i == first + 8:
            for k in range(4):
                y = vLY + 8 + k
                pend += ["v_add_f32 v%d, v%d, v%d" % (vLS + k % 2, vLS + k % 2, y), "v_fmac_f32 v%d, v%d, v%d" % (vLS + 2 + k % 2, y, y)]
            pend += ["v_add_f32 v%d, v%d, v%d" % (la, vLS, vLS + 1), "v_add_f32 v%d, v%d, v%d" % (lb, vLS + 2, vLS + 3), None,
                     "v_permlane32_swap_b32 v%d, v%d" % (la, lb), "v_add_f32 v%d, v%d, v%d" % (la, la, lb), "v_mov_b32 v%d, v%d" % (lb, la), None,
                     "v_permlane16_swap_b32 v%d, v%d" % (la, lb), "v_add_f32 v%d, v%d, v%d" % (la, la, lb), "W"]
        if pend:
            o = pend.pop(0)
            if o == "W": lds("ds_write_b32 v%d, v%d offset:%d" % (vLSw, la, XST))
            elif o: e(o)
        if last_of_plane:
            st("mf%d" % a)
            assert not pend
            if a == 1: assert not any(tg[0] == "x" for tg, _ in vm.pending)
            for t in range(3):
                for m in (2 * a, 2 * a + 1): lds(res_rd(t, m))
            if a == 1:
                if L: lds("ds_read_b128 %s, v%d" % (vr(vRL, 4), vTmp))
                for r_ in [vRA, vRA + 1] + ([vTmp] if L else []): e("v_add_u32 v%d, %d, v%d" % (r_, 2 * PL, r_))
            ops = stats_ops(a, L)
            if a == 2:
                while vm.pending: vm.pop()
                for o in ops[:36]: e(o)
                ops = ops[36:]
                vm.wait(lambda t: t == "w0")
                e("s_waitcnt lgkmcnt(0)")
                e("s_barrier")
                if L:
                    e("ds_read_b128 %s, v%d offset:%d" % (vr(vFb, 4), vLSr, XST))
                    e("ds_read_b128 %s, v%d offset:%d" % (vr(vFb + 4, 4), vLSr, XST + 16))
                set_dma_slot(SLOT)
                e("s_mov_b32 s%d, 128" % sW1off)
                e("s_mov_b32 s%d, 0" % sW2off)
                for kind in (1, 2):
                    for k in range(6):
                        sc, ins = dma_w(k, kind); vm.queue("w1", sc + [ins])
                vm.pop()
            for o in ops: e(o)
            if a < 2: e("s_waitcnt lgkmcnt(%d)" % min(14, seq[0] - rseq[mf[i + 1][1]]))
            st("conv%d" % a)
    assert nis[0] == len(reads)
    p = vFb
    ch = [reduce_chain(t) for t in range(3)]
    if L:
        ch.append([None, None, "s_waitcnt lgkmcnt(0)", "v_pk_add_f32 %s, %s, %s" % (vr(p, 2), vr(p, 2), vr(p + 2, 2)),
                   "v_pk_add_f32 %s, %s, %s" % (vr(p + 4, 2), vr(p + 4, 2), vr(p + 6, 2)),
                   "v_add_f32 v%d, v%d, v%d" % (p, p, p + 1), "v_add_f32 v%d, v%d, v%d" % (p + 1, p + 4, p + 5),
                   "v_mul_f32 v%d, 0x%08x, v%d" % (p, f2u(1.0 / 192.0), p), "v_mul_f32 v%d, 0x%08x, v%d" % (p + 1, f2u(1.0 / 192.0), p + 1),
                   "v_lshlrev_b32 v%d, 4, v%d" % (vX + 8, vLane)] + finish_ops(p, p + 1, p + 2, p + 4))
    for k in range(len(ch[0])):
        for c in ch:
            if c[k]: e(c[k])
        if k % 5 == 1: vm.pop()
    st("red")
    if L:
        ln_norm(vLY, 6, vLY, p + 2, p + 4)
        for a in range(3): e("ds_write_b64 v%d, %s offset:%d" % (vLW, vr(vLY + 2 * a, 2), XCH + a * 2048))
    for t in range(3):
        ln_norm(vYt[t], 24, vB1 + 24 * t, vS + 4 * t, vS + 4 * t + 2)
        if t == 0 and L: e("ds_read_b128 %s, v%d" % (vr(vRL + 4, 4), vTmp))
    if L:
        pass
    while vm.pending: vm.pop()
    if L:
        e("s_waitcnt lgkmcnt(0)")
        e("s_barrier")
        for kb in range(6): e("ds_read_b128 %s, v%d offset:%d" % (vr(vB1 + 72 + 4 * kb, 4), vX + 8, XCH + kb * 1024))
        e("s_cmp_eq_u32 s%d, 0" % sWave)
        e("s_cselect_b32 s%d, 0, %d" % (sT0, OOB))
        e("v_add_u32 v%d, s%d, v%d" % (vTmp + 1, sT0, vTab))
    st("conv3")

def acc_init(L):
    r = []
    for ct in range(12):
        for t in range(1):
            r.append("ds_read_b128 %s, v%d offset:%d" % (ar(48 * t + 4 * ct, 4), vTab, (ct // 2) * 128 + (ct % 2) * 16))
        if L:
            r.append("ds_read_b128 %s, v%d offset:%d" % (ar(144 + 4 * ct, 4), vTmp + 1, (ct // 2) * 128 + (ct % 2) * 16))
    return r

def gelu_pair(x0, x1, dst, tmp):
    a, b = tmp, tmp + 1
    if opt.gelu == 1:
        return [("v_fma_f32 v%d, -v%d, v%d, -s%d" % (a, x0, x0, sK), 4), ("v_fma_f32 v%d, -v%d, v%d, -s%d" % (b, x1, x1, sK), 4),
                ("v_mul_f32 v%d, v%d, v%d" % (a, x0, a), 4), ("v_mul_f32 v%d, v%d, v%d" % (b, x1, b), 4),
                ("v_exp_f32 v%d, v%d" % (a, a), 8), ("v_exp_f32 v%d, v%d" % (b, b), 8),
                ("v_add_f32 v%d, 1.0, v%d" % (a, a), 4), ("v_add_f32 v%d, 1.0, v%d" % (b, b), 4),
                ("v_rcp_f32 v%d, v%d" % (a, a), 8), ("v_rcp_f32 v%d, v%d" % (b, b), 8),
                ("v_mul_f32 v%d, v%d, v%d" % (a, x0, a), 4), ("v_mul_f32 v%d, v%d, v%d" % (b, x1, b), 4),
                ("v_cvt_pk_bf16_f32 v%d, v%d, v%d" % (dst, a, b), 4)]
    sd = "dst_sel:WORD_1 dst_unused:UNUSED_PRESERVE src0_sel:WORD_1"
    return [("v_cvt_pk_f16_f32 v%d, v%d, v%d" % (a, x0, x1), 4),
            ("v_pk_fma_f16 v%d, v%d, v%d, s%d" % (b, a, a, sK), 4),
            ("v_pk_mul_f16 v%d, v%d, v%d neg_lo:[1,0] neg_hi:[1,0]" % (a, a, b), 4),
            ("v_exp_f16%s v%d, v%d" % ("_e64" if opt.e64 else "", b, a), 8),
            ("v_exp_f16_sdwa v%d, v%d %s" % (b, a, sd), 8),
            ("v_pk_add_f16 v%d, v%d, 1.0 op_sel_hi:[1,0]" % (a, b), 4),
            ("v_rcp_f16%s v%d, v%d" % ("_e64" if opt.e64 else "", b, a), 8),
            ("v_rcp_f16_sdwa v%d, v%d %s" % (b, a, sd), 8),
            ("v_fma_mix_f32 v%d, v%d, v%d, 0 op_sel_hi:[0,1,0]" % (a, x0, b), 4),
            ("v_fma_mix_f32 v%d, v%d, v%d, 0 op_sel:[0,1,0] op_sel_hi:[0,1,0]" % (b, x1, b), 4),
            ("v_cvt_pk_bf16_f32 v%d, v%d, v%d" % (dst, a, b), 4)]

def gelu_ops(c, L, tiles=(0, 1, 2)):
    hb = vH + 24 * (c % 2); pb = vP + 12 * (c % 2)
    quads = []
    for t in tiles:
        for ep in range(2):
            quads.append((hb + 8 * t + 4 * ep, pb + 4 * t + 2 * ep))
    if L and c % 2 == 0: quads.append((vHL, vPL))
    ops = []
    for n, (x, d) in enumerate(quads):
        tmp = vT + 4 * (n % 2)
        A = gelu_pair(x, x + 1, d, tmp); B = gelu_pair(x + 2, x + 3, d + 1, tmp + 2)
        if opt.gelu == 1:
            for k in range(0, 12, 2): ops += [A[k], A[k + 1], B[k], B[k + 1]]
            ops += [A[12], B[12]]
        else:
            for k in range(len(A)): ops += [A[k], B[k]]
    return ops

class Frag: pass

def step_scalars():
    return ["s_add_u32 s%d, s%d, s%d" % (sM1, sM1, sDel2),
            "s_add_u32 s%d, s%d, s%d" % (sM2, sM2, sDel2),
            "s_add_u32 s%d, s%d, 128" % (sW1off, sW1off),
            "s_add_u32 s%d, s%d, 24576" % (sW2off, sW2off),
            "s_mov_b32 s%d, s%d" % (sT0, sDel1),
            "s_mov_b32 s%d, s%d" % (sDel1, sDel2),
            "s_mov_b32 s%d, s%d" % (sDel2, sDelta),
            "s_sub_u32 s%d, s%d, 1" % (sCnt, sCnt),
            "s_cmp_lg_u32 s%d, 0" % sCnt]

def build_main(L, c_lo, c_hi, virt, xds={}, xval={}, xwr={}):
    groups = []
    TM = c_hi == 26
    for c in range(c_lo, c_hi + 1 + (1 if virt else 0)):
        step = (c + 1) // 2 if c < 24 or not TM else c - 11
        if c + 1 <= 23 or virt:
            c1 = c + 1
            for ep in range(2):
                pos = 2 * (c1 % 2) + ep
                for kb in range(6):
                    g = Frag(); g.kind = 1; g.period = c; g.step = step; g.pos = pos; g.kb = kb; g.chunk = c1; g.ep = ep
                    groups.append(g)
        if c - 1 >= 0:
            c2 = min(c - 1, 23)
            for ct in range(12):
                g = Frag(); g.kind = 2; g.period = c; g.step = step; g.ct = ct; g.chunk = c2
                groups.append(g)
    N = len(groups)
    D, R = opt.D, opt.R
    assert 24 % R == 0 and D < R and D <= 5
    nbias = 0
    for n, g in enumerate(groups):
        g.slot = aRing + 4 * (n % R)
        g.reads = []
        if g.kind == 1:
            if g.kb == 0:
                g.bias = vBias + 4 * (nbias % 2); nbias += 1
                g.reads.append("ds_read_b128 %s, v%d" % (vr(g.bias, 4), vAb + g.pos))
            for h in range(2):
                g.reads.append("ds_read_b64_tr_b16 %s, v%d offset:%d" % (ar(g.slot + 2 * h, 2), vA1 + g.pos, (g.kb * 4 + h * 2) * 1024))
            hb = vH + 24 * (g.chunk % 2)
            g.mf = []
            tiles = [0, 1, 2] + ([3] if (L and g.pos == 0) else [])
            for t in tiles:
                d = (hb + 8 * t + 4 * g.ep) if t < 3 else vHL
                cc = vr(g.bias, 4) if g.kb == 0 else vr(d, 4)
                g.mf.append("v_mfma_f32_16x16x32_bf16 %s, %s, %s, %s" % (vr(d, 4), ar(g.slot, 4), vr(vB1 + 24 * t + 4 * g.kb, 4), cc))
            g.upd = []
            if g.kb == 5 and g.step <= 10: g.upd = ["v_add_u32 v%d, s%d, v%d" % (vA1 + g.pos, sDelta, vA1 + g.pos)]
            if g.kb == 0 and g.step <= 10: g.upd = ["v_add_u32 v%d, 0x100, v%d" % (vAb + g.pos, vAb + g.pos)]
        else:
            m, o = g.ct // 2, g.ct % 2
            for h in range(2):
                pos = 2 * (g.chunk % 2) + h
                g.reads.append("ds_read_b64_tr_b16 %s, v%d offset:%d" % (ar(g.slot + 2 * h, 2), vA2 + pos, m * 512 + o * 8))
            pb = vP + 12 * (g.chunk % 2)
            g.mf = []
            tiles = [0, 1, 2] + ([3] if (L and g.chunk % 2 == 0) else [])
            if len(tiles) == 4: tiles = [0, 1, 3, 2]
            if g.chunk == 0: tiles = [1, 2] + ([3] if L else []) + [0]
            if TM and g.period >= 24: tiles = [g.period - 24]
            for t in tiles:
                acc = ar(48 * t + 4 * g.ct, 4)
                cin = ar(4 * g.ct, 4) if (g.chunk == 0 and t < 3) else acc
                if t < 3: g.mf.append("v_mfma_f32_16x16x32_bf16 %s, %s, %s, %s" % (acc, ar(g.slot, 4), vr(pb + 4 * t, 4), cin))
                else: g.mf.append("v_mfma_f32_16x16x16_bf16 %s, %s, %s, %s" % (acc, ar(g.slot, 2), vr(vPL, 2), cin))
            g.upd = []
            if g.ct == 11 and g.step <= 11:
                g.upd = ["v_add_u32 v%d, s%d, v%d" % (vA2 + 2 * (g.chunk % 2) + h, sDelta, vA2 + 2 * (g.chunk % 2) + h) for h in range(2)]
    steps = [[] for _ in range(16)]
    issued = [0]; lastseq = {}
    pre = []
    def issue(n, dst):
        for r in groups[n].reads:
            dst.append(r); issued[0] += 1
        lastseq[n] = issued[0]
    for n in range(D): issue(n, pre)
    for n in range(D): pre += groups[n].upd
    first_wait = "s_waitcnt lgkmcnt(%d)" % (issued[0] - lastseq[0])
    for c in range(c_lo, c_hi + 1):
        step = (c + 1) // 2 if c < 24 or not TM else c - 11
        dst = steps[step]
        gs = [k for k in range(N) if groups[k].period == c]
        val = gelu_ops(c, L) if 0 <= c <= 23 else []
        if TM and 23 <= c <= 25: val = gelu_ops(23, L, (c - 23,))
        val = val + [(x, 4) for x in xval.get(c, [])]
        xd = list(xds.get(c, []))
        nxd = (len(xd) + len(gs) - 1) // len(gs)
        if c == c_lo:
            burst = 0
            while val and burst < 120:
                pre.append(val[0][0]); burst += val[0][1]; val = val[1:]
            pre.append(first_wait)
        dmas = []; scal = []
        if step <= 11:
            if c % 2 == 1: dmas = [dma_w(i, 1) for i in range(6 if step <= 9 else 0)] + [dma_w(i, 2) for i in range(6 if step <= 10 else 0)]
            else: scal = step_scalars()
        nm = sum(len(groups[k].mf) for k in gs)
        mcost = lambda m: 4 if "16x16x16" in m else 8
        tot = sum(mcost(m) for k in gs for m in groups[k].mf) + sum(x[1] for x in val) + 12 * len(dmas) + 4 * len(xd) + 20 * len([1 for cc, _ in xwr if cc == c])
        for k in gs:
            if k + D < N: tot += 4 * len(groups[k + D].reads) + 4 * len(groups[k + D].upd)
        t = 0.0; vi = 0; mi = 0
        sp = opt.dsp if len(gs) >= 24 else 1
        dmap = {sp * i: d for i, d in enumerate(dmas)}
        for gi, k in enumerate(gs):
            g = groups[k]
            for j, m in enumerate(g.mf):
                dst.append(m); t += mcost(m); mi += 1
                extra = []
                if j == len(g.mf) - 1 and k + 1 < N:
                    dst.append("s_waitcnt lgkmcnt(%d)" % min(14, issued[0] - lastseq[k + 1]))
                if j == 0:
                    if gi in dmap: dst.append(dmap[gi][0][0])
                    elif scal: dst.append(scal.pop(0))
                    if k + D < N:
                        issue(k + D, dst); t += 4 * len(groups[k + D].reads)
                        extra = groups[k + D].upd
                if j == len(g.mf) - 1:
                    for _ in range(nxd):
                        if xd: dst.append(xd.pop(0)); issued[0] += 1; t += 4
                if j == min(1, len(g.mf) - 1) and (c, gi) in xwr:
                    dst.append(xwr[(c, gi)]); issued[0] += 1; t += 20
                if j == 1:
                    if gi in dmap:
                        dst.append(dmap[gi][0][1]); dst.append(dmap[gi][1]); t += 12
                    elif gi == len(gs) - 1 and step <= 11 and c % 2 == 0:
                        dst.append("s_mov_b32 s%d, s%d" % (sDelta, sT0))
                for x in extra: dst.append(x); t += 4
                lim = mi * tot / nm
                while vi < len(val) and t + val[vi][1] <= lim + 2:
                    dst.append(val[vi][0]); t += val[vi][1]; vi += 1
        while vi < len(val): dst.append(val[vi][0]); vi += 1
        assert not scal and not xd
    return pre, steps

def main_part(L):
    tag = "b%d" % L
    ai = acc_init(L)
    xd24, xwr, xv24 = epi_prep(L)
    TM = (opt.tm >> L) & 1
    if TM: pre, steps = build_main(L, -1, 26, False, xds={0: ai, 23: xd24}, xval={23: xv24, 26: unpack_t2()}, xwr=xwr)
    else: pre, steps = build_main(L, -1, 24, False, xds={0: ai, 24: xd24}, xval={24: xv24}, xwr=xwr)
    for j in range(3, 10): assert steps[j] == steps[2], j
    assert opt.unroll in (1, 2, 4)
    e("s_mov_b32 s%d, 0x%08x" % (sK, f2u(KK) if opt.gelu == 1 else f2h(KK) * 0x10001))
    set_dma_slot(2 * SLOT)
    e("s_mov_b32 s%d, 256" % sW1off)
    e("s_mov_b32 s%d, 24576" % sW2off)
    e("s_mov_b32 s%d, %d" % (sDelta, SLOT))
    e("s_mov_b32 s%d, %d" % (sDel1, SLOT))
    e("s_mov_b32 s%d, %d" % (sDel2, -2 * SLOT))
    e("s_mov_b32 s%d, 10" % sCnt)
    for s in pre: e(s)
    def with_bar(body):
        body = list(body)
        bar = ["s_waitcnt vmcnt(0)"] + ([] if opt.nobar else ["s_barrier"])
        if opt.barpos:
            idx = [i for i, l in enumerate(body) if l.startswith("v_mfma")][-opt.barpos]
            return body[:idx + 1] + bar + body[idx + 1:]
        return body + bar
    s0 = with_bar(steps[0])
    idx = [i for i, l in enumerate(s0) if l.startswith("v_mfma")][-3 * (opt.D + 2)]
    s0 = s0[:idx + 1] + ["s_waitcnt vmcnt(12)", "s_barrier"] + s0[idx + 1:]
    for s in s0: e(s)
    st("step0")
    for s in with_bar(steps[1]): e(s)
    out.append(".p2align 6")
    lab("L_loop_%s" % tag)
    for u in range(opt.unroll):
        for s in with_bar(steps[2]): e(s)
    e("s_cbranch_scc1 L_loop_%s" % tag)
    for s in with_bar(steps[10]): e(s)
    for s in steps[11]: e(s)
    st("loop")
    epi_scalars(L)
    for s in steps[12]: e(s)
    st("p24")
    epilogue(L, steps[13:16] if TM else None)

RED = SLOT
STG = 2 * SLOT
vG = vH
vWA = vA1
vRd = vA1 + 2
vSt = vA1 + 3
vX0 = vB1 + 48
def gam(L, m):
    if (opt.tm >> L) & 1 and m >= 3: return vB1 + 72 + 8 * (m - 3)
    return vG + 8 * m
def unp_reg(L, t, m):
    if (opt.tm >> L) & 1:
        if t == 0 and 2 <= m <= 4: return vX0 + 8 * (m - 2)
        if t == 2: return (vX0 + 8 * m) if m < 3 else (vH + 24 + 8 * (m - 3))
        return None
    return vX0 + 8 * (m - 2) if (t == 0 and m >= 2) else None
def unpack_t2():
    ops = []
    for m in range(6):
        src = res_dst(2, m); base = int(src[2:src.index(":")]); d = unp_reg(0, 2, m)
        if src[0] == "a":
            for k in range(4): ops.append("v_accvgpr_read_b32 v%d, a%d" % (d + 2 * k + 1, base + k))
            for k in range(4):
                ops += ["v_lshlrev_b32 v%d, 16, v%d" % (d + 2 * k, d + 2 * k + 1), "v_and_b32 v%d, 0xffff0000, v%d" % (d + 2 * k + 1, d + 2 * k + 1)]
        else:
            for k in range(4):
                ops += ["v_lshlrev_b32 v%d, 16, v%d" % (d + 2 * k, base + k), "v_and_b32 v%d, 0xffff0000, v%d" % (d + 2 * k + 1, base + k)]
    return ops
def epi_prep(L):
    xd = ["ds_read_b128 %s, v%d offset:%d" % (vr(gam(L, ct // 2) + 4 * (ct % 2), 4), vTab, TAB_G - TAB_B2 + (ct // 2) * 128 + (ct % 2) * 16) for ct in range(12)]
    xv23 = {}
    if L:
        for ct in range(12):
            xv23[(23, ct + 2) if ct < 10 else (24, 2 * (ct - 10) + 2)] = "ds_write_b128 v%d, %s offset:%d" % (vTmp + 1, ar(144 + 4 * ct, 4), ct * 1024)
    t0, t1 = vAb + 2, vAb + 3
    xv = ["v_and_b32 v%d, 15, v%d" % (t0, vLane), "v_lshrrev_b32 v%d, 4, v%d" % (t1, vLane),
          "v_lshl_add_u32 v%d, v%d, 7, s%d" % (vWA, t0, sT2), "v_and_b32 v%d, 7, v%d" % (t0, t0),
          "v_xor_b32 v%d, v%d, v%d" % (t1, t0, t1), "v_lshl_add_u32 v%d, v%d, 4, v%d" % (vWA, t1, vWA),
          "v_xor_b32 v%d, 64, v%d" % (vWA + 1, vWA),
          "v_lshrrev_b32 v%d, 3, v%d" % (t1, vLane), "v_xor_b32 v%d, v%d, v%d" % (vRd, t1, vLane),
          "v_lshl_add_u32 v%d, v%d, 4, s%d" % (vRd, vRd, sT2),
          "v_mul_u32_u24 v%d, 384, v%d" % (t1, t1), "v_lshl_add_u32 v%d, v%d, 4, v%d" % (vSt, t0, t1),
          "v_add_u32 v%d, s%d, v%d" % (vSt, sT1, vSt)]
    for k in range(12 if ((opt.tm >> L) & 1) else 16):
        src = (vR23 + k) if k < 8 else (vR45 + k - 8)
        xv += ["v_lshlrev_b32 v%d, 16, v%d" % (vX0 + 2 * k, src), "v_and_b32 v%d, 0xffff0000, v%d" % (vX0 + 2 * k + 1, src)]
    return xd, xv23, xv

def epi_scalars(L):
    e("s_mul_i32 s%d, s%d, %d" % (sT1, sWave, 3 * ROWB))
    e("s_add_u32 s%d, s%d, s%d" % (sT1, sT1, sBase))
    e("s_mul_i32 s%d, s%d, 12288" % (sT2, sWave))
    e("s_add_u32 s%d, s%d, %d" % (sT3, sT2, RED))
    e("s_add_u32 s%d, s%d, %d" % (sT2, sT2, STG if L else RED))
    assert STG % 128 == 0 and RED % 128 == 0
    if L:
        e("v_lshlrev_b32 v%d, 4, v%d" % (vTmp, vLane))
        e("v_add_u32 v%d, s%d, v%d" % (vTmp + 1, sT3, vTmp))

def epi_group(acc_regs, gam, xr, dst, tmp, unpacked=False):
    if not unpacked:
        for k in range(4):
            e("v_lshlrev_b32 v%d, 16, v%d" % (tmp + 2 * k, xr + k))
            e("v_and_b32 v%d, 0xffff0000, v%d" % (tmp + 2 * k + 1, xr + k))
    for k in range(4):
        e("v_pk_fma_f32 %s, %s, %s, %s" % (vr(tmp + 2 * k, 2), vr(acc_regs + 2 * k, 2), vr(gam + 2 * k, 2), vr(tmp + 2 * k, 2)))
    for k in range(4):
        e("v_cvt_pk_bf16_f32 v%d, v%d, v%d" % (dst + k, tmp + 2 * k, tmp + 2 * k + 1))

def epilogue(L, tmsteps):
    tag = "b%d" % L
    if not tmsteps: e("s_waitcnt lgkmcnt(0)")
    vAc = vB1; vTm = vB1 + 16; vXs = vB1 + 32; vO = vB1 + 40
    vLin = (vHL if L else vRL) if tmsteps else vP
    if tmsteps:
        for l in tmsteps[0]: e(l)
    if L:
        if tmsteps: e("s_waitcnt lgkmcnt(0)")
        e("s_barrier")
        e("s_lshl_b32 s%d, s%d, 6" % (sT1, sWave))
        e("s_add_u32 s%d, s%d, %d" % (sT1, sT1, 12 * ROWB))
        e("s_lshl_b32 s%d, s%d, 11" % (sT2, sWave))
        e("s_add_u32 s%d, s%d, %d" % (sT2, sT2, RED))
        e("v_add_u32 v%d, s%d, v%d" % (vTmp, sT2, vTmp))
        e("s_lshl_b32 s%d, s%d, 7" % (sT2, sWave))
        e("v_add_u32 v%d, s%d, v%d" % (vTmp + 1, sT2, vTab))
        lregs = [vBias, vT, vHL, vB1 + 80]; lgam = vB1 + 88
        if tmsteps: lregs = [vBias, vT, vH + 24, vH + 32]; lgam = vH + 40
        def lreads(half):
            for w in range(4):
                for o in range(2):
                    e("ds_read_b128 %s, v%d offset:%d" % (vr(lregs[w] + 4 * o, 4), vTmp, w * 12288 + half * 8192 + o * 1024))
            for o in range(2):
                e("ds_read_b128 %s, v%d offset:%d" % (vr(lgam + 4 * o, 4), vTmp + 1, TAB_G - TAB_B2 + half * 512 + o * 16))
        def lfinish(half):
            r = lregs
            for k in range(0, 8, 2):
                e("v_pk_add_f32 %s, %s, %s" % (vr(r[0] + k, 2), vr(r[0] + k, 2), vr(r[1] + k, 2)))
                e("v_pk_add_f32 %s, %s, %s" % (vr(r[2] + k, 2), vr(r[2] + k, 2), vr(r[3] + k, 2)))
            for k in range(0, 8, 2):
                e("v_pk_add_f32 %s, %s, %s" % (vr(r[0] + k, 2), vr(r[0] + k, 2), vr(r[2] + k, 2)))
            xr = vRL + 4 * half
            epi_group(r[0], lgam, xr, xr, r[1])
            e("buffer_store_dwordx4 %s, v%d, %s, s%d offen offset:%d%s" % (vr(xr, 4), vOut, sr(S_O, 4), sT1, half * 256, OPOL))
        if not tmsteps: lreads(0)
    nL = 6 if tmsteps else 0
    st("gam")
    e("s_mov_b32 s%d, %d" % (sT0, ROWB))
    e("s_mov_b32 s%d, %d" % (sSo, 2 * ROWB))
    if not L:
        e("s_sub_u32 s%d, s%d, s%d" % (sT3, sNrows, sWave))
        e("s_cmp_eq_u32 s%d, 8" % sT3)
        e("s_cselect_b32 s%d, 0x40000000, s%d" % (sSo, sSo))
    def store(u, k):
        t, a = u // 3, u % 3
        e("buffer_store_dwordx4 %s, v%d, %s, %s offen offset:%d%s" % (vr(vLin + 8 * (u % 2) + 4 * k, 4), vSt, sr(S_O, 4),
                                                                     ["0", "s%d" % sT0, "s%d" % sSo][t], a * 128 + k * 3072, OPOL))
    n = 0
    for t in range(3):
        if tmsteps and t > 0:
            body = list(tmsteps[t])
            if t > 0:
                ix = [i for i, l in enumerate(body) if l.startswith("s_waitcnt")][opt.D]
                body = body[:ix + 1] + capture(store, 3 * t - 1, 0) + capture(store, 3 * t - 1, 1) + body[ix + 1:]
            for l in body: e(l)
            if L and t == 1: lreads(0)
        for m in range(6):
            u = 3 * t + m // 2
            buf = (u % 4) * 2048
            ac = vAc + 8 * (n % 2); tm = vTm + 8 * (n % 2); o = vO + 4 * (n % 2)
            for k in range(8): e("v_accvgpr_read_b32 v%d, a%d" % (ac + k, 48 * t + 8 * m + k))
            src = res_dst(t, m)
            base = int(src[2:src.index(":")])
            unp = unp_reg(L, t, m) is not None
            if unp: tm = unp_reg(L, t, m); xr = None
            elif src[0] == "a":
                xr = vXs + 4 * (n % 2)
                for k in range(4): e("v_accvgpr_read_b32 v%d, a%d" % (xr + k, base + k))
            else: xr = base
            epi_group(ac, gam(L, m), xr, o, tm, unp)
            if u > 0 and not (tmsteps and m < 2):
                if m % 2 == 0: e("s_waitcnt lgkmcnt(0)")
                store(u - 1, m % 2)
            e("ds_write_b128 v%d, %s offset:%d" % (vWA + m % 2, vr(o, 4), buf))
            if m % 2 == 1:
                for k in range(2): e("ds_read_b128 %s, v%d offset:%d" % (vr(vLin + 8 * (u % 2) + 4 * k, 4), vRd, buf + k * 1024))
            n += 1
            if L and n == nL + 1:
                e("s_waitcnt lgkmcnt(1)")
                lfinish(0)
                lreads(1)
            if L and n == nL + 3:
                e("s_cmp_ge_u32 s%d, 2" % sWave)
                e("s_cbranch_scc1 L_done_%s" % tag)
                lfinish(1)
                lab("L_done_%s" % tag)
        st("t%d" % t)
    e("s_waitcnt lgkmcnt(0)")
    for k in range(2): store(8, k)
    if opt.stamps:
        st("epi")
        e("s_waitcnt vmcnt(0)")
        st("drain")
        e("s_waitcnt lgkmcnt(0)")
        if opt.dbg:
            srd(S_T, 8, 64)
            e("v_mov_b32 v2, 0")
            for i in range(len(SSETS[opt.sset])):
                e("s_sub_u32 s%d, s%d, s%d" % (sT0, sStamp + 2 * i, sStamp))
                e("v_writelane_b32 v2, s%d, %d" % (sT0, i))
            e("v_lshlrev_b32 v3, 2, v0")
            e("buffer_atomic_umax v2, v3, %s, 0 offen" % sr(S_T, 4))
            e("s_endpgm")
            return
        srd(S_T, 9, 1 << 20)
        e("s_lshl_b32 s%d, s2, 2" % sT0)
        e("s_add_u32 s%d, s%d, s%d" % (sT0, sT0, sWave))
        e("s_lshl_b32 s%d, s%d, 6" % (sT0, sT0))
        e("v_mov_b32 v2, 0")
        for i in range(len(SSETS[opt.sset])): e("v_writelane_b32 v2, s%d, %d" % (sStamp + 2 * i, i))
        out.append("; STAMPNAMES " + " ".join(SSETS[opt.sset]))
        e("v_writelane_b32 v2, s%d, 11" % sNrows)
        e("v_lshlrev_b32 v3, 2, v%d" % vLane)
        e("v_add_u32 v3, s%d, v3" % sT0)
        e("v_cmp_gt_u32 vcc, 16, v%d" % vLane)
        e("s_and_saveexec_b64 %s, vcc" % sr(sEx, 2))
        e("buffer_store_dword v2, v3, %s, 0 offen" % sr(S_T, 4))
    e("s_endpgm")

import copy
vm = VM()
head()
vm0 = vm
for L in (1, 0):
    vm = copy.deepcopy(vm0)
    lab("L_body%d" % L)
    if not L and opt.prio == 3:
        e("s_bitcmp1_b32 s%d, 24" % (sTb + 1))
        e("s_cbranch_scc1 L_defer")
        early(L, False, True)
        pend = [t for t, _ in vm.pending]
        e("s_branch L_join")
        lab("L_defer")
        vm = copy.deepcopy(vm0)
        early(L, True, True)
        assert pend == [t for t, _ in vm.pending]
        lab("L_join")
    else:
        early(L, (not L) and opt.prio == 2)
    prologue(L)
    main_part(L)
lab("L_exit")
e("s_endpgm")
out.append(".p2align 3")
out.append(".type L_wgtab,@object")
lab("L_wgtab")
for a, b in wg_table(): e(".long 0x%08x, 0x%08x" % (a, b))
out.append(".size L_wgtab, %d" % (NWG * 8))

ref = open("cdna_kernels/%s.s.ref" % NAME).read().split("\n")
hdr = [l for l in ref if l.startswith(";") and "@launch" not in l]
txt = "\n".join(hdr) + "\n; @launch grid=(%d,1,1) block=(256,1,1) lds=%d\n" % (NWG, LDS_SIZE)
txt += """.amdgcn_target "amdgcn-amd-amdhsa--gfx950"
.text
.globl %s_kernel
.p2align 8
.type %s_kernel,@function
%s_kernel:
""" % (NAME, NAME, NAME)
txt += "\n".join(out).replace("PF_LIM", "L_exit-L_pf-0x8000") + "\n"
txt += """.section .rodata,"a"
.p2align 6
.amdhsa_kernel %s_kernel
  .amdhsa_next_free_vgpr 512
  .amdhsa_next_free_sgpr 102
  .amdhsa_accum_offset 256
  .amdhsa_group_segment_fixed_size 0
  .amdhsa_kernarg_size 80
  .amdhsa_user_sgpr_count 2
  .amdhsa_user_sgpr_kernarg_segment_ptr 1
  .amdhsa_system_sgpr_workgroup_id_x 1
.end_amdhsa_kernel
""" % NAME
dst = [a for a in sys.argv[1:] if "=" not in a]
open(dst[0] if dst else "cdna_kernels/%s.s" % NAME, "w").write(txt)
```

```python
import math, struct, sys

NAME = "standalone__modern_conv_block_convnext__vision"
def f2u(f): return struct.unpack("<I", struct.pack("<f", f))[0]
def f2h(f): return struct.unpack("<H", struct.pack("<e", f))[0]

class Opt:
    gelu = 2
    stamps = 0
    D = 4
    R = 6
    xnt = 0
    sset = 0
    dsp = 1
    nobar = 0
    unroll = 2
    e64 = 0
    barpos = 0
    dist = 12
    prio = 3
    tm = 1
    odef = 2
    wpol = 0
    c0 = 4
    w0first = 0
    map = 11
    fast = 1
    gap = 12
    dbg = 0
    pe1 = 6
    pf = 1
    ont = 2
opt = Opt()
for a in sys.argv[1:]:
    if "=" in a:
        k, v = a.split("="); assert hasattr(opt, k), k; setattr(opt, k, int(v))

C0 = 2.0 * math.sqrt(2.0 / math.pi) * math.log2(math.e)
SA = (C0 * 0.044715) ** (1.0 / 3.0)
KK = C0 / SA
if opt.gelu == 2:
    KK = struct.unpack("<e", struct.pack("<e", KK))[0]
    SA = C0 / KK

XBYTES = 224 * 224 * 384
ROWB = 86016
SLOT = 49408
XB = SLOT
W2E = 6160
PL = 34816
PR = 2304
TAB_B1 = XB + 3 * PL
TAB_B2 = TAB_B1 + 3072
TAB_G = TAB_B2 + 1024
DUMMY = TAB_G + 1024
IMG = 24576
JS = 1936
XCH = 40960
XST = XCH + 6144
LDS_SIZE = 163840
OOB = 0x40000
XPOL = " nt" if opt.xnt else ""
WPOL = ["", " nt", " sc1", " sc0"][opt.wpol]
OPOL = ["", " nt", " sc1", " sc0 sc1"][opt.ont]
assert DUMMY + 1280 <= LDS_SIZE and IMG + 8 * JS <= XCH and XST + 1024 <= SLOT

S_X = 8; S_W1 = 12; S_W2 = 16; S_O = 20; S_T = 24
sWave = 28; sBase = 29; sNrows = 31
sK = 32; sDelta = 33; sW1off = 35; sW2off = 36; sCnt = 37
sT0 = 38; sT1 = 39; sT2 = 40; sT3 = 41
sEx = 42
sC1 = 44; sM1 = 45; sM2 = 46; sSo = 47; sDel1 = 48; sDel2 = 49
sXm7 = 30; sXm1 = 50; sXm8 = 51; sXs8 = 52; sQlo = 53; sTb = 54; sQn = 56; sC2 = 57; sLut = 58
sPtr = 60
S_B = 60; S_G = 64
sStamp = 80

vLane = 1
vA1 = 2; vA2 = 6; vAb = 10
vD1 = 14; vD2 = 15; vOut = 16; vTab = 17; vTmp = 18
vBias = 20
vT = 28
vRL = 36
vHL = 44; vPL = 48
vP = 52
vH = 76
vR45 = 124
vR23 = 148
vB1 = 160
aRing = 192
aRes = 216
vLW = 19
vLY = 20
vRA = 32; vLF = 34; vLG = 35
vS = 40
vIA = 48
vFb = 52
vLS = 72
vYt = [160, 76, 208]
vGb = 124
vF = 140; vGa = 144
vX = 148
vIdx = 157; vLSw = 158; vLSr = 159
aLD = 144; aFb = 180; aGb = 200
vDW = 76; vQ = 80; vTB = 96; vU = 116

out = []
def e(s): out.append("    " + s)
def lab(s): out.append(s + ":")
def cm(s): out.append("    ; " + s)
SSETS = [["start", "issued", "diag", "conv0", "conv1", "conv2", "conv3", "step0", "loop", "epi", "drain"],
         ["start", "loop", "p24", "gam", "t0", "t1", "t2", "epi", "drain"],
         ["start", "kernarg", "issued", "setup", "dwin", "img", "bar", "diag", "x0in", "mf0", "conv0"],
         ["start", "diag", "x0in", "mf0", "x1in", "mf1", "x2in", "mf2", "red", "conv3", "step0"],
         ["start", "x0in", "mf0", "conv0", "mf1", "conv1", "mf2", "conv2", "conv3", "step0", "drain"]]
def st(name):
    names = SSETS[opt.sset]
    if opt.stamps and name in names: stamp(names.index(name))
def stamp(i):
    if opt.stamps: e("%s s[%d:%d]" % ("s_memrealtime" if opt.stamps == 1 else "s_memtime", sStamp + 2 * i, sStamp + 2 * i + 1))
def vr(b, n): return "v[%d:%d]" % (b, b + n - 1)
def ar(b, n): return "a[%d:%d]" % (b, b + n - 1)
def sr(b, n): return "s[%d:%d]" % (b, b + n - 1)
def srd(s, ptr_slot, nbytes):
    e("s_mov_b32 s%d, s%d" % (s, sPtr + 2 * ptr_slot))
    e("s_and_b32 s%d, s%d, 0xffff" % (s + 1, sPtr + 2 * ptr_slot + 1))
    e("s_mov_b32 s%d, %d" % (s + 2, nbytes))
    e("s_mov_b32 s%d, 0x20000" % (s + 3))

def capture(fn, *args):
    global out
    save = out; out = []
    fn(*args)
    got = [l.strip() for l in out if not l.strip().startswith(";")]
    out = save
    return got

class VM:
    def __init__(self): self.issued = []; self.pending = []; self.cap = False
    def issue_now(self, tag, lines):
        for l in lines: e(l)
        self.issued.append(tag)
    def queue(self, tag, lines): self.pending.append((tag, lines))
    def pop(self, n=1):
        for _ in range(n):
            if self.pending and not (self.cap and self.pending[0][0] == ("x", 2)):
                tag, lines = self.pending.pop(0); self.issue_now(tag, lines)
    def wait(self, pred):
        while any(pred(t) for t, _ in self.pending): self.pop()
        idx = [i for i, t in enumerate(self.issued) if pred(t)]
        e("s_waitcnt vmcnt(%d)" % (len(self.issued) - 1 - max(idx)))
vm = None

NWG = 256 if opt.map else 252
def wg_table():
    rows = []
    seen = set()
    if opt.map >= 7:
        own = {x: [] for x in range(8)}
        def deal(blocks, plan):
            for x, k in plan:
                own[x] += blocks[:k]; blocks = blocks[k:]
            assert not blocks
        band = lambda r0, h, nb: [(r0 + h * b, st_, h) for st_ in range(14) for b in range(nb)]
        if opt.map == 7:
            deal(band(0, 13, 4), [(0, 28), (2, 28)]); deal(band(52, 13, 4), [(4, 21), (1, 14), (6, 21)])
            deal(band(104, 12, 3), [(4, 11), (1, 18), (6, 11), (0, 2)]); deal(band(140, 12, 7), [(3, 32), (5, 32), (7, 32), (2, 2)])
        elif opt.map == 11:
            hs = [13, 13, 12, 13, 12, 13, 12, 13, 12, 13, 13, 12, 13, 12, 12, 12, 12, 12]
            r0 = [sum(hs[:b]) for b in range(18)]
            left = []
            for half, (xu, xl) in enumerate(((0, 4), (2, 6))):
                bl = [(r0[b], 5 * half + k, hs[b]) for b in range(13) for k in range(5)]
                own[xu] += bl[:32]; left.append(bl[32]); own[xl] += bl[33:]
            h2 = [12, 12, 12, 11, 12, 12, 12, 12, 11, 12, 12, 12, 12, 11, 12, 12, 12, 12, 11]
            right = [(sum(h2[:b]), 10 + k, h2[b]) for b in range(19) for k in range(4)]
            bottom = [(r0[b], st_, 12) for st_ in range(9, -1, -1) for b in range(13, 18)]
            deal(right + bottom + left, [(1, 32), (3, 32), (5, 32), (7, 32)])
        elif opt.map == 9:
            deal(band(0, 13, 4), [(0, 28), (2, 28)]); deal(band(52, 13, 4), [(4, 24), (1, 8), (6, 24)])
            deal(band(104, 12, 3), [(4, 7), (0, 3), (1, 24), (2, 1), (6, 7)]); deal(band(140, 12, 7), [(3, 32), (5, 32), (7, 32), (2, 2)])
        elif opt.map == 10:
            deal(band(0, 13, 4), [(0, 28), (2, 28)]); deal(band(52, 13, 4), [(4, 21), (1, 14), (6, 21)])
            deal(band(104, 12, 3), [(4, 10), (0, 4), (1, 16), (2, 2), (6, 10)]); deal(band(140, 12, 7), [(3, 32), (5, 32), (7, 32), (2, 2)])
        else:
            deal(band(0, 13, 4), [(0, 24), (1, 8), (2, 24)]); deal(band(52, 13, 4), [(4, 22), (1, 12), (6, 22)])
            deal(band(104, 12, 3), [(4, 9), (0, 7), (1, 12), (2, 5), (6, 9)]); deal(band(140, 12, 7), [(3, 32), (5, 32), (7, 32), (2, 2)])
    for wg in range(NWG):
        x, n = wg & 7, wg >> 3
        if opt.map == 0:
            idx = 63 * (x & 3) + (32 if x >= 4 else 0) + n
            h, rem = idx // 126, idx % 126
            b, strip = rem // 7, 7 * h + rem % 7
            row0 = b * 112 // 9; nrows = (b + 1) * 112 // 9 - row0
        elif opt.map >= 7:
            if n >= len(own[x]):
                rows.append((0, 0)); continue
            row0, strip, nrows = own[x][n]
        elif opt.map in (5, 6):
            h, v = (x // 2) % 2, x // 4
            ne = 3 if opt.map == 5 else 4
            no = 35 - ne
            if x % 2 == 0 and n < 28:
                strip = 7 * h + n % 7; row0 = 13 * (4 * v + n // 7); nrows = 13
            elif n >= (28 + ne if x % 2 == 0 else no):
                rows.append((0, 0)); continue
            else:
                k = (ne * v + n - 28) if x % 2 == 0 else (2 * ne + no * v + n)
                strip = 7 * h + k % 7; row0 = 104 + 12 * (k // 7); nrows = 12
        elif opt.map >= 2:
            order = {0: 0, 4: 1, 1: 2, 5: 3, 2: 0, 6: 1, 3: 2, 7: 3}
            h = 0 if x in (0, 4, 1, 5) else 1
            if opt.map == 2:
                cnt = [32, 32, 30, 32]; hs = [13, 12, 13, 13, 12, 13, 13, 12, 13, 12, 13, 12, 13, 12, 12, 12, 12, 12]
            elif opt.map == 3:
                cnt = [32, 32, 31, 31]; hs = [13, 13, 12, 13, 13, 13, 13, 12, 13, 12, 12, 13, 12, 12, 12, 12, 12, 12]
            else:
                cnt = [32, 32, 32, 30]; hs = [13, 12, 13, 13, 12, 13, 12, 13, 12, 12, 13, 12, 13, 12, 12, 13, 12, 12]
            assert sum(hs) == 224 and sum(cnt) == 126
            o = order[x]
            if n >= cnt[o]:
                rows.append((0, 0)); continue
            k = sum(cnt[:o]) + n
            strip = 7 * h + k % 7; row0 = sum(hs[:k // 7]); nrows = hs[k // 7]
        else:
            h, v = x % 2, (x % 4) // 2
            if x < 4 and n < 28:
                strip = 7 * h + n % 7; row0 = 13 * (4 * v + n // 7); nrows = 13
            elif x < 4 and n == 31:
                rows.append((0, 0)); continue
            else:
                k = (3 * v + n - 28) if x < 4 else (6 + 32 * v + n)
                strip = 7 * h + k % 7; row0 = 104 + 12 * (k // 7); nrows = 12
        for r in range(row0, row0 + nrows):
            assert (r, strip) not in seen; seen.add((r, strip))
        base = ((row0 - 1) * ROWB + strip * 6144 - 384) & 0xffffffff
        qlo = 1 if strip == 0 else 0; qn = (17 if strip == 13 else 18) - qlo
        defer = 1 if (opt.prio == 3 and nrows < 13 and (x % 2 == 0 or (n % 4) < opt.odef)) else 0
        rows.append((base, qlo | qn << 8 | nrows << 16 | defer << 24))
    assert len(seen) == 224 * 14
    return rows

def dma_w(i, kind):
    if kind == 1:
        return (["s_add_u32 m0, s%d, %d" % (sM1, i * 1024), "s_add_u32 s%d, s%d, %d" % (sSo, sW1off, i * 12288)],
                "buffer_load_dwordx4 v%d, %s, s%d offen%s lds" % (vD1, sr(S_W1, 4), sSo, WPOL))
    oo, t = i // 3, i % 3
    return (["s_add_u32 m0, s%d, %d" % (sM2, oo * 3080 + t * 1024), "s_add_u32 s%d, s%d, %d" % (sSo, sW2off, oo * 1536 + t * 128)],
            "buffer_load_dwordx4 v%d, %s, s%d offen%s lds" % (vD2, sr(S_W2, 4), sSo, WPOL))

def set_dma_slot(slot_base_imm):
    e("s_mul_i32 s%d, s%d, 6144" % (sM1, sWave))
    e("s_add_u32 s%d, s%d, %d" % (sM1, sM1, slot_base_imm))
    e("s_mul_i32 s%d, s%d, %d" % (sM2, sWave, W2E))
    e("s_add_u32 s%d, s%d, %d" % (sM2, sM2, slot_base_imm + 24576))


def x_item(a, i):
    off = (" offset:%d" % (128 * a)) if a else ""
    j, sec = i // 2, i % 2
    if i < 7: m = ["s_add_u32 m0, s%d, %d" % (sXm1, a * (PL - 128) + j * 9216 + sec * 4096), "s_nop 0"]
    else:
        r = sXm7 if i == 7 else sXm8
        m = ["s_mov_b32 m0, s%d" % r, "s_add_u32 s%d, s%d, s%d" % (r, r, sXs8)]
    return (("x", a), m + ["buffer_load_dwordx4 v%d, %s, 0 offen%s%s lds" % (vX + i, sr(S_X, 4), off, XPOL)])

def x_voff_a(i):
    n, r, q, f = vU, vU + 1, vU + 2 + min(i, 2), vTB + 10
    l = []
    if i == 0: l += ["v_lshrrev_b32 v%d, 3, v0" % n, "v_and_b32 v%d, 7, v0" % (vU + 5)]
    elif i == 1: l += ["v_add_u32 v%d, 32, v%d" % (n, n)]
    else: l += ["v_bfe_u32 v%d, v0, 3, 3" % n, "v_add_u32 v%d, 64, v%d" % (n, n)]
    l += ["v_mul_u32_u24 v%d, 3641, v%d" % (r, n), "v_lshrrev_b32 v%d, 16, v%d" % (r, r),
          "v_mul_u32_u24 v%d, 18, v%d" % (q, r), "v_sub_u32 v%d, v%d, v%d" % (q, n, q),
          "v_bfe_u32 v%d, v%d, 1, 3" % (f, q), "v_xor_b32 v%d, v%d, v%d" % (f, f, vU + 5),
          "v_mul_u32_u24 v%d, %d, v%d" % (r, ROWB - 18 * 384, r),
          "v_mad_u32_u24 v%d, v%d, s%d, v%d" % (r, n, sC1, r),
          "v_lshl_add_u32 v%d, v%d, 4, v%d" % (vX + i, f, r)]
    return l
def x_voff_b(i, base):
    q = vU + 2 + min(i, 2)
    return ["v_subrev_u32 v%d, s%d, v%d" % (q, sQlo, q), "v_cmp_gt_u32 vcc, s%d, v%d" % (sQn, q),
            "v_add_u32 v%d, s%d, v%d" % (vX + i, base, vX + i), "s_nop 0",
            "v_cndmask_b32 v%d, v%d, v%d, vcc" % (vX + i, vU + 6, vX + i)]
for n in range(288): assert (n * 3641) >> 16 == n // 18

def head():
    e("s_cmp_ge_u32 s2, %d" % NWG)
    e("s_cbranch_scc1 L_exit")
    st("start")
    e("s_load_dwordx2 %s, s[0:1], 0" % sr(S_X, 2))
    e("s_load_dwordx2 %s, s[0:1], 8" % sr(S_T, 2))
    e("s_getpc_b64 %s" % sr(sEx, 2))
    lab("L_pf")
    e("s_lshl_b32 s%d, s2, 3" % sT0)
    e("s_add_u32 s%d, s%d, L_wgtab-L_pf" % (sT0, sT0))
    e("s_load_dwordx2 %s, %s, s%d" % (sr(sTb, 2), sr(sEx, 2), sT0))
    if opt.pf:
        e("s_lshr_b32 s%d, s2, 3" % sT3)
        e("s_lshl_b32 s%d, s%d, 12" % (sT3, sT3))
        e("v_lshrrev_b32 v%d, 3, v0" % (vTB + 8))
        e("v_lshl_add_u32 v%d, v%d, 7, s%d" % (vTB + 8, vTB + 8, sT3))
        e("v_min_u32 v%d, L_exit-L_pf, v%d" % (vTB + 8, vTB + 8))
        vm.issue_now("dw", ["global_load_dword v%d, v%d, %s" % (vTB + 6, vTB + 8, sr(sEx, 2))])
    e("v_lshrrev_b32 v%d, 6, v0" % vS)
    e("s_movk_i32 s%d, 384" % sC1)
    e("v_readfirstlane_b32 s%d, v%d" % (sWave, vS))
    for l in x_voff_a(0): e(l)
    e("v_bfrev_b32 v%d, 2" % (vU + 6))
    e("v_lshlrev_b32 v%d, 4, v0" % vTmp)
    e("s_mov_b32 s%d, %d" % (S_X + 2, XBYTES))
    e("s_mov_b32 s%d, 0x20000" % (S_X + 3))
    e("s_movk_i32 s%d, 3456" % (S_T + 2))
    e("s_mov_b32 s%d, s%d" % (S_T + 3, S_X + 3))
    e("s_lshl_b32 s%d, s%d, 10" % (sXm1, sWave))
    e("s_add_u32 s%d, s%d, %d" % (sXm1, sXm1, XB))
    e("s_waitcnt lgkmcnt(0)")
    st("kernarg")
    vm.issue_now("dw", ["buffer_load_dwordx4 %s, v%d, %s, 0 offen" % (vr(vDW, 4), vTmp, sr(S_T, 4))])
    e("s_load_dwordx2 %s, s[0:1], 16" % sr(S_W1, 2))
    e("s_load_dwordx2 %s, s[0:1], 32" % sr(S_W2, 2))
    e("s_load_dwordx2 %s, s[0:1], 56" % sr(S_O, 2))
    e("s_load_dwordx2 %s, s[0:1], 24" % sr(S_B, 2))
    e("s_load_dwordx4 %s, s[0:1], 40" % sr(S_G, 4))
    if opt.stamps: e("s_load_dwordx4 %s, s[0:1], 64" % sr(sPtr + 16, 4))
    e("s_and_b32 s%d, s%d, 0xff" % (sQlo, sTb + 1))
    e("s_bfe_u32 s%d, s%d, 0x80008" % (sQn, sTb + 1))
    e("s_bfe_u32 s%d, s%d, 0x80010" % (sNrows, sTb + 1))
    if opt.map == 11:
        e("s_cmp_lt_u32 s%d, 13" % sNrows)
        e("s_cbranch_scc1 L_body0")
    else:
        e("s_cmp_eq_u32 s%d, 12" % sNrows)
        e("s_cbranch_scc1 L_body0")
        if opt.map:
            e("s_cmp_eq_u32 s%d, 0" % sNrows)
            e("s_cbranch_scc1 L_exit")

def issue_plane0(L, filler):
    add = lambda i: ["v_add_u32 v%d, s%d, v%d" % (vX + i, sC2, vX + i - 2)]
    va1 = x_voff_a(1); va8 = x_voff_a(8)
    sc = ["s_add_u32 s%d, s%d, %d" % (sXm7, sXm1, 3 * 9216 + 4096), "s_mul_i32 s%d, s%d, 9216" % (sXm8, sWave),
          "s_add_u32 s%d, s%d, %d" % (sXm8, sXm8, XB + 8192), "s_mul_i32 s%d, s%d, s%d" % (sT2, sWave, sC2),
          "s_add_u32 s%d, s%d, s%d" % (sT2, sT2, sTb), "s_cmp_lt_u32 s%d, 3" % sWave,
          "s_cselect_b32 s%d, s%d, %d" % (sXm7, sXm7, DUMMY), "s_cselect_b32 s%d, s%d, %d" % (sXm8, sXm8, DUMMY),
          "s_cselect_b32 s%d, %d, 0" % (sXs8, PL - 128), "s_cselect_b32 s%d, s%d, 0x40000000" % (sT2, sT2)]
    seq = [(x_voff_b(0, sTb), 0), (["s_mov_b32 s%d, %d" % (sC2, 4 * ROWB)] + add(2), 2), (add(4) + va1, 4),
           (add(6) + x_voff_b(1, sTb), 6), (sc, 1), (add(3) + va8, 3), (add(5) + x_voff_b(8, sT2), 5),
           (["s_cmp_lt_u32 s%d, %d" % (sWave, 3 if L else 1), "s_cselect_b32 s%d, s%d, 0x40000000" % (sT3, sC2),
             "v_add_u32 v%d, s%d, v%d" % (vX + 7, sT3, vX + 5)], 7), ([], 8)]
    for n, (pre, i) in enumerate(seq):
        for l in pre: e(l)
        k = len(pre)
        while n >= 2 and k < opt.gap and filler and "vcc" not in filler[0]:
            e(filler.pop(0)); k += 1
        vm.issue_now(*x_item(0, i))
    for a in (1, 2):
        for i in range(9): vm.queue(*x_item(a, i))

def early(L, defer=False, cap=False):
    vm.queue("tab", ["s_waitcnt lgkmcnt(0)", "s_cmp_eq_u32 s%d, 3" % sWave, "s_cselect_b64 %s, %s, %s" % (sr(S_B, 2), sr(S_G, 2), sr(S_B, 2)),
                     "s_movk_i32 s%d, 1536" % (S_B + 2), "s_cselect_b32 s%d, 384, s%d" % (S_B + 2, S_B + 2), "s_mov_b32 s%d, s%d" % (S_B + 3, S_X + 3),
                     "s_cselect_b32 s%d, 63, -1" % sT3, "v_and_b32 v%d, s%d, v0" % (vTB + 7, sT3), "v_lshlrev_b32 v%d, 3, v%d" % (vTB + 7, vTB + 7),
                     "buffer_load_dwordx2 %s, v%d, %s, 0 offen" % (vr(vTB, 2), vTB + 7, sr(S_B, 4))])
    vm.queue("tab", ["s_mov_b64 %s, %s" % (sr(S_G, 2), sr(S_G + 2, 2)), "s_movk_i32 s%d, 384" % (S_G + 2), "s_mov_b32 s%d, s%d" % (S_G + 3, S_X + 3),
                     "v_lshlrev_b32 v%d, 3, v%d" % (vTB + 7, vLane),
                     "buffer_load_dwordx2 %s, v%d, %s, 0 offen" % (vr(vTB + 2, 2), vTB + 7, sr(S_G, 4))])
    fill = capture(setup_early) + ["v_mov_b32 v%d, 0" % (vFb + k) for k in range(4)]
    vm.cap = cap
    if not defer: issue_plane0(L, fill)
    e("s_add_u32 s%d, s%d, %d" % (sBase, sTb, ROWB + 384))
    st("issued")
    build_diag(L, fill, defer)
    vm.cap = False

px, g_, gl, gh = vS + 4, vS + 5, vS + 6, vS + 7
def setup_early():
    t0, t1, t2 = vS, vS + 1, vS + 2
    e("v_and_b32 v%d, 63, v0" % vLane)
    for j in range(8): e("v_mov_b32 v%d, 0" % (vQ + 2 * j + 1 - j // 4))
    cm("image write address: tap = tid/24 -> (pair, half)")
    code = [0, 1, 4, 2, 3, 5, 8, 9, 7, 6, 15]
    lut = sum(c << (4 * i) for i, c in enumerate(code))
    e("s_mov_b32 s%d, 0x%08x" % (sLut, lut & 0xffffffff))
    e("s_mov_b32 s%d, 0x%08x" % (sLut + 1, lut >> 32))
    e("v_mul_u32_u24 v%d, 2731, v0" % t0)
    e("v_lshrrev_b32 v%d, 16, v%d" % (t0, t0))
    e("v_mul_u32_u24 v%d, 24, v%d" % (t1, t0))
    e("v_sub_u32 v%d, v0, v%d" % (t1, t1))
    e("v_lshlrev_b32 v%d, 2, v%d" % (t0, t0))
    e("v_lshrrev_b64 %s, v%d, %s" % (vr(t2, 2), t0, sr(sLut, 2)))
    e("v_and_b32 v%d, 1, v%d" % (t0, t2))
    e("v_lshlrev_b32 v%d, 3, v%d" % (t0, t0))
    e("v_lshl_add_u32 v%d, v%d, 4, v%d" % (t0, t1, t0))
    e("v_bfe_u32 v%d, v%d, 1, 3" % (t2, t2))
    e("v_mul_u32_u24 v%d, 384, v%d" % (t1, t2))
    e("v_cmp_gt_u32 vcc, 5, v%d" % t2)
    e("v_add_u32 v%d, v%d, v%d" % (t0, t0, t1))
    e("v_mov_b32 v%d, %d" % (t1, OOB))
    e("v_cndmask_b32 v%d, v%d, v%d, vcc" % (vU + 7, t1, t0))
    e("v_and_b32 v%d, 15, v%d" % (px, vLane))
    e("v_lshrrev_b32 v%d, 4, v%d" % (g_, vLane))
    e("v_and_b32 v%d, 1, v%d" % (gl, g_))
    e("v_lshrrev_b32 v%d, 1, v%d" % (gh, g_))
    cm("image read addresses (invalid lanes out of range -> read 0)")
    e("v_lshrrev_b32 v%d, 3, v%d" % (t0, px))
    e("v_xor_b32 v%d, v%d, v%d" % (t0, t0, gl))
    e("v_mul_u32_u24 v%d, %d, v%d" % (t0, OOB, t0))
    e("v_lshl_add_u32 v%d, v%d, 4, v%d" % (t0, gl, t0))
    e("v_and_b32 v%d, 7, v%d" % (t1, px))
    e("v_mul_u32_u24 v%d, %d, v%d" % (t1, JS, t1))
    e("v_add_u32 v%d, v%d, v%d" % (t0, t0, t1))
    e("v_mul_u32_u24 v%d, 384, v%d" % (t1, gh))
    e("v_add_u32 v%d, v%d, v%d" % (vIA, t0, t1))
    e("v_xor_b32 v%d, 1, v%d" % (t1, gh))
    e("v_mul_u32_u24 v%d, %d, v%d" % (t1, OOB, t1))
    e("v_add_u32 v%d, v%d, v%d" % (vIA + 1, t0, t1))
    e("s_lshl_b32 s%d, s%d, 5" % (sT0, sWave))
    e("v_add_u32 v%d, s%d, v%d" % (vIA + 2, sT0, vIA))
    e("v_add_u32 v%d, s%d, v%d" % (vIA + 3, sT0, vIA + 1))

def setup_late():
    t0, t1, t2, t3 = vS, vS + 1, vS + 2, vS + 3
    cm("W1 dma voffset")
    e("v_lshrrev_b32 v%d, 3, v%d" % (t0, vLane))
    e("v_and_b32 v%d, 7, v%d" % (t1, vLane))
    e("v_and_b32 v%d, 6, v%d" % (t2, t0))
    e("v_xor_b32 v%d, v%d, v%d" % (t1, t1, t2))
    e("v_mul_u32_u24 v%d, 1536, v%d" % (t0, t0))
    e("v_lshl_add_u32 v%d, v%d, 4, v%d" % (vD1, t1, t0))
    e("s_mul_i32 s%d, s%d, %d" % (sT0, sWave, 48 * 1536))
    e("v_add_u32 v%d, s%d, v%d" % (vD1, sT0, vD1))
    cm("W2 dma voffset")
    e("v_bfe_u32 v%d, v%d, 2, 3" % (t0, vLane))
    e("v_and_b32 v%d, 4, v%d" % (t1, t0))
    e("v_add_u32 v%d, v%d, v%d" % (t0, t0, t1))
    e("v_mul_u32_u24 v%d, 384, v%d" % (t0, t0))
    e("v_lshl_add_u32 v%d, v%d, 6, v%d" % (t0, gh, t0))
    e("v_and_b32 v%d, 3, v%d" % (t1, vLane))
    e("v_lshl_add_u32 v%d, v%d, 4, v%d" % (vD2, t1, t0))
    e("s_mul_i32 s%d, s%d, %d" % (sT0, sWave, 16 * 384))
    e("v_add_u32 v%d, s%d, v%d" % (vD2, sT0, vD2))
    e("s_mov_b32 s%d, %d" % (S_W1 + 2, 192 * 768 * 2))
    e("s_mov_b32 s%d, s%d" % (S_W1 + 3, S_X + 3))
    e("s_mov_b64 %s, %s" % (sr(S_W2 + 2, 2), sr(S_W1 + 2, 2)))
    e("s_mov_b64 %s, %s" % (sr(S_O + 2, 2), sr(S_X + 2, 2)))
    set_dma_slot(0)
    e("s_mov_b32 s%d, 0" % sW1off)
    cm("sparse index: every group selects (row%4, (row+1)%4)")
    e("v_add_u32 v%d, 1, v%d" % (t0, t1))
    e("v_and_b32 v%d, 3, v%d" % (t0, t0))
    e("v_lshl_add_u32 v%d, v%d, 2, v%d" % (t0, t0, t1))
    e("v_mul_u32_u24 v%d, 0x1111, v%d" % (vIdx, t0))
    cm("conv B-frag addresses")
    e("s_mul_i32 s%d, s%d, %d" % (sT0, sWave, 3 * PR))
    e("s_add_u32 s%d, s%d, %d" % (sT0, sT0, XB))
    e("s_lshl_b32 s%d, s%d, 5" % (sT1, sWave))
    for kind, dst, ldst in ((0, vF, vLF), (1, vGa, vLG), (2, vRA, None)):
        if kind == 0: e("v_add_u32 v%d, v%d, v%d" % (t0, gl, px))
        else: e("v_add_u32 v%d, %d, v%d" % (t0, 2 if kind == 1 else 1, px))
        e("v_bfe_u32 v%d, v%d, 1, 3" % (t1, t0))
        e("v_xor_b32 v%d, v%d, v%d" % (t1, t1, gh if kind < 2 else g_))
        e("v_lshlrev_b32 v%d, 7, v%d" % (t0, t0))
        e("v_lshl_add_u32 v%d, v%d, 4, v%d" % (t0, t1, t0))
        if kind == 1:
            e("v_mul_u32_u24 v%d, %d, v%d" % (t1, PR, gl))
            e("v_add_u32 v%d, v%d, v%d" % (t0, t0, t1))
        if kind == 2: e("v_add_u32 v%d, %d, v%d" % (t0, PR, t0))
        e("v_add_u32 v%d, s%d, v%d" % (dst, sT0, t0))
        if kind < 2:
            for k in range(1, 4): e("v_xor_b32 v%d, %d, v%d" % (dst + k, 32 * k, dst))
            e("v_xor_b32 v%d, s%d, v%d" % (t0, sT1, t0))
            e("v_add_u32 v%d, %d, v%d" % (ldst, XB + 12 * PR, t0))
        else:
            e("v_xor_b32 v%d, 64, v%d" % (dst + 1, dst))
    cm("L exchange addresses")
    e("s_lshr_b32 s%d, s%d, 1" % (sT0, sWave))
    e("s_lshl_b32 s%d, s%d, 10" % (sT0, sT0))
    e("s_and_b32 s%d, s%d, 1" % (sT1, sWave))
    e("s_lshl_b32 s%d, s%d, 3" % (sT1, sT1))
    e("s_add_u32 s%d, s%d, s%d" % (sT0, sT0, sT1))
    e("v_lshl_add_u32 v%d, v%d, 4, s%d" % (vLW, vLane, sT0))
    e("v_lshlrev_b32 v%d, 5, v%d" % (vLSr, px))
    e("s_lshl_b32 s%d, s%d, 2" % (sT0, sWave))
    e("v_lshl_add_u32 v%d, v%d, 4, v%d" % (vLSw, gh, vLSr))
    e("v_add_u32 v%d, s%d, v%d" % (vLSw, sT0, vLSw))
    cm("main-loop LDS addresses")
    e("v_bfe_u32 v%d, v%d, 2, 3" % (t0, vLane))
    e("v_and_b32 v%d, 3, v%d" % (t2, vLane))
    e("v_lshlrev_b32 v%d, 7, v%d" % (t3, t0))
    e("v_lshl_add_u32 v%d, v%d, 10, v%d" % (t3, gh, t3))
    e("v_lshl_add_u32 v%d, v%d, 3, v%d" % (t3, t2, t3))
    e("v_lshrrev_b32 v%d, 1, v%d" % (vA1, t0))
    e("v_xor_b32 v%d, s%d, v%d" % (vA1, sWave, vA1))
    e("v_lshl_add_u32 v%d, v%d, 5, v%d" % (vA1, vA1, t3))
    for p in range(1, 4): e("v_xor_b32 v%d, %d, v%d" % (vA1 + p, 32 * p, vA1))
    e("v_mul_u32_u24 v%d, 3080, v%d" % (t3, gl))
    e("v_lshl_add_u32 v%d, v%d, 8, v%d" % (t3, gh, t3))
    e("v_lshl_add_u32 v%d, v%d, 4, v%d" % (t3, px, t3))
    e("v_lshlrev_b32 v%d, 4, v%d" % (t2, g_))
    for p in range(4):
        e("s_xor_b32 s%d, s%d, %d" % (sT0, sWave, p))
        e("s_mul_i32 s%d, s%d, %d" % (sT1, sT0, W2E))
        e("s_add_u32 s%d, s%d, %d" % (sT1, sT1, SLOT + 24576))
        e("v_add_u32 v%d, s%d, v%d" % (vA2 + p, sT1, t3))
    assert TAB_B1 % 256 == 0
    e("s_lshl_b32 s%d, s%d, 6" % (sT0, sWave))
    e("s_add_u32 s%d, s%d, %d" % (sT0, sT0, TAB_B1))
    e("v_add_u32 v%d, s%d, v%d" % (vAb, sT0, t2))
    for p in range(1, 4): e("v_xor_b32 v%d, %d, v%d" % (vAb + p, 64 * p, vAb))
    e("v_lshlrev_b32 v%d, 5, v%d" % (vTab, g_))
    e("v_add_u32 v%d, %d, v%d" % (vTab, TAB_B2, vTab))
    e("v_mul_u32_u24 v%d, 384, v%d" % (vOut, px))
    e("v_add3_u32 v%d, v%d, v%d, s%d" % (vOut, vOut, t2, sBase))

def build_diag(L, early, defer):
    late0 = capture(setup_late)
    zs = ["v_mfma_f32_32x32x16_bf16 %s, %s, %s, 0" % (vr(b, 16), vr(vFb, 4), vr(vFb, 4)) for b in range(160, 256, 16)]
    zs += ["v_mfma_f32_16x16x32_bf16 %s, %s, %s, 0" % (vr(b, 4), vr(vFb, 4), vr(vFb, 4)) for b in range(vLY, vLY + 12, 4)]
    late = []
    for k, l in enumerate(late0):
        late.append(l)
        if k % 10 == 9 and zs: late.append(zs.pop(0))
    assert not zs
    for k, l in enumerate(early):
        e(l)
        if k % 10 == 5: vm.pop()
    cm("sparse-diagonal image")
    vm.wait(lambda t: t == "dw")
    st("dwin")
    for j in range(8):
        d = vQ + 2 * j + j // 4
        if j % 2: e("v_lshrrev_b32 v%d, 16, v%d" % (d, vDW + j // 2))
        else: e("v_and_b32 v%d, 0xffff, v%d" % (d, vDW + j // 2))
    for j in range(8):
        e("ds_write_b64 v%d, %s offset:%d" % (vU + 7, vr(vQ + 2 * j, 2), IMG + j * JS))
    for l in late[:16]: e(l)
    late = late[16:]
    vm.pop()
    st("img")
    e("s_waitcnt lgkmcnt(0)")
    e("s_barrier")
    st("bar")
    rds = []
    for cg in range(12):
        for s_, (a, off) in enumerate(((vIA, 0), (vIA, 768), (vIA + 1, 1536))):
            rds.append("ds_read_b128 %s, v%d offset:%d" % (ar(12 * cg + 4 * s_, 4), a, IMG + off + cg * 32))
    for a_ in range(3 if L else 0):
        for s_, (a, off) in enumerate(((vIA + 2, 0), (vIA + 2, 768), (vIA + 3, 1536))):
            rds.append("ds_read_b128 %s, v%d offset:%d" % (ar(aLD + 12 * a_ + 4 * s_, 4), a, IMG + off + a_ * 128))
    per = (len(late) + 8) // 9
    for f, r in enumerate(rds):
        e(r)
        if f % (len(rds) // 9) == len(rds) // 9 - 1:
            vm.pop()
            for l in late[:per // 2]: e(l)
            if L and opt.fast == 2: vm.pop()
            for l in late[per // 2:per]: e(l)
            late = late[per:]
    assert not late
    for i in range(6):
        sc, ins = dma_w(i, 1); vm.queue("w0", sc + [ins])
    vm.wait(lambda t: t == "tab")
    e("v_mfma_f32_32x32x16_bf16 %s, %s, %s, 0" % (vr(76, 16), vr(vFb, 4), vr(vFb, 4)))
    tables()
    if L:
        e("s_mul_i32 s%d, s%d, %d" % (sT0, sWave, -3 * PR))
        e("s_add_u32 s%d, s%d, %d" % (sT0, sT0, 12 * PR))
        e("s_lshr_b32 s%d, s%d, 1" % (sT1, sWave))
        e("s_mul_i32 s%d, s%d, %d" % (sT1, sT1, PL))
        e("s_add_u32 s%d, s%d, s%d" % (sT0, sT0, sT1))
        e("s_and_b32 s%d, s%d, 1" % (sT1, sWave))
        e("s_lshl_b32 s%d, s%d, 6" % (sT1, sT1))
        e("v_xor_b32 v%d, s%d, v%d" % (vTmp, sT1, vRA))
        e("v_add_u32 v%d, s%d, v%d" % (vTmp, sT0, vTmp))
    if defer:
        w0 = vm.pending; vm.pending = []
        issue_plane0(L, [])
        if opt.w0first: vm.wait(lambda t: t == ("x", 0))
        vm.pending += w0
    while any(tg == ("x", 1) for tg, _ in vm.pending): vm.pop()
    e("s_waitcnt lgkmcnt(0)")
    for b in (92, 108): e("v_mfma_f32_32x32x16_bf16 %s, %s, %s, 0" % (vr(b, 16), vr(vFb, 4), vr(vFb, 4)))
    st("diag")

def tables():
    def unpack_scale(src, dst, scale):
        e("s_mov_b32 s%d, 0x%08x" % (sT0, f2u(scale)))
        for h in range(2):
            e("v_lshlrev_b32 v%d, 16, v%d" % (dst + 2 * h, src + h))
            e("v_and_b32 v%d, 0xffff0000, v%d" % (dst + 2 * h + 1, src + h))
        for k in range(4): e("v_mul_f32 v%d, s%d, v%d" % (dst + k, sT0, dst + k))
    unpack_scale(vTB, vTB + 8, SA)
    unpack_scale(vTB + 2, vTB + 12, 1.0 / SA)
    e("v_add_u32 v%d, %d, v%d" % (vTB + 4, TAB_B1, vTmp))
    e("s_mov_b32 s%d, %d" % (sT0, TAB_G))
    e("v_lshl_add_u32 v%d, v%d, 4, s%d" % (vTB + 5, vLane, sT0))
    e("ds_write_b128 v%d, %s" % (vTB + 4, vr(vTB + 8, 4)))
    e("ds_write_b128 v%d, %s" % (vTB + 5, vr(vTB + 12, 4)))

def res_dst(t, m):
    if m >= 4: return vr(vR45 + 8 * t + 4 * (m - 4), 4)
    if t == 0 and m >= 2: return vr(vR23 + 4 * (m - 2), 4)
    idx = m if t == 0 else 4 * t + m - 2
    return ar(aRes + 4 * idx, 4)
def poff(a): return (a % 2) * PL
def res_rd(t, m):
    return "ds_read_b128 %s, v%d offset:%d" % (res_dst(t, m), vRA + m % 2, poff(m // 2) + t * PR)

def conv_all(L):
    reads = []; mf = []
    lastuse = {}
    nitem = 0
    for a in range(3):
        items = [("m", k) for k in range(4)]
        if L: items.insert(0 if a == 2 else 2, ("l", 0))
        for kind, k in items:
            b = nitem % 2; nitem += 1
            F = (lambda h, c=1: vr(vFb + 4 * h, 4 * c)) if b else (lambda h, c=1: ar(aFb + 4 * h, 4 * c))
            G = (lambda h, c=1: vr(vGb + 4 * h, 4 * c)) if b else (lambda h, c=1: ar(aGb + 4 * h, 4 * c))
            nrow = 3 if kind == "m" else 1
            r0 = len(reads)
            for h in range(nrow + 2):
                reads.append(("ds_read_b128 %s, v%d offset:%d" % (F(h), vF + k if kind == "m" else vLF, poff(a) + h * PR), lastuse.get((b, "F", h), -1), a))
            g0 = len(reads)
            for h in range(nrow + 1):
                reads.append(("ds_read_b128 %s, v%d offset:%d" % (G(h), vGa + k if kind == "m" else vLG, poff(a) + h * PR), lastuse.get((b, "G", h), -1), a))
            A = (lambda s_: ar(12 * (4 * a + k) + 4 * s_, 4)) if kind == "m" else (lambda s_: ar(aLD + 12 * a + 4 * s_, 4))
            Dr = (lambda t: vr(vYt[t] + 4 * (4 * a + k), 4)) if kind == "m" else (lambda t: vr(vLY + 4 * a, 4))
            def sm(t, s_, B, need, uses):
                for u in uses: lastuse[u] = len(mf)
                mf.append(("v_smfmac_f32_16x16x64_bf16 %s, %s, %s, v%d" % (Dr(t), A(s_), B, vIdx), need, a))
            for t in range(nrow):
                sm(t, 0, F(t, 2), r0 + t + 1, [(b, "F", t), (b, "F", t + 1)])
                sm(t, 2, F(t + 1, 2), r0 + t + 2, [(b, "F", t + 1), (b, "F", t + 2)])
            for t in range(nrow):
                sm(t, 1, G(t, 2), g0 + t + 1, [(b, "G", t), (b, "G", t + 1)])
    return reads, mf

def stats_ops(a, L):
    ops = []
    for k in range(4):
        for i in (0, 2):
            for t in range(3):
                y = vr(vYt[t] + 16 * a + 4 * k + i, 2)
                a1, a2 = vr(vS + 4 * t, 2), vr(vS + 4 * t + 2, 2)
                if a == 0 and k == 0 and i == 0:
                    ops += ["v_pk_add_f32 %s, %s, 0 op_sel_hi:[1,0]" % (a1, y), "v_pk_mul_f32 %s, %s, %s" % (a2, y, y)]
                else:
                    ops += ["v_pk_add_f32 %s, %s, %s" % (a1, a1, y), "v_pk_fma_f32 %s, %s, %s, %s" % (a2, y, y, a2)]
        if L and k < 2 and a < 2:
            y = vr(vLY + 4 * a + 2 * k, 2); a1, a2 = vr(vLS, 2), vr(vLS + 2, 2)
            if a == 0 and k == 0: ops += ["v_pk_add_f32 %s, %s, 0 op_sel_hi:[1,0]" % (a1, y), "v_pk_mul_f32 %s, %s, %s" % (a2, y, y)]
            else: ops += ["v_pk_add_f32 %s, %s, %s" % (a1, a1, y), "v_pk_fma_f32 %s, %s, %s, %s" % (a2, y, y, a2)]
    return ops

def finish_ops(a, b, sc, sh):
    return ["v_fma_f32 v%d, -v%d, v%d, v%d" % (b, a, a, b), "v_max_f32 v%d, 0, v%d" % (b, b),
            "v_add_f32 v%d, 0x%08x, v%d" % (b, f2u(1e-5), b), "v_rsq_f32 v%d, v%d" % (b, b),
            "v_mul_f32 v%d, 0x%08x, v%d" % (sc, f2u(SA), b), "v_mul_f32 v%d, v%d, v%d" % (sh, a, sc)]

def reduce_chain(t):
    s1, s2 = vS + 4 * t, vS + 4 * t + 2
    a, b = s1 + 1, s2 + 1
    return ["v_add_f32 v%d, v%d, v%d" % (a, s1, s1 + 1), "v_add_f32 v%d, v%d, v%d" % (b, s2, s2 + 1),
            "v_permlane32_swap_b32 v%d, v%d" % (a, b), "v_add_f32 v%d, v%d, v%d" % (a, a, b), "v_mov_b32 v%d, v%d" % (b, a),
            "v_permlane16_swap_b32 v%d, v%d" % (a, b), "v_add_f32 v%d, v%d, v%d" % (a, a, b),
            "v_mul_f32 v%d, 0x%08x, v%d" % (a, f2u(1.0 / 192.0), a), "v_mov_b32 v%d, v%d" % (b, a),
            "v_permlane32_swap_b32 v%d, v%d" % (a, b)] + finish_ops(a, b, s1, s2)

def ln_norm(y0, n, dst, sc, sh):
    LAG = min(6, n)
    for k in range(n + LAG):
        if k < n:
            y = y0 + 2 * k
            e("v_pk_fma_f32 %s, %s, %s, %s op_sel_hi:[1,0,0] neg_lo:[0,0,1] neg_hi:[0,0,1]" % (vr(y, 2), vr(y, 2), vr(sc, 2), vr(sh, 2)))
        if k >= LAG:
            j = k - LAG
            e("v_cvt_pk_bf16_f32 v%d, v%d, v%d" % (dst + j, y0 + 2 * j, y0 + 2 * j + 1))
        if k % 8 == 7: vm.pop()

def prologue(L):
    vm.wait(lambda t: t == ("x", 0))
    e("s_barrier")
    st("x0in")
    reads, mf = conv_all(L)
    seq = [0]; rseq = {}
    def lds(txt): e(txt); seq[0] += 1
    plane = [0]
    nis = [0]
    def issue_read():
        r = reads[nis[0]]
        if r[2] > plane[0]:
            a = plane[0]
            if a == 1:
                for r_ in [vF + k for k in range(8)] + ([vLF, vLG] if L else []):
                    e("v_add_u32 v%d, %d, v%d" % (r_, 2 * PL, r_))
            vm.wait(lambda t: t == ("x", a + 1))
            e("s_barrier")
            st("x%din" % (a + 1))
            plane[0] += 1
        lds(r[0]); rseq[nis[0]] = seq[0]; nis[0] += 1
    for _ in range(opt.dist): issue_read()
    n0 = nis[0]
    e("s_waitcnt lgkmcnt(%d)" % (seq[0] - rseq[mf[0][1]]))
    pend = []
    la, lb = vLS + 1, vLS + 3
    for i, (txt, need, a) in enumerate(mf):
        e(txt)
        last_of_plane = i + 1 == len(mf) or mf[i + 1][2] != a
        if i + 1 < len(mf):
            nxt = mf[i + 1][1]
            while nis[0] <= nxt:
                assert reads[nis[0]][1] <= i
                issue_read()
            if not last_of_plane and (nxt > need or i == 0): e("s_waitcnt lgkmcnt(%d)" % min(14, seq[0] - rseq[nxt]))
            target = min(len(reads), n0 + -(-(i + 1) * len(reads) // len(mf)))
            while nis[0] < target and nis[0] - nxt <= 13 and reads[nis[0]][1] <= i: issue_read()
        first = min(k for k in range(len(mf)) if mf[k][2] == a)
        if (i - first) % [opt.c0, 5, 3][a] == 1: vm.pop()
        if a == 2 and L and i == first + 8:
            for k in range(4):
                y = vLY + 8 + k
                pend += ["v_add_f32 v%d, v%d, v%d" % (vLS + k % 2, vLS + k % 2, y), "v_fmac_f32 v%d, v%d, v%d" % (vLS + 2 + k % 2, y, y)]
            pend += ["v_add_f32 v%d, v%d, v%d" % (la, vLS, vLS + 1), "v_add_f32 v%d, v%d, v%d" % (lb, vLS + 2, vLS + 3), None,
                     "v_permlane32_swap_b32 v%d, v%d" % (la, lb), "v_add_f32 v%d, v%d, v%d" % (la, la, lb), "v_mov_b32 v%d, v%d" % (lb, la), None,
                     "v_permlane16_swap_b32 v%d, v%d" % (la, lb), "v_add_f32 v%d, v%d, v%d" % (la, la, lb), "W"]
        if pend:
            o = pend.pop(0)
            if o == "W": lds("ds_write_b32 v%d, v%d offset:%d" % (vLSw, la, XST))
            elif o: e(o)
        if last_of_plane:
            st("mf%d" % a)
            assert not pend
            if a == 1: assert not any(tg[0] == "x" for tg, _ in vm.pending)
            for t in range(3):
                for m in (2 * a, 2 * a + 1): lds(res_rd(t, m))
            if a == 1:
                if L: lds("ds_read_b128 %s, v%d" % (vr(vRL, 4), vTmp))
                for r_ in [vRA, vRA + 1] + ([vTmp] if L else []): e("v_add_u32 v%d, %d, v%d" % (r_, 2 * PL, r_))
            ops = stats_ops(a, L)
            if a == 2:
                while vm.pending: vm.pop()
                for o in ops[:36]: e(o)
                ops = ops[36:]
                vm.wait(lambda t: t == "w0")
                e("s_waitcnt lgkmcnt(0)")
                e("s_barrier")
                if L:
                    e("ds_read_b128 %s, v%d offset:%d" % (vr(vFb, 4), vLSr, XST))
                    e("ds_read_b128 %s, v%d offset:%d" % (vr(vFb + 4, 4), vLSr, XST + 16))
                set_dma_slot(SLOT)
                e("s_mov_b32 s%d, 128" % sW1off)
                e("s_mov_b32 s%d, 0" % sW2off)
                for kind in (1, 2):
                    for k in range(6):
                        sc, ins = dma_w(k, kind); vm.queue("w1", sc + [ins])
                vm.pop()
            for o in ops: e(o)
            if a < 2: e("s_waitcnt lgkmcnt(%d)" % min(14, seq[0] - rseq[mf[i + 1][1]]))
            st("conv%d" % a)
    assert nis[0] == len(reads)
    p = vFb
    ch = [reduce_chain(t) for t in range(3)]
    if L:
        ch.append([None, None, "s_waitcnt lgkmcnt(0)", "v_pk_add_f32 %s, %s, %s" % (vr(p, 2), vr(p, 2), vr(p + 2, 2)),
                   "v_pk_add_f32 %s, %s, %s" % (vr(p + 4, 2), vr(p + 4, 2), vr(p + 6, 2)),
                   "v_add_f32 v%d, v%d, v%d" % (p, p, p + 1), "v_add_f32 v%d, v%d, v%d" % (p + 1, p + 4, p + 5),
                   "v_mul_f32 v%d, 0x%08x, v%d" % (p, f2u(1.0 / 192.0), p), "v_mul_f32 v%d, 0x%08x, v%d" % (p + 1, f2u(1.0 / 192.0), p + 1),
                   "v_lshlrev_b32 v%d, 4, v%d" % (vX + 8, vLane)] + finish_ops(p, p + 1, p + 2, p + 4))
    for k in range(len(ch[0])):
        for c in ch:
            if c[k]: e(c[k])
        if k % 5 == 1: vm.pop()
    st("red")
    if L:
        ln_norm(vLY, 6, vLY, p + 2, p + 4)
        for a in range(3): e("ds_write_b64 v%d, %s offset:%d" % (vLW, vr(vLY + 2 * a, 2), XCH + a * 2048))
    for t in range(3):
        ln_norm(vYt[t], 24, vB1 + 24 * t, vS + 4 * t, vS + 4 * t + 2)
        if t == 0 and L: e("ds_read_b128 %s, v%d" % (vr(vRL + 4, 4), vTmp))
    if L:
        pass
    while vm.pending: vm.pop()
    if L:
        e("s_waitcnt lgkmcnt(0)")
        e("s_barrier")
        for kb in range(6): e("ds_read_b128 %s, v%d offset:%d" % (vr(vB1 + 72 + 4 * kb, 4), vX + 8, XCH + kb * 1024))
        e("s_cmp_eq_u32 s%d, 0" % sWave)
        e("s_cselect_b32 s%d, 0, %d" % (sT0, OOB))
        e("v_add_u32 v%d, s%d, v%d" % (vTmp + 1, sT0, vTab))
    st("conv3")

def acc_init(L):
    r = []
    for ct in range(12):
        for t in range(1):
            r.append("ds_read_b128 %s, v%d offset:%d" % (ar(48 * t + 4 * ct, 4), vTab, (ct // 2) * 128 + (ct % 2) * 16))
        if L:
            r.append("ds_read_b128 %s, v%d offset:%d" % (ar(144 + 4 * ct, 4), vTmp + 1, (ct // 2) * 128 + (ct % 2) * 16))
    return r

def gelu_pair(x0, x1, dst, tmp):
    a, b = tmp, tmp + 1
    if opt.gelu == 1:
        return [("v_fma_f32 v%d, -v%d, v%d, -s%d" % (a, x0, x0, sK), 4), ("v_fma_f32 v%d, -v%d, v%d, -s%d" % (b, x1, x1, sK), 4),
                ("v_mul_f32 v%d, v%d, v%d" % (a, x0, a), 4), ("v_mul_f32 v%d, v%d, v%d" % (b, x1, b), 4),
                ("v_exp_f32 v%d, v%d" % (a, a), 8), ("v_exp_f32 v%d, v%d" % (b, b), 8),
                ("v_add_f32 v%d, 1.0, v%d" % (a, a), 4), ("v_add_f32 v%d, 1.0, v%d" % (b, b), 4),
                ("v_rcp_f32 v%d, v%d" % (a, a), 8), ("v_rcp_f32 v%d, v%d" % (b, b), 8),
                ("v_mul_f32 v%d, v%d, v%d" % (a, x0, a), 4), ("v_mul_f32 v%d, v%d, v%d" % (b, x1, b), 4),
                ("v_cvt_pk_bf16_f32 v%d, v%d, v%d" % (dst, a, b), 4)]
    sd = "dst_sel:WORD_1 dst_unused:UNUSED_PRESERVE src0_sel:WORD_1"
    return [("v_cvt_pk_f16_f32 v%d, v%d, v%d" % (a, x0, x1), 4),
            ("v_pk_fma_f16 v%d, v%d, v%d, s%d" % (b, a, a, sK), 4),
            ("v_pk_mul_f16 v%d, v%d, v%d neg_lo:[1,0] neg_hi:[1,0]" % (a, a, b), 4),
            ("v_exp_f16%s v%d, v%d" % ("_e64" if opt.e64 else "", b, a), 8),
            ("v_exp_f16_sdwa v%d, v%d %s" % (b, a, sd), 8),
            ("v_pk_add_f16 v%d, v%d, 1.0 op_sel_hi:[1,0]" % (a, b), 4),
            ("v_rcp_f16%s v%d, v%d" % ("_e64" if opt.e64 else "", b, a), 8),
            ("v_rcp_f16_sdwa v%d, v%d %s" % (b, a, sd), 8),
            ("v_fma_mix_f32 v%d, v%d, v%d, 0 op_sel_hi:[0,1,0]" % (a, x0, b), 4),
            ("v_fma_mix_f32 v%d, v%d, v%d, 0 op_sel:[0,1,0] op_sel_hi:[0,1,0]" % (b, x1, b), 4),
            ("v_cvt_pk_bf16_f32 v%d, v%d, v%d" % (dst, a, b), 4)]

def gelu_ops(c, L, tiles=(0, 1, 2)):
    hb = vH + 24 * (c % 2); pb = vP + 12 * (c % 2)
    quads = []
    for t in tiles:
        for ep in range(2):
            quads.append((hb + 8 * t + 4 * ep, pb + 4 * t + 2 * ep))
    if L and c % 2 == 0: quads.append((vHL, vPL))
    ops = []
    for n, (x, d) in enumerate(quads):
        tmp = vT + 4 * (n % 2)
        A = gelu_pair(x, x + 1, d, tmp); B = gelu_pair(x + 2, x + 3, d + 1, tmp + 2)
        if opt.gelu == 1:
            for k in range(0, 12, 2): ops += [A[k], A[k + 1], B[k], B[k + 1]]
            ops += [A[12], B[12]]
        else:
            for k in range(len(A)): ops += [A[k], B[k]]
    return ops

class Frag: pass

def step_scalars():
    return ["s_add_u32 s%d, s%d, s%d" % (sM1, sM1, sDel2),
            "s_add_u32 s%d, s%d, s%d" % (sM2, sM2, sDel2),
            "s_add_u32 s%d, s%d, 128" % (sW1off, sW1off),
            "s_add_u32 s%d, s%d, 24576" % (sW2off, sW2off),
            "s_mov_b32 s%d, s%d" % (sT0, sDel1),
            "s_mov_b32 s%d, s%d" % (sDel1, sDel2),
            "s_mov_b32 s%d, s%d" % (sDel2, sDelta),
            "s_sub_u32 s%d, s%d, 1" % (sCnt, sCnt),
            "s_cmp_lg_u32 s%d, 0" % sCnt]

def build_main(L, c_lo, c_hi, virt, xds={}, xval={}, xwr={}):
    groups = []
    TM = c_hi == 26
    for c in range(c_lo, c_hi + 1 + (1 if virt else 0)):
        step = (c + 1) // 2 if c < 24 or not TM else c - 11
        if c + 1 <= 23 or virt:
            c1 = c + 1
            for ep in range(2):
                pos = 2 * (c1 % 2) + ep
                for kb in range(6):
                    g = Frag(); g.kind = 1; g.period = c; g.step = step; g.pos = pos; g.kb = kb; g.chunk = c1; g.ep = ep
                    groups.append(g)
        if c - 1 >= 0:
            c2 = min(c - 1, 23)
            for ct in range(12):
                g = Frag(); g.kind = 2; g.period = c; g.step = step; g.ct = ct; g.chunk = c2
                groups.append(g)
    N = len(groups)
    D, R = opt.D, opt.R
    assert 24 % R == 0 and D < R and D <= 5
    nbias = 0
    for n, g in enumerate(groups):
        g.slot = aRing + 4 * (n % R)
        g.reads = []
        if g.kind == 1:
            if g.kb == 0:
                g.bias = vBias + 4 * (nbias % 2); nbias += 1
                g.reads.append("ds_read_b128 %s, v%d" % (vr(g.bias, 4), vAb + g.pos))
            for h in range(2):
                g.reads.append("ds_read_b64_tr_b16 %s, v%d offset:%d" % (ar(g.slot + 2 * h, 2), vA1 + g.pos, (g.kb * 4 + h * 2) * 1024))
            hb = vH + 24 * (g.chunk % 2)
            g.mf = []
            tiles = [0, 1, 2] + ([3] if (L and g.pos == 0) else [])
            for t in tiles:
                d = (hb + 8 * t + 4 * g.ep) if t < 3 else vHL
                cc = vr(g.bias, 4) if g.kb == 0 else vr(d, 4)
                g.mf.append("v_mfma_f32_16x16x32_bf16 %s, %s, %s, %s" % (vr(d, 4), ar(g.slot, 4), vr(vB1 + 24 * t + 4 * g.kb, 4), cc))
            g.upd = []
            if g.kb == 5 and g.step <= 10: g.upd = ["v_add_u32 v%d, s%d, v%d" % (vA1 + g.pos, sDelta, vA1 + g.pos)]
            if g.kb == 0 and g.step <= 10: g.upd = ["v_add_u32 v%d, 0x100, v%d" % (vAb + g.pos, vAb + g.pos)]
        else:
            m, o = g.ct // 2, g.ct % 2
            for h in range(2):
                pos = 2 * (g.chunk % 2) + h
                g.reads.append("ds_read_b64_tr_b16 %s, v%d offset:%d" % (ar(g.slot + 2 * h, 2), vA2 + pos, m * 512 + o * 8))
            pb = vP + 12 * (g.chunk % 2)
            g.mf = []
            tiles = [0, 1, 2] + ([3] if (L and g.chunk % 2 == 0) else [])
            if len(tiles) == 4: tiles = [0, 1, 3, 2]
            if g.chunk == 0: tiles = [1, 2] + ([3] if L else []) + [0]
            if TM and g.period >= 24: tiles = [g.period - 24]
            for t in tiles:
                acc = ar(48 * t + 4 * g.ct, 4)
                cin = ar(4 * g.ct, 4) if (g.chunk == 0 and t < 3) else acc
                if t < 3: g.mf.append("v_mfma_f32_16x16x32_bf16 %s, %s, %s, %s" % (acc, ar(g.slot, 4), vr(pb + 4 * t, 4), cin))
                else: g.mf.append("v_mfma_f32_16x16x16_bf16 %s, %s, %s, %s" % (acc, ar(g.slot, 2), vr(vPL, 2), cin))
            g.upd = []
            if g.ct == 11 and g.step <= 11:
                g.upd = ["v_add_u32 v%d, s%d, v%d" % (vA2 + 2 * (g.chunk % 2) + h, sDelta, vA2 + 2 * (g.chunk % 2) + h) for h in range(2)]
    steps = [[] for _ in range(16)]
    issued = [0]; lastseq = {}
    pre = []
    def issue(n, dst):
        for r in groups[n].reads:
            dst.append(r); issued[0] += 1
        lastseq[n] = issued[0]
    for n in range(D): issue(n, pre)
    for n in range(D): pre += groups[n].upd
    first_wait = "s_waitcnt lgkmcnt(%d)" % (issued[0] - lastseq[0])
    for c in range(c_lo, c_hi + 1):
        step = (c + 1) // 2 if c < 24 or not TM else c - 11
        dst = steps[step]
        gs = [k for k in range(N) if groups[k].period == c]
        val = gelu_ops(c, L) if 0 <= c <= 23 else []
        if TM and 23 <= c <= 25: val = gelu_ops(23, L, (c - 23,))
        val = val + [(x, 4) for x in xval.get(c, [])]
        xd = list(xds.get(c, []))
        nxd = (len(xd) + len(gs) - 1) // len(gs)
        if c == c_lo:
            burst = 0
            while val and burst < 120:
                pre.append(val[0][0]); burst += val[0][1]; val = val[1:]
            pre.append(first_wait)
        dmas = []; scal = []
        if step <= 11:
            if c % 2 == 1: dmas = [dma_w(i, 1) for i in range(6 if step <= 9 else 0)] + [dma_w(i, 2) for i in range(6 if step <= 10 else 0)]
            else: scal = step_scalars()
        nm = sum(len(groups[k].mf) for k in gs)
        mcost = lambda m: 4 if "16x16x16" in m else 8
        tot = sum(mcost(m) for k in gs for m in groups[k].mf) + sum(x[1] for x in val) + 12 * len(dmas) + 4 * len(xd) + 20 * len([1 for cc, _ in xwr if cc == c])
        for k in gs:
            if k + D < N: tot += 4 * len(groups[k + D].reads) + 4 * len(groups[k + D].upd)
        t = 0.0; vi = 0; mi = 0
        sp = opt.dsp if len(gs) >= 24 else 1
        dmap = {sp * i: d for i, d in enumerate(dmas)}
        for gi, k in enumerate(gs):
            g = groups[k]
            for j, m in enumerate(g.mf):
                dst.append(m); t += mcost(m); mi += 1
                extra = []
                if j == len(g.mf) - 1 and k + 1 < N:
                    dst.append("s_waitcnt lgkmcnt(%d)" % min(14, issued[0] - lastseq[k + 1]))
                if j == 0:
                    if gi in dmap: dst.append(dmap[gi][0][0])
                    elif scal: dst.append(scal.pop(0))
                    if k + D < N:
                        issue(k + D, dst); t += 4 * len(groups[k + D].reads)
                        extra = groups[k + D].upd
                if j == len(g.mf) - 1:
                    for _ in range(nxd):
                        if xd: dst.append(xd.pop(0)); issued[0] += 1; t += 4
                if j == min(1, len(g.mf) - 1) and (c, gi) in xwr:
                    dst.append(xwr[(c, gi)]); issued[0] += 1; t += 20
                if j == 1:
                    if gi in dmap:
                        dst.append(dmap[gi][0][1]); dst.append(dmap[gi][1]); t += 12
                    elif gi == len(gs) - 1 and step <= 11 and c % 2 == 0:
                        dst.append("s_mov_b32 s%d, s%d" % (sDelta, sT0))
                for x in extra: dst.append(x); t += 4
                lim = mi * tot / nm
                while vi < len(val) and t + val[vi][1] <= lim + 2:
                    dst.append(val[vi][0]); t += val[vi][1]; vi += 1
        while vi < len(val): dst.append(val[vi][0]); vi += 1
        assert not scal and not xd
    return pre, steps

def main_part(L):
    tag = "b%d" % L
    ai = acc_init(L)
    xd24, xwr, xv24 = epi_prep(L)
    TM = (opt.tm >> L) & 1
    if TM: pre, steps = build_main(L, -1, 26, False, xds={0: ai, 23: xd24}, xval={23: xv24, 26: unpack_t2()}, xwr=xwr)
    else: pre, steps = build_main(L, -1, 24, False, xds={0: ai, 24: xd24}, xval={24: xv24}, xwr=xwr)
    for j in range(3, 10): assert steps[j] == steps[2], j
    assert opt.unroll in (1, 2, 4)
    e("s_mov_b32 s%d, 0x%08x" % (sK, f2u(KK) if opt.gelu == 1 else f2h(KK) * 0x10001))
    set_dma_slot(2 * SLOT)
    e("s_mov_b32 s%d, 256" % sW1off)
    e("s_mov_b32 s%d, 24576" % sW2off)
    e("s_mov_b32 s%d, %d" % (sDelta, SLOT))
    e("s_mov_b32 s%d, %d" % (sDel1, SLOT))
    e("s_mov_b32 s%d, %d" % (sDel2, -2 * SLOT))
    e("s_mov_b32 s%d, 10" % sCnt)
    for s in pre: e(s)
    def with_bar(body):
        body = list(body)
        bar = ["s_waitcnt vmcnt(0)"] + ([] if opt.nobar else ["s_barrier"])
        if opt.barpos:
            idx = [i for i, l in enumerate(body) if l.startswith("v_mfma")][-opt.barpos]
            return body[:idx + 1] + bar + body[idx + 1:]
        return body + bar
    s0 = with_bar(steps[0])
    idx = [i for i, l in enumerate(s0) if l.startswith("v_mfma")][-3 * (opt.D + 2)]
    s0 = s0[:idx + 1] + ["s_waitcnt vmcnt(12)", "s_barrier"] + s0[idx + 1:]
    for s in s0: e(s)
    st("step0")
    for s in with_bar(steps[1]): e(s)
    out.append(".p2align 6")
    lab("L_loop_%s" % tag)
    for u in range(opt.unroll):
        for s in with_bar(steps[2]): e(s)
    e("s_cbranch_scc1 L_loop_%s" % tag)
    for s in with_bar(steps[10]): e(s)
    for s in steps[11]: e(s)
    st("loop")
    epi_scalars(L)
    for s in steps[12]: e(s)
    st("p24")
    epilogue(L, steps[13:16] if TM else None)

RED = SLOT
STG = 2 * SLOT
vG = vH
vWA = vA1
vRd = vA1 + 2
vSt = vA1 + 3
vX0 = vB1 + 48
def gam(L, m):
    if (opt.tm >> L) & 1 and m >= 3: return vB1 + 72 + 8 * (m - 3)
    return vG + 8 * m
def unp_reg(L, t, m):
    if (opt.tm >> L) & 1:
        if t == 0 and 2 <= m <= 4: return vX0 + 8 * (m - 2)
        if t == 2: return (vX0 + 8 * m) if m < 3 else (vH + 24 + 8 * (m - 3))
        return None
    return vX0 + 8 * (m - 2) if (t == 0 and m >= 2) else None
def unpack_t2():
    ops = []
    for m in range(6):
        src = res_dst(2, m); base = int(src[2:src.index(":")]); d = unp_reg(0, 2, m)
        if src[0] == "a":
            for k in range(4): ops.append("v_accvgpr_read_b32 v%d, a%d" % (d + 2 * k + 1, base + k))
            for k in range(4):
                ops += ["v_lshlrev_b32 v%d, 16, v%d" % (d + 2 * k, d + 2 * k + 1), "v_and_b32 v%d, 0xffff0000, v%d" % (d + 2 * k + 1, d + 2 * k + 1)]
        else:
            for k in range(4):
                ops += ["v_lshlrev_b32 v%d, 16, v%d" % (d + 2 * k, base + k), "v_and_b32 v%d, 0xffff0000, v%d" % (d + 2 * k + 1, base + k)]
    return ops
def epi_prep(L):
    xd = ["ds_read_b128 %s, v%d offset:%d" % (vr(gam(L, ct // 2) + 4 * (ct % 2), 4), vTab, TAB_G - TAB_B2 + (ct // 2) * 128 + (ct % 2) * 16) for ct in range(12)]
    xv23 = {}
    if L:
        for ct in range(12):
            xv23[(23, ct + 2) if ct < 10 else (24, 2 * (ct - 10) + 2)] = "ds_write_b128 v%d, %s offset:%d" % (vTmp + 1, ar(144 + 4 * ct, 4), ct * 1024)
    t0, t1 = vAb + 2, vAb + 3
    xv = ["v_and_b32 v%d, 15, v%d" % (t0, vLane), "v_lshrrev_b32 v%d, 4, v%d" % (t1, vLane),
          "v_lshl_add_u32 v%d, v%d, 7, s%d" % (vWA, t0, sT2), "v_and_b32 v%d, 7, v%d" % (t0, t0),
          "v_xor_b32 v%d, v%d, v%d" % (t1, t0, t1), "v_lshl_add_u32 v%d, v%d, 4, v%d" % (vWA, t1, vWA),
          "v_xor_b32 v%d, 64, v%d" % (vWA + 1, vWA),
          "v_lshrrev_b32 v%d, 3, v%d" % (t1, vLane), "v_xor_b32 v%d, v%d, v%d" % (vRd, t1, vLane),
          "v_lshl_add_u32 v%d, v%d, 4, s%d" % (vRd, vRd, sT2),
          "v_mul_u32_u24 v%d, 384, v%d" % (t1, t1), "v_lshl_add_u32 v%d, v%d, 4, v%d" % (vSt, t0, t1),
          "v_add_u32 v%d, s%d, v%d" % (vSt, sT1, vSt)]
    for k in range(12 if ((opt.tm >> L) & 1) else 16):
        src = (vR23 + k) if k < 8 else (vR45 + k - 8)
        xv += ["v_lshlrev_b32 v%d, 16, v%d" % (vX0 + 2 * k, src), "v_and_b32 v%d, 0xffff0000, v%d" % (vX0 + 2 * k + 1, src)]
    return xd, xv23, xv

def epi_scalars(L):
    e("s_mul_i32 s%d, s%d, %d" % (sT1, sWave, 3 * ROWB))
    e("s_add_u32 s%d, s%d, s%d" % (sT1, sT1, sBase))
    e("s_mul_i32 s%d, s%d, 12288" % (sT2, sWave))
    e("s_add_u32 s%d, s%d, %d" % (sT3, sT2, RED))
    e("s_add_u32 s%d, s%d, %d" % (sT2, sT2, STG if L else RED))
    assert STG % 128 == 0 and RED % 128 == 0
    if L:
        e("v_lshlrev_b32 v%d, 4, v%d" % (vTmp, vLane))
        e("v_add_u32 v%d, s%d, v%d" % (vTmp + 1, sT3, vTmp))

def epi_group(acc_regs, gam, xr, dst, tmp, unpacked=False):
    if not unpacked:
        for k in range(4):
            e("v_lshlrev_b32 v%d, 16, v%d" % (tmp + 2 * k, xr + k))
            e("v_and_b32 v%d, 0xffff0000, v%d" % (tmp + 2 * k + 1, xr + k))
    for k in range(4):
        e("v_pk_fma_f32 %s, %s, %s, %s" % (vr(tmp + 2 * k, 2), vr(acc_regs + 2 * k, 2), vr(gam + 2 * k, 2), vr(tmp + 2 * k, 2)))
    for k in range(4):
        e("v_cvt_pk_bf16_f32 v%d, v%d, v%d" % (dst + k, tmp + 2 * k, tmp + 2 * k + 1))

def epilogue(L, tmsteps):
    tag = "b%d" % L
    if not tmsteps: e("s_waitcnt lgkmcnt(0)")
    vAc = vB1; vTm = vB1 + 16; vXs = vB1 + 32; vO = vB1 + 40
    vLin = (vHL if L else vRL) if tmsteps else vP
    if tmsteps:
        for l in tmsteps[0]: e(l)
    if L:
        if tmsteps: e("s_waitcnt lgkmcnt(0)")
        e("s_barrier")
        e("s_lshl_b32 s%d, s%d, 6" % (sT1, sWave))
        e("s_add_u32 s%d, s%d, %d" % (sT1, sT1, 12 * ROWB))
        e("s_lshl_b32 s%d, s%d, 11" % (sT2, sWave))
        e("s_add_u32 s%d, s%d, %d" % (sT2, sT2, RED))
        e("v_add_u32 v%d, s%d, v%d" % (vTmp, sT2, vTmp))
        e("s_lshl_b32 s%d, s%d, 7" % (sT2, sWave))
        e("v_add_u32 v%d, s%d, v%d" % (vTmp + 1, sT2, vTab))
        lregs = [vBias, vT, vHL, vB1 + 80]; lgam = vB1 + 88
        if tmsteps: lregs = [vBias, vT, vH + 24, vH + 32]; lgam = vH + 40
        def lreads(half):
            for w in range(4):
                for o in range(2):
                    e("ds_read_b128 %s, v%d offset:%d" % (vr(lregs[w] + 4 * o, 4), vTmp, w * 12288 + half * 8192 + o * 1024))
            for o in range(2):
                e("ds_read_b128 %s, v%d offset:%d" % (vr(lgam + 4 * o, 4), vTmp + 1, TAB_G - TAB_B2 + half * 512 + o * 16))
        def lfinish(half):
            r = lregs
            for k in range(0, 8, 2):
                e("v_pk_add_f32 %s, %s, %s" % (vr(r[0] + k, 2), vr(r[0] + k, 2), vr(r[1] + k, 2)))
                e("v_pk_add_f32 %s, %s, %s" % (vr(r[2] + k, 2), vr(r[2] + k, 2), vr(r[3] + k, 2)))
            for k in range(0, 8, 2):
                e("v_pk_add_f32 %s, %s, %s" % (vr(r[0] + k, 2), vr(r[0] + k, 2), vr(r[2] + k, 2)))
            xr = vRL + 4 * half
            epi_group(r[0], lgam, xr, xr, r[1])
            e("buffer_store_dwordx4 %s, v%d, %s, s%d offen offset:%d%s" % (vr(xr, 4), vOut, sr(S_O, 4), sT1, half * 256, OPOL))
        if not tmsteps: lreads(0)
    nL = 6 if tmsteps else 0
    st("gam")
    e("s_mov_b32 s%d, %d" % (sT0, ROWB))
    e("s_mov_b32 s%d, %d" % (sSo, 2 * ROWB))
    if not L:
        e("s_sub_u32 s%d, s%d, s%d" % (sT3, sNrows, sWave))
        e("s_cmp_eq_u32 s%d, 8" % sT3)
        e("s_cselect_b32 s%d, 0x40000000, s%d" % (sSo, sSo))
    def store(u, k):
        t, a = u // 3, u % 3
        e("buffer_store_dwordx4 %s, v%d, %s, %s offen offset:%d%s" % (vr(vLin + 8 * (u % 2) + 4 * k, 4), vSt, sr(S_O, 4),
                                                                     ["0", "s%d" % sT0, "s%d" % sSo][t], a * 128 + k * 3072, OPOL))
    n = 0
    for t in range(3):
        if tmsteps and t > 0:
            body = list(tmsteps[t])
            if t > 0:
                ix = [i for i, l in enumerate(body) if l.startswith("s_waitcnt")][opt.D]
                body = body[:ix + 1] + capture(store, 3 * t - 1, 0) + capture(store, 3 * t - 1, 1) + body[ix + 1:]
            for l in body: e(l)
            if L and t == 1: lreads(0)
        for m in range(6):
            u = 3 * t + m // 2
            buf = (u % 4) * 2048
            ac = vAc + 8 * (n % 2); tm = vTm + 8 * (n % 2); o = vO + 4 * (n % 2)
            for k in range(8): e("v_accvgpr_read_b32 v%d, a%d" % (ac + k, 48 * t + 8 * m + k))
            src = res_dst(t, m)
            base = int(src[2:src.index(":")])
            unp = unp_reg(L, t, m) is not None
            if unp: tm = unp_reg(L, t, m); xr = None
            elif src[0] == "a":
                xr = vXs + 4 * (n % 2)
                for k in range(4): e("v_accvgpr_read_b32 v%d, a%d" % (xr + k, base + k))
            else: xr = base
            epi_group(ac, gam(L, m), xr, o, tm, unp)
            if u > 0 and not (tmsteps and m < 2):
                if m % 2 == 0: e("s_waitcnt lgkmcnt(0)")
                store(u - 1, m % 2)
            e("ds_write_b128 v%d, %s offset:%d" % (vWA + m % 2, vr(o, 4), buf))
            if m % 2 == 1:
                for k in range(2): e("ds_read_b128 %s, v%d offset:%d" % (vr(vLin + 8 * (u % 2) + 4 * k, 4), vRd, buf + k * 1024))
            n += 1
            if L and n == nL + 1:
                e("s_waitcnt lgkmcnt(1)")
                lfinish(0)
                lreads(1)
            if L and n == nL + 3:
                e("s_cmp_ge_u32 s%d, 2" % sWave)
                e("s_cbranch_scc1 L_done_%s" % tag)
                lfinish(1)
                lab("L_done_%s" % tag)
        st("t%d" % t)
    e("s_waitcnt lgkmcnt(0)")
    for k in range(2): store(8, k)
    if opt.stamps:
        st("epi")
        e("s_waitcnt vmcnt(0)")
        st("drain")
        e("s_waitcnt lgkmcnt(0)")
        if opt.dbg:
            srd(S_T, 8, 64)
            e("v_mov_b32 v2, 0")
            for i in range(len(SSETS[opt.sset])):
                e("s_sub_u32 s%d, s%d, s%d" % (sT0, sStamp + 2 * i, sStamp))
                e("v_writelane_b32 v2, s%d, %d" % (sT0, i))
            e("v_lshlrev_b32 v3, 2, v0")
            e("buffer_atomic_umax v2, v3, %s, 0 offen" % sr(S_T, 4))
            e("s_endpgm")
            return
        srd(S_T, 9, 1 << 20)
        e("s_lshl_b32 s%d, s2, 2" % sT0)
        e("s_add_u32 s%d, s%d, s%d" % (sT0, sT0, sWave))
        e("s_lshl_b32 s%d, s%d, 6" % (sT0, sT0))
        e("v_mov_b32 v2, 0")
        for i in range(len(SSETS[opt.sset])): e("v_writelane_b32 v2, s%d, %d" % (sStamp + 2 * i, i))
        out.append("; STAMPNAMES " + " ".join(SSETS[opt.sset]))
        e("v_writelane_b32 v2, s%d, 11" % sNrows)
        e("v_lshlrev_b32 v3, 2, v%d" % vLane)
        e("v_add_u32 v3, s%d, v3" % sT0)
        e("v_cmp_gt_u32 vcc, 16, v%d" % vLane)
        e("s_and_saveexec_b64 %s, vcc" % sr(sEx, 2))
        e("buffer_store_dword v2, v3, %s, 0 offen" % sr(S_T, 4))
    e("s_endpgm")

import copy
vm = VM()
head()
vm0 = vm
for L in (1, 0):
    vm = copy.deepcopy(vm0)
    lab("L_body%d" % L)
    if not L and opt.prio == 3:
        e("s_bitcmp1_b32 s%d, 24" % (sTb + 1))
        e("s_cbranch_scc1 L_defer")
        early(L, False, True)
        pend = [t for t, _ in vm.pending]
        e("s_branch L_join")
        lab("L_defer")
        vm = copy.deepcopy(vm0)
        early(L, True, True)
        assert pend == [t for t, _ in vm.pending]
        lab("L_join")
    else:
        early(L, (not L) and opt.prio == 2)
    prologue(L)
    main_part(L)
lab("L_exit")
e("s_endpgm")
out.append(".p2align 3")
out.append(".type L_wgtab,@object")
lab("L_wgtab")
for a, b in wg_table(): e(".long 0x%08x, 0x%08x" % (a, b))
out.append(".size L_wgtab, %d" % (NWG * 8))

ref = open("cdna_kernels/%s.s.ref" % NAME).read().split("\n")
hdr = [l for l in ref if l.startswith(";") and "@launch" not in l]
txt = "\n".join(hdr) + "\n; @launch grid=(%d,1,1) block=(256,1,1) lds=%d\n" % (NWG, LDS_SIZE)
txt += """.amdgcn_target "amdgcn-amd-amdhsa--gfx950"
.text
.globl %s_kernel
.p2align 8
.type %s_kernel,@function
%s_kernel:
""" % (NAME, NAME, NAME)
txt += "\n".join(out).replace("PF_LIM", "L_exit-L_pf-0x8000") + "\n"
txt += """.section .rodata,"a"
.p2align 6
.amdhsa_kernel %s_kernel
  .amdhsa_next_free_vgpr 512
  .amdhsa_next_free_sgpr 102
  .amdhsa_accum_offset 256
  .amdhsa_group_segment_fixed_size 0
  .amdhsa_kernarg_size 80
  .amdhsa_user_sgpr_count 2
  .amdhsa_user_sgpr_kernarg_segment_ptr 1
  .amdhsa_system_sgpr_workgroup_id_x 1
.end_amdhsa_kernel
""" % NAME
dst = [a for a in sys.argv[1:] if "=" not in a]
open(dst[0] if dst else "cdna_kernels/%s.s" % NAME, "w").write(txt)
```

```python
import math, struct, sys

NAME = "standalone__modern_conv_block_convnext__vision"
def f2u(f): return struct.unpack("<I", struct.pack("<f", f))[0]
def f2h(f): return struct.unpack("<H", struct.pack("<e", f))[0]

class Opt:
    gelu = 2
    stamps = 0
    D = 4
    R = 6
    xnt = 0
    sset = 0
    dsp = 1
    nobar = 0
    unroll = 2
    e64 = 0
    barpos = 0
    dist = 12
    prio = 3
    tm = 1
    odef = 2
    wpol = 0
    kb = 0
    mg = 1
    c0 = 4
    w0first = 0
    map = 11
    fast = 1
    gap = 12
    dbg = 0
    pe1 = 6
    pf = 1
    ont = 2
opt = Opt()
for a in sys.argv[1:]:
    if "=" in a:
        k, v = a.split("="); assert hasattr(opt, k), k; setattr(opt, k, int(v))

C0 = 2.0 * math.sqrt(2.0 / math.pi) * math.log2(math.e)
SA = (C0 * 0.044715) ** (1.0 / 3.0)
KK = C0 / SA
if opt.gelu == 2:
    KK = struct.unpack("<e", struct.pack("<e", KK))[0]
    SA = C0 / KK

XBYTES = 224 * 224 * 384
ROWB = 86016
SLOT = 49408
XB = SLOT
W2E = 6160
PL = 34816
PR = 2304
TAB_B1 = XB + 3 * PL
TAB_B2 = TAB_B1 + 3072
TAB_G = TAB_B2 + 1024
DUMMY = TAB_G + 1024
IMG = 24576
JS = 1936
XCH = 40960
XST = XCH + 6144
LDS_SIZE = 163840
OOB = 0x40000
XPOL = " nt" if opt.xnt else ""
WPOL = ["", " nt", " sc1", " sc0"][opt.wpol]
OPOL = ["", " nt", " sc1", " sc0 sc1"][opt.ont]
assert DUMMY + 1280 <= LDS_SIZE and IMG + 8 * JS <= XCH and XST + 1024 <= SLOT

S_X = 8; S_W1 = 12; S_W2 = 16; S_O = 20; S_T = 24
sWave = 28; sBase = 29; sNrows = 31
sK = 32; sDelta = 33; sW1off = 35; sW2off = 36; sCnt = 37
sT0 = 38; sT1 = 39; sT2 = 40; sT3 = 41
sEx = 42
sC1 = 44; sM1 = 45; sM2 = 46; sSo = 47; sDel1 = 48; sDel2 = 49
sXm7 = 30; sXm1 = 50; sXm8 = 51; sXs8 = 52; sQlo = 53; sTb = 54; sQn = 56; sC2 = 57; sLut = 58
sPtr = 60
S_B = 60; S_G = 64
sStamp = 80

vLane = 1
vA1 = 2; vA2 = 6; vAb = 10
vD1 = 14; vD2 = 15; vOut = 16; vTab = 17; vTmp = 18
vBias = 20
vT = 28
vRL = 36
vHL = 44; vPL = 48
vP = 52
vH = 76
vR45 = 124
vR23 = 148
vB1 = 160
aRing = 192
aRes = 216
vLW = 19
vLY = 20
vRA = 32; vLF = 34; vLG = 35
vS = 40
vIA = 48
vFb = 52
vLS = 72
vYt = [160, 76, 208]
vGb = 124
vF = 140; vGa = 144
vX = 148
vIdx = 157; vLSw = 158; vLSr = 159
aLD = 144; aFb = 180; aGb = 200
vDW = 76; vQ = 80; vTB = 96; vU = 116

out = []
def e(s): out.append("    " + s)
def lab(s): out.append(s + ":")
def cm(s): out.append("    ; " + s)
SSETS = [["start", "issued", "diag", "conv0", "conv1", "conv2", "conv3", "step0", "loop", "epi", "drain"],
         ["start", "loop", "p24", "gam", "t0", "t1", "t2", "epi", "drain"],
         ["start", "kernarg", "issued", "setup", "dwin", "img", "bar", "diag", "x0in", "mf0", "conv0"],
         ["start", "diag", "x0in", "mf0", "x1in", "mf1", "x2in", "mf2", "red", "conv3", "step0"],
         ["start", "x0in", "mf0", "conv0", "mf1", "conv1", "mf2", "conv2", "conv3", "step0", "drain"]]
def st(name):
    names = SSETS[opt.sset]
    if opt.stamps and name in names: stamp(names.index(name))
def stamp(i):
    if opt.stamps: e("%s s[%d:%d]" % ("s_memrealtime" if opt.stamps == 1 else "s_memtime", sStamp + 2 * i, sStamp + 2 * i + 1))
def vr(b, n): return "v[%d:%d]" % (b, b + n - 1)
def ar(b, n): return "a[%d:%d]" % (b, b + n - 1)
def sr(b, n): return "s[%d:%d]" % (b, b + n - 1)
def srd(s, ptr_slot, nbytes):
    e("s_mov_b32 s%d, s%d" % (s, sPtr + 2 * ptr_slot))
    e("s_and_b32 s%d, s%d, 0xffff" % (s + 1, sPtr + 2 * ptr_slot + 1))
    e("s_mov_b32 s%d, %d" % (s + 2, nbytes))
    e("s_mov_b32 s%d, 0x20000" % (s + 3))

def capture(fn, *args):
    global out
    save = out; out = []
    fn(*args)
    got = [l.strip() for l in out if not l.strip().startswith(";")]
    out = save
    return got

class VM:
    def __init__(self): self.issued = []; self.pending = []; self.cap = False
    def issue_now(self, tag, lines):
        for l in lines: e(l)
        self.issued.append(tag)
    def queue(self, tag, lines): self.pending.append((tag, lines))
    def pop(self, n=1):
        for _ in range(n):
            if self.pending and not (self.cap and self.pending[0][0] == ("x", 2)):
                tag, lines = self.pending.pop(0); self.issue_now(tag, lines)
    def wait(self, pred):
        while any(pred(t) for t, _ in self.pending): self.pop()
        idx = [i for i, t in enumerate(self.issued) if pred(t)]
        e("s_waitcnt vmcnt(%d)" % (len(self.issued) - 1 - max(idx)))
vm = None

NWG = 256 if opt.map else 252
def wg_table():
    rows = []
    seen = set()
    if opt.map >= 7:
        own = {x: [] for x in range(8)}
        def deal(blocks, plan):
            for x, k in plan:
                own[x] += blocks[:k]; blocks = blocks[k:]
            assert not blocks
        band = lambda r0, h, nb: [(r0 + h * b, st_, h) for st_ in range(14) for b in range(nb)]
        if opt.map == 7:
            deal(band(0, 13, 4), [(0, 28), (2, 28)]); deal(band(52, 13, 4), [(4, 21), (1, 14), (6, 21)])
            deal(band(104, 12, 3), [(4, 11), (1, 18), (6, 11), (0, 2)]); deal(band(140, 12, 7), [(3, 32), (5, 32), (7, 32), (2, 2)])
        elif opt.map == 11:
            hs = [13, 13, 12, 13, 12, 13, 12, 13, 12, 13, 13, 12, 13, 12, 12, 12, 12, 12]
            r0 = [sum(hs[:b]) for b in range(18)]
            left = []
            for half, (xu, xl) in enumerate(((0, 4), (2, 6))):
                bl = [(r0[b], 5 * half + k, hs[b]) for b in range(13) for k in range(5)]
                own[xu] += bl[:32]; left.append(bl[32]); own[xl] += bl[33:]
            h2 = [12, 12, 12, 11, 12, 12, 12, 12, 11, 12, 12, 12, 12, 11, 12, 12, 12, 12, 11]
            right = [(sum(h2[:b]), 10 + k, h2[b]) for b in range(19) for k in range(4)]
            bottom = [(r0[b], st_, 12) for st_ in range(9, -1, -1) for b in range(13, 18)]
            deal(right + bottom + left, [(1, 32), (3, 32), (5, 32), (7, 32)])
        elif opt.map == 9:
            deal(band(0, 13, 4), [(0, 28), (2, 28)]); deal(band(52, 13, 4), [(4, 24), (1, 8), (6, 24)])
            deal(band(104, 12, 3), [(4, 7), (0, 3), (1, 24), (2, 1), (6, 7)]); deal(band(140, 12, 7), [(3, 32), (5, 32), (7, 32), (2, 2)])
        elif opt.map == 10:
            deal(band(0, 13, 4), [(0, 28), (2, 28)]); deal(band(52, 13, 4), [(4, 21), (1, 14), (6, 21)])
            deal(band(104, 12, 3), [(4, 10), (0, 4), (1, 16), (2, 2), (6, 10)]); deal(band(140, 12, 7), [(3, 32), (5, 32), (7, 32), (2, 2)])
        else:
            deal(band(0, 13, 4), [(0, 24), (1, 8), (2, 24)]); deal(band(52, 13, 4), [(4, 22), (1, 12), (6, 22)])
            deal(band(104, 12, 3), [(4, 9), (0, 7), (1, 12), (2, 5), (6, 9)]); deal(band(140, 12, 7), [(3, 32), (5, 32), (7, 32), (2, 2)])
    for wg in range(NWG):
        x, n = wg & 7, wg >> 3
        if opt.map == 0:
            idx = 63 * (x & 3) + (32 if x >= 4 else 0) + n
            h, rem = idx // 126, idx % 126
            b, strip = rem // 7, 7 * h + rem % 7
            row0 = b * 112 // 9; nrows = (b + 1) * 112 // 9 - row0
        elif opt.map >= 7:
            if n >= len(own[x]):
                rows.append((0, 0)); continue
            row0, strip, nrows = own[x][n]
        elif opt.map in (5, 6):
            h, v = (x // 2) % 2, x // 4
            ne = 3 if opt.map == 5 else 4
            no = 35 - ne
            if x % 2 == 0 and n < 28:
                strip = 7 * h + n % 7; row0 = 13 * (4 * v + n // 7); nrows = 13
            elif n >= (28 + ne if x % 2 == 0 else no):
                rows.append((0, 0)); continue
            else:
                k = (ne * v + n - 28) if x % 2 == 0 else (2 * ne + no * v + n)
                strip = 7 * h + k % 7; row0 = 104 + 12 * (k // 7); nrows = 12
        elif opt.map >= 2:
            order = {0: 0, 4: 1, 1: 2, 5: 3, 2: 0, 6: 1, 3: 2, 7: 3}
            h = 0 if x in (0, 4, 1, 5) else 1
            if opt.map == 2:
                cnt = [32, 32, 30, 32]; hs = [13, 12, 13, 13, 12, 13, 13, 12, 13, 12, 13, 12, 13, 12, 12, 12, 12, 12]
            elif opt.map == 3:
                cnt = [32, 32, 31, 31]; hs = [13, 13, 12, 13, 13, 13, 13, 12, 13, 12, 12, 13, 12, 12, 12, 12, 12, 12]
            else:
                cnt = [32, 32, 32, 30]; hs = [13, 12, 13, 13, 12, 13, 12, 13, 12, 12, 13, 12, 13, 12, 12, 13, 12, 12]
            assert sum(hs) == 224 and sum(cnt) == 126
            o = order[x]
            if n >= cnt[o]:
                rows.append((0, 0)); continue
            k = sum(cnt[:o]) + n
            strip = 7 * h + k % 7; row0 = sum(hs[:k // 7]); nrows = hs[k // 7]
        else:
            h, v = x % 2, (x % 4) // 2
            if x < 4 and n < 28:
                strip = 7 * h + n % 7; row0 = 13 * (4 * v + n // 7); nrows = 13
            elif x < 4 and n == 31:
                rows.append((0, 0)); continue
            else:
                k = (3 * v + n - 28) if x < 4 else (6 + 32 * v + n)
                strip = 7 * h + k % 7; row0 = 104 + 12 * (k // 7); nrows = 12
        for r in range(row0, row0 + nrows):
            assert (r, strip) not in seen; seen.add((r, strip))
        base = ((row0 - 1) * ROWB + strip * 6144 - 384) & 0xffffffff
        qlo = 1 if strip == 0 else 0; qn = (17 if strip == 13 else 18) - qlo
        defer = 1 if (opt.prio == 3 and nrows < 13 and (x % 2 == 0 or (n % 4) < opt.odef)) else 0
        rows.append((base, qlo | qn << 8 | nrows << 16 | defer << 24))
    assert len(seen) == 224 * 14
    return rows

def dma_w(i, kind):
    if kind == 1:
        return (["s_add_u32 m0, s%d, %d" % (sM1, i * 1024), "s_add_u32 s%d, s%d, %d" % (sSo, sW1off, i * 12288)],
                "buffer_load_dwordx4 v%d, %s, s%d offen%s lds" % (vD1, sr(S_W1, 4), sSo, WPOL))
    oo, t = i // 3, i % 3
    return (["s_add_u32 m0, s%d, %d" % (sM2, oo * 3080 + t * 1024), "s_add_u32 s%d, s%d, %d" % (sSo, sW2off, oo * 1536 + t * 128)],
            "buffer_load_dwordx4 v%d, %s, s%d offen%s lds" % (vD2, sr(S_W2, 4), sSo, WPOL))

def set_dma_slot(slot_base_imm):
    e("s_mul_i32 s%d, s%d, 6144" % (sM1, sWave))
    e("s_add_u32 s%d, s%d, %d" % (sM1, sM1, slot_base_imm))
    e("s_mul_i32 s%d, s%d, %d" % (sM2, sWave, W2E))
    e("s_add_u32 s%d, s%d, %d" % (sM2, sM2, slot_base_imm + 24576))


def x_item(a, i):
    off = (" offset:%d" % (128 * a)) if a else ""
    j, sec = i // 2, i % 2
    if i < 7: m = ["s_add_u32 m0, s%d, %d" % (sXm1, a * (PL - 128) + j * 9216 + sec * 4096), "s_nop 0"]
    else:
        r = sXm7 if i == 7 else sXm8
        m = ["s_mov_b32 m0, s%d" % r, "s_add_u32 s%d, s%d, s%d" % (r, r, sXs8)]
    return (("x", a), m + ["buffer_load_dwordx4 v%d, %s, 0 offen%s%s lds" % (vX + i, sr(S_X, 4), off, XPOL)])

def x_voff_a(i):
    n, r, q, f = vU, vU + 1, vU + 2 + min(i, 2), vTB + 10
    l = []
    if i == 0: l += ["v_lshrrev_b32 v%d, 3, v0" % n, "v_and_b32 v%d, 7, v0" % (vU + 5)]
    elif i == 1: l += ["v_add_u32 v%d, 32, v%d" % (n, n)]
    else: l += ["v_bfe_u32 v%d, v0, 3, 3" % n, "v_add_u32 v%d, 64, v%d" % (n, n)]
    l += ["v_mul_u32_u24 v%d, 3641, v%d" % (r, n), "v_lshrrev_b32 v%d, 16, v%d" % (r, r),
          "v_mul_u32_u24 v%d, 18, v%d" % (q, r), "v_sub_u32 v%d, v%d, v%d" % (q, n, q),
          "v_bfe_u32 v%d, v%d, 1, 3" % (f, q), "v_xor_b32 v%d, v%d, v%d" % (f, f, vU + 5),
          "v_mul_u32_u24 v%d, %d, v%d" % (r, ROWB - 18 * 384, r),
          "v_mad_u32_u24 v%d, v%d, s%d, v%d" % (r, n, sC1, r),
          "v_lshl_add_u32 v%d, v%d, 4, v%d" % (vX + i, f, r)]
    return l
def x_voff_b(i, base):
    q = vU + 2 + min(i, 2)
    return ["v_subrev_u32 v%d, s%d, v%d" % (q, sQlo, q), "v_cmp_gt_u32 vcc, s%d, v%d" % (sQn, q),
            "v_add_u32 v%d, s%d, v%d" % (vX + i, base, vX + i), "s_nop 0",
            "v_cndmask_b32 v%d, v%d, v%d, vcc" % (vX + i, vU + 6, vX + i)]
for n in range(288): assert (n * 3641) >> 16 == n // 18

def head():
    e("s_cmp_ge_u32 s2, %d" % NWG)
    e("s_cbranch_scc1 L_exit")
    st("start")
    e("s_load_dwordx2 %s, s[0:1], 0" % sr(S_X, 2))
    e("s_load_dwordx2 %s, s[0:1], 8" % sr(S_T, 2))
    e("s_getpc_b64 %s" % sr(sEx, 2))
    lab("L_pf")
    e("s_lshl_b32 s%d, s2, 3" % sT0)
    e("s_add_u32 s%d, s%d, L_wgtab-L_pf" % (sT0, sT0))
    e("s_load_dwordx2 %s, %s, s%d" % (sr(sTb, 2), sr(sEx, 2), sT0))
    if opt.pf:
        e("s_lshr_b32 s%d, s2, 3" % sT3)
        e("s_lshl_b32 s%d, s%d, 12" % (sT3, sT3))
        e("v_lshrrev_b32 v%d, 3, v0" % (vTB + 8))
        e("v_lshl_add_u32 v%d, v%d, 7, s%d" % (vTB + 8, vTB + 8, sT3))
        e("v_min_u32 v%d, L_exit-L_pf, v%d" % (vTB + 8, vTB + 8))
        vm.issue_now("dw", ["global_load_dword v%d, v%d, %s" % (vTB + 6, vTB + 8, sr(sEx, 2))])
    e("v_lshrrev_b32 v%d, 6, v0" % vS)
    e("s_movk_i32 s%d, 384" % sC1)
    e("v_readfirstlane_b32 s%d, v%d" % (sWave, vS))
    for l in x_voff_a(0): e(l)
    e("v_bfrev_b32 v%d, 2" % (vU + 6))
    e("v_lshlrev_b32 v%d, 4, v0" % vTmp)
    e("s_mov_b32 s%d, %d" % (S_X + 2, XBYTES))
    e("s_mov_b32 s%d, 0x20000" % (S_X + 3))
    e("s_movk_i32 s%d, 3456" % (S_T + 2))
    e("s_mov_b32 s%d, s%d" % (S_T + 3, S_X + 3))
    e("s_lshl_b32 s%d, s%d, 10" % (sXm1, sWave))
    e("s_add_u32 s%d, s%d, %d" % (sXm1, sXm1, XB))
    e("s_waitcnt lgkmcnt(0)")
    st("kernarg")
    vm.issue_now("dw", ["buffer_load_dwordx4 %s, v%d, %s, 0 offen" % (vr(vDW, 4), vTmp, sr(S_T, 4))])
    e("s_load_dwordx2 %s, s[0:1], 16" % sr(S_W1, 2))
    e("s_load_dwordx2 %s, s[0:1], 32" % sr(S_W2, 2))
    e("s_load_dwordx2 %s, s[0:1], 56" % sr(S_O, 2))
    e("s_load_dwordx2 %s, s[0:1], 24" % sr(S_B, 2))
    e("s_load_dwordx4 %s, s[0:1], 40" % sr(S_G, 4))
    if opt.stamps: e("s_load_dwordx4 %s, s[0:1], 64" % sr(sPtr + 16, 4))
    e("s_and_b32 s%d, s%d, 0xff" % (sQlo, sTb + 1))
    e("s_bfe_u32 s%d, s%d, 0x80008" % (sQn, sTb + 1))
    e("s_bfe_u32 s%d, s%d, 0x80010" % (sNrows, sTb + 1))
    if opt.map == 11:
        e("s_cmp_lt_u32 s%d, 13" % sNrows)
        e("s_cbranch_scc1 L_body0")
    else:
        e("s_cmp_eq_u32 s%d, 12" % sNrows)
        e("s_cbranch_scc1 L_body0")
        if opt.map:
            e("s_cmp_eq_u32 s%d, 0" % sNrows)
            e("s_cbranch_scc1 L_exit")

def issue_plane0(L, filler):
    add = lambda i: ["v_add_u32 v%d, s%d, v%d" % (vX + i, sC2, vX + i - 2)]
    va1 = x_voff_a(1); va8 = x_voff_a(8)
    sc = ["s_add_u32 s%d, s%d, %d" % (sXm7, sXm1, 3 * 9216 + 4096), "s_mul_i32 s%d, s%d, 9216" % (sXm8, sWave),
          "s_add_u32 s%d, s%d, %d" % (sXm8, sXm8, XB + 8192), "s_mul_i32 s%d, s%d, s%d" % (sT2, sWave, sC2),
          "s_add_u32 s%d, s%d, s%d" % (sT2, sT2, sTb), "s_cmp_lt_u32 s%d, 3" % sWave,
          "s_cselect_b32 s%d, s%d, %d" % (sXm7, sXm7, DUMMY), "s_cselect_b32 s%d, s%d, %d" % (sXm8, sXm8, DUMMY),
          "s_cselect_b32 s%d, %d, 0" % (sXs8, PL - 128), "s_cselect_b32 s%d, s%d, 0x40000000" % (sT2, sT2)]
    seq = [(x_voff_b(0, sTb), 0), (["s_mov_b32 s%d, %d" % (sC2, 4 * ROWB)] + add(2), 2), (add(4) + va1, 4),
           (add(6) + x_voff_b(1, sTb), 6), (sc, 1), (add(3) + va8, 3), (add(5) + x_voff_b(8, sT2), 5),
           (["s_cmp_lt_u32 s%d, %d" % (sWave, 3 if L else 1), "s_cselect_b32 s%d, s%d, 0x40000000" % (sT3, sC2),
             "v_add_u32 v%d, s%d, v%d" % (vX + 7, sT3, vX + 5)], 7), ([], 8)]
    for n, (pre, i) in enumerate(seq):
        for l in pre: e(l)
        k = len(pre)
        while n >= 2 and k < opt.gap and filler and "vcc" not in filler[0]:
            e(filler.pop(0)); k += 1
        vm.issue_now(*x_item(0, i))
    for a in (1, 2):
        for i in range(9): vm.queue(*x_item(a, i))

def early(L, defer=False, cap=False):
    vm.queue("tab", ["s_waitcnt lgkmcnt(0)", "s_cmp_eq_u32 s%d, 3" % sWave, "s_cselect_b64 %s, %s, %s" % (sr(S_B, 2), sr(S_G, 2), sr(S_B, 2)),
                     "s_movk_i32 s%d, 1536" % (S_B + 2), "s_cselect_b32 s%d, 384, s%d" % (S_B + 2, S_B + 2), "s_mov_b32 s%d, s%d" % (S_B + 3, S_X + 3),
                     "s_cselect_b32 s%d, 63, -1" % sT3, "v_and_b32 v%d, s%d, v0" % (vTB + 7, sT3), "v_lshlrev_b32 v%d, 3, v%d" % (vTB + 7, vTB + 7),
                     "buffer_load_dwordx2 %s, v%d, %s, 0 offen" % (vr(vTB, 2), vTB + 7, sr(S_B, 4))])
    vm.queue("tab", ["s_mov_b64 %s, %s" % (sr(S_G, 2), sr(S_G + 2, 2)), "s_movk_i32 s%d, 384" % (S_G + 2), "s_mov_b32 s%d, s%d" % (S_G + 3, S_X + 3),
                     "v_lshlrev_b32 v%d, 3, v%d" % (vTB + 7, vLane),
                     "buffer_load_dwordx2 %s, v%d, %s, 0 offen" % (vr(vTB + 2, 2), vTB + 7, sr(S_G, 4))])
    fill = capture(setup_early) + ["v_mov_b32 v%d, 0" % (vFb + k) for k in range(4)]
    vm.cap = cap
    if not defer: issue_plane0(L, fill)
    e("s_add_u32 s%d, s%d, %d" % (sBase, sTb, ROWB + 384))
    st("issued")
    build_diag(L, fill, defer)
    vm.cap = False

px, g_, gl, gh = vS + 4, vS + 5, vS + 6, vS + 7
def setup_early():
    t0, t1, t2 = vS, vS + 1, vS + 2
    e("v_and_b32 v%d, 63, v0" % vLane)
    for j in range(8): e("v_mov_b32 v%d, 0" % (vQ + 2 * j + 1 - j // 4))
    cm("image write address: tap = tid/24 -> (pair, half)")
    code = [0, 1, 4, 2, 3, 5, 8, 9, 7, 6, 15]
    lut = sum(c << (4 * i) for i, c in enumerate(code))
    e("s_mov_b32 s%d, 0x%08x" % (sLut, lut & 0xffffffff))
    e("s_mov_b32 s%d, 0x%08x" % (sLut + 1, lut >> 32))
    e("v_mul_u32_u24 v%d, 2731, v0" % t0)
    e("v_lshrrev_b32 v%d, 16, v%d" % (t0, t0))
    e("v_mul_u32_u24 v%d, 24, v%d" % (t1, t0))
    e("v_sub_u32 v%d, v0, v%d" % (t1, t1))
    e("v_lshlrev_b32 v%d, 2, v%d" % (t0, t0))
    e("v_lshrrev_b64 %s, v%d, %s" % (vr(t2, 2), t0, sr(sLut, 2)))
    e("v_and_b32 v%d, 1, v%d" % (t0, t2))
    e("v_lshlrev_b32 v%d, 3, v%d" % (t0, t0))
    e("v_lshl_add_u32 v%d, v%d, 4, v%d" % (t0, t1, t0))
    e("v_bfe_u32 v%d, v%d, 1, 3" % (t2, t2))
    e("v_mul_u32_u24 v%d, 384, v%d" % (t1, t2))
    e("v_cmp_gt_u32 vcc, 5, v%d" % t2)
    e("v_add_u32 v%d, v%d, v%d" % (t0, t0, t1))
    e("v_mov_b32 v%d, %d" % (t1, OOB))
    e("v_cndmask_b32 v%d, v%d, v%d, vcc" % (vU + 7, t1, t0))
    e("v_and_b32 v%d, 15, v%d" % (px, vLane))
    e("v_lshrrev_b32 v%d, 4, v%d" % (g_, vLane))
    e("v_and_b32 v%d, 1, v%d" % (gl, g_))
    e("v_lshrrev_b32 v%d, 1, v%d" % (gh, g_))
    cm("image read addresses (invalid lanes out of range -> read 0)")
    e("v_lshrrev_b32 v%d, 3, v%d" % (t0, px))
    e("v_xor_b32 v%d, v%d, v%d" % (t0, t0, gl))
    e("v_mul_u32_u24 v%d, %d, v%d" % (t0, OOB, t0))
    e("v_lshl_add_u32 v%d, v%d, 4, v%d" % (t0, gl, t0))
    e("v_and_b32 v%d, 7, v%d" % (t1, px))
    e("v_mul_u32_u24 v%d, %d, v%d" % (t1, JS, t1))
    e("v_add_u32 v%d, v%d, v%d" % (t0, t0, t1))
    e("v_mul_u32_u24 v%d, 384, v%d" % (t1, gh))
    e("v_add_u32 v%d, v%d, v%d" % (vIA, t0, t1))
    e("v_xor_b32 v%d, 1, v%d" % (t1, gh))
    e("v_mul_u32_u24 v%d, %d, v%d" % (t1, OOB, t1))
    e("v_add_u32 v%d, v%d, v%d" % (vIA + 1, t0, t1))
    e("s_lshl_b32 s%d, s%d, 5" % (sT0, sWave))
    e("v_add_u32 v%d, s%d, v%d" % (vIA + 2, sT0, vIA))
    e("v_add_u32 v%d, s%d, v%d" % (vIA + 3, sT0, vIA + 1))

def setup_late():
    t0, t1, t2, t3 = vS, vS + 1, vS + 2, vS + 3
    cm("W1 dma voffset")
    e("v_lshrrev_b32 v%d, 3, v%d" % (t0, vLane))
    e("v_and_b32 v%d, 7, v%d" % (t1, vLane))
    e("v_and_b32 v%d, 6, v%d" % (t2, t0))
    e("v_xor_b32 v%d, v%d, v%d" % (t1, t1, t2))
    e("v_mul_u32_u24 v%d, 1536, v%d" % (t0, t0))
    e("v_lshl_add_u32 v%d, v%d, 4, v%d" % (vD1, t1, t0))
    e("s_mul_i32 s%d, s%d, %d" % (sT0, sWave, 48 * 1536))
    e("v_add_u32 v%d, s%d, v%d" % (vD1, sT0, vD1))
    cm("W2 dma voffset")
    e("v_bfe_u32 v%d, v%d, 2, 3" % (t0, vLane))
    e("v_and_b32 v%d, 4, v%d" % (t1, t0))
    e("v_add_u32 v%d, v%d, v%d" % (t0, t0, t1))
    e("v_mul_u32_u24 v%d, 384, v%d" % (t0, t0))
    e("v_lshl_add_u32 v%d, v%d, 6, v%d" % (t0, gh, t0))
    e("v_and_b32 v%d, 3, v%d" % (t1, vLane))
    e("v_lshl_add_u32 v%d, v%d, 4, v%d" % (vD2, t1, t0))
    e("s_mul_i32 s%d, s%d, %d" % (sT0, sWave, 16 * 384))
    e("v_add_u32 v%d, s%d, v%d" % (vD2, sT0, vD2))
    e("s_mov_b32 s%d, %d" % (S_W1 + 2, 192 * 768 * 2))
    e("s_mov_b32 s%d, s%d" % (S_W1 + 3, S_X + 3))
    e("s_mov_b64 %s, %s" % (sr(S_W2 + 2, 2), sr(S_W1 + 2, 2)))
    e("s_mov_b64 %s, %s" % (sr(S_O + 2, 2), sr(S_X + 2, 2)))
    set_dma_slot(0)
    e("s_mov_b32 s%d, 0" % sW1off)
    cm("sparse index: every group selects (row%4, (row+1)%4)")
    e("v_add_u32 v%d, 1, v%d" % (t0, t1))
    e("v_and_b32 v%d, 3, v%d" % (t0, t0))
    e("v_lshl_add_u32 v%d, v%d, 2, v%d" % (t0, t0, t1))
    e("v_mul_u32_u24 v%d, 0x1111, v%d" % (vIdx, t0))
    cm("conv B-frag addresses")
    e("s_mul_i32 s%d, s%d, %d" % (sT0, sWave, 3 * PR))
    e("s_add_u32 s%d, s%d, %d" % (sT0, sT0, XB))
    e("s_lshl_b32 s%d, s%d, 5" % (sT1, sWave))
    for kind, dst, ldst in ((0, vF, vLF), (1, vGa, vLG), (2, vRA, None)):
        if kind == 0: e("v_add_u32 v%d, v%d, v%d" % (t0, gl, px))
        else: e("v_add_u32 v%d, %d, v%d" % (t0, 2 if kind == 1 else 1, px))
        e("v_bfe_u32 v%d, v%d, 1, 3" % (t1, t0))
        e("v_xor_b32 v%d, v%d, v%d" % (t1, t1, gh if kind < 2 else g_))
        e("v_lshlrev_b32 v%d, 7, v%d" % (t0, t0))
        e("v_lshl_add_u32 v%d, v%d, 4, v%d" % (t0, t1, t0))
        if kind == 1:
            e("v_mul_u32_u24 v%d, %d, v%d" % (t1, PR, gl))
            e("v_add_u32 v%d, v%d, v%d" % (t0, t0, t1))
        if kind == 2: e("v_add_u32 v%d, %d, v%d" % (t0, PR, t0))
        e("v_add_u32 v%d, s%d, v%d" % (dst, sT0, t0))
        if kind < 2:
            for k in range(1, 4): e("v_xor_b32 v%d, %d, v%d" % (dst + k, 32 * k, dst))
            e("v_xor_b32 v%d, s%d, v%d" % (t0, sT1, t0))
            e("v_add_u32 v%d, %d, v%d" % (ldst, XB + 12 * PR, t0))
        else:
            e("v_xor_b32 v%d, 64, v%d" % (dst + 1, dst))
    cm("L exchange addresses")
    e("s_lshr_b32 s%d, s%d, 1" % (sT0, sWave))
    e("s_lshl_b32 s%d, s%d, 10" % (sT0, sT0))
    e("s_and_b32 s%d, s%d, 1" % (sT1, sWave))
    e("s_lshl_b32 s%d, s%d, 3" % (sT1, sT1))
    e("s_add_u32 s%d, s%d, s%d" % (sT0, sT0, sT1))
    e("v_lshl_add_u32 v%d, v%d, 4, s%d" % (vLW, vLane, sT0))
    e("v_lshlrev_b32 v%d, 5, v%d" % (vLSr, px))
    e("s_lshl_b32 s%d, s%d, 2" % (sT0, sWave))
    e("v_lshl_add_u32 v%d, v%d, 4, v%d" % (vLSw, gh, vLSr))
    e("v_add_u32 v%d, s%d, v%d" % (vLSw, sT0, vLSw))
    cm("main-loop LDS addresses")
    e("v_bfe_u32 v%d, v%d, 2, 3" % (t0, vLane))
    e("v_and_b32 v%d, 3, v%d" % (t2, vLane))
    e("v_lshlrev_b32 v%d, 7, v%d" % (t3, t0))
    e("v_lshl_add_u32 v%d, v%d, 10, v%d" % (t3, gh, t3))
    e("v_lshl_add_u32 v%d, v%d, 3, v%d" % (t3, t2, t3))
    e("v_lshrrev_b32 v%d, 1, v%d" % (vA1, t0))
    e("v_xor_b32 v%d, s%d, v%d" % (vA1, sWave, vA1))
    e("v_lshl_add_u32 v%d, v%d, 5, v%d" % (vA1, vA1, t3))
    for p in range(1, 4): e("v_xor_b32 v%d, %d, v%d" % (vA1 + p, 32 * p, vA1))
    e("v_mul_u32_u24 v%d, 3080, v%d" % (t3, gl))
    e("v_lshl_add_u32 v%d, v%d, 8, v%d" % (t3, gh, t3))
    e("v_lshl_add_u32 v%d, v%d, 4, v%d" % (t3, px, t3))
    e("v_lshlrev_b32 v%d, 4, v%d" % (t2, g_))
    for p in range(4):
        e("s_xor_b32 s%d, s%d, %d" % (sT0, sWave, p))
        e("s_mul_i32 s%d, s%d, %d" % (sT1, sT0, W2E))
        e("s_add_u32 s%d, s%d, %d" % (sT1, sT1, SLOT + 24576))
        e("v_add_u32 v%d, s%d, v%d" % (vA2 + p, sT1, t3))
    assert TAB_B1 % 256 == 0
    e("s_lshl_b32 s%d, s%d, 6" % (sT0, sWave))
    e("s_add_u32 s%d, s%d, %d" % (sT0, sT0, TAB_B1))
    e("v_add_u32 v%d, s%d, v%d" % (vAb, sT0, t2))
    for p in range(1, 4): e("v_xor_b32 v%d, %d, v%d" % (vAb + p, 64 * p, vAb))
    e("v_lshlrev_b32 v%d, 5, v%d" % (vTab, g_))
    e("v_add_u32 v%d, %d, v%d" % (vTab, TAB_B2, vTab))
    e("v_mul_u32_u24 v%d, 384, v%d" % (vOut, px))
    e("v_add3_u32 v%d, v%d, v%d, s%d" % (vOut, vOut, t2, sBase))

def build_diag(L, early, defer):
    late0 = capture(setup_late)
    zs = ["v_mfma_f32_32x32x16_bf16 %s, %s, %s, 0" % (vr(b, 16), vr(vFb, 4), vr(vFb, 4)) for b in range(160, 256, 16)]
    zs += ["v_mfma_f32_16x16x32_bf16 %s, %s, %s, 0" % (vr(b, 4), vr(vFb, 4), vr(vFb, 4)) for b in range(vLY, vLY + 12, 4)]
    late = []
    for k, l in enumerate(late0):
        late.append(l)
        if k % 10 == 9 and zs: late.append(zs.pop(0))
    assert not zs
    for k, l in enumerate(early):
        e(l)
        if k % 10 == 5: vm.pop()
    cm("sparse-diagonal image")
    vm.wait(lambda t: t == "dw")
    st("dwin")
    for j in range(8):
        d = vQ + 2 * j + j // 4
        if j % 2: e("v_lshrrev_b32 v%d, 16, v%d" % (d, vDW + j // 2))
        else: e("v_and_b32 v%d, 0xffff, v%d" % (d, vDW + j // 2))
    for j in range(8):
        e("ds_write_b64 v%d, %s offset:%d" % (vU + 7, vr(vQ + 2 * j, 2), IMG + j * JS))
    for l in late[:16]: e(l)
    late = late[16:]
    vm.pop()
    st("img")
    e("s_waitcnt lgkmcnt(0)")
    e("s_barrier")
    st("bar")
    rds = []
    for cg in range(12):
        for s_, (a, off) in enumerate(((vIA, 0), (vIA, 768), (vIA + 1, 1536))):
            rds.append("ds_read_b128 %s, v%d offset:%d" % (ar(12 * cg + 4 * s_, 4), a, IMG + off + cg * 32))
    for a_ in range(3 if L else 0):
        for s_, (a, off) in enumerate(((vIA + 2, 0), (vIA + 2, 768), (vIA + 3, 1536))):
            rds.append("ds_read_b128 %s, v%d offset:%d" % (ar(aLD + 12 * a_ + 4 * s_, 4), a, IMG + off + a_ * 128))
    per = (len(late) + 8) // 9
    for f, r in enumerate(rds):
        e(r)
        if f % (len(rds) // 9) == len(rds) // 9 - 1:
            vm.pop()
            for l in late[:per // 2]: e(l)
            if L and opt.fast == 2: vm.pop()
            for l in late[per // 2:per]: e(l)
            late = late[per:]
    assert not late
    for i in range(6):
        sc, ins = dma_w(i, 1); vm.queue("w0", sc + [ins])
    vm.wait(lambda t: t == "tab")
    e("v_mfma_f32_32x32x16_bf16 %s, %s, %s, 0" % (vr(76, 16), vr(vFb, 4), vr(vFb, 4)))
    tables()
    if L:
        e("s_mul_i32 s%d, s%d, %d" % (sT0, sWave, -3 * PR))
        e("s_add_u32 s%d, s%d, %d" % (sT0, sT0, 12 * PR))
        e("s_lshr_b32 s%d, s%d, 1" % (sT1, sWave))
        e("s_mul_i32 s%d, s%d, %d" % (sT1, sT1, PL))
        e("s_add_u32 s%d, s%d, s%d" % (sT0, sT0, sT1))
        e("s_and_b32 s%d, s%d, 1" % (sT1, sWave))
        e("s_lshl_b32 s%d, s%d, 6" % (sT1, sT1))
        e("v_xor_b32 v%d, s%d, v%d" % (vTmp, sT1, vRA))
        e("v_add_u32 v%d, s%d, v%d" % (vTmp, sT0, vTmp))
    if defer:
        w0 = vm.pending; vm.pending = []
        issue_plane0(L, [])
        if opt.w0first: vm.wait(lambda t: t == ("x", 0))
        vm.pending += w0
    while any(tg == ("x", 1) for tg, _ in vm.pending): vm.pop()
    e("s_waitcnt lgkmcnt(0)")
    for b in (92, 108): e("v_mfma_f32_32x32x16_bf16 %s, %s, %s, 0" % (vr(b, 16), vr(vFb, 4), vr(vFb, 4)))
    st("diag")

def tables():
    def unpack_scale(src, dst, scale):
        e("s_mov_b32 s%d, 0x%08x" % (sT0, f2u(scale)))
        for h in range(2):
            e("v_lshlrev_b32 v%d, 16, v%d" % (dst + 2 * h, src + h))
            e("v_and_b32 v%d, 0xffff0000, v%d" % (dst + 2 * h + 1, src + h))
        for k in range(4): e("v_mul_f32 v%d, s%d, v%d" % (dst + k, sT0, dst + k))
    unpack_scale(vTB, vTB + 8, SA)
    unpack_scale(vTB + 2, vTB + 12, 1.0 / SA)
    e("v_add_u32 v%d, %d, v%d" % (vTB + 4, TAB_B1, vTmp))
    e("s_mov_b32 s%d, %d" % (sT0, TAB_G))
    e("v_lshl_add_u32 v%d, v%d, 4, s%d" % (vTB + 5, vLane, sT0))
    e("ds_write_b128 v%d, %s" % (vTB + 4, vr(vTB + 8, 4)))
    e("ds_write_b128 v%d, %s" % (vTB + 5, vr(vTB + 12, 4)))

def res_dst(t, m):
    if m >= 4: return vr(vR45 + 8 * t + 4 * (m - 4), 4)
    if t == 0 and m >= 2: return vr(vR23 + 4 * (m - 2), 4)
    idx = m if t == 0 else 4 * t + m - 2
    return ar(aRes + 4 * idx, 4)
def poff(a): return (a % 2) * PL
def res_rd(t, m):
    return "ds_read_b128 %s, v%d offset:%d" % (res_dst(t, m), vRA + m % 2, poff(m // 2) + t * PR)

def conv_all(L):
    reads = []; mf = []
    lastuse = {}
    nitem = 0
    for a in range(3):
        items = [("m", k) for k in range(4)]
        if L: items.insert(0 if a == 2 else 2, ("l", 0))
        for kind, k in items:
            b = nitem % 2; nitem += 1
            F = (lambda h, c=1: vr(vFb + 4 * h, 4 * c)) if b else (lambda h, c=1: ar(aFb + 4 * h, 4 * c))
            G = (lambda h, c=1: vr(vGb + 4 * h, 4 * c)) if b else (lambda h, c=1: ar(aGb + 4 * h, 4 * c))
            nrow = 3 if kind == "m" else 1
            r0 = len(reads)
            for h in range(nrow + 2):
                reads.append(("ds_read_b128 %s, v%d offset:%d" % (F(h), vF + k if kind == "m" else vLF, poff(a) + h * PR), lastuse.get((b, "F", h), -1), a))
            g0 = len(reads)
            for h in range(nrow + 1):
                reads.append(("ds_read_b128 %s, v%d offset:%d" % (G(h), vGa + k if kind == "m" else vLG, poff(a) + h * PR), lastuse.get((b, "G", h), -1), a))
            A = (lambda s_: ar(12 * (4 * a + k) + 4 * s_, 4)) if kind == "m" else (lambda s_: ar(aLD + 12 * a + 4 * s_, 4))
            Dr = (lambda t: vr(vYt[t] + 4 * (4 * a + k), 4)) if kind == "m" else (lambda t: vr(vLY + 4 * a, 4))
            def sm(t, s_, B, need, uses):
                for u in uses: lastuse[u] = len(mf)
                mf.append(("v_smfmac_f32_16x16x64_bf16 %s, %s, %s, v%d" % (Dr(t), A(s_), B, vIdx), need, a))
            for t in range(nrow):
                sm(t, 0, F(t, 2), r0 + t + 1, [(b, "F", t), (b, "F", t + 1)])
                sm(t, 2, F(t + 1, 2), r0 + t + 2, [(b, "F", t + 1), (b, "F", t + 2)])
            for t in range(nrow):
                sm(t, 1, G(t, 2), g0 + t + 1, [(b, "G", t), (b, "G", t + 1)])
    return reads, mf

def stats_ops(a, L):
    ops = []
    for k in range(4):
        for i in (0, 2):
            for t in range(3):
                y = vr(vYt[t] + 16 * a + 4 * k + i, 2)
                a1, a2 = vr(vS + 4 * t, 2), vr(vS + 4 * t + 2, 2)
                if a == 0 and k == 0 and i == 0:
                    ops += ["v_pk_add_f32 %s, %s, 0 op_sel_hi:[1,0]" % (a1, y), "v_pk_mul_f32 %s, %s, %s" % (a2, y, y)]
                else:
                    ops += ["v_pk_add_f32 %s, %s, %s" % (a1, a1, y), "v_pk_fma_f32 %s, %s, %s, %s" % (a2, y, y, a2)]
        if L and k < 2 and a < 2:
            y = vr(vLY + 4 * a + 2 * k, 2); a1, a2 = vr(vLS, 2), vr(vLS + 2, 2)
            if a == 0 and k == 0: ops += ["v_pk_add_f32 %s, %s, 0 op_sel_hi:[1,0]" % (a1, y), "v_pk_mul_f32 %s, %s, %s" % (a2, y, y)]
            else: ops += ["v_pk_add_f32 %s, %s, %s" % (a1, a1, y), "v_pk_fma_f32 %s, %s, %s, %s" % (a2, y, y, a2)]
    return ops

def finish_ops(a, b, sc, sh):
    return ["v_fma_f32 v%d, -v%d, v%d, v%d" % (b, a, a, b), "v_max_f32 v%d, 0, v%d" % (b, b),
            "v_add_f32 v%d, 0x%08x, v%d" % (b, f2u(1e-5), b), "v_rsq_f32 v%d, v%d" % (b, b),
            "v_mul_f32 v%d, 0x%08x, v%d" % (sc, f2u(SA), b), "v_mul_f32 v%d, v%d, v%d" % (sh, a, sc)]

def reduce_chain(t):
    s1, s2 = vS + 4 * t, vS + 4 * t + 2
    a, b = s1 + 1, s2 + 1
    return ["v_add_f32 v%d, v%d, v%d" % (a, s1, s1 + 1), "v_add_f32 v%d, v%d, v%d" % (b, s2, s2 + 1),
            "v_permlane32_swap_b32 v%d, v%d" % (a, b), "v_add_f32 v%d, v%d, v%d" % (a, a, b), "v_mov_b32 v%d, v%d" % (b, a),
            "v_permlane16_swap_b32 v%d, v%d" % (a, b), "v_add_f32 v%d, v%d, v%d" % (a, a, b),
            "v_mul_f32 v%d, 0x%08x, v%d" % (a, f2u(1.0 / 192.0), a), "v_mov_b32 v%d, v%d" % (b, a),
            "v_permlane32_swap_b32 v%d, v%d" % (a, b)] + finish_ops(a, b, s1, s2)

def ln_norm(y0, n, dst, sc, sh):
    LAG = min(6, n)
    for k in range(n + LAG):
        if k < n:
            y = y0 + 2 * k
            e("v_pk_fma_f32 %s, %s, %s, %s op_sel_hi:[1,0,0] neg_lo:[0,0,1] neg_hi:[0,0,1]" % (vr(y, 2), vr(y, 2), vr(sc, 2), vr(sh, 2)))
        if k >= LAG:
            j = k - LAG
            e("v_cvt_pk_bf16_f32 v%d, v%d, v%d" % (dst + j, y0 + 2 * j, y0 + 2 * j + 1))
        if k % 8 == 7: vm.pop()

def prologue(L):
    vm.wait(lambda t: t == ("x", 0))
    e("s_barrier")
    st("x0in")
    reads, mf = conv_all(L)
    seq = [0]; rseq = {}
    def lds(txt): e(txt); seq[0] += 1
    plane = [0]
    nis = [0]
    def issue_read():
        r = reads[nis[0]]
        if r[2] > plane[0]:
            a = plane[0]
            if a == 1:
                for r_ in [vF + k for k in range(8)] + ([vLF, vLG] if L else []):
                    e("v_add_u32 v%d, %d, v%d" % (r_, 2 * PL, r_))
            vm.wait(lambda t: t == ("x", a + 1))
            e("s_barrier")
            st("x%din" % (a + 1))
            plane[0] += 1
        lds(r[0]); rseq[nis[0]] = seq[0]; nis[0] += 1
    for _ in range(opt.dist): issue_read()
    n0 = nis[0]
    e("s_waitcnt lgkmcnt(%d)" % (seq[0] - rseq[mf[0][1]]))
    pend = []
    la, lb = vLS + 1, vLS + 3
    for i, (txt, need, a) in enumerate(mf):
        e(txt)
        last_of_plane = i + 1 == len(mf) or mf[i + 1][2] != a
        if i + 1 < len(mf):
            nxt = mf[i + 1][1]
            while nis[0] <= nxt:
                assert reads[nis[0]][1] <= i
                issue_read()
            if not last_of_plane and (nxt > need or i == 0): e("s_waitcnt lgkmcnt(%d)" % min(14, seq[0] - rseq[nxt]))
            target = min(len(reads), n0 + -(-(i + 1) * len(reads) // len(mf)))
            while nis[0] < target and nis[0] - nxt <= 13 and reads[nis[0]][1] <= i: issue_read()
        first = min(k for k in range(len(mf)) if mf[k][2] == a)
        if (i - first) % [opt.c0, 5, 3][a] == 1: vm.pop()
        if a == 2 and L and i == first + 8:
            for k in range(4):
                y = vLY + 8 + k
                pend += ["v_add_f32 v%d, v%d, v%d" % (vLS + k % 2, vLS + k % 2, y), "v_fmac_f32 v%d, v%d, v%d" % (vLS + 2 + k % 2, y, y)]
            pend += ["v_add_f32 v%d, v%d, v%d" % (la, vLS, vLS + 1), "v_add_f32 v%d, v%d, v%d" % (lb, vLS + 2, vLS + 3), None,
                     "v_permlane32_swap_b32 v%d, v%d" % (la, lb), "v_add_f32 v%d, v%d, v%d" % (la, la, lb), "v_mov_b32 v%d, v%d" % (lb, la), None,
                     "v_permlane16_swap_b32 v%d, v%d" % (la, lb), "v_add_f32 v%d, v%d, v%d" % (la, la, lb), "W"]
        if pend:
            o = pend.pop(0)
            if o == "W": lds("ds_write_b32 v%d, v%d offset:%d" % (vLSw, la, XST))
            elif o: e(o)
        if last_of_plane:
            st("mf%d" % a)
            assert not pend
            if a == 1: assert not any(tg[0] == "x" for tg, _ in vm.pending)
            for t in range(3):
                for m in (2 * a, 2 * a + 1): lds(res_rd(t, m))
            if a == 1:
                if L: lds("ds_read_b128 %s, v%d" % (vr(vRL, 4), vTmp))
                for r_ in [vRA, vRA + 1] + ([vTmp] if L else []): e("v_add_u32 v%d, %d, v%d" % (r_, 2 * PL, r_))
            ops = stats_ops(a, L)
            if a == 2:
                while vm.pending: vm.pop()
                for o in ops[:36]: e(o)
                ops = ops[36:]
                vm.wait(lambda t: t == "w0")
                e("s_waitcnt lgkmcnt(0)")
                e("s_barrier")
                if L:
                    e("ds_read_b128 %s, v%d offset:%d" % (vr(vFb, 4), vLSr, XST))
                    e("ds_read_b128 %s, v%d offset:%d" % (vr(vFb + 4, 4), vLSr, XST + 16))
                set_dma_slot(SLOT)
                e("s_mov_b32 s%d, 128" % sW1off)
                e("s_mov_b32 s%d, 0" % sW2off)
                for kind in (1, 2):
                    for k in range(6):
                        sc, ins = dma_w(k, kind); vm.queue("w1", sc + [ins])
                vm.pop()
            for o in ops: e(o)
            if a < 2: e("s_waitcnt lgkmcnt(%d)" % min(14, seq[0] - rseq[mf[i + 1][1]]))
            st("conv%d" % a)
    assert nis[0] == len(reads)
    p = vFb
    ch = [reduce_chain(t) for t in range(3)]
    if L:
        ch.append([None, None, "s_waitcnt lgkmcnt(0)", "v_pk_add_f32 %s, %s, %s" % (vr(p, 2), vr(p, 2), vr(p + 2, 2)),
                   "v_pk_add_f32 %s, %s, %s" % (vr(p + 4, 2), vr(p + 4, 2), vr(p + 6, 2)),
                   "v_add_f32 v%d, v%d, v%d" % (p, p, p + 1), "v_add_f32 v%d, v%d, v%d" % (p + 1, p + 4, p + 5),
                   "v_mul_f32 v%d, 0x%08x, v%d" % (p, f2u(1.0 / 192.0), p), "v_mul_f32 v%d, 0x%08x, v%d" % (p + 1, f2u(1.0 / 192.0), p + 1),
                   "v_lshlrev_b32 v%d, 4, v%d" % (vX + 8, vLane)] + finish_ops(p, p + 1, p + 2, p + 4))
    for k in range(len(ch[0])):
        for c in ch:
            if c[k]: e(c[k])
        if k % 5 == 1: vm.pop()
    st("red")
    if L:
        ln_norm(vLY, 6, vLY, p + 2, p + 4)
        for a in range(3): e("ds_write_b64 v%d, %s offset:%d" % (vLW, vr(vLY + 2 * a, 2), XCH + a * 2048))
    for t in range(3):
        ln_norm(vYt[t], 24, vB1 + 24 * t, vS + 4 * t, vS + 4 * t + 2)
        if t == 0 and L: e("ds_read_b128 %s, v%d" % (vr(vRL + 4, 4), vTmp))
    if L:
        pass
    while vm.pending: vm.pop()
    if L:
        e("s_waitcnt lgkmcnt(0)")
        e("s_barrier")
        for kb in range(6): e("ds_read_b128 %s, v%d offset:%d" % (vr(vB1 + 72 + 4 * kb, 4), vX + 8, XCH + kb * 1024))
        e("s_cmp_eq_u32 s%d, 0" % sWave)
        e("s_cselect_b32 s%d, 0, %d" % (sT0, OOB))
        e("v_add_u32 v%d, s%d, v%d" % (vTmp + 1, sT0, vTab))
    st("conv3")

def acc_init(L):
    r = []
    for ct in range(12):
        for t in range(1):
            r.append("ds_read_b128 %s, v%d offset:%d" % (ar(48 * t + 4 * ct, 4), vTab, (ct // 2) * 128 + (ct % 2) * 16))
        if L:
            r.append("ds_read_b128 %s, v%d offset:%d" % (ar(144 + 4 * ct, 4), vTmp + 1, (ct // 2) * 128 + (ct % 2) * 16))
    return r

def gelu_pair(x0, x1, dst, tmp):
    a, b = tmp, tmp + 1
    if opt.gelu == 1:
        return [("v_fma_f32 v%d, -v%d, v%d, -s%d" % (a, x0, x0, sK), 4), ("v_fma_f32 v%d, -v%d, v%d, -s%d" % (b, x1, x1, sK), 4),
                ("v_mul_f32 v%d, v%d, v%d" % (a, x0, a), 4), ("v_mul_f32 v%d, v%d, v%d" % (b, x1, b), 4),
                ("v_exp_f32 v%d, v%d" % (a, a), 8), ("v_exp_f32 v%d, v%d" % (b, b), 8),
                ("v_add_f32 v%d, 1.0, v%d" % (a, a), 4), ("v_add_f32 v%d, 1.0, v%d" % (b, b), 4),
                ("v_rcp_f32 v%d, v%d" % (a, a), 8), ("v_rcp_f32 v%d, v%d" % (b, b), 8),
                ("v_mul_f32 v%d, v%d, v%d" % (a, x0, a), 4), ("v_mul_f32 v%d, v%d, v%d" % (b, x1, b), 4),
                ("v_cvt_pk_bf16_f32 v%d, v%d, v%d" % (dst, a, b), 4)]
    sd = "dst_sel:WORD_1 dst_unused:UNUSED_PRESERVE src0_sel:WORD_1"
    return [("v_cvt_pk_f16_f32 v%d, v%d, v%d" % (a, x0, x1), 4),
            ("v_pk_fma_f16 v%d, v%d, v%d, s%d" % (b, a, a, sK), 4),
            ("v_pk_mul_f16 v%d, v%d, v%d neg_lo:[1,0] neg_hi:[1,0]" % (a, a, b), 4),
            ("v_exp_f16%s v%d, v%d" % ("_e64" if opt.e64 else "", b, a), 8),
            ("v_exp_f16_sdwa v%d, v%d %s" % (b, a, sd), 8),
            ("v_pk_add_f16 v%d, v%d, 1.0 op_sel_hi:[1,0]" % (a, b), 4),
            ("v_rcp_f16%s v%d, v%d" % ("_e64" if opt.e64 else "", b, a), 8),
            ("v_rcp_f16_sdwa v%d, v%d %s" % (b, a, sd), 8),
            ("v_fma_mix_f32 v%d, v%d, v%d, 0 op_sel_hi:[0,1,0]" % (a, x0, b), 4),
            ("v_fma_mix_f32 v%d, v%d, v%d, 0 op_sel:[0,1,0] op_sel_hi:[0,1,0]" % (b, x1, b), 4),
            ("v_cvt_pk_bf16_f32 v%d, v%d, v%d" % (dst, a, b), 4)]

def gelu_ops(c, L, tiles=(0, 1, 2)):
    hb = vH + 24 * (c % 2); pb = vP + 12 * (c % 2)
    quads = []
    for t in tiles:
        for ep in range(2):
            quads.append((hb + 8 * t + 4 * ep, pb + 4 * t + 2 * ep))
    if L and c % 2 == 0: quads.append((vHL, vPL))
    ops = []
    for n, (x, d) in enumerate(quads):
        tmp = vT + 4 * (n % 2)
        A = gelu_pair(x, x + 1, d, tmp); B = gelu_pair(x + 2, x + 3, d + 1, tmp + 2)
        if opt.gelu == 1:
            for k in range(0, 12, 2): ops += [A[k], A[k + 1], B[k], B[k + 1]]
            ops += [A[12], B[12]]
        else:
            for k in range(len(A)): ops += [A[k], B[k]]
    return ops

class Frag: pass

def step_scalars():
    return ["s_add_u32 s%d, s%d, s%d" % (sM1, sM1, sDel2),
            "s_add_u32 s%d, s%d, s%d" % (sM2, sM2, sDel2),
            "s_add_u32 s%d, s%d, 128" % (sW1off, sW1off),
            "s_add_u32 s%d, s%d, 24576" % (sW2off, sW2off),
            "s_mov_b32 s%d, s%d" % (sT0, sDel1),
            "s_mov_b32 s%d, s%d" % (sDel1, sDel2),
            "s_mov_b32 s%d, s%d" % (sDel2, sDelta),
            "s_sub_u32 s%d, s%d, 1" % (sCnt, sCnt),
            "s_cmp_lg_u32 s%d, 0" % sCnt]

def build_main(L, c_lo, c_hi, virt, xds={}, xval={}, xwr={}):
    groups = []
    TM = c_hi == 26
    for c in range(c_lo, c_hi + 1 + (1 if virt else 0)):
        step = (c + 1) // 2 if c < 24 or not TM else c - 11
        if c + 1 <= 23 or virt:
            c1 = c + 1
            for ep in range(2):
                pos = 2 * (c1 % 2) + ep
                for kb in range(6):
                    g = Frag(); g.kind = 1; g.period = c; g.step = step; g.pos = pos; g.kb = kb; g.chunk = c1; g.ep = ep
                    groups.append(g)
        if c - 1 >= 0:
            c2 = min(c - 1, 23)
            for ct in range(12):
                g = Frag(); g.kind = 2; g.period = c; g.step = step; g.ct = ct; g.chunk = c2
                groups.append(g)
    N = len(groups)
    D, R = opt.D, opt.R
    assert 24 % R == 0 and D < R and D <= 5
    nbias = 0
    for n, g in enumerate(groups):
        g.slot = aRing + 4 * (n % R)
        g.reads = []
        if g.kind == 1:
            if g.kb == 0:
                g.bias = vBias + 4 * (nbias % 2); nbias += 1
                g.reads.append("ds_read_b128 %s, v%d" % (vr(g.bias, 4), vAb + g.pos))
            for h in range(2):
                g.reads.append("ds_read_b64_tr_b16 %s, v%d offset:%d" % (ar(g.slot + 2 * h, 2), vA1 + g.pos, (g.kb * 4 + h * 2) * 1024))
            hb = vH + 24 * (g.chunk % 2)
            g.mf = []
            tiles = [0, 1, 2] + ([3] if (L and g.pos == 0) else [])
            for t in tiles:
                d = (hb + 8 * t + 4 * g.ep) if t < 3 else vHL
                cc = vr(g.bias, 4) if g.kb == 0 else vr(d, 4)
                g.mf.append("v_mfma_f32_16x16x32_bf16 %s, %s, %s, %s" % (vr(d, 4), ar(g.slot, 4), vr(vB1 + 24 * t + 4 * g.kb, 4), cc))
            g.upd = []
            if g.kb == 5 and g.step <= 10: g.upd = ["v_add_u32 v%d, s%d, v%d" % (vA1 + g.pos, sDelta, vA1 + g.pos)]
            if g.kb == 0 and g.step <= 10: g.upd = ["v_add_u32 v%d, 0x100, v%d" % (vAb + g.pos, vAb + g.pos)]
        else:
            m, o = g.ct // 2, g.ct % 2
            for h in range(2):
                pos = 2 * (g.chunk % 2) + h
                g.reads.append("ds_read_b64_tr_b16 %s, v%d offset:%d" % (ar(g.slot + 2 * h, 2), vA2 + pos, m * 512 + o * 8))
            pb = vP + 12 * (g.chunk % 2)
            g.mf = []
            tiles = [0, 1, 2] + ([3] if (L and g.chunk % 2 == 0) else [])
            if len(tiles) == 4: tiles = [0, 1, 3, 2]
            if g.chunk == 0: tiles = [1, 2] + ([3] if L else []) + [0]
            if TM and g.period >= 24: tiles = [g.period - 24]
            for t in tiles:
                acc = ar(48 * t + 4 * g.ct, 4)
                cin = ar(4 * g.ct, 4) if (g.chunk == 0 and t < 3) else acc
                if t < 3: g.mf.append("v_mfma_f32_16x16x32_bf16 %s, %s, %s, %s" % (acc, ar(g.slot, 4), vr(pb + 4 * t, 4), cin))
                else: g.mf.append("v_mfma_f32_16x16x16_bf16 %s, %s, %s, %s" % (acc, ar(g.slot, 2), vr(vPL, 2), cin))
            g.upd = []
            if g.ct == 11 and g.step <= 11:
                g.upd = ["v_add_u32 v%d, s%d, v%d" % (vA2 + 2 * (g.chunk % 2) + h, sDelta, vA2 + 2 * (g.chunk % 2) + h) for h in range(2)]
    steps = [[] for _ in range(16)]
    issued = [0]; lastseq = {}
    pre = []
    def issue(n, dst):
        for r in groups[n].reads:
            dst.append(r); issued[0] += 1
        lastseq[n] = issued[0]
    for n in range(D): issue(n, pre)
    for n in range(D): pre += groups[n].upd
    first_wait = "s_waitcnt lgkmcnt(%d)" % (issued[0] - lastseq[0])
    for c in range(c_lo, c_hi + 1):
        step = (c + 1) // 2 if c < 24 or not TM else c - 11
        dst = steps[step]
        gs = [k for k in range(N) if groups[k].period == c]
        val = gelu_ops(c, L) if 0 <= c <= 23 else []
        if TM and 23 <= c <= 25: val = gelu_ops(23, L, (c - 23,))
        val = val + [(x, 4) for x in xval.get(c, [])]
        xd = list(xds.get(c, []))
        nxd = (len(xd) + len(gs) - 1) // len(gs)
        if c == c_lo:
            burst = 0
            while val and burst < 120:
                pre.append(val[0][0]); burst += val[0][1]; val = val[1:]
            pre.append(first_wait)
        dmas = []; scal = []
        if step <= 11:
            if c % 2 == 1: dmas = [dma_w(i, 1) for i in range(6 if step <= 9 else 0)] + [dma_w(i, 2) for i in range(6 if step <= 10 else 0)]
            else: scal = step_scalars()
        nm = sum(len(groups[k].mf) for k in gs)
        mcost = lambda m: 4 if "16x16x16" in m else 8
        tot = sum(mcost(m) for k in gs for m in groups[k].mf) + sum(x[1] for x in val) + 12 * len(dmas) + 4 * len(xd) + 20 * len([1 for cc, _ in xwr if cc == c])
        for k in gs:
            if k + D < N: tot += 4 * len(groups[k + D].reads) + 4 * len(groups[k + D].upd)
        t = 0.0; vi = 0; mi = 0
        sp = opt.dsp if len(gs) >= 24 else 1
        dmap = {sp * i: d for i, d in enumerate(dmas)}
        for gi, k in enumerate(gs):
            g = groups[k]
            for j, m in enumerate(g.mf):
                tm_ = t
                dst.append(m); t += mcost(m); mi += 1
                extra = []
                if j == len(g.mf) - 1 and k + 1 < N:
                    dst.append("s_waitcnt lgkmcnt(%d)" % min(14, issued[0] - lastseq[k + 1]))
                if j == 0:
                    if gi in dmap: dst.append(dmap[gi][0][0])
                    elif scal: dst.append(scal.pop(0))
                    if k + D < N:
                        issue(k + D, dst); t += 4 * len(groups[k + D].reads)
                        extra = groups[k + D].upd
                if j == len(g.mf) - 1:
                    for _ in range(nxd):
                        if xd: dst.append(xd.pop(0)); issued[0] += 1; t += 4
                if j == min(1, len(g.mf) - 1) and (c, gi) in xwr:
                    dst.append(xwr[(c, gi)]); issued[0] += 1; t += 20
                if j == 1:
                    if gi in dmap:
                        dst.append(dmap[gi][0][1]); dst.append(dmap[gi][1]); t += 12
                    elif gi == len(gs) - 1 and step <= 11 and c % 2 == 0:
                        dst.append("s_mov_b32 s%d, s%d" % (sDelta, sT0))
                for x in extra: dst.append(x); t += 4
                lim = mi * tot / nm
                sw = "16x16x16" in m or (j + 1 < len(g.mf) and "16x16x16" in g.mf[j + 1])
                mingap = (20 if sw else 16) if opt.mg else 0
                if opt.mg and len(g.mf) == 4 and g.kind == 2 and not sw: lim -= opt.kb
                while vi < len(val) and (t + val[vi][1] <= lim + 2 or t - tm_ < mingap):
                    dst.append(val[vi][0]); t += val[vi][1]; vi += 1
        while vi < len(val): dst.append(val[vi][0]); vi += 1
        assert not scal and not xd
    return pre, steps

def main_part(L):
    tag = "b%d" % L
    ai = acc_init(L)
    xd24, xwr, xv24 = epi_prep(L)
    TM = (opt.tm >> L) & 1
    if TM: pre, steps = build_main(L, -1, 26, False, xds={0: ai, 23: xd24}, xval={23: xv24, 26: unpack_t2()}, xwr=xwr)
    else: pre, steps = build_main(L, -1, 24, False, xds={0: ai, 24: xd24}, xval={24: xv24}, xwr=xwr)
    for j in range(3, 10): assert steps[j] == steps[2], j
    assert opt.unroll in (1, 2, 4)
    e("s_mov_b32 s%d, 0x%08x" % (sK, f2u(KK) if opt.gelu == 1 else f2h(KK) * 0x10001))
    set_dma_slot(2 * SLOT)
    e("s_mov_b32 s%d, 256" % sW1off)
    e("s_mov_b32 s%d, 24576" % sW2off)
    e("s_mov_b32 s%d, %d" % (sDelta, SLOT))
    e("s_mov_b32 s%d, %d" % (sDel1, SLOT))
    e("s_mov_b32 s%d, %d" % (sDel2, -2 * SLOT))
    e("s_mov_b32 s%d, 10" % sCnt)
    for s in pre: e(s)
    def with_bar(body):
        body = list(body)
        bar = ["s_waitcnt vmcnt(0)"] + ([] if opt.nobar else ["s_barrier"])
        if opt.barpos:
            idx = [i for i, l in enumerate(body) if l.startswith("v_mfma")][-opt.barpos]
            return body[:idx + 1] + bar + body[idx + 1:]
        return body + bar
    s0 = with_bar(steps[0])
    idx = [i for i, l in enumerate(s0) if l.startswith("v_mfma")][-3 * (opt.D + 2)]
    s0 = s0[:idx + 1] + ["s_waitcnt vmcnt(12)", "s_barrier"] + s0[idx + 1:]
    for s in s0: e(s)
    st("step0")
    for s in with_bar(steps[1]): e(s)
    out.append(".p2align 6")
    lab("L_loop_%s" % tag)
    for u in range(opt.unroll):
        for s in with_bar(steps[2]): e(s)
    e("s_cbranch_scc1 L_loop_%s" % tag)
    for s in with_bar(steps[10]): e(s)
    for s in steps[11]: e(s)
    st("loop")
    epi_scalars(L)
    for s in steps[12]: e(s)
    st("p24")
    epilogue(L, steps[13:16] if TM else None)

RED = SLOT
STG = 2 * SLOT
vG = vH
vWA = vA1
vRd = vA1 + 2
vSt = vA1 + 3
vX0 = vB1 + 48
def gam(L, m):
    if (opt.tm >> L) & 1 and m >= 3: return vB1 + 72 + 8 * (m - 3)
    return vG + 8 * m
def unp_reg(L, t, m):
    if (opt.tm >> L) & 1:
        if t == 0 and 2 <= m <= 4: return vX0 + 8 * (m - 2)
        if t == 2: return (vX0 + 8 * m) if m < 3 else (vH + 24 + 8 * (m - 3))
        return None
    return vX0 + 8 * (m - 2) if (t == 0 and m >= 2) else None
def unpack_t2():
    ops = []
    for m in range(6):
        src = res_dst(2, m); base = int(src[2:src.index(":")]); d = unp_reg(0, 2, m)
        if src[0] == "a":
            for k in range(4): ops.append("v_accvgpr_read_b32 v%d, a%d" % (d + 2 * k + 1, base + k))
            for k in range(4):
                ops += ["v_lshlrev_b32 v%d, 16, v%d" % (d + 2 * k, d + 2 * k + 1), "v_and_b32 v%d, 0xffff0000, v%d" % (d + 2 * k + 1, d + 2 * k + 1)]
        else:
            for k in range(4):
                ops += ["v_lshlrev_b32 v%d, 16, v%d" % (d + 2 * k, base + k), "v_and_b32 v%d, 0xffff0000, v%d" % (d + 2 * k + 1, base + k)]
    return ops
def epi_prep(L):
    xd = ["ds_read_b128 %s, v%d offset:%d" % (vr(gam(L, ct // 2) + 4 * (ct % 2), 4), vTab, TAB_G - TAB_B2 + (ct // 2) * 128 + (ct % 2) * 16) for ct in range(12)]
    xv23 = {}
    if L:
        for ct in range(12):
            xv23[(23, ct + 2) if ct < 10 else (24, 2 * (ct - 10) + 2)] = "ds_write_b128 v%d, %s offset:%d" % (vTmp + 1, ar(144 + 4 * ct, 4), ct * 1024)
    t0, t1 = vAb + 2, vAb + 3
    xv = ["v_and_b32 v%d, 15, v%d" % (t0, vLane), "v_lshrrev_b32 v%d, 4, v%d" % (t1, vLane),
          "v_lshl_add_u32 v%d, v%d, 7, s%d" % (vWA, t0, sT2), "v_and_b32 v%d, 7, v%d" % (t0, t0),
          "v_xor_b32 v%d, v%d, v%d" % (t1, t0, t1), "v_lshl_add_u32 v%d, v%d, 4, v%d" % (vWA, t1, vWA),
          "v_xor_b32 v%d, 64, v%d" % (vWA + 1, vWA),
          "v_lshrrev_b32 v%d, 3, v%d" % (t1, vLane), "v_xor_b32 v%d, v%d, v%d" % (vRd, t1, vLane),
          "v_lshl_add_u32 v%d, v%d, 4, s%d" % (vRd, vRd, sT2),
          "v_mul_u32_u24 v%d, 384, v%d" % (t1, t1), "v_lshl_add_u32 v%d, v%d, 4, v%d" % (vSt, t0, t1),
          "v_add_u32 v%d, s%d, v%d" % (vSt, sT1, vSt)]
    for k in range(12 if ((opt.tm >> L) & 1) else 16):
        src = (vR23 + k) if k < 8 else (vR45 + k - 8)
        xv += ["v_lshlrev_b32 v%d, 16, v%d" % (vX0 + 2 * k, src), "v_and_b32 v%d, 0xffff0000, v%d" % (vX0 + 2 * k + 1, src)]
    return xd, xv23, xv

def epi_scalars(L):
    e("s_mul_i32 s%d, s%d, %d" % (sT1, sWave, 3 * ROWB))
    e("s_add_u32 s%d, s%d, s%d" % (sT1, sT1, sBase))
    e("s_mul_i32 s%d, s%d, 12288" % (sT2, sWave))
    e("s_add_u32 s%d, s%d, %d" % (sT3, sT2, RED))
    e("s_add_u32 s%d, s%d, %d" % (sT2, sT2, STG if L else RED))
    assert STG % 128 == 0 and RED % 128 == 0
    if L:
        e("v_lshlrev_b32 v%d, 4, v%d" % (vTmp, vLane))
        e("v_add_u32 v%d, s%d, v%d" % (vTmp + 1, sT3, vTmp))

def epi_group(acc_regs, gam, xr, dst, tmp, unpacked=False):
    if not unpacked:
        for k in range(4):
            e("v_lshlrev_b32 v%d, 16, v%d" % (tmp + 2 * k, xr + k))
            e("v_and_b32 v%d, 0xffff0000, v%d" % (tmp + 2 * k + 1, xr + k))
    for k in range(4):
        e("v_pk_fma_f32 %s, %s, %s, %s" % (vr(tmp + 2 * k, 2), vr(acc_regs + 2 * k, 2), vr(gam + 2 * k, 2), vr(tmp + 2 * k, 2)))
    for k in range(4):
        e("v_cvt_pk_bf16_f32 v%d, v%d, v%d" % (dst + k, tmp + 2 * k, tmp + 2 * k + 1))

def epilogue(L, tmsteps):
    tag = "b%d" % L
    if not tmsteps: e("s_waitcnt lgkmcnt(0)")
    vAc = vB1; vTm = vB1 + 16; vXs = vB1 + 32; vO = vB1 + 40
    vLin = (vHL if L else vRL) if tmsteps else vP
    if tmsteps:
        for l in tmsteps[0]: e(l)
    if L:
        if tmsteps: e("s_waitcnt lgkmcnt(0)")
        e("s_barrier")
        e("s_lshl_b32 s%d, s%d, 6" % (sT1, sWave))
        e("s_add_u32 s%d, s%d, %d" % (sT1, sT1, 12 * ROWB))
        e("s_lshl_b32 s%d, s%d, 11" % (sT2, sWave))
        e("s_add_u32 s%d, s%d, %d" % (sT2, sT2, RED))
        e("v_add_u32 v%d, s%d, v%d" % (vTmp, sT2, vTmp))
        e("s_lshl_b32 s%d, s%d, 7" % (sT2, sWave))
        e("v_add_u32 v%d, s%d, v%d" % (vTmp + 1, sT2, vTab))
        lregs = [vBias, vT, vHL, vB1 + 80]; lgam = vB1 + 88
        if tmsteps: lregs = [vBias, vT, vH + 24, vH + 32]; lgam = vH + 40
        def lreads(half):
            for w in range(4):
                for o in range(2):
                    e("ds_read_b128 %s, v%d offset:%d" % (vr(lregs[w] + 4 * o, 4), vTmp, w * 12288 + half * 8192 + o * 1024))
            for o in range(2):
                e("ds_read_b128 %s, v%d offset:%d" % (vr(lgam + 4 * o, 4), vTmp + 1, TAB_G - TAB_B2 + half * 512 + o * 16))
        def lfinish(half):
            r = lregs
            for k in range(0, 8, 2):
                e("v_pk_add_f32 %s, %s, %s" % (vr(r[0] + k, 2), vr(r[0] + k, 2), vr(r[1] + k, 2)))
                e("v_pk_add_f32 %s, %s, %s" % (vr(r[2] + k, 2), vr(r[2] + k, 2), vr(r[3] + k, 2)))
            for k in range(0, 8, 2):
                e("v_pk_add_f32 %s, %s, %s" % (vr(r[0] + k, 2), vr(r[0] + k, 2), vr(r[2] + k, 2)))
            xr = vRL + 4 * half
            epi_group(r[0], lgam, xr, xr, r[1])
            e("buffer_store_dwordx4 %s, v%d, %s, s%d offen offset:%d%s" % (vr(xr, 4), vOut, sr(S_O, 4), sT1, half * 256, OPOL))
        if not tmsteps: lreads(0)
    nL = 6 if tmsteps else 0
    st("gam")
    e("s_mov_b32 s%d, %d" % (sT0, ROWB))
    e("s_mov_b32 s%d, %d" % (sSo, 2 * ROWB))
    if not L:
        e("s_sub_u32 s%d, s%d, s%d" % (sT3, sNrows, sWave))
        e("s_cmp_eq_u32 s%d, 8" % sT3)
        e("s_cselect_b32 s%d, 0x40000000, s%d" % (sSo, sSo))
    def store(u, k):
        t, a = u // 3, u % 3
        e("buffer_store_dwordx4 %s, v%d, %s, %s offen offset:%d%s" % (vr(vLin + 8 * (u % 2) + 4 * k, 4), vSt, sr(S_O, 4),
                                                                     ["0", "s%d" % sT0, "s%d" % sSo][t], a * 128 + k * 3072, OPOL))
    n = 0
    for t in range(3):
        if tmsteps and t > 0:
            body = list(tmsteps[t])
            if t > 0:
                ix = [i for i, l in enumerate(body) if l.startswith("s_waitcnt")][opt.D]
                body = body[:ix + 1] + capture(store, 3 * t - 1, 0) + capture(store, 3 * t - 1, 1) + body[ix + 1:]
            for l in body: e(l)
            if L and t == 1: lreads(0)
        for m in range(6):
            u = 3 * t + m // 2
            buf = (u % 4) * 2048
            ac = vAc + 8 * (n % 2); tm = vTm + 8 * (n % 2); o = vO + 4 * (n % 2)
            for k in range(8): e("v_accvgpr_read_b32 v%d, a%d" % (ac + k, 48 * t + 8 * m + k))
            src = res_dst(t, m)
            base = int(src[2:src.index(":")])
            unp = unp_reg(L, t, m) is not None
            if unp: tm = unp_reg(L, t, m); xr = None
            elif src[0] == "a":
                xr = vXs + 4 * (n % 2)
                for k in range(4): e("v_accvgpr_read_b32 v%d, a%d" % (xr + k, base + k))
            else: xr = base
            epi_group(ac, gam(L, m), xr, o, tm, unp)
            if u > 0 and not (tmsteps and m < 2):
                if m % 2 == 0: e("s_waitcnt lgkmcnt(0)")
                store(u - 1, m % 2)
            e("ds_write_b128 v%d, %s offset:%d" % (vWA + m % 2, vr(o, 4), buf))
            if m % 2 == 1:
                for k in range(2): e("ds_read_b128 %s, v%d offset:%d" % (vr(vLin + 8 * (u % 2) + 4 * k, 4), vRd, buf + k * 1024))
            n += 1
            if L and n == nL + 1:
                e("s_waitcnt lgkmcnt(1)")
                lfinish(0)
                lreads(1)
            if L and n == nL + 3:
                e("s_cmp_ge_u32 s%d, 2" % sWave)
                e("s_cbranch_scc1 L_done_%s" % tag)
                lfinish(1)
                lab("L_done_%s" % tag)
        st("t%d" % t)
    e("s_waitcnt lgkmcnt(0)")
    for k in range(2): store(8, k)
    if opt.stamps:
        st("epi")
        e("s_waitcnt vmcnt(0)")
        st("drain")
        e("s_waitcnt lgkmcnt(0)")
        if opt.dbg:
            srd(S_T, 8, 64)
            e("v_mov_b32 v2, 0")
            for i in range(len(SSETS[opt.sset])):
                e("s_sub_u32 s%d, s%d, s%d" % (sT0, sStamp + 2 * i, sStamp))
                e("v_writelane_b32 v2, s%d, %d" % (sT0, i))
            e("v_lshlrev_b32 v3, 2, v0")
            e("buffer_atomic_umax v2, v3, %s, 0 offen" % sr(S_T, 4))
            e("s_endpgm")
            return
        srd(S_T, 9, 1 << 20)
        e("s_lshl_b32 s%d, s2, 2" % sT0)
        e("s_add_u32 s%d, s%d, s%d" % (sT0, sT0, sWave))
        e("s_lshl_b32 s%d, s%d, 6" % (sT0, sT0))
        e("v_mov_b32 v2, 0")
        for i in range(len(SSETS[opt.sset])): e("v_writelane_b32 v2, s%d, %d" % (sStamp + 2 * i, i))
        out.append("; STAMPNAMES " + " ".join(SSETS[opt.sset]))
        e("v_writelane_b32 v2, s%d, 11" % sNrows)
        e("v_lshlrev_b32 v3, 2, v%d" % vLane)
        e("v_add_u32 v3, s%d, v3" % sT0)
        e("v_cmp_gt_u32 vcc, 16, v%d" % vLane)
        e("s_and_saveexec_b64 %s, vcc" % sr(sEx, 2))
        e("buffer_store_dword v2, v3, %s, 0 offen" % sr(S_T, 4))
    e("s_endpgm")

import copy
vm = VM()
head()
vm0 = vm
for L in (1, 0):
    vm = copy.deepcopy(vm0)
    lab("L_body%d" % L)
    if not L and opt.prio == 3:
        e("s_bitcmp1_b32 s%d, 24" % (sTb + 1))
        e("s_cbranch_scc1 L_defer")
        early(L, False, True)
        pend = [t for t, _ in vm.pending]
        e("s_branch L_join")
        lab("L_defer")
        vm = copy.deepcopy(vm0)
        early(L, True, True)
        assert pend == [t for t, _ in vm.pending]
        lab("L_join")
    else:
        early(L, (not L) and opt.prio == 2)
    prologue(L)
    main_part(L)
lab("L_exit")
e("s_endpgm")
out.append(".p2align 3")
out.append(".type L_wgtab,@object")
lab("L_wgtab")
for a, b in wg_table(): e(".long 0x%08x, 0x%08x" % (a, b))
out.append(".size L_wgtab, %d" % (NWG * 8))

ref = open("cdna_kernels/%s.s.ref" % NAME).read().split("\n")
hdr = [l for l in ref if l.startswith(";") and "@launch" not in l]
txt = "\n".join(hdr) + "\n; @launch grid=(%d,1,1) block=(256,1,1) lds=%d\n" % (NWG, LDS_SIZE)
txt += """;
;  * L_wgtab maps workgroup id -> block (placement only affects speed).  Generated by a hand-written script.
"""
txt += """.amdgcn_target "amdgcn-amd-amdhsa--gfx950"
.text
.globl %s_kernel
.p2align 8
.type %s_kernel,@function
%s_kernel:
""" % (NAME, NAME, NAME)
txt += "\n".join(out).replace("PF_LIM", "L_exit-L_pf-0x8000") + "\n"
txt += """.section .rodata,"a"
.p2align 6
.amdhsa_kernel %s_kernel
  .amdhsa_next_free_vgpr 512
  .amdhsa_next_free_sgpr 102
  .amdhsa_accum_offset 256
  .amdhsa_group_segment_fixed_size 0
  .amdhsa_kernarg_size 80
  .amdhsa_user_sgpr_count 2
  .amdhsa_user_sgpr_kernarg_segment_ptr 1
  .amdhsa_system_sgpr_workgroup_id_x 1
.end_amdhsa_kernel
""" % NAME
dst = [a for a in sys.argv[1:] if "=" not in a]
open(dst[0] if dst else "cdna_kernels/%s.s" % NAME, "w").write(txt)
```

```python
import math, struct, sys

NAME = "standalone__modern_conv_block_convnext__vision"
def f2u(f): return struct.unpack("<I", struct.pack("<f", f))[0]
def f2h(f): return struct.unpack("<H", struct.pack("<e", f))[0]

class Opt:
    gelu = 2
    stamps = 0
    D = 4
    R = 6
    xnt = 0
    sset = 0
    dsp = 1
    nobar = 0
    unroll = 2
    e64 = 0
    barpos = 0
    dist = 12
    prio = 3
    tm = 1
    odef = 2
    wpol = 0
    kb = 0
    mg = 1
    sg = 3
    trd = 0
    c0 = 4
    w0first = 0
    map = 11
    fast = 1
    gap = 12
    dbg = 0
    pe1 = 6
    pf = 1
    ont = 2
opt = Opt()
for a in sys.argv[1:]:
    if "=" in a:
        k, v = a.split("="); assert hasattr(opt, k), k; setattr(opt, k, int(v))

C0 = 2.0 * math.sqrt(2.0 / math.pi) * math.log2(math.e)
SA = (C0 * 0.044715) ** (1.0 / 3.0)
KK = C0 / SA
if opt.gelu == 2:
    KK = struct.unpack("<e", struct.pack("<e", KK))[0]
    SA = C0 / KK

XBYTES = 224 * 224 * 384
ROWB = 86016
SLOT = 49408
XB = SLOT
W2E = 6160
PL = 34816
PR = 2304
TAB_B1 = XB + 3 * PL
TAB_B2 = TAB_B1 + 3072
TAB_G = TAB_B2 + 1024
DUMMY = TAB_G + 1024
IMG = 24576
JS = 1936
XCH = 40960
XST = XCH + 6144
LDS_SIZE = 163840
OOB = 0x40000
XPOL = " nt" if opt.xnt else ""
WPOL = ["", " nt", " sc1", " sc0"][opt.wpol]
OPOL = ["", " nt", " sc1", " sc0 sc1"][opt.ont]
assert DUMMY + 1280 <= LDS_SIZE and IMG + 8 * JS <= XCH and XST + 1024 <= SLOT

S_X = 8; S_W1 = 12; S_W2 = 16; S_O = 20; S_T = 24
sWave = 28; sBase = 29; sNrows = 31
sK = 32; sDelta = 33; sW1off = 35; sW2off = 36; sCnt = 37
sT0 = 38; sT1 = 39; sT2 = 40; sT3 = 41
sEx = 42
sC1 = 44; sM1 = 45; sM2 = 46; sSo = 47; sDel1 = 48; sDel2 = 49
sXm7 = 30; sXm1 = 50; sXm8 = 51; sXs8 = 52; sQlo = 53; sTb = 54; sQn = 56; sC2 = 57; sLut = 58
sPtr = 60
S_B = 60; S_G = 64
sStamp = 80

vLane = 1
vA1 = 2; vA2 = 6; vAb = 10
vD1 = 14; vD2 = 15; vOut = 16; vTab = 17; vTmp = 18
vBias = 20
vT = 28
vRL = 36
vHL = 44; vPL = 48
vP = 52
vH = 76
vR45 = 124
vR23 = 148
vB1 = 160
aRing = 192
aRes = 216
vLW = 19
vLY = 20
vRA = 32; vLF = 34; vLG = 35
vS = 40
vIA = 48
vFb = 52
vLS = 72
vYt = [160, 76, 208]
vGb = 124
vF = 140; vGa = 144
vX = 148
vIdx = 157; vLSw = 158; vLSr = 159
aLD = 144; aFb = 180; aGb = 200
vDW = 76; vQ = 80; vTB = 96; vU = 116

out = []
def e(s): out.append("    " + s)
def lab(s): out.append(s + ":")
def cm(s): out.append("    ; " + s)
SSETS = [["start", "issued", "diag", "conv0", "conv1", "conv2", "conv3", "step0", "loop", "epi", "drain"],
         ["start", "loop", "p24", "gam", "t0", "t1", "t2", "epi", "drain"],
         ["start", "kernarg", "issued", "setup", "dwin", "img", "bar", "diag", "x0in", "mf0", "conv0"],
         ["start", "diag", "x0in", "mf0", "x1in", "mf1", "x2in", "mf2", "red", "conv3", "step0"],
         ["start", "x0in", "mf0", "conv0", "mf1", "conv1", "mf2", "conv2", "conv3", "step0", "drain"]]
def st(name):
    names = SSETS[opt.sset]
    if opt.stamps and name in names: stamp(names.index(name))
def stamp(i):
    if opt.stamps: e("%s s[%d:%d]" % ("s_memrealtime" if opt.stamps == 1 else "s_memtime", sStamp + 2 * i, sStamp + 2 * i + 1))
def vr(b, n): return "v[%d:%d]" % (b, b + n - 1)
def ar(b, n): return "a[%d:%d]" % (b, b + n - 1)
def sr(b, n): return "s[%d:%d]" % (b, b + n - 1)
def srd(s, ptr_slot, nbytes):
    e("s_mov_b32 s%d, s%d" % (s, sPtr + 2 * ptr_slot))
    e("s_and_b32 s%d, s%d, 0xffff" % (s + 1, sPtr + 2 * ptr_slot + 1))
    e("s_mov_b32 s%d, %d" % (s + 2, nbytes))
    e("s_mov_b32 s%d, 0x20000" % (s + 3))

def capture(fn, *args):
    global out
    save = out; out = []
    fn(*args)
    got = [l.strip() for l in out if not l.strip().startswith(";")]
    out = save
    return got

class VM:
    def __init__(self): self.issued = []; self.pending = []; self.cap = False
    def issue_now(self, tag, lines):
        for l in lines: e(l)
        self.issued.append(tag)
    def queue(self, tag, lines): self.pending.append((tag, lines))
    def pop(self, n=1):
        for _ in range(n):
            if self.pending and not (self.cap and self.pending[0][0] == ("x", 2)):
                tag, lines = self.pending.pop(0); self.issue_now(tag, lines)
    def wait(self, pred):
        while any(pred(t) for t, _ in self.pending): self.pop()
        idx = [i for i, t in enumerate(self.issued) if pred(t)]
        e("s_waitcnt vmcnt(%d)" % (len(self.issued) - 1 - max(idx)))
vm = None

NWG = 256 if opt.map else 252
def wg_table():
    rows = []
    seen = set()
    if opt.map >= 7:
        own = {x: [] for x in range(8)}
        def deal(blocks, plan):
            for x, k in plan:
                own[x] += blocks[:k]; blocks = blocks[k:]
            assert not blocks
        band = lambda r0, h, nb: [(r0 + h * b, st_, h) for st_ in range(14) for b in range(nb)]
        if opt.map == 7:
            deal(band(0, 13, 4), [(0, 28), (2, 28)]); deal(band(52, 13, 4), [(4, 21), (1, 14), (6, 21)])
            deal(band(104, 12, 3), [(4, 11), (1, 18), (6, 11), (0, 2)]); deal(band(140, 12, 7), [(3, 32), (5, 32), (7, 32), (2, 2)])
        elif opt.map == 11:
            hs = [13, 13, 12, 13, 12, 13, 12, 13, 12, 13, 13, 12, 13, 12, 12, 12, 12, 12]
            r0 = [sum(hs[:b]) for b in range(18)]
            left = []
            for half, (xu, xl) in enumerate(((0, 4), (2, 6))):
                bl = [(r0[b], 5 * half + k, hs[b]) for b in range(13) for k in range(5)]
                own[xu] += bl[:32]; left.append(bl[32]); own[xl] += bl[33:]
            h2 = [12, 12, 12, 11, 12, 12, 12, 12, 11, 12, 12, 12, 12, 11, 12, 12, 12, 12, 11]
            right = [(sum(h2[:b]), 10 + k, h2[b]) for b in range(19) for k in range(4)]
            bottom = [(r0[b], st_, 12) for st_ in range(9, -1, -1) for b in range(13, 18)]
            deal(right + bottom + left, [(1, 32), (3, 32), (5, 32), (7, 32)])
        elif opt.map == 9:
            deal(band(0, 13, 4), [(0, 28), (2, 28)]); deal(band(52, 13, 4), [(4, 24), (1, 8), (6, 24)])
            deal(band(104, 12, 3), [(4, 7), (0, 3), (1, 24), (2, 1), (6, 7)]); deal(band(140, 12, 7), [(3, 32), (5, 32), (7, 32), (2, 2)])
        elif opt.map == 10:
            deal(band(0, 13, 4), [(0, 28), (2, 28)]); deal(band(52, 13, 4), [(4, 21), (1, 14), (6, 21)])
            deal(band(104, 12, 3), [(4, 10), (0, 4), (1, 16), (2, 2), (6, 10)]); deal(band(140, 12, 7), [(3, 32), (5, 32), (7, 32), (2, 2)])
        else:
            deal(band(0, 13, 4), [(0, 24), (1, 8), (2, 24)]); deal(band(52, 13, 4), [(4, 22), (1, 12), (6, 22)])
            deal(band(104, 12, 3), [(4, 9), (0, 7), (1, 12), (2, 5), (6, 9)]); deal(band(140, 12, 7), [(3, 32), (5, 32), (7, 32), (2, 2)])
    for wg in range(NWG):
        x, n = wg & 7, wg >> 3
        if opt.map == 0:
            idx = 63 * (x & 3) + (32 if x >= 4 else 0) + n
            h, rem = idx // 126, idx % 126
            b, strip = rem // 7, 7 * h + rem % 7
            row0 = b * 112 // 9; nrows = (b + 1) * 112 // 9 - row0
        elif opt.map >= 7:
            if n >= len(own[x]):
                rows.append((0, 0)); continue
            row0, strip, nrows = own[x][n]
        elif opt.map in (5, 6):
            h, v = (x // 2) % 2, x // 4
            ne = 3 if opt.map == 5 else 4
            no = 35 - ne
            if x % 2 == 0 and n < 28:
                strip = 7 * h + n % 7; row0 = 13 * (4 * v + n // 7); nrows = 13
            elif n >= (28 + ne if x % 2 == 0 else no):
                rows.append((0, 0)); continue
            else:
                k = (ne * v + n - 28) if x % 2 == 0 else (2 * ne + no * v + n)
                strip = 7 * h + k % 7; row0 = 104 + 12 * (k // 7); nrows = 12
        elif opt.map >= 2:
            order = {0: 0, 4: 1, 1: 2, 5: 3, 2: 0, 6: 1, 3: 2, 7: 3}
            h = 0 if x in (0, 4, 1, 5) else 1
            if opt.map == 2:
                cnt = [32, 32, 30, 32]; hs = [13, 12, 13, 13, 12, 13, 13, 12, 13, 12, 13, 12, 13, 12, 12, 12, 12, 12]
            elif opt.map == 3:
                cnt = [32, 32, 31, 31]; hs = [13, 13, 12, 13, 13, 13, 13, 12, 13, 12, 12, 13, 12, 12, 12, 12, 12, 12]
            else:
                cnt = [32, 32, 32, 30]; hs = [13, 12, 13, 13, 12, 13, 12, 13, 12, 12, 13, 12, 13, 12, 12, 13, 12, 12]
            assert sum(hs) == 224 and sum(cnt) == 126
            o = order[x]
            if n >= cnt[o]:
                rows.append((0, 0)); continue
            k = sum(cnt[:o]) + n
            strip = 7 * h + k % 7; row0 = sum(hs[:k // 7]); nrows = hs[k // 7]
        else:
            h, v = x % 2, (x % 4) // 2
            if x < 4 and n < 28:
                strip = 7 * h + n % 7; row0 = 13 * (4 * v + n // 7); nrows = 13
            elif x < 4 and n == 31:
                rows.append((0, 0)); continue
            else:
                k = (3 * v + n - 28) if x < 4 else (6 + 32 * v + n)
                strip = 7 * h + k % 7; row0 = 104 + 12 * (k // 7); nrows = 12
        for r in range(row0, row0 + nrows):
            assert (r, strip) not in seen; seen.add((r, strip))
        base = ((row0 - 1) * ROWB + strip * 6144 - 384) & 0xffffffff
        qlo = 1 if strip == 0 else 0; qn = (17 if strip == 13 else 18) - qlo
        defer = 1 if (opt.prio == 3 and nrows < 13 and (x % 2 == 0 or (n % 4) < opt.odef)) else 0
        rows.append((base, qlo | qn << 8 | nrows << 16 | defer << 24))
    assert len(seen) == 224 * 14
    return rows

def dma_w(i, kind):
    if kind == 1:
        return (["s_add_u32 m0, s%d, %d" % (sM1, i * 1024), "s_add_u32 s%d, s%d, %d" % (sSo, sW1off, i * 12288)],
                "buffer_load_dwordx4 v%d, %s, s%d offen%s lds" % (vD1, sr(S_W1, 4), sSo, WPOL))
    oo, t = i // 3, i % 3
    return (["s_add_u32 m0, s%d, %d" % (sM2, oo * 3080 + t * 1024), "s_add_u32 s%d, s%d, %d" % (sSo, sW2off, oo * 1536 + t * 128)],
            "buffer_load_dwordx4 v%d, %s, s%d offen%s lds" % (vD2, sr(S_W2, 4), sSo, WPOL))

def set_dma_slot(slot_base_imm):
    e("s_mul_i32 s%d, s%d, 6144" % (sM1, sWave))
    e("s_add_u32 s%d, s%d, %d" % (sM1, sM1, slot_base_imm))
    e("s_mul_i32 s%d, s%d, %d" % (sM2, sWave, W2E))
    e("s_add_u32 s%d, s%d, %d" % (sM2, sM2, slot_base_imm + 24576))


def x_item(a, i):
    off = (" offset:%d" % (128 * a)) if a else ""
    j, sec = i // 2, i % 2
    if i < 7: m = ["s_add_u32 m0, s%d, %d" % (sXm1, a * (PL - 128) + j * 9216 + sec * 4096), "s_nop 0"]
    else:
        r = sXm7 if i == 7 else sXm8
        m = ["s_mov_b32 m0, s%d" % r, "s_add_u32 s%d, s%d, s%d" % (r, r, sXs8)]
    return (("x", a), m + ["buffer_load_dwordx4 v%d, %s, 0 offen%s%s lds" % (vX + i, sr(S_X, 4), off, XPOL)])

def x_voff_a(i):
    n, r, q, f = vU, vU + 1, vU + 2 + min(i, 2), vTB + 10
    l = []
    if i == 0: l += ["v_lshrrev_b32 v%d, 3, v0" % n, "v_and_b32 v%d, 7, v0" % (vU + 5)]
    elif i == 1: l += ["v_add_u32 v%d, 32, v%d" % (n, n)]
    else: l += ["v_bfe_u32 v%d, v0, 3, 3" % n, "v_add_u32 v%d, 64, v%d" % (n, n)]
    l += ["v_mul_u32_u24 v%d, 3641, v%d" % (r, n), "v_lshrrev_b32 v%d, 16, v%d" % (r, r),
          "v_mul_u32_u24 v%d, 18, v%d" % (q, r), "v_sub_u32 v%d, v%d, v%d" % (q, n, q),
          "v_bfe_u32 v%d, v%d, 1, 3" % (f, q), "v_xor_b32 v%d, v%d, v%d" % (f, f, vU + 5),
          "v_mul_u32_u24 v%d, %d, v%d" % (r, ROWB - 18 * 384, r),
          "v_mad_u32_u24 v%d, v%d, s%d, v%d" % (r, n, sC1, r),
          "v_lshl_add_u32 v%d, v%d, 4, v%d" % (vX + i, f, r)]
    return l
def x_voff_b(i, base):
    q = vU + 2 + min(i, 2)
    return ["v_subrev_u32 v%d, s%d, v%d" % (q, sQlo, q), "v_cmp_gt_u32 vcc, s%d, v%d" % (sQn, q),
            "v_add_u32 v%d, s%d, v%d" % (vX + i, base, vX + i), "s_nop 0",
            "v_cndmask_b32 v%d, v%d, v%d, vcc" % (vX + i, vU + 6, vX + i)]
for n in range(288): assert (n * 3641) >> 16 == n // 18

def head():
    e("s_cmp_ge_u32 s2, %d" % NWG)
    e("s_cbranch_scc1 L_exit")
    st("start")
    e("s_load_dwordx2 %s, s[0:1], 0" % sr(S_X, 2))
    e("s_load_dwordx2 %s, s[0:1], 8" % sr(S_T, 2))
    e("s_getpc_b64 %s" % sr(sEx, 2))
    lab("L_pf")
    e("s_lshl_b32 s%d, s2, 3" % sT0)
    e("s_add_u32 s%d, s%d, L_wgtab-L_pf" % (sT0, sT0))
    e("s_load_dwordx2 %s, %s, s%d" % (sr(sTb, 2), sr(sEx, 2), sT0))
    if opt.pf:
        e("s_lshr_b32 s%d, s2, 3" % sT3)
        e("s_lshl_b32 s%d, s%d, 12" % (sT3, sT3))
        e("v_lshrrev_b32 v%d, 3, v0" % (vTB + 8))
        e("v_lshl_add_u32 v%d, v%d, 7, s%d" % (vTB + 8, vTB + 8, sT3))
        e("v_min_u32 v%d, L_exit-L_pf, v%d" % (vTB + 8, vTB + 8))
        vm.issue_now("dw", ["global_load_dword v%d, v%d, %s" % (vTB + 6, vTB + 8, sr(sEx, 2))])
    e("v_lshrrev_b32 v%d, 6, v0" % vS)
    e("s_movk_i32 s%d, 384" % sC1)
    e("v_readfirstlane_b32 s%d, v%d" % (sWave, vS))
    for l in x_voff_a(0): e(l)
    e("v_bfrev_b32 v%d, 2" % (vU + 6))
    e("v_lshlrev_b32 v%d, 4, v0" % vTmp)
    e("s_mov_b32 s%d, %d" % (S_X + 2, XBYTES))
    e("s_mov_b32 s%d, 0x20000" % (S_X + 3))
    e("s_movk_i32 s%d, 3456" % (S_T + 2))
    e("s_mov_b32 s%d, s%d" % (S_T + 3, S_X + 3))
    e("s_lshl_b32 s%d, s%d, 10" % (sXm1, sWave))
    e("s_add_u32 s%d, s%d, %d" % (sXm1, sXm1, XB))
    e("s_waitcnt lgkmcnt(0)")
    st("kernarg")
    vm.issue_now("dw", ["buffer_load_dwordx4 %s, v%d, %s, 0 offen" % (vr(vDW, 4), vTmp, sr(S_T, 4))])
    e("s_load_dwordx2 %s, s[0:1], 16" % sr(S_W1, 2))
    e("s_load_dwordx2 %s, s[0:1], 32" % sr(S_W2, 2))
    e("s_load_dwordx2 %s, s[0:1], 56" % sr(S_O, 2))
    e("s_load_dwordx2 %s, s[0:1], 24" % sr(S_B, 2))
    e("s_load_dwordx4 %s, s[0:1], 40" % sr(S_G, 4))
    if opt.stamps: e("s_load_dwordx4 %s, s[0:1], 64" % sr(sPtr + 16, 4))
    e("s_and_b32 s%d, s%d, 0xff" % (sQlo, sTb + 1))
    e("s_bfe_u32 s%d, s%d, 0x80008" % (sQn, sTb + 1))
    e("s_bfe_u32 s%d, s%d, 0x80010" % (sNrows, sTb + 1))
    if opt.map == 11:
        e("s_cmp_lt_u32 s%d, 13" % sNrows)
        e("s_cbranch_scc1 L_body0")
    else:
        e("s_cmp_eq_u32 s%d, 12" % sNrows)
        e("s_cbranch_scc1 L_body0")
        if opt.map:
            e("s_cmp_eq_u32 s%d, 0" % sNrows)
            e("s_cbranch_scc1 L_exit")

def issue_plane0(L, filler):
    add = lambda i: ["v_add_u32 v%d, s%d, v%d" % (vX + i, sC2, vX + i - 2)]
    va1 = x_voff_a(1); va8 = x_voff_a(8)
    sc = ["s_add_u32 s%d, s%d, %d" % (sXm7, sXm1, 3 * 9216 + 4096), "s_mul_i32 s%d, s%d, 9216" % (sXm8, sWave),
          "s_add_u32 s%d, s%d, %d" % (sXm8, sXm8, XB + 8192), "s_mul_i32 s%d, s%d, s%d" % (sT2, sWave, sC2),
          "s_add_u32 s%d, s%d, s%d" % (sT2, sT2, sTb), "s_cmp_lt_u32 s%d, 3" % sWave,
          "s_cselect_b32 s%d, s%d, %d" % (sXm7, sXm7, DUMMY), "s_cselect_b32 s%d, s%d, %d" % (sXm8, sXm8, DUMMY),
          "s_cselect_b32 s%d, %d, 0" % (sXs8, PL - 128), "s_cselect_b32 s%d, s%d, 0x40000000" % (sT2, sT2)]
    seq = [(x_voff_b(0, sTb), 0), (["s_mov_b32 s%d, %d" % (sC2, 4 * ROWB)] + add(2), 2), (add(4) + va1, 4),
           (add(6) + x_voff_b(1, sTb), 6), (sc, 1), (add(3) + va8, 3), (add(5) + x_voff_b(8, sT2), 5),
           (["s_cmp_lt_u32 s%d, %d" % (sWave, 3 if L else 1), "s_cselect_b32 s%d, s%d, 0x40000000" % (sT3, sC2),
             "v_add_u32 v%d, s%d, v%d" % (vX + 7, sT3, vX + 5)], 7), ([], 8)]
    for n, (pre, i) in enumerate(seq):
        for l in pre: e(l)
        k = len(pre)
        while n >= 2 and k < opt.gap and filler and "vcc" not in filler[0]:
            e(filler.pop(0)); k += 1
        vm.issue_now(*x_item(0, i))
    for a in (1, 2):
        for i in range(9): vm.queue(*x_item(a, i))

def early(L, defer=False, cap=False):
    vm.queue("tab", ["s_waitcnt lgkmcnt(0)", "s_cmp_eq_u32 s%d, 3" % sWave, "s_cselect_b64 %s, %s, %s" % (sr(S_B, 2), sr(S_G, 2), sr(S_B, 2)),
                     "s_movk_i32 s%d, 1536" % (S_B + 2), "s_cselect_b32 s%d, 384, s%d" % (S_B + 2, S_B + 2), "s_mov_b32 s%d, s%d" % (S_B + 3, S_X + 3),
                     "s_cselect_b32 s%d, 63, -1" % sT3, "v_and_b32 v%d, s%d, v0" % (vTB + 7, sT3), "v_lshlrev_b32 v%d, 3, v%d" % (vTB + 7, vTB + 7),
                     "buffer_load_dwordx2 %s, v%d, %s, 0 offen" % (vr(vTB, 2), vTB + 7, sr(S_B, 4))])
    vm.queue("tab", ["s_mov_b64 %s, %s" % (sr(S_G, 2), sr(S_G + 2, 2)), "s_movk_i32 s%d, 384" % (S_G + 2), "s_mov_b32 s%d, s%d" % (S_G + 3, S_X + 3),
                     "v_lshlrev_b32 v%d, 3, v%d" % (vTB + 7, vLane),
                     "buffer_load_dwordx2 %s, v%d, %s, 0 offen" % (vr(vTB + 2, 2), vTB + 7, sr(S_G, 4))])
    fill = capture(setup_early) + ["v_mov_b32 v%d, 0" % (vFb + k) for k in range(4)]
    vm.cap = cap
    if not defer: issue_plane0(L, fill)
    e("s_add_u32 s%d, s%d, %d" % (sBase, sTb, ROWB + 384))
    st("issued")
    build_diag(L, fill, defer)
    vm.cap = False

px, g_, gl, gh = vS + 4, vS + 5, vS + 6, vS + 7
def setup_early():
    t0, t1, t2 = vS, vS + 1, vS + 2
    e("v_and_b32 v%d, 63, v0" % vLane)
    for j in range(8): e("v_mov_b32 v%d, 0" % (vQ + 2 * j + 1 - j // 4))
    cm("image write address: tap = tid/24 -> (pair, half)")
    code = [0, 1, 4, 2, 3, 5, 8, 9, 7, 6, 15]
    lut = sum(c << (4 * i) for i, c in enumerate(code))
    e("s_mov_b32 s%d, 0x%08x" % (sLut, lut & 0xffffffff))
    e("s_mov_b32 s%d, 0x%08x" % (sLut + 1, lut >> 32))
    e("v_mul_u32_u24 v%d, 2731, v0" % t0)
    e("v_lshrrev_b32 v%d, 16, v%d" % (t0, t0))
    e("v_mul_u32_u24 v%d, 24, v%d" % (t1, t0))
    e("v_sub_u32 v%d, v0, v%d" % (t1, t1))
    e("v_lshlrev_b32 v%d, 2, v%d" % (t0, t0))
    e("v_lshrrev_b64 %s, v%d, %s" % (vr(t2, 2), t0, sr(sLut, 2)))
    e("v_and_b32 v%d, 1, v%d" % (t0, t2))
    e("v_lshlrev_b32 v%d, 3, v%d" % (t0, t0))
    e("v_lshl_add_u32 v%d, v%d, 4, v%d" % (t0, t1, t0))
    e("v_bfe_u32 v%d, v%d, 1, 3" % (t2, t2))
    e("v_mul_u32_u24 v%d, 384, v%d" % (t1, t2))
    e("v_cmp_gt_u32 vcc, 5, v%d" % t2)
    e("v_add_u32 v%d, v%d, v%d" % (t0, t0, t1))
    e("v_mov_b32 v%d, %d" % (t1, OOB))
    e("v_cndmask_b32 v%d, v%d, v%d, vcc" % (vU + 7, t1, t0))
    e("v_and_b32 v%d, 15, v%d" % (px, vLane))
    e("v_lshrrev_b32 v%d, 4, v%d" % (g_, vLane))
    e("v_and_b32 v%d, 1, v%d" % (gl, g_))
    e("v_lshrrev_b32 v%d, 1, v%d" % (gh, g_))
    cm("image read addresses (invalid lanes out of range -> read 0)")
    e("v_lshrrev_b32 v%d, 3, v%d" % (t0, px))
    e("v_xor_b32 v%d, v%d, v%d" % (t0, t0, gl))
    e("v_mul_u32_u24 v%d, %d, v%d" % (t0, OOB, t0))
    e("v_lshl_add_u32 v%d, v%d, 4, v%d" % (t0, gl, t0))
    e("v_and_b32 v%d, 7, v%d" % (t1, px))
    e("v_mul_u32_u24 v%d, %d, v%d" % (t1, JS, t1))
    e("v_add_u32 v%d, v%d, v%d" % (t0, t0, t1))
    e("v_mul_u32_u24 v%d, 384, v%d" % (t1, gh))
    e("v_add_u32 v%d, v%d, v%d" % (vIA, t0, t1))
    e("v_xor_b32 v%d, 1, v%d" % (t1, gh))
    e("v_mul_u32_u24 v%d, %d, v%d" % (t1, OOB, t1))
    e("v_add_u32 v%d, v%d, v%d" % (vIA + 1, t0, t1))
    e("s_lshl_b32 s%d, s%d, 5" % (sT0, sWave))
    e("v_add_u32 v%d, s%d, v%d" % (vIA + 2, sT0, vIA))
    e("v_add_u32 v%d, s%d, v%d" % (vIA + 3, sT0, vIA + 1))

def setup_late():
    t0, t1, t2, t3 = vS, vS + 1, vS + 2, vS + 3
    cm("W1 dma voffset")
    e("v_lshrrev_b32 v%d, 3, v%d" % (t0, vLane))
    e("v_and_b32 v%d, 7, v%d" % (t1, vLane))
    e("v_and_b32 v%d, 6, v%d" % (t2, t0))
    e("v_xor_b32 v%d, v%d, v%d" % (t1, t1, t2))
    e("v_mul_u32_u24 v%d, 1536, v%d" % (t0, t0))
    e("v_lshl_add_u32 v%d, v%d, 4, v%d" % (vD1, t1, t0))
    e("s_mul_i32 s%d, s%d, %d" % (sT0, sWave, 48 * 1536))
    e("v_add_u32 v%d, s%d, v%d" % (vD1, sT0, vD1))
    cm("W2 dma voffset")
    e("v_bfe_u32 v%d, v%d, 2, 3" % (t0, vLane))
    e("v_and_b32 v%d, 4, v%d" % (t1, t0))
    e("v_add_u32 v%d, v%d, v%d" % (t0, t0, t1))
    e("v_mul_u32_u24 v%d, 384, v%d" % (t0, t0))
    e("v_lshl_add_u32 v%d, v%d, 6, v%d" % (t0, gh, t0))
    e("v_and_b32 v%d, 3, v%d" % (t1, vLane))
    e("v_lshl_add_u32 v%d, v%d, 4, v%d" % (vD2, t1, t0))
    e("s_mul_i32 s%d, s%d, %d" % (sT0, sWave, 16 * 384))
    e("v_add_u32 v%d, s%d, v%d" % (vD2, sT0, vD2))
    e("s_mov_b32 s%d, %d" % (S_W1 + 2, 192 * 768 * 2))
    e("s_mov_b32 s%d, s%d" % (S_W1 + 3, S_X + 3))
    e("s_mov_b64 %s, %s" % (sr(S_W2 + 2, 2), sr(S_W1 + 2, 2)))
    e("s_mov_b64 %s, %s" % (sr(S_O + 2, 2), sr(S_X + 2, 2)))
    set_dma_slot(0)
    e("s_mov_b32 s%d, 0" % sW1off)
    cm("sparse index: every group selects (row%4, (row+1)%4)")
    e("v_add_u32 v%d, 1, v%d" % (t0, t1))
    e("v_and_b32 v%d, 3, v%d" % (t0, t0))
    e("v_lshl_add_u32 v%d, v%d, 2, v%d" % (t0, t0, t1))
    e("v_mul_u32_u24 v%d, 0x1111, v%d" % (vIdx, t0))
    cm("conv B-frag addresses")
    e("s_mul_i32 s%d, s%d, %d" % (sT0, sWave, 3 * PR))
    e("s_add_u32 s%d, s%d, %d" % (sT0, sT0, XB))
    e("s_lshl_b32 s%d, s%d, 5" % (sT1, sWave))
    for kind, dst, ldst in ((0, vF, vLF), (1, vGa, vLG), (2, vRA, None)):
        if kind == 0: e("v_add_u32 v%d, v%d, v%d" % (t0, gl, px))
        else: e("v_add_u32 v%d, %d, v%d" % (t0, 2 if kind == 1 else 1, px))
        e("v_bfe_u32 v%d, v%d, 1, 3" % (t1, t0))
        e("v_xor_b32 v%d, v%d, v%d" % (t1, t1, gh if kind < 2 else g_))
        e("v_lshlrev_b32 v%d, 7, v%d" % (t0, t0))
        e("v_lshl_add_u32 v%d, v%d, 4, v%d" % (t0, t1, t0))
        if kind == 1:
            e("v_mul_u32_u24 v%d, %d, v%d" % (t1, PR, gl))
            e("v_add_u32 v%d, v%d, v%d" % (t0, t0, t1))
        if kind == 2: e("v_add_u32 v%d, %d, v%d" % (t0, PR, t0))
        e("v_add_u32 v%d, s%d, v%d" % (dst, sT0, t0))
        if kind < 2:
            for k in range(1, 4): e("v_xor_b32 v%d, %d, v%d" % (dst + k, 32 * k, dst))
            e("v_xor_b32 v%d, s%d, v%d" % (t0, sT1, t0))
            e("v_add_u32 v%d, %d, v%d" % (ldst, XB + 12 * PR, t0))
        else:
            e("v_xor_b32 v%d, 64, v%d" % (dst + 1, dst))
    cm("L exchange addresses")
    e("s_lshr_b32 s%d, s%d, 1" % (sT0, sWave))
    e("s_lshl_b32 s%d, s%d, 10" % (sT0, sT0))
    e("s_and_b32 s%d, s%d, 1" % (sT1, sWave))
    e("s_lshl_b32 s%d, s%d, 3" % (sT1, sT1))
    e("s_add_u32 s%d, s%d, s%d" % (sT0, sT0, sT1))
    e("v_lshl_add_u32 v%d, v%d, 4, s%d" % (vLW, vLane, sT0))
    e("v_lshlrev_b32 v%d, 5, v%d" % (vLSr, px))
    e("s_lshl_b32 s%d, s%d, 2" % (sT0, sWave))
    e("v_lshl_add_u32 v%d, v%d, 4, v%d" % (vLSw, gh, vLSr))
    e("v_add_u32 v%d, s%d, v%d" % (vLSw, sT0, vLSw))
    cm("main-loop LDS addresses")
    e("v_bfe_u32 v%d, v%d, 2, 3" % (t0, vLane))
    e("v_and_b32 v%d, 3, v%d" % (t2, vLane))
    e("v_lshlrev_b32 v%d, 7, v%d" % (t3, t0))
    e("v_lshl_add_u32 v%d, v%d, 10, v%d" % (t3, gh, t3))
    e("v_lshl_add_u32 v%d, v%d, 3, v%d" % (t3, t2, t3))
    e("v_lshrrev_b32 v%d, 1, v%d" % (vA1, t0))
    e("v_xor_b32 v%d, s%d, v%d" % (vA1, sWave, vA1))
    e("v_lshl_add_u32 v%d, v%d, 5, v%d" % (vA1, vA1, t3))
    for p in range(1, 4): e("v_xor_b32 v%d, %d, v%d" % (vA1 + p, 32 * p, vA1))
    e("v_mul_u32_u24 v%d, 3080, v%d" % (t3, gl))
    e("v_lshl_add_u32 v%d, v%d, 8, v%d" % (t3, gh, t3))
    e("v_lshl_add_u32 v%d, v%d, 4, v%d" % (t3, px, t3))
    e("v_lshlrev_b32 v%d, 4, v%d" % (t2, g_))
    for p in range(4):
        e("s_xor_b32 s%d, s%d, %d" % (sT0, sWave, p))
        e("s_mul_i32 s%d, s%d, %d" % (sT1, sT0, W2E))
        e("s_add_u32 s%d, s%d, %d" % (sT1, sT1, SLOT + 24576))
        e("v_add_u32 v%d, s%d, v%d" % (vA2 + p, sT1, t3))
    assert TAB_B1 % 256 == 0
    e("s_lshl_b32 s%d, s%d, 6" % (sT0, sWave))
    e("s_add_u32 s%d, s%d, %d" % (sT0, sT0, TAB_B1))
    e("v_add_u32 v%d, s%d, v%d" % (vAb, sT0, t2))
    for p in range(1, 4): e("v_xor_b32 v%d, %d, v%d" % (vAb + p, 64 * p, vAb))
    e("v_lshlrev_b32 v%d, 5, v%d" % (vTab, g_))
    e("v_add_u32 v%d, %d, v%d" % (vTab, TAB_B2, vTab))
    e("v_mul_u32_u24 v%d, 384, v%d" % (vOut, px))
    e("v_add3_u32 v%d, v%d, v%d, s%d" % (vOut, vOut, t2, sBase))

def build_diag(L, early, defer):
    late0 = capture(setup_late)
    zs = ["v_mfma_f32_32x32x16_bf16 %s, %s, %s, 0" % (vr(b, 16), vr(vFb, 4), vr(vFb, 4)) for b in range(160, 256, 16)]
    zs += ["v_mfma_f32_16x16x32_bf16 %s, %s, %s, 0" % (vr(b, 4), vr(vFb, 4), vr(vFb, 4)) for b in range(vLY, vLY + 12, 4)]
    late = []
    for k, l in enumerate(late0):
        late.append(l)
        if k % 10 == 9 and zs: late.append(zs.pop(0))
    assert not zs
    for k, l in enumerate(early):
        e(l)
        if k % 10 == 5: vm.pop()
    cm("sparse-diagonal image")
    vm.wait(lambda t: t == "dw")
    st("dwin")
    for j in range(8):
        d = vQ + 2 * j + j // 4
        if j % 2: e("v_lshrrev_b32 v%d, 16, v%d" % (d, vDW + j // 2))
        else: e("v_and_b32 v%d, 0xffff, v%d" % (d, vDW + j // 2))
    for j in range(8):
        e("ds_write_b64 v%d, %s offset:%d" % (vU + 7, vr(vQ + 2 * j, 2), IMG + j * JS))
    for l in late[:16]: e(l)
    late = late[16:]
    vm.pop()
    st("img")
    e("s_waitcnt lgkmcnt(0)")
    e("s_barrier")
    st("bar")
    rds = []
    for cg in range(12):
        for s_, (a, off) in enumerate(((vIA, 0), (vIA, 768), (vIA + 1, 1536))):
            rds.append("ds_read_b128 %s, v%d offset:%d" % (ar(12 * cg + 4 * s_, 4), a, IMG + off + cg * 32))
    for a_ in range(3 if L else 0):
        for s_, (a, off) in enumerate(((vIA + 2, 0), (vIA + 2, 768), (vIA + 3, 1536))):
            rds.append("ds_read_b128 %s, v%d offset:%d" % (ar(aLD + 12 * a_ + 4 * s_, 4), a, IMG + off + a_ * 128))
    per = (len(late) + 8) // 9
    for f, r in enumerate(rds):
        e(r)
        if f % (len(rds) // 9) == len(rds) // 9 - 1:
            vm.pop()
            for l in late[:per // 2]: e(l)
            if L and opt.fast == 2: vm.pop()
            for l in late[per // 2:per]: e(l)
            late = late[per:]
    assert not late
    for i in range(6):
        sc, ins = dma_w(i, 1); vm.queue("w0", sc + [ins])
    vm.wait(lambda t: t == "tab")
    e("v_mfma_f32_32x32x16_bf16 %s, %s, %s, 0" % (vr(76, 16), vr(vFb, 4), vr(vFb, 4)))
    tables()
    if L:
        e("s_mul_i32 s%d, s%d, %d" % (sT0, sWave, -3 * PR))
        e("s_add_u32 s%d, s%d, %d" % (sT0, sT0, 12 * PR))
        e("s_lshr_b32 s%d, s%d, 1" % (sT1, sWave))
        e("s_mul_i32 s%d, s%d, %d" % (sT1, sT1, PL))
        e("s_add_u32 s%d, s%d, s%d" % (sT0, sT0, sT1))
        e("s_and_b32 s%d, s%d, 1" % (sT1, sWave))
        e("s_lshl_b32 s%d, s%d, 6" % (sT1, sT1))
        e("v_xor_b32 v%d, s%d, v%d" % (vTmp, sT1, vRA))
        e("v_add_u32 v%d, s%d, v%d" % (vTmp, sT0, vTmp))
    if defer:
        w0 = vm.pending; vm.pending = []
        issue_plane0(L, [])
        if opt.w0first: vm.wait(lambda t: t == ("x", 0))
        vm.pending += w0
    while any(tg == ("x", 1) for tg, _ in vm.pending): vm.pop()
    e("s_waitcnt lgkmcnt(0)")
    for b in (92, 108): e("v_mfma_f32_32x32x16_bf16 %s, %s, %s, 0" % (vr(b, 16), vr(vFb, 4), vr(vFb, 4)))
    st("diag")

def tables():
    def unpack_scale(src, dst, scale):
        e("s_mov_b32 s%d, 0x%08x" % (sT0, f2u(scale)))
        for h in range(2):
            e("v_lshlrev_b32 v%d, 16, v%d" % (dst + 2 * h, src + h))
            e("v_and_b32 v%d, 0xffff0000, v%d" % (dst + 2 * h + 1, src + h))
        for k in range(4): e("v_mul_f32 v%d, s%d, v%d" % (dst + k, sT0, dst + k))
    unpack_scale(vTB, vTB + 8, SA)
    unpack_scale(vTB + 2, vTB + 12, 1.0 / SA)
    e("v_add_u32 v%d, %d, v%d" % (vTB + 4, TAB_B1, vTmp))
    e("s_mov_b32 s%d, %d" % (sT0, TAB_G))
    e("v_lshl_add_u32 v%d, v%d, 4, s%d" % (vTB + 5, vLane, sT0))
    e("ds_write_b128 v%d, %s" % (vTB + 4, vr(vTB + 8, 4)))
    e("ds_write_b128 v%d, %s" % (vTB + 5, vr(vTB + 12, 4)))

def res_dst(t, m):
    if m >= 4: return vr(vR45 + 8 * t + 4 * (m - 4), 4)
    if t == 0 and m >= 2: return vr(vR23 + 4 * (m - 2), 4)
    idx = m if t == 0 else 4 * t + m - 2
    return ar(aRes + 4 * idx, 4)
def poff(a): return (a % 2) * PL
def res_rd(t, m):
    return "ds_read_b128 %s, v%d offset:%d" % (res_dst(t, m), vRA + m % 2, poff(m // 2) + t * PR)

def conv_all(L):
    reads = []; mf = []
    lastuse = {}
    nitem = 0
    for a in range(3):
        items = [("m", k) for k in range(4)]
        if L: items.insert(0 if a == 2 else 2, ("l", 0))
        for kind, k in items:
            b = nitem % 2; nitem += 1
            F = (lambda h, c=1: vr(vFb + 4 * h, 4 * c)) if b else (lambda h, c=1: ar(aFb + 4 * h, 4 * c))
            G = (lambda h, c=1: vr(vGb + 4 * h, 4 * c)) if b else (lambda h, c=1: ar(aGb + 4 * h, 4 * c))
            nrow = 3 if kind == "m" else 1
            r0 = len(reads)
            for h in range(nrow + 2):
                reads.append(("ds_read_b128 %s, v%d offset:%d" % (F(h), vF + k if kind == "m" else vLF, poff(a) + h * PR), lastuse.get((b, "F", h), -1), a))
            g0 = len(reads)
            for h in range(nrow + 1):
                reads.append(("ds_read_b128 %s, v%d offset:%d" % (G(h), vGa + k if kind == "m" else vLG, poff(a) + h * PR), lastuse.get((b, "G", h), -1), a))
            A = (lambda s_: ar(12 * (4 * a + k) + 4 * s_, 4)) if kind == "m" else (lambda s_: ar(aLD + 12 * a + 4 * s_, 4))
            Dr = (lambda t: vr(vYt[t] + 4 * (4 * a + k), 4)) if kind == "m" else (lambda t: vr(vLY + 4 * a, 4))
            def sm(t, s_, B, need, uses):
                for u in uses: lastuse[u] = len(mf)
                mf.append(("v_smfmac_f32_16x16x64_bf16 %s, %s, %s, v%d" % (Dr(t), A(s_), B, vIdx), need, a))
            for t in range(nrow):
                sm(t, 0, F(t, 2), r0 + t + 1, [(b, "F", t), (b, "F", t + 1)])
                sm(t, 2, F(t + 1, 2), r0 + t + 2, [(b, "F", t + 1), (b, "F", t + 2)])
            for t in range(nrow):
                sm(t, 1, G(t, 2), g0 + t + 1, [(b, "G", t), (b, "G", t + 1)])
    return reads, mf

def stats_ops(a, L):
    ops = []
    for k in range(4):
        for i in (0, 2):
            for t in range(3):
                y = vr(vYt[t] + 16 * a + 4 * k + i, 2)
                a1, a2 = vr(vS + 4 * t, 2), vr(vS + 4 * t + 2, 2)
                if a == 0 and k == 0 and i == 0:
                    ops += ["v_pk_add_f32 %s, %s, 0 op_sel_hi:[1,0]" % (a1, y), "v_pk_mul_f32 %s, %s, %s" % (a2, y, y)]
                else:
                    ops += ["v_pk_add_f32 %s, %s, %s" % (a1, a1, y), "v_pk_fma_f32 %s, %s, %s, %s" % (a2, y, y, a2)]
        if L and k < 2 and a < 2:
            y = vr(vLY + 4 * a + 2 * k, 2); a1, a2 = vr(vLS, 2), vr(vLS + 2, 2)
            if a == 0 and k == 0: ops += ["v_pk_add_f32 %s, %s, 0 op_sel_hi:[1,0]" % (a1, y), "v_pk_mul_f32 %s, %s, %s" % (a2, y, y)]
            else: ops += ["v_pk_add_f32 %s, %s, %s" % (a1, a1, y), "v_pk_fma_f32 %s, %s, %s, %s" % (a2, y, y, a2)]
    return ops

def finish_ops(a, b, sc, sh):
    return ["v_fma_f32 v%d, -v%d, v%d, v%d" % (b, a, a, b), "v_max_f32 v%d, 0, v%d" % (b, b),
            "v_add_f32 v%d, 0x%08x, v%d" % (b, f2u(1e-5), b), "v_rsq_f32 v%d, v%d" % (b, b),
            "v_mul_f32 v%d, 0x%08x, v%d" % (sc, f2u(SA), b), "v_mul_f32 v%d, v%d, v%d" % (sh, a, sc)]

def reduce_chain(t):
    s1, s2 = vS + 4 * t, vS + 4 * t + 2
    a, b = s1 + 1, s2 + 1
    return ["v_add_f32 v%d, v%d, v%d" % (a, s1, s1 + 1), "v_add_f32 v%d, v%d, v%d" % (b, s2, s2 + 1),
            "v_permlane32_swap_b32 v%d, v%d" % (a, b), "v_add_f32 v%d, v%d, v%d" % (a, a, b), "v_mov_b32 v%d, v%d" % (b, a),
            "v_permlane16_swap_b32 v%d, v%d" % (a, b), "v_add_f32 v%d, v%d, v%d" % (a, a, b),
            "v_mul_f32 v%d, 0x%08x, v%d" % (a, f2u(1.0 / 192.0), a), "v_mov_b32 v%d, v%d" % (b, a),
            "v_permlane32_swap_b32 v%d, v%d" % (a, b)] + finish_ops(a, b, s1, s2)

def ln_norm(y0, n, dst, sc, sh):
    LAG = min(6, n)
    for k in range(n + LAG):
        if k < n:
            y = y0 + 2 * k
            e("v_pk_fma_f32 %s, %s, %s, %s op_sel_hi:[1,0,0] neg_lo:[0,0,1] neg_hi:[0,0,1]" % (vr(y, 2), vr(y, 2), vr(sc, 2), vr(sh, 2)))
        if k >= LAG:
            j = k - LAG
            e("v_cvt_pk_bf16_f32 v%d, v%d, v%d" % (dst + j, y0 + 2 * j, y0 + 2 * j + 1))
        if k % 8 == 7: vm.pop()

def prologue(L):
    vm.wait(lambda t: t == ("x", 0))
    e("s_barrier")
    st("x0in")
    reads, mf = conv_all(L)
    seq = [0]; rseq = {}
    def lds(txt): e(txt); seq[0] += 1
    plane = [0]
    nis = [0]
    def issue_read():
        r = reads[nis[0]]
        if r[2] > plane[0]:
            a = plane[0]
            if a == 1:
                for r_ in [vF + k for k in range(8)] + ([vLF, vLG] if L else []):
                    e("v_add_u32 v%d, %d, v%d" % (r_, 2 * PL, r_))
            vm.wait(lambda t: t == ("x", a + 1))
            e("s_barrier")
            st("x%din" % (a + 1))
            plane[0] += 1
        lds(r[0]); rseq[nis[0]] = seq[0]; nis[0] += 1
    for _ in range(opt.dist): issue_read()
    n0 = nis[0]
    e("s_waitcnt lgkmcnt(%d)" % (seq[0] - rseq[mf[0][1]]))
    pend = []
    la, lb = vLS + 1, vLS + 3
    for i, (txt, need, a) in enumerate(mf):
        e(txt)
        last_of_plane = i + 1 == len(mf) or mf[i + 1][2] != a
        if i + 1 < len(mf):
            nxt = mf[i + 1][1]
            while nis[0] <= nxt:
                assert reads[nis[0]][1] <= i
                issue_read()
            if not last_of_plane and (nxt > need or i == 0): e("s_waitcnt lgkmcnt(%d)" % min(14, seq[0] - rseq[nxt]))
            target = min(len(reads), n0 + -(-(i + 1) * len(reads) // len(mf)))
            while nis[0] < target and nis[0] - nxt <= 13 and reads[nis[0]][1] <= i: issue_read()
        first = min(k for k in range(len(mf)) if mf[k][2] == a)
        if (i - first) % [opt.c0, 5, 3][a] == 1: vm.pop()
        if a == 2 and L and i == first + 8:
            for k in range(4):
                y = vLY + 8 + k
                pend += ["v_add_f32 v%d, v%d, v%d" % (vLS + k % 2, vLS + k % 2, y), "v_fmac_f32 v%d, v%d, v%d" % (vLS + 2 + k % 2, y, y)]
            pend += ["v_add_f32 v%d, v%d, v%d" % (la, vLS, vLS + 1), "v_add_f32 v%d, v%d, v%d" % (lb, vLS + 2, vLS + 3), None,
                     "v_permlane32_swap_b32 v%d, v%d" % (la, lb), "v_add_f32 v%d, v%d, v%d" % (la, la, lb), "v_mov_b32 v%d, v%d" % (lb, la), None,
                     "v_permlane16_swap_b32 v%d, v%d" % (la, lb), "v_add_f32 v%d, v%d, v%d" % (la, la, lb), "W"]
        if pend:
            o = pend.pop(0)
            if o == "W": lds("ds_write_b32 v%d, v%d offset:%d" % (vLSw, la, XST))
            elif o: e(o)
        if last_of_plane:
            st("mf%d" % a)
            assert not pend
            if a == 1: assert not any(tg[0] == "x" for tg, _ in vm.pending)
            for t in range(3):
                for m in (2 * a, 2 * a + 1): lds(res_rd(t, m))
            if a == 1:
                if L: lds("ds_read_b128 %s, v%d" % (vr(vRL, 4), vTmp))
                for r_ in [vRA, vRA + 1] + ([vTmp] if L else []): e("v_add_u32 v%d, %d, v%d" % (r_, 2 * PL, r_))
            ops = stats_ops(a, L)
            if a == 2:
                while vm.pending: vm.pop()
                for o in ops[:36]: e(o)
                ops = ops[36:]
                vm.wait(lambda t: t == "w0")
                e("s_waitcnt lgkmcnt(0)")
                e("s_barrier")
                if L:
                    e("ds_read_b128 %s, v%d offset:%d" % (vr(vFb, 4), vLSr, XST))
                    e("ds_read_b128 %s, v%d offset:%d" % (vr(vFb + 4, 4), vLSr, XST + 16))
                set_dma_slot(SLOT)
                e("s_mov_b32 s%d, 128" % sW1off)
                e("s_mov_b32 s%d, 0" % sW2off)
                for kind in (1, 2):
                    for k in range(6):
                        sc, ins = dma_w(k, kind); vm.queue("w1", sc + [ins])
                vm.pop()
            for o in ops: e(o)
            if a < 2: e("s_waitcnt lgkmcnt(%d)" % min(14, seq[0] - rseq[mf[i + 1][1]]))
            st("conv%d" % a)
    assert nis[0] == len(reads)
    p = vFb
    ch = [reduce_chain(t) for t in range(3)]
    if L:
        ch.append([None, None, "s_waitcnt lgkmcnt(0)", "v_pk_add_f32 %s, %s, %s" % (vr(p, 2), vr(p, 2), vr(p + 2, 2)),
                   "v_pk_add_f32 %s, %s, %s" % (vr(p + 4, 2), vr(p + 4, 2), vr(p + 6, 2)),
                   "v_add_f32 v%d, v%d, v%d" % (p, p, p + 1), "v_add_f32 v%d, v%d, v%d" % (p + 1, p + 4, p + 5),
                   "v_mul_f32 v%d, 0x%08x, v%d" % (p, f2u(1.0 / 192.0), p), "v_mul_f32 v%d, 0x%08x, v%d" % (p + 1, f2u(1.0 / 192.0), p + 1),
                   "v_lshlrev_b32 v%d, 4, v%d" % (vX + 8, vLane)] + finish_ops(p, p + 1, p + 2, p + 4))
    for k in range(len(ch[0])):
        for c in ch:
            if c[k]: e(c[k])
        if k % 5 == 1: vm.pop()
    st("red")
    if L:
        ln_norm(vLY, 6, vLY, p + 2, p + 4)
        for a in range(3): e("ds_write_b64 v%d, %s offset:%d" % (vLW, vr(vLY + 2 * a, 2), XCH + a * 2048))
    for t in range(3):
        ln_norm(vYt[t], 24, vB1 + 24 * t, vS + 4 * t, vS + 4 * t + 2)
        if t == 0 and L: e("ds_read_b128 %s, v%d" % (vr(vRL + 4, 4), vTmp))
    if L:
        pass
    while vm.pending: vm.pop()
    if L:
        e("s_waitcnt lgkmcnt(0)")
        e("s_barrier")
        for kb in range(6): e("ds_read_b128 %s, v%d offset:%d" % (vr(vB1 + 72 + 4 * kb, 4), vX + 8, XCH + kb * 1024))
        e("s_cmp_eq_u32 s%d, 0" % sWave)
        e("s_cselect_b32 s%d, 0, %d" % (sT0, OOB))
        e("v_add_u32 v%d, s%d, v%d" % (vTmp + 1, sT0, vTab))
    st("conv3")

def acc_init(L):
    r = []
    for ct in range(12):
        for t in range(1):
            r.append("ds_read_b128 %s, v%d offset:%d" % (ar(48 * t + 4 * ct, 4), vTab, (ct // 2) * 128 + (ct % 2) * 16))
        if L:
            r.append("ds_read_b128 %s, v%d offset:%d" % (ar(144 + 4 * ct, 4), vTmp + 1, (ct // 2) * 128 + (ct % 2) * 16))
    return r

def gelu_pair(x0, x1, dst, tmp):
    a, b = tmp, tmp + 1
    if opt.gelu == 1:
        return [("v_fma_f32 v%d, -v%d, v%d, -s%d" % (a, x0, x0, sK), 4), ("v_fma_f32 v%d, -v%d, v%d, -s%d" % (b, x1, x1, sK), 4),
                ("v_mul_f32 v%d, v%d, v%d" % (a, x0, a), 4), ("v_mul_f32 v%d, v%d, v%d" % (b, x1, b), 4),
                ("v_exp_f32 v%d, v%d" % (a, a), 8), ("v_exp_f32 v%d, v%d" % (b, b), 8),
                ("v_add_f32 v%d, 1.0, v%d" % (a, a), 4), ("v_add_f32 v%d, 1.0, v%d" % (b, b), 4),
                ("v_rcp_f32 v%d, v%d" % (a, a), 8), ("v_rcp_f32 v%d, v%d" % (b, b), 8),
                ("v_mul_f32 v%d, v%d, v%d" % (a, x0, a), 4), ("v_mul_f32 v%d, v%d, v%d" % (b, x1, b), 4),
                ("v_cvt_pk_bf16_f32 v%d, v%d, v%d" % (dst, a, b), 4)]
    sd = "dst_sel:WORD_1 dst_unused:UNUSED_PRESERVE src0_sel:WORD_1"
    return [("v_cvt_pk_f16_f32 v%d, v%d, v%d" % (a, x0, x1), 4),
            ("v_pk_fma_f16 v%d, v%d, v%d, s%d" % (b, a, a, sK), 4),
            ("v_pk_mul_f16 v%d, v%d, v%d neg_lo:[1,0] neg_hi:[1,0]" % (a, a, b), 4),
            ("v_exp_f16%s v%d, v%d" % ("_e64" if opt.e64 else "", b, a), 8),
            ("v_exp_f16_sdwa v%d, v%d %s" % (b, a, sd), 8),
            ("v_pk_add_f16 v%d, v%d, 1.0 op_sel_hi:[1,0]" % (a, b), 4),
            ("v_rcp_f16%s v%d, v%d" % ("_e64" if opt.e64 else "", b, a), 8),
            ("v_rcp_f16_sdwa v%d, v%d %s" % (b, a, sd), 8),
            ("v_fma_mix_f32 v%d, v%d, v%d, 0 op_sel_hi:[0,1,0]" % (a, x0, b), 4),
            ("v_fma_mix_f32 v%d, v%d, v%d, 0 op_sel:[0,1,0] op_sel_hi:[0,1,0]" % (b, x1, b), 4),
            ("v_cvt_pk_bf16_f32 v%d, v%d, v%d" % (dst, a, b), 4)]

def gelu_ops(c, L, tiles=(0, 1, 2)):
    hb = vH + 24 * (c % 2); pb = vP + 12 * (c % 2)
    quads = []
    for t in tiles:
        for ep in range(2):
            quads.append((hb + 8 * t + 4 * ep, pb + 4 * t + 2 * ep))
    if L and c % 2 == 0: quads.append((vHL, vPL))
    ops = []
    for n, (x, d) in enumerate(quads):
        tmp = vT + 4 * (n % 2)
        A = gelu_pair(x, x + 1, d, tmp); B = gelu_pair(x + 2, x + 3, d + 1, tmp + 2)
        if opt.gelu == 1:
            for k in range(0, 12, 2): ops += [A[k], A[k + 1], B[k], B[k + 1]]
            ops += [A[12], B[12]]
        else:
            for k in range(len(A)): ops += [A[k], B[k]]
    return ops

class Frag: pass

def step_scalars():
    return ["s_add_u32 s%d, s%d, s%d" % (sM1, sM1, sDel2),
            "s_add_u32 s%d, s%d, s%d" % (sM2, sM2, sDel2),
            "s_add_u32 s%d, s%d, 128" % (sW1off, sW1off),
            "s_add_u32 s%d, s%d, 24576" % (sW2off, sW2off),
            "s_mov_b32 s%d, s%d" % (sT0, sDel1),
            "s_mov_b32 s%d, s%d" % (sDel1, sDel2),
            "s_mov_b32 s%d, s%d" % (sDel2, sDelta),
            "s_sub_u32 s%d, s%d, 1" % (sCnt, sCnt),
            "s_cmp_lg_u32 s%d, 0" % sCnt]

def build_main(L, c_lo, c_hi, virt, xds={}, xval={}, xwr={}):
    groups = []
    TM = c_hi == 26
    for c in range(c_lo, c_hi + 1 + (1 if virt else 0)):
        step = (c + 1) // 2 if c < 24 or not TM else c - 11
        if c + 1 <= 23 or virt:
            c1 = c + 1
            for ep in range(2):
                pos = 2 * (c1 % 2) + ep
                for kb in range(6):
                    g = Frag(); g.kind = 1; g.period = c; g.step = step; g.pos = pos; g.kb = kb; g.chunk = c1; g.ep = ep
                    groups.append(g)
        if c - 1 >= 0:
            c2 = min(c - 1, 23)
            for ct in range(12):
                g = Frag(); g.kind = 2; g.period = c; g.step = step; g.ct = ct; g.chunk = c2
                groups.append(g)
    N = len(groups)
    D, R = opt.D, opt.R
    assert 24 % R == 0 and D < R and D <= 5
    nbias = 0
    for n, g in enumerate(groups):
        g.slot = aRing + 4 * (n % R)
        g.reads = []
        if g.kind == 1:
            if g.kb == 0:
                g.bias = vBias + 4 * (nbias % 2); nbias += 1
                g.reads.append("ds_read_b128 %s, v%d" % (vr(g.bias, 4), vAb + g.pos))
            for h in range(2):
                g.reads.append("ds_read_b64_tr_b16 %s, v%d offset:%d" % (ar(g.slot + 2 * h, 2), vA1 + g.pos, (g.kb * 4 + h * 2) * 1024))
            hb = vH + 24 * (g.chunk % 2)
            g.mf = []
            tiles = [0, 1, 2] + ([3] if (L and g.pos == 0) else [])
            for t in tiles:
                d = (hb + 8 * t + 4 * g.ep) if t < 3 else vHL
                cc = vr(g.bias, 4) if g.kb == 0 else vr(d, 4)
                g.mf.append("v_mfma_f32_16x16x32_bf16 %s, %s, %s, %s" % (vr(d, 4), ar(g.slot, 4), vr(vB1 + 24 * t + 4 * g.kb, 4), cc))
            g.upd = []
            if g.kb == 5 and g.step <= 10: g.upd = ["v_add_u32 v%d, s%d, v%d" % (vA1 + g.pos, sDelta, vA1 + g.pos)]
            if g.kb == 0 and g.step <= 10: g.upd = ["v_add_u32 v%d, 0x100, v%d" % (vAb + g.pos, vAb + g.pos)]
        else:
            m, o = g.ct // 2, g.ct % 2
            for h in range(2):
                pos = 2 * (g.chunk % 2) + h
                g.reads.append("ds_read_b64_tr_b16 %s, v%d offset:%d" % (ar(g.slot + 2 * h, 2), vA2 + pos, m * 512 + o * 8))
            pb = vP + 12 * (g.chunk % 2)
            g.mf = []
            tiles = [0, 1, 2] + ([3] if (L and g.chunk % 2 == 0) else [])
            if len(tiles) == 4: tiles = [0, 1, 3, 2]
            if g.chunk == 0: tiles = [1, 2] + ([3] if L else []) + [0]
            if TM and g.period >= 24: tiles = [g.period - 24]
            for t in tiles:
                acc = ar(48 * t + 4 * g.ct, 4)
                cin = ar(4 * g.ct, 4) if (g.chunk == 0 and t < 3) else acc
                if t < 3: g.mf.append("v_mfma_f32_16x16x32_bf16 %s, %s, %s, %s" % (acc, ar(g.slot, 4), vr(pb + 4 * t, 4), cin))
                else: g.mf.append("v_mfma_f32_16x16x16_bf16 %s, %s, %s, %s" % (acc, ar(g.slot, 2), vr(vPL, 2), cin))
            g.upd = []
            if g.ct == 11 and g.step <= 11:
                g.upd = ["v_add_u32 v%d, s%d, v%d" % (vA2 + 2 * (g.chunk % 2) + h, sDelta, vA2 + 2 * (g.chunk % 2) + h) for h in range(2)]
    if opt.sg > 1: return emit_chained(L, groups, c_lo, c_hi, TM, xds, xval, xwr)
    steps = [[] for _ in range(16)]
    issued = [0]; lastseq = {}
    pre = []
    def issue(n, dst):
        for r in groups[n].reads:
            dst.append(r); issued[0] += 1
        lastseq[n] = issued[0]
    for n in range(D): issue(n, pre)
    for n in range(D): pre += groups[n].upd
    first_wait = "s_waitcnt lgkmcnt(%d)" % (issued[0] - lastseq[0])
    for c in range(c_lo, c_hi + 1):
        step = (c + 1) // 2 if c < 24 or not TM else c - 11
        dst = steps[step]
        gs = [k for k in range(N) if groups[k].period == c]
        val = gelu_ops(c, L) if 0 <= c <= 23 else []
        if TM and 23 <= c <= 25: val = gelu_ops(23, L, (c - 23,))
        val = val + [(x, 4) for x in xval.get(c, [])]
        xd = list(xds.get(c, []))
        nxd = (len(xd) + len(gs) - 1) // len(gs)
        if c == c_lo:
            burst = 0
            while val and burst < 120:
                pre.append(val[0][0]); burst += val[0][1]; val = val[1:]
            pre.append(first_wait)
        dmas = []; scal = []
        if step <= 11:
            if c % 2 == 1: dmas = [dma_w(i, 1) for i in range(6 if step <= 9 else 0)] + [dma_w(i, 2) for i in range(6 if step <= 10 else 0)]
            else: scal = step_scalars()
        nm = sum(len(groups[k].mf) for k in gs)
        mcost = lambda m: 4 if "16x16x16" in m else 8
        tot = sum(mcost(m) for k in gs for m in groups[k].mf) + sum(x[1] for x in val) + 12 * len(dmas) + 4 * len(xd) + 20 * len([1 for cc, _ in xwr if cc == c])
        for k in gs:
            if k + D < N: tot += 4 * len(groups[k + D].reads) + 4 * len(groups[k + D].upd)
        t = 0.0; vi = 0; mi = 0
        sp = opt.dsp if len(gs) >= 24 else 1
        dmap = {sp * i: d for i, d in enumerate(dmas)}
        for gi, k in enumerate(gs):
            g = groups[k]
            for j, m in enumerate(g.mf):
                tm_ = t
                dst.append(m); t += mcost(m); mi += 1
                extra = []
                if j == len(g.mf) - 1 and k + 1 < N:
                    dst.append("s_waitcnt lgkmcnt(%d)" % min(14, issued[0] - lastseq[k + 1]))
                if j == 0:
                    if gi in dmap: dst.append(dmap[gi][0][0])
                    elif scal: dst.append(scal.pop(0))
                    if k + D < N:
                        issue(k + D, dst); t += 4 * len(groups[k + D].reads)
                        extra = groups[k + D].upd
                if j == len(g.mf) - 1:
                    for _ in range(nxd):
                        if xd: dst.append(xd.pop(0)); issued[0] += 1; t += 4
                if j == min(1, len(g.mf) - 1) and (c, gi) in xwr:
                    dst.append(xwr[(c, gi)]); issued[0] += 1; t += 20
                if j == 1:
                    if gi in dmap:
                        dst.append(dmap[gi][0][1]); dst.append(dmap[gi][1]); t += 12
                    elif gi == len(gs) - 1 and step <= 11 and c % 2 == 0:
                        dst.append("s_mov_b32 s%d, s%d" % (sDelta, sT0))
                for x in extra: dst.append(x); t += 4
                lim = mi * tot / nm
                sw = "16x16x16" in m or (j + 1 < len(g.mf) and "16x16x16" in g.mf[j + 1])
                mingap = (20 if sw else 16) if opt.mg else 0
                if opt.mg and len(g.mf) == 4 and g.kind == 2 and not sw: lim -= opt.kb
                while vi < len(val) and (t + val[vi][1] <= lim + 2 or t - tm_ < mingap):
                    dst.append(val[vi][0]); t += val[vi][1]; vi += 1
        while vi < len(val): dst.append(val[vi][0]); vi += 1
        assert not scal and not xd
    return pre, steps, None

def emit_chained(L, groups, c_lo, c_hi, TM, xds, xval, xwr):
    N = len(groups); R = opt.R; sg = opt.sg
    M = []
    n = 0
    while n < N:
        g = groups[n]
        if g.kind == 1:
            sgp = groups[n:n + sg]
            order = list(range(len(g.mf)))
            if opt.trd and (g.kb // sg) % 2 == 1: order.reverse()
            for jj, j in enumerate(order):
                for k, gg in enumerate(sgp):
                    junction = opt.trd and (k == sg - 1 and jj == len(order) - 1 and g.kb + sg < 6)
                    M.append((gg.mf[j], n + k, k < sg - 1 or junction, g.period))
            n += sg
        else:
            for m in g.mf: M.append((m, n, False, g.period))
            n += 1
    lastuse = {}
    for i, m in enumerate(M): lastuse[m[1]] = i
    steps = [[] for _ in range(16)]
    issued = [0]; lastseq = {}; biasdone = set()
    pre = []
    updq = []
    def issue(n, dst):
        c_ = 0
        for r in groups[n].reads:
            if "b128" in r and n in biasdone: continue
            dst.append(r); issued[0] += 1; c_ += 4
        lastseq[n] = issued[0]
        updq.extend((groups[n].step, u) for u in groups[n].upd)
        return c_
    nf = 0
    for n in range(5): issue(n, pre); nf += 1
    pre.append("s_waitcnt lgkmcnt(%d)" % (issued[0] - lastseq[0]))
    done = lastseq[0]
    marks = {}
    k16 = lambda t: "16x16x16" in t
    for c in range(c_lo, c_hi + 1):
        step = (c + 1) // 2 if c < 24 or not TM else c - 11
        dst = steps[step]
        idx = [i for i, m in enumerate(M) if m[3] == c]
        gfirst = M[idx[0]][1]
        val = gelu_ops(c, L) if 0 <= c <= 23 else []
        if TM and 23 <= c <= 25: val = gelu_ops(23, L, (c - 23,))
        val = val + [(x, 4) for x in xval.get(c, [])]
        xd = list(xds.get(c, []))
        dmas = []; scal = []
        if step <= 11:
            if c % 2 == 1: dmas = [dma_w(i, 1) for i in range(6 if step <= 9 else 0)] + [dma_w(i, 2) for i in range(6 if step <= 10 else 0)]
            else: scal = step_scalars()
        ngr = len(set(M[i][1] for i in idx))
        other = sum(x[1] for x in val) + 12 * len(dmas) + 4 * len(xd) + 20 * len([1 for cc, _ in xwr if cc == c]) + ngr * 9.3 - 4 * sum(1 for i in idx if k16(M[i][0]))
        ntight = sum(1 for i in idx if M[i][2]) if val else 0
        nloose = len(idx) - ntight
        loose = max(8.0, (other - 8.0 * ntight) / nloose)
        nxd = -(-len(xd) // max(1, len([i for i in idx if not M[i][2]]))) if xd else 0
        debt = 0.0; vi = 0; dq = []; seen = {}
        dgap = max(1, (len(idx) * 2 // 3) // max(1, len(dmas))); lastd = -99
        for pos, i in enumerate(idx):
            txt, f, tight, _ = M[i]
            if not val: tight = False
            dst.append(txt)
            seen[f] = seen.get(f, 0) + 1
            used = 0; free_scalar = not k16(txt)
            nxt_tight = pos + 1 < len(idx) and M[idx[pos + 1]][2]
            if i + 1 < len(M):
                fn = M[i + 1][1]
                while nf <= fn:
                    assert lastuse.get(nf - R, -1) <= i
                    used += issue(nf, dst); nf += 1
                if lastseq[fn] > done:
                    dst.append("s_waitcnt lgkmcnt(%d)" % min(14, issued[0] - lastseq[fn])); done = lastseq[fn]; free_scalar = False
            if not dq and dmas and pos - lastd >= dgap:
                sc, ins = dmas.pop(0); dq = [sc[0], sc[1], ins]; lastd = pos
            if free_scalar:
                if len(dq) >= 2: dst.append(dq.pop(0))
                elif scal: dst.append(scal.pop(0))
            for rep_ in range(2 if (not opt.trd and groups[f].kind == 1) else 1):
                can = nf < N and lastuse.get(nf - R, -1) <= i and (opt.trd or not tight)
                if (used == 0 or rep_) and can and not (tight and len(groups[nf].reads) == 3 and nf not in biasdone):
                    if groups[nf].step > step and (step, "nextread") not in marks: marks[(step, "nextread")] = len(dst)
                    used += issue(nf, dst); nf += 1
            if not tight:
                for q in range(nf, min(N, nf + 4)):
                    if len(groups[q].reads) == 3 and q not in biasdone and q >= nf:
                        dst.append(groups[q].reads[0]); issued[0] += 1; used += 4; biasdone.add(q); break
                if len(dq) == 1 and used <= 4: dst.append(dq.pop(0)); used += 12
                for _ in range(nxd):
                    if xd: dst.append(xd.pop(0)); issued[0] += 1; used += 4
                if seen[f] == min(2, len(groups[f].mf)) and (c, f - gfirst) in xwr:
                    dst.append(xwr[(c, f - gfirst)]); issued[0] += 1; used += 20
            if tight:
                while vi < len(val) and used + val[vi][1] <= 8:
                    dst.append(val[vi][0]); used += val[vi][1]; vi += 1
                debt += 8 - used
            else:
                sw = k16(txt) or (i + 1 < len(M) and k16(M[i + 1][0]))
                budget = loose + debt + (4 if k16(txt) else 0)
                need = (16 if k16(txt) else 12) if sw else 8
                while updq and (updq[0][0] <= step or "0x100" in updq[0][1]) and used + 4 <= max(budget, need):
                    dst.append(updq.pop(0)[1]); used += 4
                while vi < len(val) and (used + val[vi][1] <= budget + 2 or used < need or (nxt_tight and vi % 2 == 1 and val[vi][1] == 4)):
                    dst.append(val[vi][0]); used += val[vi][1]; vi += 1
                debt = budget - used
        while vi < len(val): dst.append(val[vi][0]); vi += 1
        if dq:
            for l in dq: dst.append(l)
            dq = []
        assert not scal and not xd and not dmas, (c, scal, xd, dmas)
        if c % 2 == 0 and step <= 11:
            while updq and updq[0][0] <= step: dst.append(updq.pop(0)[1])
            dst.append("s_mov_b32 s%d, s%d" % (sDelta, sT0))
    return pre, steps, marks

def main_part(L):
    tag = "b%d" % L
    ai = acc_init(L)
    xd24, xwr, xv24 = epi_prep(L)
    TM = (opt.tm >> L) & 1
    if TM: pre, steps, marks = build_main(L, -1, 26, False, xds={0: ai, 23: xd24}, xval={23: xv24, 26: unpack_t2()}, xwr=xwr)
    else: pre, steps, marks = build_main(L, -1, 24, False, xds={0: ai, 24: xd24}, xval={24: xv24}, xwr=xwr)
    for j in range(3, 10): assert steps[j] == steps[2], j
    assert opt.unroll in (1, 2, 4)
    e("s_mov_b32 s%d, 0x%08x" % (sK, f2u(KK) if opt.gelu == 1 else f2h(KK) * 0x10001))
    set_dma_slot(2 * SLOT)
    e("s_mov_b32 s%d, 256" % sW1off)
    e("s_mov_b32 s%d, 24576" % sW2off)
    e("s_mov_b32 s%d, %d" % (sDelta, SLOT))
    e("s_mov_b32 s%d, %d" % (sDel1, SLOT))
    e("s_mov_b32 s%d, %d" % (sDel2, -2 * SLOT))
    e("s_mov_b32 s%d, 10" % sCnt)
    for s in pre: e(s)
    def with_bar(body):
        body = list(body)
        bar = ["s_waitcnt vmcnt(0)"] + ([] if opt.nobar else ["s_barrier"])
        if opt.barpos:
            idx = [i for i, l in enumerate(body) if l.startswith("v_mfma")][-opt.barpos]
            return body[:idx + 1] + bar + body[idx + 1:]
        return body + bar
    s0 = with_bar(steps[0])
    idx = [i for i, l in enumerate(s0) if l.startswith("v_mfma")][-3 * (opt.D + 2)]
    if marks: idx = [i for i, l in enumerate(s0) if l.startswith("v_mfma") and i < marks[(0, "nextread")]][-2]
    s0 = s0[:idx + 1] + ["s_waitcnt vmcnt(12)", "s_barrier"] + s0[idx + 1:]
    for s in s0: e(s)
    st("step0")
    for s in with_bar(steps[1]): e(s)
    out.append(".p2align 6")
    lab("L_loop_%s" % tag)
    for u in range(opt.unroll):
        for s in with_bar(steps[2]): e(s)
    e("s_cbranch_scc1 L_loop_%s" % tag)
    for s in with_bar(steps[10]): e(s)
    for s in steps[11]: e(s)
    st("loop")
    epi_scalars(L)
    for s in steps[12]: e(s)
    st("p24")
    epilogue(L, steps[13:16] if TM else None)

RED = SLOT
STG = 2 * SLOT
vG = vH
vWA = vA1
vRd = vA1 + 2
vSt = vA1 + 3
vX0 = vB1 + 48
def gam(L, m):
    if (opt.tm >> L) & 1 and m >= 3: return vB1 + 72 + 8 * (m - 3)
    return vG + 8 * m
def unp_reg(L, t, m):
    if (opt.tm >> L) & 1:
        if t == 0 and 2 <= m <= 4: return vX0 + 8 * (m - 2)
        if t == 2: return (vX0 + 8 * m) if m < 3 else (vH + 24 + 8 * (m - 3))
        return None
    return vX0 + 8 * (m - 2) if (t == 0 and m >= 2) else None
def unpack_t2():
    ops = []
    for m in range(6):
        src = res_dst(2, m); base = int(src[2:src.index(":")]); d = unp_reg(0, 2, m)
        if src[0] == "a":
            for k in range(4): ops.append("v_accvgpr_read_b32 v%d, a%d" % (d + 2 * k + 1, base + k))
            for k in range(4):
                ops += ["v_lshlrev_b32 v%d, 16, v%d" % (d + 2 * k, d + 2 * k + 1), "v_and_b32 v%d, 0xffff0000, v%d" % (d + 2 * k + 1, d + 2 * k + 1)]
        else:
            for k in range(4):
                ops += ["v_lshlrev_b32 v%d, 16, v%d" % (d + 2 * k, base + k), "v_and_b32 v%d, 0xffff0000, v%d" % (d + 2 * k + 1, base + k)]
    return ops
def epi_prep(L):
    xd = ["ds_read_b128 %s, v%d offset:%d" % (vr(gam(L, ct // 2) + 4 * (ct % 2), 4), vTab, TAB_G - TAB_B2 + (ct // 2) * 128 + (ct % 2) * 16) for ct in range(12)]
    xv23 = {}
    if L:
        for ct in range(12):
            xv23[(23, ct + 2) if ct < 10 else (24, 2 * (ct - 10) + 2)] = "ds_write_b128 v%d, %s offset:%d" % (vTmp + 1, ar(144 + 4 * ct, 4), ct * 1024)
    t0, t1 = vAb + 2, vAb + 3
    xv = ["v_and_b32 v%d, 15, v%d" % (t0, vLane), "v_lshrrev_b32 v%d, 4, v%d" % (t1, vLane),
          "v_lshl_add_u32 v%d, v%d, 7, s%d" % (vWA, t0, sT2), "v_and_b32 v%d, 7, v%d" % (t0, t0),
          "v_xor_b32 v%d, v%d, v%d" % (t1, t0, t1), "v_lshl_add_u32 v%d, v%d, 4, v%d" % (vWA, t1, vWA),
          "v_xor_b32 v%d, 64, v%d" % (vWA + 1, vWA),
          "v_lshrrev_b32 v%d, 3, v%d" % (t1, vLane), "v_xor_b32 v%d, v%d, v%d" % (vRd, t1, vLane),
          "v_lshl_add_u32 v%d, v%d, 4, s%d" % (vRd, vRd, sT2),
          "v_mul_u32_u24 v%d, 384, v%d" % (t1, t1), "v_lshl_add_u32 v%d, v%d, 4, v%d" % (vSt, t0, t1),
          "v_add_u32 v%d, s%d, v%d" % (vSt, sT1, vSt)]
    for k in range(12 if ((opt.tm >> L) & 1) else 16):
        src = (vR23 + k) if k < 8 else (vR45 + k - 8)
        xv += ["v_lshlrev_b32 v%d, 16, v%d" % (vX0 + 2 * k, src), "v_and_b32 v%d, 0xffff0000, v%d" % (vX0 + 2 * k + 1, src)]
    return xd, xv23, xv

def epi_scalars(L):
    e("s_mul_i32 s%d, s%d, %d" % (sT1, sWave, 3 * ROWB))
    e("s_add_u32 s%d, s%d, s%d" % (sT1, sT1, sBase))
    e("s_mul_i32 s%d, s%d, 12288" % (sT2, sWave))
    e("s_add_u32 s%d, s%d, %d" % (sT3, sT2, RED))
    e("s_add_u32 s%d, s%d, %d" % (sT2, sT2, STG if L else RED))
    assert STG % 128 == 0 and RED % 128 == 0
    if L:
        e("v_lshlrev_b32 v%d, 4, v%d" % (vTmp, vLane))
        e("v_add_u32 v%d, s%d, v%d" % (vTmp + 1, sT3, vTmp))

def epi_group(acc_regs, gam, xr, dst, tmp, unpacked=False):
    if not unpacked:
        for k in range(4):
            e("v_lshlrev_b32 v%d, 16, v%d" % (tmp + 2 * k, xr + k))
            e("v_and_b32 v%d, 0xffff0000, v%d" % (tmp + 2 * k + 1, xr + k))
    for k in range(4):
        e("v_pk_fma_f32 %s, %s, %s, %s" % (vr(tmp + 2 * k, 2), vr(acc_regs + 2 * k, 2), vr(gam + 2 * k, 2), vr(tmp + 2 * k, 2)))
    for k in range(4):
        e("v_cvt_pk_bf16_f32 v%d, v%d, v%d" % (dst + k, tmp + 2 * k, tmp + 2 * k + 1))

def epilogue(L, tmsteps):
    tag = "b%d" % L
    if not tmsteps: e("s_waitcnt lgkmcnt(0)")
    vAc = vB1; vTm = vB1 + 16; vXs = vB1 + 32; vO = vB1 + 40
    vLin = (vHL if L else vRL) if tmsteps else vP
    if tmsteps:
        for l in tmsteps[0]: e(l)
    if L:
        if tmsteps: e("s_waitcnt lgkmcnt(0)")
        e("s_barrier")
        e("s_lshl_b32 s%d, s%d, 6" % (sT1, sWave))
        e("s_add_u32 s%d, s%d, %d" % (sT1, sT1, 12 * ROWB))
        e("s_lshl_b32 s%d, s%d, 11" % (sT2, sWave))
        e("s_add_u32 s%d, s%d, %d" % (sT2, sT2, RED))
        e("v_add_u32 v%d, s%d, v%d" % (vTmp, sT2, vTmp))
        e("s_lshl_b32 s%d, s%d, 7" % (sT2, sWave))
        e("v_add_u32 v%d, s%d, v%d" % (vTmp + 1, sT2, vTab))
        lregs = [vBias, vT, vHL, vB1 + 80]; lgam = vB1 + 88
        if tmsteps: lregs = [vBias, vT, vH + 24, vH + 32]; lgam = vH + 40
        def lreads(half):
            for w in range(4):
                for o in range(2):
                    e("ds_read_b128 %s, v%d offset:%d" % (vr(lregs[w] + 4 * o, 4), vTmp, w * 12288 + half * 8192 + o * 1024))
            for o in range(2):
                e("ds_read_b128 %s, v%d offset:%d" % (vr(lgam + 4 * o, 4), vTmp + 1, TAB_G - TAB_B2 + half * 512 + o * 16))
        def lfinish(half):
            r = lregs
            for k in range(0, 8, 2):
                e("v_pk_add_f32 %s, %s, %s" % (vr(r[0] + k, 2), vr(r[0] + k, 2), vr(r[1] + k, 2)))
                e("v_pk_add_f32 %s, %s, %s" % (vr(r[2] + k, 2), vr(r[2] + k, 2), vr(r[3] + k, 2)))
            for k in range(0, 8, 2):
                e("v_pk_add_f32 %s, %s, %s" % (vr(r[0] + k, 2), vr(r[0] + k, 2), vr(r[2] + k, 2)))
            xr = vRL + 4 * half
            epi_group(r[0], lgam, xr, xr, r[1])
            e("buffer_store_dwordx4 %s, v%d, %s, s%d offen offset:%d%s" % (vr(xr, 4), vOut, sr(S_O, 4), sT1, half * 256, OPOL))
        if not tmsteps: lreads(0)
    nL = 6 if tmsteps else 0
    st("gam")
    e("s_mov_b32 s%d, %d" % (sT0, ROWB))
    e("s_mov_b32 s%d, %d" % (sSo, 2 * ROWB))
    if not L:
        e("s_sub_u32 s%d, s%d, s%d" % (sT3, sNrows, sWave))
        e("s_cmp_eq_u32 s%d, 8" % sT3)
        e("s_cselect_b32 s%d, 0x40000000, s%d" % (sSo, sSo))
    def store(u, k):
        t, a = u // 3, u % 3
        e("buffer_store_dwordx4 %s, v%d, %s, %s offen offset:%d%s" % (vr(vLin + 8 * (u % 2) + 4 * k, 4), vSt, sr(S_O, 4),
                                                                     ["0", "s%d" % sT0, "s%d" % sSo][t], a * 128 + k * 3072, OPOL))
    n = 0
    for t in range(3):
        if tmsteps and t > 0:
            body = list(tmsteps[t])
            if t > 0:
                ix = [i for i, l in enumerate(body) if l.startswith("s_waitcnt")][opt.D if opt.sg == 1 else 6]
                body = body[:ix + 1] + capture(store, 3 * t - 1, 0) + capture(store, 3 * t - 1, 1) + body[ix + 1:]
            for l in body: e(l)
            if L and t == 1: lreads(0)
        for m in range(6):
            u = 3 * t + m // 2
            buf = (u % 4) * 2048
            ac = vAc + 8 * (n % 2); tm = vTm + 8 * (n % 2); o = vO + 4 * (n % 2)
            for k in range(8): e("v_accvgpr_read_b32 v%d, a%d" % (ac + k, 48 * t + 8 * m + k))
            src = res_dst(t, m)
            base = int(src[2:src.index(":")])
            unp = unp_reg(L, t, m) is not None
            if unp: tm = unp_reg(L, t, m); xr = None
            elif src[0] == "a":
                xr = vXs + 4 * (n % 2)
                for k in range(4): e("v_accvgpr_read_b32 v%d, a%d" % (xr + k, base + k))
            else: xr = base
            epi_group(ac, gam(L, m), xr, o, tm, unp)
            if u > 0 and not (tmsteps and m < 2):
                if m % 2 == 0: e("s_waitcnt lgkmcnt(0)")
                store(u - 1, m % 2)
            e("ds_write_b128 v%d, %s offset:%d" % (vWA + m % 2, vr(o, 4), buf))
            if m % 2 == 1:
                for k in range(2): e("ds_read_b128 %s, v%d offset:%d" % (vr(vLin + 8 * (u % 2) + 4 * k, 4), vRd, buf + k * 1024))
            n += 1
            if L and n == nL + 1:
                e("s_waitcnt lgkmcnt(1)")
                lfinish(0)
                lreads(1)
            if L and n == nL + 3:
                e("s_cmp_ge_u32 s%d, 2" % sWave)
                e("s_cbranch_scc1 L_done_%s" % tag)
                lfinish(1)
                lab("L_done_%s" % tag)
        st("t%d" % t)
    e("s_waitcnt lgkmcnt(0)")
    for k in range(2): store(8, k)
    if opt.stamps:
        st("epi")
        e("s_waitcnt vmcnt(0)")
        st("drain")
        e("s_waitcnt lgkmcnt(0)")
        if opt.dbg:
            srd(S_T, 8, 64)
            e("v_mov_b32 v2, 0")
            for i in range(len(SSETS[opt.sset])):
                e("s_sub_u32 s%d, s%d, s%d" % (sT0, sStamp + 2 * i, sStamp))
                e("v_writelane_b32 v2, s%d, %d" % (sT0, i))
            e("v_lshlrev_b32 v3, 2, v0")
            e("buffer_atomic_umax v2, v3, %s, 0 offen" % sr(S_T, 4))
            e("s_endpgm")
            return
        srd(S_T, 9, 1 << 20)
        e("s_lshl_b32 s%d, s2, 2" % sT0)
        e("s_add_u32 s%d, s%d, s%d" % (sT0, sT0, sWave))
        e("s_lshl_b32 s%d, s%d, 6" % (sT0, sT0))
        e("v_mov_b32 v2, 0")
        for i in range(len(SSETS[opt.sset])): e("v_writelane_b32 v2, s%d, %d" % (sStamp + 2 * i, i))
        out.append("; STAMPNAMES " + " ".join(SSETS[opt.sset]))
        e("v_writelane_b32 v2, s%d, 11" % sNrows)
        e("v_lshlrev_b32 v3, 2, v%d" % vLane)
        e("v_add_u32 v3, s%d, v3" % sT0)
        e("v_cmp_gt_u32 vcc, 16, v%d" % vLane)
        e("s_and_saveexec_b64 %s, vcc" % sr(sEx, 2))
        e("buffer_store_dword v2, v3, %s, 0 offen" % sr(S_T, 4))
    e("s_endpgm")

import copy
vm = VM()
head()
vm0 = vm
for L in (1, 0):
    vm = copy.deepcopy(vm0)
    lab("L_body%d" % L)
    if not L and opt.prio == 3:
        e("s_bitcmp1_b32 s%d, 24" % (sTb + 1))
        e("s_cbranch_scc1 L_defer")
        early(L, False, True)
        pend = [t for t, _ in vm.pending]
        e("s_branch L_join")
        lab("L_defer")
        vm = copy.deepcopy(vm0)
        early(L, True, True)
        assert pend == [t for t, _ in vm.pending]
        lab("L_join")
    else:
        early(L, (not L) and opt.prio == 2)
    prologue(L)
    main_part(L)
lab("L_exit")
e("s_endpgm")
out.append(".p2align 3")
out.append(".type L_wgtab,@object")
lab("L_wgtab")
for a, b in wg_table(): e(".long 0x%08x, 0x%08x" % (a, b))
out.append(".size L_wgtab, %d" % (NWG * 8))

ref = open("cdna_kernels/%s.s.ref" % NAME).read().split("\n")
hdr = [l for l in ref if l.startswith(";") and "@launch" not in l]
txt = "\n".join(hdr) + "\n; @launch grid=(%d,1,1) block=(256,1,1) lds=%d\n" % (NWG, LDS_SIZE)
txt += """;
;  * L_wgtab maps workgroup id -> block (placement only affects speed).  Generated by a hand-written script.
"""
txt += """.amdgcn_target "amdgcn-amd-amdhsa--gfx950"
.text
.globl %s_kernel
.p2align 8
.type %s_kernel,@function
%s_kernel:
""" % (NAME, NAME, NAME)
txt += "\n".join(out).replace("PF_LIM", "L_exit-L_pf-0x8000") + "\n"
txt += """.section .rodata,"a"
.p2align 6
.amdhsa_kernel %s_kernel
  .amdhsa_next_free_vgpr 512
  .amdhsa_next_free_sgpr 102
  .amdhsa_accum_offset 256
  .amdhsa_group_segment_fixed_size 0
  .amdhsa_kernarg_size 80
  .amdhsa_user_sgpr_count 2
  .amdhsa_user_sgpr_kernarg_segment_ptr 1
  .amdhsa_system_sgpr_workgroup_id_x 1
.end_amdhsa_kernel
""" % NAME
dst = [a for a in sys.argv[1:] if "=" not in a]
open(dst[0] if dst else "cdna_kernels/%s.s" % NAME, "w").write(txt)
```
